```python
import torch

def _softmax(x, axis=-1):
    return torch.softmax(x, dim=axis)

def _gelu(x):
    return torch.nn.functional.gelu(x, approximate='tanh')

def _silu(x):
    return torch.nn.functional.silu(x)

def _sigmoid(x):
    return torch.sigmoid(x)

def _layernorm(x, axis=-1, eps=1e-05):
    m = x.mean(dim=axis, keepdim=True)
    v = x.var(dim=axis, keepdim=True, unbiased=False)
    return (x - m) / torch.sqrt(v + eps)

def _scatter_add(tgt, idx, src, axis=0):
    return tgt.clone().index_add_(axis, idx, src)

def _segment_sum(src, seg, n):
    out = torch.zeros((n,) + src.shape[1:], dtype=src.dtype)
    return out.index_add_(0, seg, src)

def _pad(x, pw):
    flat = tuple((v for pair in reversed(pw) for v in pair))
    return torch.nn.functional.pad(x, flat)
kernel_name = 'adaLN_cond__grouped_kv_mqa__mixer_gmlp__prompt'

def setup_inputs():

    _w = lambda a: (lambda t: t.to(torch.bfloat16) if t.is_floating_point() else t)(torch.as_tensor(a))

    def _A_setup():
        B, S, D, H = (1, 2048, 640, 32)
        Dh = D // H
        return {'x': _w((lambda *s: torch.randn(*s, dtype=torch.bfloat16) * 0.05)(B, S, D)), 'wq': _w((lambda *s: torch.randn(*s, dtype=torch.bfloat16) * 0.05)(D, H * Dh)), 'wk': _w((lambda *s: torch.randn(*s, dtype=torch.bfloat16) * 0.05)(D, Dh)), 'wv': _w((lambda *s: torch.randn(*s, dtype=torch.bfloat16) * 0.05)(D, Dh)), 'wo': _w((lambda *s: torch.randn(*s, dtype=torch.bfloat16) * 0.05)(H * Dh, D))}
    _A_in = _A_setup()

    def _B_setup():
        B, S, D, F = (1, 2048, 640, 1536)
        Fh = F // 2
        return {'x': _w((lambda *s: torch.randn(*s, dtype=torch.bfloat16) * 0.05)(B, S, D)), 'w_in': _w((lambda *s: torch.randn(*s, dtype=torch.bfloat16) * 0.4)(D, 2 * Fh)), 'w_sp': _w(0.01 * (lambda *s: torch.randn(*s, dtype=torch.bfloat16) * 0.4)(S, S)), 'b_sp': _w(1.0 + 0.01 * (lambda *s: torch.randn(*s, dtype=torch.bfloat16) * 0.05)(S)), 'w_out': _w((lambda *s: torch.randn(*s, dtype=torch.bfloat16) * 0.05)(Fh, D))}
    _B_in = _B_setup()
    return {'A_x': _A_in['x'], 'A_wq': _A_in['wq'], 'A_wk': _A_in['wk'], 'A_wv': _A_in['wv'], 'A_wo': _A_in['wo'], 'B_x': _B_in['x'], 'B_w_in': _B_in['w_in'], 'B_w_sp': _B_in['w_sp'], 'B_b_sp': _B_in['b_sp'], 'B_w_out': _B_in['w_out'], 'c': _w((lambda *s: torch.randn(*s, dtype=torch.bfloat16) * 0.1)(1, 640) * 8.0), 'w_mod': _w((lambda *s: torch.randn(*s, dtype=torch.bfloat16) * 0.1)(640, 6 * 640) * 640 ** (-0.5) * 8.0)}

def reference(A_x, A_wq, A_wk, A_wv, A_wo, B_x, B_w_in, B_w_sp, B_b_sp, B_w_out, c, w_mod):

    def _A_ref(x, wq, wk, wv, wo):
        B, S, D = x.shape
        H = 32
        Dh = D // H
        q = (lambda x, *d: x.permute(*d))((x @ wq).reshape(B, S, H, Dh), 0, 2, 1, 3)
        k = x @ wk
        v = x @ wv
        scores = torch.einsum('bhqd,bkd->bhqk', q, k) * Dh ** (-0.5)
        p = _softmax(scores, axis=-1)
        o = torch.einsum('bhqk,bkd->bhqd', p, v)
        return (lambda x, *d: x.permute(*d))(o, 0, 2, 1, 3).reshape(B, S, H * Dh) @ wo

    def _B_ref(x, w_in, w_sp, b_sp, w_out):
        B, S, D = x.shape
        F = w_in.shape[-1]
        Fh = F // 2
        z = _gelu(torch.einsum('bsd,df->bsf', x, w_in))
        z1 = z[..., :Fh].clone()
        z2 = _layernorm(z[..., Fh:], axis=-1)
        g = torch.einsum('ts,bsf->btf', w_sp, z2) + b_sp[None, :, None]
        return torch.einsum('bsf,fd->bsd', z1 * g, w_out)
    x = A_x
    mod = (_silu(c) @ w_mod).reshape(c.shape[0], 6, 1, -1)
    sa, ca, ga, sb, cb, gb = (mod[:, 0].clone(), mod[:, 1].clone(), mod[:, 2].clone(), mod[:, 3].clone(), mod[:, 4].clone(), mod[:, 5].clone())
    h = _layernorm(x, axis=-1) * (1 + ca) + sa
    x = x + ga * _A_ref(h, A_wq, A_wk, A_wv, A_wo)
    h = _layernorm(x, axis=-1) * (1 + cb) + sb
    x = x + gb * _B_ref(h, B_w_in, B_w_sp, B_b_sp, B_w_out)
    return x
```

```python
import re

class Kern:
    def __init__(self, name, vgpr, sgpr=96, agpr=0):
        self.name = name; self.lines = []; self.vgpr = vgpr; self.sgpr = sgpr; self.agpr = agpr
        self.nlab = 0
    def __call__(self, s):
        for l in s.split("\n"):
            l = l.strip()
            if l: self.lines.append("    " + l)
    def label(self, l):
        self.lines.append(f"{l}:")
    def newlabel(self, p="L"):
        self.nlab += 1
        return f"{self.name}_{p}{self.nlab}"
    def nop(self, n):
        while n > 0:
            k = min(n, 16); self(f"s_nop {k-1}"); n -= k
    def srd(self, d, lo, hi, off, size):
        if off == 0:
            self(f"s_mov_b32 s{d}, s{lo}")
            self(f"s_mov_b32 s{d+1}, s{hi}")
        else:
            o = off if isinstance(off, str) else hex(off)
            self(f"s_add_u32 s{d}, s{lo}, {o}")
            self(f"s_addc_u32 s{d+1}, s{hi}, 0")
        self(f"s_mov_b32 s{d+2}, {hex(size)}")
        self(f"s_mov_b32 s{d+3}, 0x20000")
    def text(self):
        acc = ((self.vgpr + 3) // 4) * 4
        nfv = acc + self.agpr if self.agpr else self.vgpr
        body = f".globl {self.name}\n.p2align 8\n.type {self.name},@function\n{self.name}:\n" + "\n".join(self.lines) + "\n"
        kd = f""".p2align 6
.amdhsa_kernel {self.name}
  .amdhsa_next_free_vgpr {nfv}
  .amdhsa_next_free_sgpr {self.sgpr}
  .amdhsa_accum_offset {acc}
  .amdhsa_group_segment_fixed_size 0
  .amdhsa_kernarg_size 120
  .amdhsa_user_sgpr_count 2
  .amdhsa_user_sgpr_kernarg_segment_ptr 1
  .amdhsa_system_sgpr_workgroup_id_x 1
.end_amdhsa_kernel
"""
        return body, kd

RV = re.compile(r"\b([va])\[(\d+):(\d+)\]|\b([va])(\d+)\b")
RS = re.compile(r"\bs\[(\d+):(\d+)\]|\bs(\d+)\b|\b(vcc|exec|m0)\b")
def vregs(op):
    out = set()
    for m in RV.finditer(op):
        if m.group(1): out |= {(m.group(1), i) for i in range(int(m.group(2)), int(m.group(3)) + 1)}
        else: out.add((m.group(4), int(m.group(5))))
    return out
def sregs(op):
    out = set()
    for m in RS.finditer(op):
        if m.group(1): out |= {("s", i) for i in range(int(m.group(1)), int(m.group(2)) + 1)}
        elif m.group(3): out.add(("s", int(m.group(3))))
        else: out.add((m.group(4), 0))
    return out
TRANS = ("v_exp_", "v_log_", "v_rcp_", "v_rsq_", "v_sqrt_", "v_sin_", "v_cos_")
class I:
    pass
def parse(line):
    line = line.split(";")[0].strip()
    if not line or line.endswith(":") or line.startswith("."): return None
    p = line.split(None, 1)
    mn = p[0]; rest = p[1] if len(p) > 1 else ""
    ops = [o.strip() for o in re.split(r",(?![^\[]*\])", rest)] if rest else []
    i = I(); i.mn = mn; i.ops = ops; i.text = line
    i.vw = set(); i.vr = set(); i.sw = set(); i.sr = set()
    i.states = 1
    i.kind = "other"
    if mn == "s_nop": i.states = int(ops[0], 0) + 1
    if mn.startswith("v_mfma"):
        i.kind = "mfma"; i.vw = vregs(ops[0]); i.a = vregs(ops[1]); i.b = vregs(ops[2]); i.c = vregs(ops[3])
        i.vr = i.a | i.b | i.c
        i.passes = 8 if "32x32" in mn else 4
    elif mn.startswith("v_"):
        i.kind = "valu"
        i.trans = mn.startswith(TRANS)
        i.dpp = "dpp" in mn or "row_" in rest or "quad_perm" in rest
        i.perml = mn.startswith("v_permlane")
        if mn.startswith("v_cmp"):
            i.sw = sregs(ops[0]); srcs = ops[1:]
            if mn.startswith("v_cmpx"): i.sw.add(("exec", 0))
        elif mn.startswith("v_readfirstlane") or mn.startswith("v_readlane"):
            i.sw = sregs(ops[0]); srcs = ops[1:]
        elif i.perml:
            i.vw = vregs(ops[0]) | vregs(ops[1]); srcs = ops
        else:
            i.vw = vregs(ops[0]); srcs = ops[1:]
            if "_co_" in mn: i.sw = sregs(ops[1]); srcs = ops[2:]
            if mn.startswith(("v_fmac", "v_dot2c", "v_pk_fmac")) or i.dpp or "sdwa" in mn: srcs = ops
        for o in srcs:
            o = o.split(" ")[0] if not o.startswith(("v[", "s[", "a[", "-", "abs")) else o
            i.vr |= vregs(o); i.sr |= sregs(o)
    elif mn.startswith(("buffer_", "global_", "ds_")):
        i.kind = "mem"
        load = ("load" in mn or "ds_read" in mn or "bpermute" in mn or "swizzle" in mn)
        lds = rest.rstrip().endswith("lds") or " lds" in rest
        i.lds = lds
        if load and not lds:
            i.vw = vregs(ops[0]); srcs = ops[1:]
        else:
            srcs = ops
        for o in srcs:
            i.vr |= vregs(o); i.sr |= sregs(o)
        if lds: i.sr.add(("m0", 0))
        i.widestore = ("store" in mn and ("x3" in mn or "x4" in mn))
        if i.widestore: i.data = vregs(ops[0]) if mn.startswith("buffer") else vregs(ops[1])
    elif mn.startswith("s_"):
        i.kind = "salu"
        if ops and not mn.startswith(("s_cmp", "s_cbranch", "s_branch", "s_waitcnt", "s_nop", "s_barrier", "s_bitcmp", "s_endpgm", "s_sleep", "s_setprio")):
            i.sw = sregs(ops[0])
            if "saveexec" in mn: i.sw.add(("exec", 0))
    return i

def check(lines, name=""):
    seq = []
    labels = {}
    for l in lines:
        t = l.strip()
        if t.endswith(":") and not t.startswith(";"):
            labels[t[:-1]] = len(seq)
        ins = parse(l)
        if ins: seq.append(ins)
    traces = [list(range(len(seq)))]
    for n, ins in enumerate(seq):
        if ins.mn.startswith(("s_cbranch", "s_branch")) and ins.ops[0] in labels:
            t = labels[ins.ops[0]]
            traces.append(list(range(max(0, n - 24), n + 1)) + list(range(t, min(len(seq), t + 24))))
    errs = set()
    for tr in traces:
        for x in range(len(tr)):
            c = seq[tr[x]]
            dist = 0
            for y in range(x - 1, max(-1, x - 26), -1):
                p = seq[tr[y]]
                if p.mn in ("s_branch", "s_endpgm") and tr[y] + 1 == tr[y + 1]:
                    break
                need = 0; why = ""
                if p.kind == "valu":
                    if c.kind == "mfma" and p.vw & c.vr: need, why = 2, "valu->mfma"
                    if c.kind == "valu":
                        if c.dpp and p.vw & c.vr: need, why = max(need, 2), "valu->dpp"
                        if c.perml and p.vw & c.vr: need, why = max(need, 2), "valu->permlane"
                        if c.mn.startswith(("v_readfirstlane", "v_readlane")) and p.vw & c.vr: need, why = max(need, 1), "valu->readlane"
                        if p.trans and not c.trans and p.vw & c.vr: need, why = max(need, 1), "trans->valu"
                        if p.sw & c.sr: need, why = max(need, 2), "valu sgpr->valu"
                        if ("exec", 0) in p.sw and c.dpp: need, why = max(need, 5), "exec->dpp"
                        if "sdwa" in p.mn and p.vw & c.vr: need, why = max(need, 1), "sdwa->valu"
                    if c.kind == "mfma" and p.trans and p.vw & c.vr: need = max(need, 2)
                    if c.kind == "mem" and p.sw & c.sr: need, why = max(need, 5), "valu sgpr->vmem"
                    if c.kind == "mfma" and ("exec", 0) in p.sw: need, why = max(need, 4), "exec->mfma"
                elif p.kind == "mfma":
                    n4 = p.passes == 4
                    if c.kind == "mfma":
                        if p.vw & (c.a | c.b): need, why = (8 if n4 else 12), "mfma D->A/B"
                        elif p.vw & c.c and not (p.vw == c.c and p.passes == c.passes): need, why = (6 if n4 else 10), "mfma D->C partial"
                        elif p.vw & c.vw and not (p.vw == c.c): need, why = (6 if n4 else 10), "mfma D->D waw?"
                    elif c.kind == "valu":
                        if p.vw & (c.vr | c.vw): need, why = (8 if n4 else 12), "mfma D->valu"
                        elif p.c & c.vw: need, why = (3 if n4 else 7), "mfma C war"
                    elif c.kind == "mem":
                        if p.vw & (c.vr | c.vw): need, why = (8 if n4 else 12), "mfma D->mem"
                elif p.kind == "mem":
                    if getattr(p, "widestore", False) and c.kind in ("valu", "mfma") and p.data & c.vw: need, why = 2, "store data war"
                elif p.kind == "salu":
                    if ("m0", 0) in p.sw and c.kind == "mem" and c.lds: need, why = 1, "m0->ldsdma"
                if need > dist:
                    errs.add((tr[x], f"{name}: need {need} have {dist} [{why}]  {p.text}  ->  {c.text}"))
                dist += p.states
    return [e for _, e in sorted(errs)]
```

```python
from asmlib import Kern
from layout import *

NM, NL, NW, NP = 240, 128, 220, 16
K0_GRID = NM + NL + NW + NP

def xsum16_32(k, v, t):
    k(f"v_mov_b32 v{t}, v{v}")
    k.nop(2)
    k(f"v_permlane16_swap_b32 v{v}, v{t}")
    k(f"v_add_f32 v{v}, v{v}, v{t}")
    k(f"v_mov_b32 v{t}, v{v}")
    k.nop(2)
    k(f"v_permlane32_swap_b32 v{v}, v{t}")
    k(f"v_add_f32 v{v}, v{v}, v{t}")

def rowred(k, op, v, extra=None):
    for r in (1, 2, 4, 8):
        k.nop(2)
        k(f"{op}_dpp v{v}, v{v}, v{v} row_ror:{r} row_mask:0xf bank_mask:0xf")

def gen_k0(code_start, code_end):
    k = Kern("k0_kernel", 72, 48)
    k(f"s_cmp_ge_u32 s2, {K0_GRID}")
    k("s_cbranch_scc1 k0_end")
    k("s_load_dwordx2 s[8:9], s[0:1], 112")
    k(f"s_cmp_ge_u32 s2, {NM + NL + NW}")
    k("s_cbranch_scc1 k0_P")
    k(f"s_cmp_ge_u32 s2, {NM + NL}")
    k("s_cbranch_scc1 k0_W")
    k(f"s_cmp_ge_u32 s2, {NM}")
    k("s_cbranch_scc1 k0_L")
    k("s_load_dwordx4 s[4:7], s[0:1], 80")
    k("s_and_b32 s3, s2, 7")
    k("s_mul_i32 s3, s3, 30")
    k("s_lshr_b32 s10, s2, 3")
    k("s_add_u32 s3, s3, s10")
    k("v_lshrrev_b32 v1, 1, v0")
    k("v_and_b32 v2, 1, v0")
    k("v_mul_u32_u24 v3, 7680, v1")
    k("v_lshl_add_u32 v3, v2, 4, v3")
    k("v_lshlrev_b32 v4, 1, v1")
    k("s_lshl_b32 s20, s3, 5")
    for p in range(1, 5):
        k(f"s_add_u32 s{20+p}, s20, {p * 128 * 7680}")
    k("s_waitcnt lgkmcnt(0)")
    k.srd(12, 4, 5, 0, 1280)
    k.srd(16, 6, 7, 0, 640 * 7680)
    for p in range(5):
        k(f"buffer_load_ushort v{8+p}, v4, s[12:15], 0 offen offset:{p*256}")
    for p in range(5):
        k(f"buffer_load_dwordx4 v[{16+4*p}:{19+4*p}], v3, s[16:19], s{20+p} offen")
    k.srd(12 + 16, 8, 9, MOD, MOD_SZ)
    k("v_lshlrev_b32 v5, 6, v1")
    k("v_lshl_add_u32 v5, v2, 5, v5")
    k("s_waitcnt vmcnt(5)")
    for p in range(5):
        k(f"v_lshlrev_b32 v{8+p}, 16, v{8+p}")
    for p in range(5):
        k(f"v_mul_f32 v{40+p}, 0xbfb8aa3b, v{8+p}")
    for p in range(5):
        k(f"v_exp_f32 v{40+p}, v{40+p}")
    k.nop(1)
    for p in range(5):
        k(f"v_add_f32 v{40+p}, 1.0, v{40+p}")
    for p in range(5):
        k(f"v_rcp_f32 v{40+p}, v{40+p}")
    k.nop(1)
    for p in range(5):
        k(f"v_mul_f32 v{8+p}, v{8+p}, v{40+p}")
    for p in range(5):
        k(f"v_cvt_pk_bf16_f32 v{8+p}, v{8+p}, v{8+p}")
    for p in range(5):
        k(f"v_and_b32 v{8+p}, 0xffff0000, v{8+p}")
    for p in range(5):
        k(f"s_waitcnt vmcnt({4-p})")
        for j in range(4):
            k(f"v_lshlrev_b32 v40, 16, v{16+4*p+j}")
            k(f"v_and_b32 v41, 0xffff0000, v{16+4*p+j}")
            if p == 0:
                k(f"v_mul_f32 v{48+2*j}, v8, v40")
                k(f"v_mul_f32 v{49+2*j}, v8, v41")
            else:
                k(f"v_fmac_f32 v{48+2*j}, v{8+p}, v40")
                k(f"v_fmac_f32 v{49+2*j}, v{8+p}, v41")
    k("ds_write_b128 v5, v[48:51]")
    k("ds_write_b128 v5, v[52:55] offset:16")
    k("v_and_b32 v6, 15, v0")
    k("v_lshrrev_b32 v7, 4, v0")
    k("v_lshlrev_b32 v7, 9, v7")
    k("v_lshl_add_u32 v7, v6, 2, v7")
    k("s_waitcnt lgkmcnt(0)")
    k("s_barrier")
    for i in range(8):
        k(f"ds_read_b32 v{16+i}, v7 offset:{i*64}")
    k("v_lshrrev_b32 v8, 6, v0")
    k("v_lshlrev_b32 v8, 6, v8")
    k("v_lshl_add_u32 v8, v6, 2, v8")
    k("v_lshlrev_b32 v9, 2, v6")
    k("s_waitcnt lgkmcnt(0)")
    for a, b in ((16, 17), (18, 19), (20, 21), (22, 23), (16, 18), (20, 22), (16, 20)):
        k(f"v_add_f32 v{a}, v{a}, v{b}")
    xsum16_32(k, 16, 17)
    k("ds_write_b32 v8, v16 offset:8192")
    k("s_mul_i32 s20, s3, 205")
    k("s_lshr_b32 s20, s20, 13")
    k("s_mul_i32 s21, s20, 40")
    k("s_sub_u32 s21, s3, s21")
    k("s_waitcnt lgkmcnt(0)")
    k("s_barrier")
    for i in range(4):
        k(f"ds_read_b32 v{16+i}, v9 offset:{8192+i*64}")
    k("s_cmp_lt_u32 s20, 2")
    k("s_cbranch_scc1 k0_M_t1")
    k("s_lshl_b32 s22, s3, 6")
    k("v_add_u32 v10, s22, v9")
    k("s_branch k0_M_st")
    k.label("k0_M_t1")
    k("s_lshl_b32 s22, s21, 7")
    k("s_xor_b32 s23, s20, 1")
    k("s_lshl_b32 s23, s23, 5")
    k("s_add_u32 s22, s22, s23")
    k("v_lshrrev_b32 v10, 3, v6")
    k("v_lshlrev_b32 v10, 6, v10")
    k("v_and_b32 v11, 7, v6")
    k("v_lshl_add_u32 v10, v11, 2, v10")
    k("v_add_u32 v10, s22, v10")
    k.label("k0_M_st")
    k("s_waitcnt lgkmcnt(0)")
    k("v_add_f32 v16, v16, v17")
    k("v_add_f32 v18, v18, v19")
    k("v_add_f32 v16, v16, v18")
    k("v_cvt_pk_bf16_f32 v16, v16, v16")
    k("v_and_b32 v16, 0xffff0000, v16")
    k("s_cmp_eq_u32 s20, 1")
    k("s_cselect_b32 s24, 1.0, 0")
    k("s_cmp_eq_u32 s20, 4")
    k("s_cselect_b32 s24, 1.0, s24")
    k("v_add_f32 v16, s24, v16")
    k("v_cvt_pk_bf16_f32 v16, v16, v16")
    k("v_and_b32 v16, 0xffff0000, v16")
    k("v_cmp_gt_u32 vcc, 16, v0")
    k("s_and_saveexec_b64 s[34:35], vcc")
    k("s_cbranch_execz k0_end")
    k("buffer_store_dword v16, v10, s[28:31], 0 offen")
    k("s_endpgm")
    k.label("k0_L")
    k("s_load_dwordx2 s[4:5], s[0:1], 0")
    k(f"s_sub_u32 s3, s2, {NM}")
    k("s_and_b32 s10, s3, 7")
    k("s_lshl_b32 s10, s10, 4")
    k("s_lshr_b32 s11, s3, 3")
    k("s_add_u32 s10, s10, s11")
    k("v_lshrrev_b32 v1, 4, v0")
    k("v_and_b32 v2, 15, v0")
    k("v_mul_u32_u24 v3, 1280, v1")
    k("v_lshl_add_u32 v3, v2, 4, v3")
    k("s_mul_i32 s20, s10, 20480")
    k("s_waitcnt lgkmcnt(0)")
    k.srd(12, 4, 5, 0, ACT_SZ)
    for i in range(5):
        k(f"buffer_load_dwordx4 v[{8+4*i}:{11+4*i}], v3, s[12:15], s20 offen offset:{i*256}")
    k.srd(16, 8, 9, ACC, ACC_SZ)
    k.srd(24, 8, 9, XN, ACT_SZ)
    k("s_lshl_b32 s21, s3, 10")
    k("v_lshlrev_b32 v4, 2, v0")
    k("v_mov_b32 v5, 0")
    k("buffer_store_dword v5, v4, s[16:19], s21 offen")
    k("v_lshrrev_b32 v4, 2, v2")
    k("v_lshlrev_b32 v4, 10, v4")
    k("v_and_b32 v5, 3, v2")
    k("v_lshlrev_b32 v5, 8, v5")
    k("v_lshl_add_u32 v5, v1, 4, v5")
    k("v_add_u32 v4, v4, v5")
    for i in range(1, 5):
        k(f"s_add_u32 s{28+i}, s20, {i*4096}")
    k("s_waitcnt vmcnt(1)")
    for i in range(20):
        k(f"v_lshlrev_b32 v{28+2*i}, 16, v{8+i}")
        k(f"v_and_b32 v{29+2*i}, 0xffff0000, v{8+i}")
    k("v_pk_add_f32 v[6:7], v[28:29], v[30:31]")
    for i in range(2, 20):
        k(f"v_pk_add_f32 v[6:7], v[6:7], v[{28+2*i}:{29+2*i}]")
    k("v_add_f32 v6, v6, v7")
    rowred(k, "v_add_f32", 6)
    k(f"v_mul_f32 v6, {hexf(-1.0/640)}, v6")
    for i in range(20):
        k(f"v_pk_add_f32 v[{28+2*i}:{29+2*i}], v[{28+2*i}:{29+2*i}], v[6:7] op_sel_hi:[1,0]")
    k("v_pk_mul_f32 v[6:7], v[28:29], v[28:29]")
    for i in range(1, 20):
        k(f"v_pk_fma_f32 v[6:7], v[{28+2*i}:{29+2*i}], v[{28+2*i}:{29+2*i}], v[6:7]")
    k("v_add_f32 v6, v6, v7")
    rowred(k, "v_add_f32", 6)
    k(f"v_mov_b32 v7, {hexf(1e-5)}")
    k(f"v_fmac_f32 v7, {hexf(1.0/640)}, v6")
    k("v_rsq_f32 v6, v7")
    k.nop(1)
    for i in range(20):
        k(f"v_pk_mul_f32 v[{28+2*i}:{29+2*i}], v[{28+2*i}:{29+2*i}], v[6:7] op_sel_hi:[1,0]")
    for i in range(20):
        k(f"v_cvt_pk_bf16_f32 v{8+i}, v{28+2*i}, v{29+2*i}")
    for i in range(5):
        so = "s20" if i == 0 else f"s{28+i}"
        k(f"buffer_store_dwordx4 v[{8+4*i}:{11+4*i}], v4, s[24:27], {so} offen")
    k("s_endpgm")
    k.label("k0_W")
    k("s_load_dwordx4 s[4:7], s[0:1], 8")
    k("s_load_dwordx2 s[10:11], s[0:1], 24")
    k("v_lshrrev_b32 v1, 6, v0")
    k(f"s_sub_u32 s3, s2, {NM + NL}")
    k("v_readfirstlane_b32 s20, v1")
    k("s_lshl_b32 s3, s3, 2")
    k("v_and_b32 v2, 15, v0")
    k("v_bfe_u32 v3, v0, 4, 2")
    k("s_add_u32 s3, s3, s20")
    k("s_mul_i32 s20, s3, 3277")
    k("s_lshr_b32 s20, s20, 16")
    k("s_mul_i32 s21, s20, 20")
    k("s_sub_u32 s21, s3, s21")
    k("s_waitcnt lgkmcnt(0)")
    k("s_cmp_ge_u32 s20, 40")
    k("s_cbranch_scc1 k0_W_kv")
    k.srd(12, 4, 5, 0, 819200)
    k("s_mov_b32 s22, 1280")
    k("s_lshl_b32 s23, s20, 5")
    k("s_mov_b32 s24, 16")
    k("s_mul_i32 s25, s20, 52")
    k("s_lshr_b32 s25, s25, 8")
    k("s_mul_i32 s26, s25, 5")
    k("s_sub_u32 s26, s20, s26")
    k("s_branch k0_W_go")
    k.label("k0_W_kv")
    k("s_sub_u32 s25, s20, 40")
    k("s_bitcmp1_b32 s25, 0")
    k("s_cselect_b32 s6, s10, s6")
    k("s_cselect_b32 s7, s11, s7")
    k.srd(12, 6, 7, 0, 25600)
    k("s_mov_b32 s22, 40")
    k("s_cmp_ge_u32 s25, 2")
    k("s_cselect_b32 s23, 32, 0")
    k("s_cselect_b32 s24, 4, 16")
    k("s_mov_b32 s26, 5")
    k.label("k0_W_go")
    k("s_lshl_b32 s27, s22, 3")
    k("v_mul_lo_u32 v4, v3, s27")
    k("v_lshl_add_u32 v4, v2, 1, v4")
    k("v_mov_b32 v5, 0x40000000")
    k("v_cmp_gt_u32 vcc, s24, v2")
    k("s_lshl_b32 s28, s21, 5")
    k("s_mul_i32 s28, s28, s22")
    k("s_add_u32 s28, s28, s23")
    k("v_cndmask_b32 v4, v5, v4, vcc")
    for j in range(8):
        k(f"buffer_load_ushort v{8+j}, v4, s[12:15], s28 offen")
        if j < 7: k("s_add_u32 s28, s28, s22")
    k.srd(16, 8, 9, WQF, WQF_SZ)
    k("s_mul_i32 s29, s25, 20")
    k("s_add_u32 s29, s29, s21")
    k("s_mul_i32 s29, s29, 6")
    k("s_add_u32 s29, s29, s26")
    k("s_lshl_b32 s29, s29, 10")
    k("v_and_b32 v6, 63, v0")
    k("v_lshlrev_b32 v6, 4, v6")
    k("s_waitcnt vmcnt(0)")
    for j in range(4):
        k(f"v_lshl_or_b32 v{16+j}, v{9+2*j}, 16, v{8+2*j}")
    k("buffer_store_dwordx4 v[16:19], v6, s[16:19], s29 offen")
    k("s_endpgm")
    k.label("k0_P")
    k("s_getpc_b64 s[4:5]")
    k.label("k0_pc")
    k(f"s_add_u32 s4, s4, {code_start}-k0_pc")
    k("s_addc_u32 s5, s5, 0")
    k(f"s_mov_b32 s6, {code_end}-{code_start}")
    k("s_mov_b32 s7, 0x20000")
    k("v_lshlrev_b32 v1, 4, v0")
    k("s_bfe_u32 s10, s2, 0x10003")
    k("s_lshl_b32 s10, s10, 12")
    k.label("k0_P_loop")
    k("buffer_load_dwordx4 v[4:7], v1, s[4:7], s10 offen")
    k("s_add_u32 s10, s10, 8192")
    k("s_cmp_lt_u32 s10, s6")
    k("s_cbranch_scc1 k0_P_loop")
    k("s_waitcnt vmcnt(0)")
    k.label("k0_end")
    k("s_endpgm")
    return k

import struct
def hexf(x):
    return hex(struct.unpack("<I", struct.pack("<f", x))[0])
```

```python
from asmlib import Kern
from layout import *
from k0 import hexf, xsum16_32, rowred
import math

K1_LDS = 122880 + 5120
QSCALE = math.log2(math.e) / math.sqrt(20.0)

def ids_rb_cb(k):
    k("v_lshrrev_b32 v1, 6, v0")
    k("s_and_b32 s3, s2, 7")
    k("v_readfirstlane_b32 s5, v1")
    k("s_lshl_b32 s3, s3, 2")
    k("s_bfe_u32 s4, s2, 0x20003")
    k("s_add_u32 s3, s3, s4")
    k("s_lshr_b32 s4, s2, 5")
    k("v_and_b32 v1, 63, v0")
    k("v_lshlrev_b32 v1, 4, v1")

def gen_k1():
    k = Kern("k1_kernel", 216, 64)
    k("s_cmp_ge_u32 s2, 256")
    k("s_cbranch_scc1 k1_end")
    k("s_load_dwordx2 s[8:9], s[0:1], 112")
    ids_rb_cb(k)
    k("s_lshl_b32 s6, s3, 2")
    k("s_add_u32 s6, s6, s5")
    k("s_mul_i32 s7, s6, 20480")
    k("s_mul_i32 s10, s4, 20")
    k("s_add_u32 s10, s10, s5")
    k("s_mul_i32 s10, s10, 6144")
    k("s_mul_i32 s11, s5, 6144")
    k("s_lshl_b32 s36, s5, 10")
    k("s_add_u32 s37, s36, 122880")
    k("s_waitcnt lgkmcnt(0)")
    k.srd(12, 8, 9, MOD, 5120)
    k.srd(16, 8, 9, WQF, WQF_SZ)
    k.srd(20, 8, 9, XN, ACT_SZ)
    k("s_mov_b32 m0, s37")
    k.nop(1)
    k("buffer_load_dwordx4 v1, s[12:15], s36 offen lds")
    k(f"s_mov_b32 m0, {122880 + 4096}")
    k("s_movk_i32 s36, 0x1000")
    k("buffer_load_dwordx4 v1, s[12:15], s36 offen lds")
    for g in range(5):
        k("s_mov_b32 m0, s11")
        k("s_add_u32 s36, s10, 4096")
        for j in range(4):
            k(f"buffer_load_dwordx4 v1, s[16:19], s10 offen offset:{j*1024} lds")
        k("s_add_u32 m0, s11, 4096")
        if g < 4:
            k("s_add_u32 s10, s10, 24576")
        else:
            k.nop(1)
        for j in range(2):
            k(f"buffer_load_dwordx4 v1, s[16:19], s36 offen offset:{j*1024} lds")
        for j in range(4):
            r = 16 + 16 * g + 4 * j
            k(f"buffer_load_dwordx4 v[{r}:{r+3}], v1, s[20:23], s7 offen offset:{j*1024}")
        if g < 4:
            k("s_add_u32 s11, s11, 24576")
            k("s_add_u32 s7, s7, 4096")
    k("v_bfe_u32 v3, v0, 4, 2")
    k("v_lshlrev_b32 v2, 6, v3")
    k("v_add_u32 v2, 122880, v2")
    k("v_add_u32 v4, 61440, v1")
    k("v_and_b32 v5, 15, v0")
    k.srd(24, 8, 9, Q, ACT_SZ)
    k.srd(28, 8, 9, KV, KV_SZ)
    k.srd(32, 8, 9, KMAX, 1024)
    def rd_coef(ks):
        b = 120 + 16 * (ks & 1)
        for j in range(4):
            k(f"ds_read_b128 v[{b+4*j}:{b+4*j+3}], v2 offset:{ks*256 + j*16}")
    def rd_w(ks):
        b = 152 + 24 * (ks & 1)
        a, base = ("v1", 0) if ks < 10 else ("v4", 61440)
        for j in range(6):
            k(f"ds_read_b128 v[{b+4*j}:{b+4*j+3}], {a} offset:{ks*6144 + j*1024 - base}")
    k("s_waitcnt vmcnt(40)")
    k("s_barrier")
    rd_coef(0); rd_w(0)
    for ks in range(20):
        cb_ = 120 + 16 * (ks & 1); wb = 152 + 24 * (ks & 1); h = 208 + 4 * (ks & 1); a = 16 + 4 * ks
        k("s_waitcnt lgkmcnt(6)")
        if ks < 19: rd_coef(ks + 1)
        for j in range(4):
            k(f"v_lshlrev_b32 v{200+2*j}, 16, v{a+j}")
            k(f"v_and_b32 v{201+2*j}, 0xffff0000, v{a+j}")
        for j in range(8):
            k(f"v_fma_f32 v{200+j}, v{200+j}, v{cb_+j}, v{cb_+8+j}")
        for j in range(4):
            k(f"v_cvt_pk_bf16_f32 v{h+j}, v{200+2*j}, v{201+2*j}")
        k(f"s_waitcnt lgkmcnt({4 if ks < 19 else 0})")
        if ks < 19:
            if ks % 4 == 3:
                k(f"s_waitcnt vmcnt({(3 - ks // 4) * 10})")
                k("s_barrier")
            rd_w(ks + 1)
        else:
            k.nop(1)
        for j in range(6):
            c = "0" if ks == 0 else f"v[{96+4*j}:{99+4*j}]"
            k(f"v_mfma_f32_16x16x32_bf16 v[{96+4*j}:{99+4*j}], v[{wb+4*j}:{wb+4*j+3}], v[{h}:{h+3}], {c}")
    k("s_lshl_b32 s36, s6, 4")
    k("v_add_u32 v6, s36, v5")
    k("v_mul_u32_u24 v7, 1280, v6")
    k("v_lshl_add_u32 v7, v3, 3, v7")
    k("s_mul_i32 s36, s4, 160")
    k(f"v_mov_b32 v8, {hexf(QSCALE)}")
    k.nop(3)
    for j in range(5):
        a = 96 + 4 * j
        k(f"v_pk_mul_f32 v[{a}:{a+1}], v[{a}:{a+1}], v[8:9] op_sel_hi:[1,0]")
        k(f"v_pk_mul_f32 v[{a+2}:{a+3}], v[{a+2}:{a+3}], v[8:9] op_sel_hi:[1,0]")
        k(f"v_cvt_pk_bf16_f32 v{16+2*j}, v{a}, v{a+1}")
        k(f"v_cvt_pk_bf16_f32 v{17+2*j}, v{a+2}, v{a+3}")
        k(f"buffer_store_dwordx2 v[{16+2*j}:{17+2*j}], v7, s[24:27], s36 offen offset:{j*32}")
    k("s_cmp_ge_u32 s4, 4")
    k("s_cbranch_scc1 k1_end")
    k("v_cvt_pk_bf16_f32 v30, v116, v117")
    k("v_cvt_pk_bf16_f32 v31, v118, v119")
    k("s_lshr_b32 s36, s6, 1")
    k("s_mul_i32 s36, s36, 2560")
    k("s_and_b32 s37, s6, 1")
    k("v_mov_b32 v11, 0x40000000")
    k("s_bitcmp1_b32 s4, 0")
    k("s_cbranch_scc1 k1_V")
    k("s_lshl_b32 s37, s37, 4")
    k("v_add_u32 v9, s37, v5")
    k("s_cmp_eq_u32 s4, 0")
    k("s_cbranch_scc0 k1_K2")
    k("v_lshrrev_b32 v10, 1, v3")
    k("v_lshlrev_b32 v10, 9, v10")
    k("v_lshl_add_u32 v10, v9, 4, v10")
    k("v_and_b32 v12, 1, v3")
    k("v_lshl_add_u32 v10, v12, 3, v10")
    k("s_branch k1_Kst")
    k.label("k1_K2")
    k("v_cmp_eq_u32 vcc, 0, v3")
    k("v_lshlrev_b32 v10, 3, v9")
    k("v_add_u32 v10, 1024, v10")
    k("v_cndmask_b32 v10, v11, v10, vcc")
    k.label("k1_Kst")
    k("buffer_store_dwordx2 v[30:31], v10, s[28:31], s36 offen")
    k("v_lshlrev_b32 v12, 16, v30")
    k("v_and_b32 v13, 0xffff0000, v30")
    k("v_lshlrev_b32 v14, 16, v31")
    k("v_and_b32 v15, 0xffff0000, v31")
    k("v_mul_f32 v12, v12, v12")
    k("v_fmac_f32 v12, v13, v13")
    k("v_fmac_f32 v12, v14, v14")
    k("v_fmac_f32 v12, v15, v15")
    xsum16_32(k, 12, 13)
    rowred(k, "v_max_f32", 12)
    k("s_lshl_b32 s36, s4, 8")
    k("s_lshl_b32 s37, s6, 2")
    k("s_add_u32 s36, s36, s37")
    k("v_and_b32 v13, 63, v0")
    k("v_cmp_eq_u32 vcc, 0, v13")
    k("v_mov_b32 v14, 0")
    k.nop(1)
    k("v_cndmask_b32 v14, v11, v14, vcc")
    k("buffer_store_dword v12, v14, s[32:35], s36 offen")
    k("s_endpgm")
    k.label("k1_V")
    k("s_mul_i32 s37, s37, 640")
    k("s_add_u32 s36, s36, s37")
    k("s_add_u32 s36, s36, 1280")
    k("s_cmp_eq_u32 s4, 3")
    k("s_cselect_b32 s37, 256, 0")
    k("s_cselect_b32 s38, 1, 4")
    k("s_add_u32 s36, s36, s37")
    k("v_bfe_u32 v9, v5, 2, 1")
    k("v_mul_u32_u24 v9, 320, v9")
    k("v_lshl_add_u32 v9, v3, 6, v9")
    k("v_lshrrev_b32 v10, 3, v5")
    k("v_lshl_add_u32 v9, v10, 3, v9")
    k("v_and_b32 v10, 3, v5")
    k("v_cmp_gt_u32 vcc, s38, v3")
    k("v_lshl_add_u32 v9, v10, 1, v9")
    k.nop(1)
    k("v_cndmask_b32 v9, v11, v9, vcc")
    k("buffer_store_short v30, v9, s[28:31], s36 offen")
    k("buffer_store_short_d16_hi v30, v9, s[28:31], s36 offen offset:16")
    k("buffer_store_short v31, v9, s[28:31], s36 offen offset:32")
    k("buffer_store_short_d16_hi v31, v9, s[28:31], s36 offen offset:48")
    k.label("k1_end")
    k("s_endpgm")
    return k
```

```python
from asmlib import Kern
from layout import *
from k0 import hexf, rowred

K2_LDS = 163840
QA, QB, CM, S0, S1, OO, PP = 4, 8, 16, 32, 48, 64, 80
KF1 = (88, 92); KF2 = (96, 100); VF = (104, 112)
AK1, AK2, AV = 12, 13, 14

def r(b, n=4): return f"v[{b}:{b+n-1}]"

def gen_k2():
    k = Kern("k2_kernel", 168, 100)
    k("s_cmp_ge_u32 s2, 256")
    k("s_cbranch_scc1 k2_end")
    k("s_load_dwordx2 s[8:9], s[0:1], 112")
    k("s_load_dwordx2 s[44:45], s[0:1], 32")
    k("s_load_dwordx4 s[48:51], s[0:1], 48")
    k("s_load_dwordx2 s[46:47], s[0:1], 72")
    k("v_lshrrev_b32 v1, 6, v0")
    k("s_and_b32 s3, s2, 7")
    k("v_readfirstlane_b32 s5, v1")
    k("s_lshl_b32 s6, s3, 2")
    k("s_bfe_u32 s4, s2, 0x20003")
    k("s_add_u32 s6, s6, s4")
    k("s_lshr_b32 s4, s2, 5")
    k("v_and_b32 v1, 63, v0")
    k("v_and_b32 v2, 31, v0")
    k("v_bfe_u32 v3, v0, 5, 1")
    k("v_lshlrev_b32 v1, 4, v1")
    k("s_lshl_b32 s4, s4, 2")
    k("s_and_b32 s7, s5, 3")
    k("s_add_u32 s4, s4, s7")
    k("s_lshl_b32 s6, s6, 6")
    k("s_lshr_b32 s7, s5, 2")
    k("s_lshl_b32 s7, s7, 5")
    k("s_add_u32 s6, s6, s7")
    k("v_mul_u32_u24 v15, 1280, v2")
    k("v_lshlrev_b32 v120, 30, v3")
    k("v_add_u32 v120, v120, v15")
    k("v_lshl_add_u32 v15, v3, 4, v15")
    k("s_mul_i32 s7, s6, 1280")
    k("s_mul_i32 s10, s4, 40")
    k("s_add_u32 s7, s7, s10")
    k("s_lshl_b32 s10, s5, 10")
    k("s_waitcnt lgkmcnt(0)")
    k.srd(12, 8, 9, Q, ACT_SZ)
    k.srd(16, 8, 9, KMAX, 1024)
    k.srd(20, 8, 9, KV, KV_SZ)
    k(f"buffer_load_dwordx4 {r(QA)}, v15, s[12:15], s7 offen")
    k(f"buffer_load_dwordx2 {r(QB,2)}, v120, s[12:15], s7 offen offset:32")
    k("s_mov_b32 m0, s10")
    k(f"buffer_load_dwordx4 {r(S0)}, v1, s[16:19], 0 offen")
    for i in range(20):
        k("buffer_load_dwordx4 v1, s[20:23], m0 offen lds")
        if i < 19:
            k("s_add_u32 m0, m0, 0x2000")
            k.nop(1)
    k("s_lshl_b32 s52, s2, 3")
    k("s_add_u32 s52, s52, s5")
    k("s_lshr_b32 s53, s2, 3")
    k("s_lshl_b32 s53, s53, 3")
    k("s_add_u32 s53, s53, s5")
    k.srd(56, 50, 51, 0, WSPF_SZ)
    k("s_lshl_b32 s54, s3, 3")
    k("s_lshr_b32 s55, s53, 5")
    k("s_add_u32 s54, s54, s55")
    k("s_and_b32 s55, s53, 31")
    k("s_lshl_b32 s54, s54, 17")
    k("s_lshl_b32 s60, s55, 7")
    k("s_add_u32 s60, s60, s54")
    k("s_lshl_b32 s61, s55, 12")
    k("s_add_u32 s61, s61, s54")
    k("v_lshlrev_b32 v15, 12, v2")
    k("v_lshl_add_u32 v15, v3, 4, v15")
    for q in range(4):
        k(f"buffer_load_dwordx4 {r(120+4*q)}, v15, s[56:59], s60 offen offset:{q*32}")
    k.srd(56, 48, 49, 0, 640 * 3072)
    k.srd(64, 8, 9, MOD + 7680, 5120)
    k("s_mul_i32 s62, s52, 1639")
    k("s_lshr_b32 s62, s62, 16")
    k("s_mul_i32 s63, s62, 40")
    k("s_sub_u32 s63, s52, s63")
    k("s_mul_i32 s68, s63, 49152")
    k("s_lshl_b32 s69, s62, 6")
    k("s_add_u32 s68, s68, s69")
    k("s_cmp_lt_u32 s52, 1920")
    k("s_cselect_b32 s70, 0, 0x40000000")
    k("s_add_u32 s68, s68, s70")
    k("v_mul_u32_u24 v15, 24576, v3")
    k("v_lshl_add_u32 v15, v2, 1, v15")
    for j in range(8):
        k(f"buffer_load_ushort v{136+j}, v15, s[56:59], s68 offen")
        if j < 7: k("s_add_u32 s68, s68, 3072")
    k("s_lshl_b32 s68, s63, 6")
    k("v_lshlrev_b32 v15, 5, v3")
    k(f"buffer_load_dwordx4 {r(144)}, v15, s[64:67], s68 offen")
    k(f"buffer_load_dwordx4 {r(148)}, v15, s[64:67], s68 offen offset:16")
    k(f"buffer_load_dwordx4 {r(152)}, v15, s[64:67], s68 offen offset:2560")
    k(f"buffer_load_dwordx4 {r(156)}, v15, s[64:67], s68 offen offset:2576")
    k("s_mul_i32 s68, s62, 86")
    k("s_lshr_b32 s68, s68, 8")
    k("s_mul_i32 s69, s68, 3")
    k("s_sub_u32 s69, s62, s69")
    k("s_mul_i32 s68, s68, 40")
    k("s_add_u32 s68, s68, s63")
    k("s_mul_i32 s68, s68, 3")
    k("s_add_u32 s68, s68, s69")
    k("s_lshl_b32 s68, s68, 10")
    k("s_add_u32 s63, s68, s70")
    k("s_lshl_b32 s62, s62, 7")
    k("s_add_u32 s62, s62, s70")
    k("s_cmp_lt_u32 s52, 800")
    k("s_cselect_b32 s56, s44, s46")
    k("s_cselect_b32 s57, s45, s47")
    k("s_mov_b32 s58, 983040")
    k("s_cselect_b32 s58, 819200, s58")
    k("s_mov_b32 s59, 0x20000")
    k("s_cselect_b32 s68, 0, 800")
    k("s_movk_i32 s69, 2731")
    k("s_cselect_b32 s69, 3277, s69")
    k("s_cselect_b32 s71, 20, 24")
    k(f"s_cselect_b32 s72, 0, {WOUTF - WOF}")
    k("s_sub_u32 s68, s52, s68")
    k("s_mul_i32 s69, s68, s69")
    k("s_lshr_b32 s69, s69, 16")
    k("s_mul_i32 s73, s69, s71")
    k("s_sub_u32 s68, s68, s73")
    k("s_cmp_lt_u32 s52, 1760")
    k("s_cselect_b32 s70, 0, 0x40000000")
    k("s_mul_i32 s73, s68, 40960")
    k("s_lshl_b32 s74, s69, 5")
    k("s_add_u32 s73, s73, s74")
    k("s_add_u32 s73, s73, s70")
    k("s_add_u32 s74, s73, 5120")
    k("v_bfe_u32 v15, v0, 4, 2")
    k("v_mul_u32_u24 v15, 10240, v15")
    k("v_and_b32 v160, 15, v0")
    k("v_lshl_add_u32 v15, v160, 1, v15")
    for j in range(8):
        k(f"buffer_load_ushort v{160+j}, v15, s[56:59], {'s73' if j < 4 else 's74'} offen offset:{(j&3)*1280}")
    k("s_mul_i32 s73, s69, 52")
    k("s_lshr_b32 s73, s73, 8")
    k("s_mul_i32 s74, s73, 5")
    k("s_sub_u32 s74, s69, s74")
    k("s_mul_i32 s73, s73, s71")
    k("s_add_u32 s73, s73, s68")
    k("s_mul_i32 s73, s73, 5")
    k("s_add_u32 s73, s73, s74")
    k("s_lshl_b32 s73, s73, 10")
    k("s_add_u32 s73, s73, s72")
    k("s_add_u32 s60, s73, s70")
    k(f"v_mov_b32 v{AK1}, v1")
    k(f"v_lshlrev_b32 v{AK2}, 3, v2")
    k(f"v_add_u32 v{AK2}, 1024, v{AK2}")
    k(f"v_mul_u32_u24 v{AV}, 20, v3")
    k(f"v_add_u32 v{AV}, v{AV}, v2")
    k(f"v_lshlrev_b32 v{AV}, 4, v{AV}")
    k(f"v_add_u32 v{AV}, 1280, v{AV}")
    k("s_mov_b32 s40, 0x000fffff")
    k("s_mov_b32 s41, 0x000fffff")
    k("v_or_b32 v15, 4, v2")
    k("v_cmp_eq_u32 vcc, 28, v15")
    k("v_mov_b32 v15, 0x3f803f80")
    for i in range(16): k(f"v_mov_b32 v{OO+i}, 0")
    for i in range(16): k(f"v_cndmask_b32 v{VF[0]+i}, 0, v15, vcc")
    for b in (QB, KF2[0], KF2[1]):
        k(f"v_mov_b32 v{b+2}, 0"); k(f"v_mov_b32 v{b+3}, 0")
    k.srd(12, 8, 9, O, ACT_SZ)
    k("s_waitcnt vmcnt(44)")
    k(f"v_max3_f32 v{S1}, v{S0}, v{S0+1}, v{S0+2}")
    k(f"v_max_f32 v{S1}, v{S1}, v{S0+3}")
    k(f"v_dot2_f32_bf16 v{S1+2}, v{QA}, v{QA}, 0")
    rowred(k, "v_max_f32", S1)
    for b in (QA + 1, QA + 2, QA + 3, QB, QB + 1):
        k(f"v_dot2_f32_bf16 v{S1+2}, v{b}, v{b}, v{S1+2}")
    k(f"v_mov_b32 v{S1+1}, v{S1}")
    k.nop(3)
    k(f"v_mov_b32 v{S1+3}, v{S1+2}")
    k(f"v_permlane16_swap_b32 v{S1}, v{S1+1}")
    k(f"v_max_f32 v{S1}, v{S1}, v{S1+1}")
    k(f"v_permlane32_swap_b32 v{S1+2}, v{S1+3}")
    k(f"v_mov_b32 v{S1+1}, v{S1}")
    k(f"v_add_f32 v{S1+2}, v{S1+2}, v{S1+3}")
    k.nop(1)
    k(f"v_permlane32_swap_b32 v{S1}, v{S1+1}")
    k(f"v_add_f32 v{S1}, v{S1}, v{S1+1}")
    k(f"v_mul_f32 v{S1}, v{S1}, v{S1+2}")
    k(f"v_sqrt_f32 v{S1}, v{S1}")
    k.nop(1)
    k(f"v_mul_f32 v{CM}, {hexf(-1.001)}, v{S1}")
    for i in range(1, 16): k(f"v_mov_b32 v{CM+i}, v{CM}")
    def rdK(t, buf):
        k(f"ds_read_b128 {r(KF1[buf])}, v{AK1} offset:{t*2560}")
        k(f"ds_read_b64 {r(KF2[buf],2)}, v{AK2} offset:{t*2560}")
    def rdV(t, buf):
        k("s_mov_b64 exec, s[40:41]")
        k(f"ds_read_b128 {r(VF[buf])}, v{AV} offset:{t*2560}")
        k(f"ds_read_b128 {r(VF[buf]+4)}, v{AV} offset:{t*2560+640}")
        k("s_mov_b64 exec, -1")
    SB = (S0, S1)
    k("s_waitcnt vmcnt(40)")
    k("s_barrier")
    rdK(0, 0); rdK(1, 1); rdV(0, 0)
    k("s_mov_b32 s42, 0")
    k("s_waitcnt lgkmcnt(4)")
    k(f"v_mfma_f32_32x32x16_bf16 {r(S0,16)}, {r(KF1[0])}, {r(QA)}, {r(CM,16)}")
    k(f"v_mfma_f32_32x32x16_bf16 {r(S0,16)}, {r(KF2[0])}, {r(QB)}, {r(S0,16)}")
    k.nop(8)
    k.lines.append(".p2align 6")
    k.label("k2_loop")
    for t in range(8):
        cur = SB[t & 1]; nxt = SB[(t + 1) & 1]
        k("s_waitcnt lgkmcnt(0)")
        k(f"v_mfma_f32_32x32x16_bf16 {r(nxt,16)}, {r(KF1[(t+1)&1])}, {r(QA)}, {r(CM,16)}")
        rdK(t + 2, t & 1)
        for i in range(4): k(f"v_exp_f32 v{cur+i}, v{cur+i}")
        k(f"v_mfma_f32_32x32x16_bf16 {r(nxt,16)}, {r(KF2[(t+1)&1])}, {r(QB)}, {r(nxt,16)}")
        rdV(t + 1, (t + 1) & 1)
        for i in range(4, 8): k(f"v_exp_f32 v{cur+i}, v{cur+i}")
        k(f"v_exp_f32 v{cur+8}, v{cur+8}")
        for i in range(4): k(f"v_cvt_pk_bf16_f32 v{PP+i}, v{cur+2*i}, v{cur+2*i+1}")
        for i in range(9, 11): k(f"v_exp_f32 v{cur+i}, v{cur+i}")
        k(f"v_mfma_f32_32x32x16_bf16 {r(OO,16)}, {r(VF[t&1])}, {r(PP)}, {r(OO,16)}")
        for i in range(11, 16): k(f"v_exp_f32 v{cur+i}, v{cur+i}")
        if t == 7:
            k(f"v_add_u32 v{AK1}, 20480, v{AK1}")
        for i in range(4, 8): k(f"v_cvt_pk_bf16_f32 v{PP+i}, v{cur+2*i}, v{cur+2*i+1}")
        if t == 7:
            k(f"v_add_u32 v{AK2}, 20480, v{AK2}")
            k(f"v_add_u32 v{AV}, 20480, v{AV}")
        else:
            k.nop(2)
        k(f"v_mfma_f32_32x32x16_bf16 {r(OO,16)}, {r(VF[t&1]+4)}, {r(PP+4)}, {r(OO,16)}")
    k("s_add_u32 s42, s42, 1")
    k("s_cmp_eq_u32 s42, 1")
    k("s_cbranch_scc1 k2_blkB")
    k("s_cmp_eq_u32 s42, 3")
    k("s_cbranch_scc1 k2_side")
    k("s_cmp_lt_u32 s42, 8")
    k("s_cbranch_scc1 k2_loop")
    k.nop(8)
    k(f"v_mov_b32 v15, {hexf(2.0**-80)}")
    k(f"v_cmp_nge_f32 vcc, v{OO+12}, v15")
    k.nop(5)
    k("s_cbranch_vccnz k2_slow")
    k.label("k2_epi")
    k(f"v_rcp_f32 v{S0}, v{OO+12}")
    k(f"v_add_u32 v{S0+2}, s6, v2")
    k(f"v_lshrrev_b32 v{S0+3}, 4, v{S0+2}")
    k(f"v_mul_u32_u24 v{S0+3}, 20480, v{S0+3}")
    k(f"v_and_b32 v{S0+2}, 15, v{S0+2}")
    k(f"v_lshl_add_u32 v{S0+3}, v{S0+2}, 4, v{S0+3}")
    k("s_mul_i32 s7, s4, 20")
    k(f"v_lshl_add_u32 v{S0+4}, v3, 2, s7")
    for i in range(6):
        k(f"v_pk_mul_f32 {r(OO+2*i,2)}, {r(OO+2*i,2)}, {r(S0,2)} op_sel_hi:[1,0]")
    for i in range(6):
        k(f"v_cvt_pk_bf16_f32 v{PP+i}, v{OO+2*i}, v{OO+2*i+1}")
    for i in range(3):
        c = S0 + 8 + 4 * i
        k(f"v_add_u32 v{c}, {8*i}, v{S0+4}")
        k(f"v_lshrrev_b32 v{c+1}, 5, v{c}")
        k(f"v_lshl_add_u32 v{c+1}, v{c+1}, 10, v{S0+3}")
        k(f"v_bfe_u32 v{c+2}, v{c}, 3, 2")
        k(f"v_lshl_add_u32 v{c+1}, v{c+2}, 8, v{c+1}")
        k(f"v_and_b32 v{c+2}, 4, v{c}")
        k(f"v_lshl_add_u32 v{c+1}, v{c+2}, 1, v{c+1}")
        if i == 2:
            k(f"v_lshl_add_u32 v{c+1}, v3, 30, v{c+1}")
        k(f"buffer_store_dwordx2 {r(PP+2*i,2)}, v{c+1}, s[12:15], 0 offen")
    k.label("k2_end")
    k("s_endpgm")
    k.label("k2_blkB")
    k("s_waitcnt vmcnt(24)")
    k("s_barrier")
    k("s_branch k2_loop")
    k.label("k2_side")
    k.srd(64, 8, 9, WSPF, WSPF_SZ)
    k.srd(68, 8, 9, WINF, WINF_SZ)
    k.srd(72, 8, 9, C1, 12288)
    k.srd(76, 8, 9, WOF, WOUTF + WOUTF_SZ - WOF)
    k("s_waitcnt vmcnt(0)")
    for q in range(4):
        k(f"buffer_store_dwordx4 {r(120+4*q)}, v1, s[64:67], s61 offen offset:{q*1024}")
    for j in range(4):
        k(f"v_lshl_or_b32 v{160+j}, v{161+2*j}, 16, v{160+2*j}")
    k(f"buffer_store_dwordx4 {r(160)}, v1, s[76:79], s60 offen")
    for j in range(8): k(f"v_lshlrev_b32 v{136+j}, 16, v{136+j}")
    k("v_mul_f32 v165, v136, v144")
    for j in range(1, 8): k(f"v_fmac_f32 v165, v{136+j}, v{144+j}")
    for j in range(8): k(f"v_mul_f32 v{136+j}, v{136+j}, v{152+j}")
    for j in range(4): k(f"v_cvt_pk_bf16_f32 v{144+j}, v{136+2*j}, v{137+2*j}")
    k(f"buffer_store_dwordx4 {r(144)}, v1, s[68:71], s63 offen")
    for j in range(4):
        k(f"v_lshlrev_b32 v{136+2*j}, 16, v{144+j}")
        k(f"v_and_b32 v{137+2*j}, 0xffff0000, v{144+j}")
    for a, b in ((136, 137), (138, 139), (140, 141), (142, 143), (136, 138), (140, 142)):
        k(f"v_add_f32 v{a}, v{a}, v{b}")
    k("v_add_f32 v164, v136, v140")
    k("v_mul_u32_u24 v166, 6144, v3")
    k("v_lshl_add_u32 v166, v2, 2, v166")
    k("v_permlane32_swap_b32 v164, v165")
    k("v_add_f32 v164, v164, v165")
    k("buffer_atomic_add_f32 v164, v166, s[72:75], s62 offen")
    k("s_branch k2_loop")
    k.label("k2_slow")
    T = S1
    k(f"v_subrev_u32 v{AK1}, 163840, v{AK1}")
    k(f"v_subrev_u32 v{AK2}, 163840, v{AK2}")
    k(f"v_subrev_u32 v{AV}, 163840, v{AV}")
    k(f"v_mov_b32 v{T}, 0xff800000")
    k("s_mov_b32 s42, 0")
    k("s_waitcnt lgkmcnt(0)")
    k.label("k2_slow1")
    rdK(0, 0)
    k(f"v_add_u32 v{AK1}, 2560, v{AK1}")
    k(f"v_add_u32 v{AK2}, 2560, v{AK2}")
    k("s_waitcnt lgkmcnt(0)")
    k(f"v_mfma_f32_32x32x16_bf16 {r(S0,16)}, {r(KF1[0])}, {r(QA)}, 0")
    k(f"v_mfma_f32_32x32x16_bf16 {r(S0,16)}, {r(KF2[0])}, {r(QB)}, {r(S0,16)}")
    k.nop(12)
    for i in range(8): k(f"v_max3_f32 v{T}, v{T}, v{S0+2*i}, v{S0+2*i+1}")
    k("s_add_u32 s42, s42, 1")
    k("s_cmp_lt_u32 s42, 64")
    k("s_cbranch_scc1 k2_slow1")
    k(f"v_mov_b32 v{T+1}, v{T}")
    k(f"v_subrev_u32 v{AK1}, 163840, v{AK1}")
    k(f"v_subrev_u32 v{AK2}, 163840, v{AK2}")
    k(f"v_permlane32_swap_b32 v{T}, v{T+1}")
    k(f"v_max_f32 v{T}, v{T}, v{T+1}")
    for i in range(16): k(f"v_sub_f32 v{CM+i}, 0, v{T}")
    for i in range(16): k(f"v_mov_b32 v{OO+i}, 0")
    k("s_mov_b32 s42, 0")
    k.label("k2_slow2")
    rdK(0, 0); rdV(0, 0)
    k(f"v_add_u32 v{AK1}, 2560, v{AK1}")
    k(f"v_add_u32 v{AK2}, 2560, v{AK2}")
    k(f"v_add_u32 v{AV}, 2560, v{AV}")
    k("s_waitcnt lgkmcnt(0)")
    k(f"v_mfma_f32_32x32x16_bf16 {r(S0,16)}, {r(KF1[0])}, {r(QA)}, {r(CM,16)}")
    k(f"v_mfma_f32_32x32x16_bf16 {r(S0,16)}, {r(KF2[0])}, {r(QB)}, {r(S0,16)}")
    k.nop(12)
    for i in range(16): k(f"v_exp_f32 v{S0+i}, v{S0+i}")
    k.nop(1)
    for i in range(8): k(f"v_cvt_pk_bf16_f32 v{PP+i}, v{S0+2*i}, v{S0+2*i+1}")
    k.nop(2)
    k(f"v_mfma_f32_32x32x16_bf16 {r(OO,16)}, {r(VF[0])}, {r(PP)}, {r(OO,16)}")
    k(f"v_mfma_f32_32x32x16_bf16 {r(OO,16)}, {r(VF[0]+4)}, {r(PP+4)}, {r(OO,16)}")
    k("s_add_u32 s42, s42, 1")
    k("s_cmp_lt_u32 s42, 64")
    k("s_cbranch_scc1 k2_slow2")
    k.nop(12)
    k("s_branch k2_epi")
    return k
```

```python
from asmlib import Kern
from layout import *
from k0 import hexf, xsum16_32
from k1 import ids_rb_cb

K3_LDS = 20 * 5120
K6_LDS = 24 * 5120

def gemm80(k, NK, act_off, act_sz, w_off, w_sz, early):
    NG = NK // 4
    ACT = 16; A0 = ACT + 4 * NK; WB = A0 + 20
    k("s_lshl_b32 s6, s3, 2")
    k("s_add_u32 s6, s6, s5")
    k(f"s_mul_i32 s7, s6, {NK*1024}")
    k(f"s_mul_i32 s10, s4, {NK}")
    k("s_add_u32 s10, s10, s5")
    k("s_mul_i32 s10, s10, 5120")
    k("s_mul_i32 s11, s5, 5120")
    k("s_waitcnt lgkmcnt(0)")
    k.srd(16, 8, 9, w_off, w_sz)
    k.srd(20, 8, 9, act_off, act_sz)
    for g in range(NG):
        k("s_mov_b32 m0, s11")
        k("s_add_u32 s36, s10, 4096")
        for j in range(4):
            k(f"buffer_load_dwordx4 v1, s[16:19], s10 offen offset:{j*1024} lds")
        k("s_add_u32 m0, s11, 4096")
        if g < NG - 1: k("s_add_u32 s10, s10, 20480")
        else: k.nop(1)
        k("buffer_load_dwordx4 v1, s[16:19], s36 offen lds")
        for j in range(4):
            r = ACT + 16 * g + 4 * j
            k(f"buffer_load_dwordx4 v[{r}:{r+3}], v1, s[20:23], s7 offen offset:{j*1024}")
        if g < NG - 1:
            k("s_add_u32 s11, s11, 20480")
            k("s_add_u32 s7, s7, 4096")
    k("v_bfe_u32 v3, v0, 4, 2")
    k("v_and_b32 v5, 15, v0")
    k("v_add_u32 v4, 61440, v1")
    def rd_w(ks):
        b = WB + 20 * (ks & 1)
        a, base = ("v1", 0) if ks < 12 else ("v4", 61440)
        for j in range(5):
            k(f"ds_read_b128 v[{b+4*j}:{b+4*j+3}], {a} offset:{ks*5120 + j*1024 - base}")
    k(f"s_waitcnt vmcnt({(NG-1)*9})")
    k("s_barrier")
    rd_w(0)
    ne = early(k, WB + 40)
    for ks in range(NK):
        wb = WB + 20 * (ks & 1); a = ACT + 4 * ks
        if ks < NK - 1:
            if ks % 4 == 3:
                k(f"s_waitcnt vmcnt({(NG - 2 - ks // 4) * 9 + ne})")
                k("s_barrier")
            rd_w(ks + 1)
            k("s_waitcnt lgkmcnt(5)")
        else:
            k("s_waitcnt lgkmcnt(0)")
        for j in range(5):
            c = "0" if ks == 0 else f"v[{A0+4*j}:{A0+4*j+3}]"
            k(f"v_mfma_f32_16x16x32_bf16 v[{A0+4*j}:{A0+4*j+3}], v[{wb+4*j}:{wb+4*j+3}], v[{a}:{a+3}], {c}")
    return A0, WB + 40

def x1_addr(k, dst, tmp):
    k("s_lshr_b32 s36, s6, 1")
    k("s_mul_i32 s36, s36, 40")
    k("s_mul_i32 s37, s4, 5")
    k("s_add_u32 s36, s36, s37")
    k("s_lshl_b32 s36, s36, 10")
    k("s_and_b32 s37, s6, 1")
    k("s_lshl_b32 s37, s37, 8")
    k("s_add_u32 s36, s36, s37")
    k("s_add_u32 s37, s36, 4096")
    k(f"v_lshrrev_b32 v{dst}, 1, v3")
    k(f"v_lshlrev_b32 v{dst}, 9, v{dst}")
    k(f"v_lshl_add_u32 v{dst}, v5, 4, v{dst}")
    k(f"v_and_b32 v{tmp}, 1, v3")
    k(f"v_lshl_add_u32 v{dst}, v{tmp}, 3, v{dst}")

def rm_addr(k, dst):
    k("s_lshl_b32 s38, s6, 4")
    k(f"v_add_u32 v{dst}, s38, v5")
    k(f"v_mul_u32_u24 v{dst}, 1280, v{dst}")
    k(f"v_lshl_add_u32 v{dst}, v3, 3, v{dst}")
    k("s_mul_i32 s38, s4, 160")

def resid(k, A0, E):
    for j in range(5):
        for h in range(2):
            a = A0 + 4 * j + 2 * h; x = E + 2 * j + h; g = E + 12 + 4 * j + 2 * h
            k(f"v_lshlrev_b32 v8, 16, v{x}")
            k(f"v_and_b32 v9, 0xffff0000, v{x}")
            k(f"v_pk_fma_f32 v[{a}:{a+1}], v[{a}:{a+1}], v[{g}:{g+1}], v[8:9]")
            k(f"v_cvt_pk_bf16_f32 v{x}, v{a}, v{a+1}")

def gen_k3():
    k = Kern("k3_kernel", 190, 64)
    k("s_cmp_ge_u32 s2, 256")
    k("s_cbranch_scc1 k3_end")
    k("s_load_dwordx2 s[8:9], s[0:1], 112")
    k("s_load_dwordx2 s[40:41], s[0:1], 0")
    ids_rb_cb(k)
    def early(k, E):
        k.srd(12, 40, 41, 0, ACT_SZ)
        k.srd(24, 8, 9, MOD + 5120, 2560)
        rm_addr(k, 6)
        k("v_lshlrev_b32 v7, 4, v3")
        k("s_mul_i32 s39, s4, 320")
        for j in range(5):
            k(f"buffer_load_dwordx2 v[{E+2*j}:{E+2*j+1}], v6, s[12:15], s38 offen offset:{j*32}")
        for j in range(5):
            k(f"buffer_load_dwordx4 v[{E+12+4*j}:{E+15+4*j}], v7, s[24:27], s39 offen offset:{j*64}")
        return 10
    A0, E = gemm80(k, 20, O, ACT_SZ, WOF, WOF_SZ, early)
    k.srd(28, 8, 9, X1, ACT_SZ)
    k.srd(32, 8, 9, ST2, 16384)
    x1_addr(k, 6, 7)
    k("s_waitcnt vmcnt(0)")
    resid(k, A0, E)
    for j in range(5):
        so = "s36" if j < 4 else "s37"
        k(f"buffer_store_dwordx2 v[{E+2*j}:{E+2*j+1}], v6, s[28:31], {so} offen offset:{(j&3)*1024}")
    for i in range(10):
        k(f"v_lshlrev_b32 v{A0+2*i}, 16, v{E+i}")
        k(f"v_and_b32 v{A0+2*i+1}, 0xffff0000, v{E+i}")
    k(f"v_pk_add_f32 v[10:11], v[{A0}:{A0+1}], v[{A0+2}:{A0+3}]")
    k(f"v_pk_mul_f32 v[12:13], v[{A0}:{A0+1}], v[{A0}:{A0+1}]")
    for i in range(1, 10):
        if i > 1: k(f"v_pk_add_f32 v[10:11], v[10:11], v[{A0+2*i}:{A0+2*i+1}]")
        k(f"v_pk_fma_f32 v[12:13], v[{A0+2*i}:{A0+2*i+1}], v[{A0+2*i}:{A0+2*i+1}], v[12:13]")
    k("v_add_f32 v10, v10, v11")
    k("v_add_f32 v12, v12, v13")
    k("s_lshl_b32 s36, s6, 7")
    k("v_lshlrev_b32 v7, 3, v5")
    k("v_permlane16_swap_b32 v10, v12")
    k("v_add_f32 v10, v10, v12")
    k("v_mov_b32 v12, v10")
    k("v_and_b32 v8, 1, v3")
    k("v_lshl_add_u32 v7, v8, 2, v7")
    k("v_permlane32_swap_b32 v10, v12")
    k("v_add_f32 v10, v10, v12")
    k("v_lshrrev_b32 v8, 1, v3")
    k("v_lshl_add_u32 v7, v8, 30, v7")
    k("buffer_atomic_add_f32 v10, v7, s[32:35], s36 offen")
    k.label("k3_end")
    k("s_endpgm")
    return k

def gen_k6():
    k = Kern("k6_kernel", 206, 64)
    k("s_cmp_ge_u32 s2, 256")
    k("s_cbranch_scc1 k6_end")
    k("s_load_dwordx2 s[8:9], s[0:1], 112")
    k("s_load_dwordx2 s[40:41], s[0:1], 96")
    ids_rb_cb(k)
    def early(k, E):
        k.srd(12, 8, 9, X1, ACT_SZ)
        k.srd(24, 8, 9, MOD + 12800, 2560)
        x1_addr(k, 6, 7)
        k("v_lshlrev_b32 v7, 4, v3")
        k("s_mul_i32 s39, s4, 320")
        for j in range(5):
            so = "s36" if j < 4 else "s37"
            k(f"buffer_load_dwordx2 v[{E+2*j}:{E+2*j+1}], v6, s[12:15], {so} offen offset:{(j&3)*1024}")
        for j in range(5):
            k(f"buffer_load_dwordx4 v[{E+12+4*j}:{E+15+4*j}], v7, s[24:27], s39 offen offset:{j*64}")
        return 10
    A0, E = gemm80(k, 24, Y, Z_SZ, WOUTF, WOUTF_SZ, early)
    k.srd(28, 40, 41, 0, ACT_SZ)
    rm_addr(k, 6)
    k("s_waitcnt vmcnt(0)")
    resid(k, A0, E)
    for j in range(5):
        k(f"buffer_store_dwordx2 v[{E+2*j}:{E+2*j+1}], v6, s[28:31], s38 offen offset:{j*32}")
    k.label("k6_end")
    k("s_endpgm")
    return k
```

```python
from asmlib import Kern
from layout import *
from k0 import hexf
import math

LC1 = 122880; LC2 = 123904; LTAB = 124928
K4_LDS = 125952
ACT = 16; A0 = 176; WB = 224
GA_ = -2 * math.log2(math.e) * math.sqrt(2 / math.pi)
GB_ = GA_ * 0.044715
def r(b, n=4): return f"v[{b}:{b+n-1}]"

def gelu(k, X, T, n):
    for i in range(n): k(f"v_pk_mul_f32 {r(T+2*i,2)}, {r(X+2*i,2)}, {r(X+2*i,2)}")
    for i in range(n): k(f"v_pk_fma_f32 {r(T+2*i,2)}, {r(T+2*i,2)}, v[12:13], v[12:13] op_sel:[0,1,0] op_sel_hi:[1,1,0]")
    for i in range(n): k(f"v_pk_mul_f32 {r(T+2*i,2)}, {r(T+2*i,2)}, {r(X+2*i,2)}")
    for i in range(2 * n): k(f"v_exp_f32 v{T+i}, v{T+i}")
    for i in range(n): k(f"v_pk_add_f32 {r(T+2*i,2)}, {r(T+2*i,2)}, 1.0 op_sel_hi:[1,0]")
    for i in range(2 * n): k(f"v_rcp_f32 v{T+i}, v{T+i}")
    for i in range(n): k(f"v_pk_mul_f32 {r(X+2*i,2)}, {r(X+2*i,2)}, {r(T+2*i,2)}")

def gen_k4():
    k = Kern("k4_kernel", 248, 64)
    k("s_cmp_ge_u32 s2, 256")
    k("s_cbranch_scc1 k4_end")
    k("s_load_dwordx2 s[8:9], s[0:1], 112")
    k("v_lshrrev_b32 v1, 6, v0")
    k("s_and_b32 s3, s2, 7")
    k("v_readfirstlane_b32 s5, v1")
    k("s_lshl_b32 s3, s3, 1")
    k("s_bfe_u32 s4, s2, 0x10003")
    k("s_add_u32 s3, s3, s4")
    k("s_lshr_b32 s4, s2, 4")
    k("v_and_b32 v1, 63, v0")
    k("v_lshlrev_b32 v1, 4, v1")
    k("v_and_b32 v2, 31, v0")
    k("v_bfe_u32 v3, v0, 5, 1")
    k("s_lshl_b32 s6, s3, 2")
    k("s_add_u32 s6, s6, s5")
    k("s_mul_i32 s7, s6, 40960")
    k("s_mul_i32 s11, s5, 6144")
    k("s_mul_i32 s10, s4, 122880")
    k("s_add_u32 s10, s10, s11")
    k("v_lshlrev_b32 v4, 3, v2")
    k("s_lshl_b32 s36, s6, 8")
    k("s_mul_i32 s37, s4, 384")
    k("s_add_u32 s38, s37, 6144")
    k("s_waitcnt lgkmcnt(0)")
    k.srd(16, 8, 9, WINF, WINF_SZ)
    k.srd(20, 8, 9, X1, ACT_SZ)
    k.srd(12, 8, 9, ACC, ACC_SZ)
    def loads(G):
        k("s_mov_b32 m0, s11")
        k("s_add_u32 s39, s10, 4096")
        for j in range(4): k(f"buffer_load_dwordx4 v1, s[16:19], s10 offen offset:{j*1024} lds")
        k("s_add_u32 m0, s11, 4096")
        k("s_add_u32 s10, s10, 24576")
        for j in range(2): k(f"buffer_load_dwordx4 v1, s[16:19], s39 offen offset:{j*1024} lds")
        k("s_add_u32 s39, s7, 4096")
        for j in range(8):
            b = ACT + 32 * G + 4 * j
            k(f"buffer_load_dwordx4 {r(b)}, v1, s[20:23], {'s7' if j < 4 else 's39'} offen offset:{(j&3)*1024}")
        k("s_add_u32 s11, s11, 24576")
        k("s_add_u32 s7, s7, 8192")
    loads(0)
    k(f"s_add_u32 s36, s36, {ST2 - ACC}")
    k(f"s_mov_b32 m0, {LC1}")
    k("buffer_load_dwordx2 v[8:9], v4, s[12:15], s36 offen")
    k("buffer_load_dwordx4 v1, s[12:15], s37 offen lds")
    k(f"s_mov_b32 m0, {LC2}")
    k.nop(1)
    k("buffer_load_dwordx4 v1, s[12:15], s38 offen lds")
    for G in range(1, 4): loads(G)
    k("v_add_u32 v5, 61440, v1")
    k(f"v_mov_b32 v12, {hexf(GA_)}")
    k(f"v_mov_b32 v13, {hexf(GB_)}")
    def rd_w(ks):
        b = WB + 12 * (ks & 1)
        a, base = ("v1", 0) if ks < 20 else ("v5", 61440)
        for j in range(3): k(f"ds_read_b128 {r(b+4*j)}, {a} offset:{ks*3072 + j*1024 - base}")
    k("s_waitcnt vmcnt(45)")
    k("s_barrier")
    rd_w(0)
    loads(4)
    k("s_cmp_ge_u32 s4, 8")
    k("s_cbranch_scc1 k4_z2")
    def main(z2):
        for ks in range(40):
            wb = WB + 12 * (ks & 1); a = ACT + 4 * ks
            if ks < 39:
                if ks % 8 == 7:
                    k(f"s_waitcnt vmcnt({(3 - ks // 8) * 14})")
                    k("s_barrier")
                rd_w(ks + 1)
                k("s_waitcnt lgkmcnt(3)")
            else:
                k("s_waitcnt lgkmcnt(0)")
            for j in range(3):
                c = "0" if ks == 0 else r(A0 + 16 * j, 16)
                x, y = (r(a), r(wb + 4 * j)) if z2 else (r(wb + 4 * j), r(a))
                k(f"v_mfma_f32_32x32x16_bf16 {r(A0+16*j,16)}, {x}, {y}, {c}")
            if ks == 8:
                k(f"v_mul_f32 v8, {hexf(1/640)}, v8")
                k(f"v_mov_b32 v10, {hexf(1e-5)}")
                k(f"v_fmac_f32 v10, {hexf(1/640)}, v9")
                k("v_fma_f32 v10, -v8, v8, v10")
                k("v_rsq_f32 v10, v10")
                k.nop(1)
                k("v_mul_f32 v9, v8, v10")
                k("v_sub_f32 v9, 0, v9")
                k("v_mov_b32 v8, v10")
                if z2:
                    k("s_lshl_b32 s36, s5, 8")
                    k(f"s_add_u32 s36, s36, {LTAB}")
                    k("v_lshl_add_u32 v10, v2, 2, s36")
                    k("ds_write_b32 v10, v8")
                    k("ds_write_b32 v10, v9 offset:128")
                    k("s_waitcnt lgkmcnt(0)")
    main(False)
    k.srd(24, 8, 9, Z1, Z_SZ)
    k(f"v_lshlrev_b32 v10, 4, v3")
    k(f"v_add_u32 v10, {LC1}, v10")
    k("s_mul_i32 s36, s6, 24")
    k("s_mul_i32 s37, s4, 3")
    k("s_add_u32 s36, s36, s37")
    k("s_lshl_b32 s36, s36, 11")
    k("s_add_u32 s37, s36, 4096")
    def rd_c(n):
        for a in range(4):
            k(f"ds_read_b128 {r(16+32*n+4*a)}, v10 offset:{n*128 + a*32}")
            k(f"ds_read_b128 {r(32+32*n+4*a)}, v10 offset:{1024 + n*128 + a*32}")
    rd_c(0)
    for n in range(3):
        X = A0 + 16 * n; Cc = 16 + 32 * n
        k("s_waitcnt lgkmcnt(0)")
        if n < 2: rd_c(n + 1)
        for i in range(8):
            k(f"v_pk_fma_f32 {r(Cc+2*i,2)}, v[8:9], {r(Cc+2*i,2)}, {r(Cc+16+2*i,2)} op_sel:[1,0,0] op_sel_hi:[1,1,1]")
        for i in range(8):
            k(f"v_pk_fma_f32 {r(X+2*i,2)}, {r(X+2*i,2)}, v[8:9], {r(Cc+2*i,2)} op_sel_hi:[1,0,1]")
        gelu(k, X, Cc, 8)
        for i in range(8): k(f"v_cvt_pk_bf16_f32 v{Cc+16+i}, v{X+2*i}, v{X+2*i+1}")
        for ap in range(2):
            o = n * 2048 + ap * 1024
            k(f"buffer_store_dwordx4 {r(Cc+16+4*ap)}, v1, s[24:27], {'s36' if o < 4096 else 's37'} offen offset:{o & 4095}")
    k("s_endpgm")
    k.label("k4_z2")
    main(True)
    k.srd(24, 8, 9, Z2, Z_SZ)
    RR = 16; NN = 32; CC = 48; SS = 64; QQ = 80; T = 96; PK = 128
    k("v_lshl_add_u32 v10, v3, 4, s36")
    for a in range(4):
        k(f"ds_read_b128 {r(RR+4*a)}, v10 offset:{a*32}")
        k(f"ds_read_b128 {r(NN+4*a)}, v10 offset:{128 + a*32}")
    k("v_lshlrev_b32 v11, 2, v2")
    for n in range(3):
        k(f"ds_read_b32 v{CC+2*n}, v11 offset:{LC1 + n*128 - 65536 if False else 0}" if False else "")
    k(f"v_add_u32 v11, {LC1}, v11")
    for n in range(3):
        k(f"ds_read_b32 v{CC+2*n}, v11 offset:{n*128}")
        k(f"ds_read_b32 v{CC+2*n+1}, v11 offset:{1024 + n*128}")
    k("s_sub_u32 s36, s4, 8")
    k("s_lshl_b32 s36, s36, 7")
    k("s_lshl_b32 s37, s6, 1")
    k("s_add_u32 s36, s36, s37")
    k("s_mul_i32 s36, s36, 3072")
    k("s_add_u32 s37, s36, 3072")
    k("s_waitcnt lgkmcnt(0)")
    for n in range(3):
        X = A0 + 16 * n; c = r(CC + 2 * n, 2); P = PK + 8 * n
        for i in range(8):
            k(f"v_pk_fma_f32 {r(T+2*i,2)}, {r(NN+2*i,2)}, {c}, {c} op_sel:[0,0,1] op_sel_hi:[1,0,1]")
        for i in range(8):
            k(f"v_pk_fma_f32 {r(X+2*i,2)}, {r(X+2*i,2)}, {r(RR+2*i,2)}, {r(T+2*i,2)}")
        gelu(k, X, T, 8)
        for i in range(8): k(f"v_cvt_pk_bf16_f32 v{P+i}, v{X+2*i}, v{X+2*i+1}")
        for i in range(8):
            if n == 0:
                k(f"v_pk_mul_f32 {r(QQ+2*i,2)}, {r(X+2*i,2)}, {r(X+2*i,2)}")
            else:
                s = A0 if n == 1 else SS
                k(f"v_pk_add_f32 {r(SS+2*i,2)}, {r(s+2*i,2)}, {r(X+2*i,2)}")
                k(f"v_pk_fma_f32 {r(QQ+2*i,2)}, {r(X+2*i,2)}, {r(X+2*i,2)}, {r(QQ+2*i,2)}")
        for h in range(2):
            k(f"v_permlane32_swap_b32 v{P+4*h}, v{P+4*h+2}")
            k(f"v_permlane32_swap_b32 v{P+4*h+1}, v{P+4*h+3}")
            k(f"buffer_store_dwordx4 {r(P+4*h)}, v1, s[24:27], {'s36' if h == 0 else 's37'} offen offset:{n*1024}")
    for i in range(16): k(f"v_permlane16_swap_b32 v{SS+i}, v{QQ+i}")
    for i in range(16): k(f"v_add_f32 v{SS+i}, v{SS+i}, v{QQ+i}")
    for j in range(8): k(f"v_add_f32_dpp v{SS+j}, v{SS+j}, v{SS+j} row_ror:8 row_mask:0xf bank_mask:0x3")
    for j in range(8): k(f"v_add_f32_dpp v{SS+j}, v{SS+8+j}, v{SS+8+j} row_ror:8 row_mask:0xf bank_mask:0xc")
    for j in range(4): k(f"v_add_f32_dpp v{SS+j}, v{SS+j}, v{SS+j} row_half_mirror row_mask:0xf bank_mask:0x5")
    for j in range(4): k(f"v_add_f32_dpp v{SS+j}, v{SS+4+j}, v{SS+4+j} row_half_mirror row_mask:0xf bank_mask:0xa")
    for j in range(4): k(f"v_add_f32_dpp v{SS+j}, v{SS+j}, v{SS+j} quad_perm:[2,3,0,1] row_mask:0xf bank_mask:0xf")
    for j in range(4): k(f"v_add_f32_dpp v{SS+j}, v{SS+j}, v{SS+j} quad_perm:[1,0,3,2] row_mask:0xf bank_mask:0xf")
    for j in range(1, 4):
        m = hex(0x11111111 << j)
        k(f"s_mov_b32 s40, {m}")
        k(f"s_mov_b32 s41, {m}")
        k(f"v_cndmask_b32 v{SS}, v{SS}, v{SS+j}, s[40:41]")
    k("v_and_b32 v10, 3, v0")
    k("v_bfe_u32 v11, v0, 2, 2")
    k("v_lshl_add_u32 v10, v11, 3, v10")
    k("v_lshl_add_u32 v10, v3, 2, v10")
    k("v_lshlrev_b32 v10, 3, v10")
    k("v_bfe_u32 v11, v0, 4, 1")
    k("v_lshl_add_u32 v10, v11, 2, v10")
    k("s_lshl_b32 s36, s6, 8")
    k(f"s_add_u32 s36, s36, {STZ - ACC}")
    k(f"buffer_atomic_add_f32 v{SS}, v10, s[12:15], s36 offen")
    k.label("k4_end")
    k("s_endpgm")
    return k
```

```python
from asmlib import Kern
from layout import *
from k0 import hexf

RT = 98304; MT = 106496; SCR = 114688
K5_LDS = SCR + 4 * 7168
WS = 16; A0 = 80; ZB = 144; RB = 176; TMP = 192; WP = 200; Z1R = 208; BSP = 220
def r(b, n=4): return f"v[{b}:{b+n-1}]"

def gen_k5():
    k = Kern("k5_kernel", 224, 64)
    k("s_cmp_ge_u32 s2, 256")
    k("s_cbranch_scc1 k5_end")
    k("s_load_dwordx2 s[8:9], s[0:1], 112")
    k("s_load_dwordx2 s[40:41], s[0:1], 64")
    k("v_lshrrev_b32 v1, 6, v0")
    k("s_and_b32 s3, s2, 7")
    k("v_readfirstlane_b32 s5, v1")
    k("s_lshl_b32 s3, s3, 2")
    k("s_bfe_u32 s4, s2, 0x20003")
    k("s_add_u32 s3, s3, s4")
    k("s_lshr_b32 s4, s2, 5")
    k("v_and_b32 v1, 63, v0")
    k("v_lshlrev_b32 v1, 4, v1")
    k("v_and_b32 v2, 31, v0")
    k("v_bfe_u32 v3, v0, 5, 1")
    k("v_lshlrev_b32 v4, 6, v0")
    k("s_and_b32 s6, s5, 1")
    k("s_lshl_b32 s3, s3, 1")
    k("s_add_u32 s6, s6, s3")
    k("s_lshr_b32 s33, s5, 1")
    k("s_mul_i32 s34, s4, 393216")
    k(f"s_add_u32 s34, s34, {Z2}")
    k("s_lshl_b32 s35, s6, 17")
    k(f"s_add_u32 s35, s35, {WSPF}")
    k("s_mul_i32 s10, s5, 6144")
    k("s_lshl_b32 s7, s33, 12")
    k("s_mul_i32 s36, s6, 24")
    k("s_mul_i32 s37, s4, 3")
    k("s_add_u32 s36, s36, s37")
    k("s_lshl_b32 s36, s36, 1")
    k("s_add_u32 s36, s36, s33")
    k("s_lshl_b32 s36, s36, 10")
    k("s_add_u32 s37, s36, 4096")
    k("s_lshl_b32 s38, s6, 6")
    k("v_lshlrev_b32 v5, 1, v2")
    k("s_waitcnt lgkmcnt(0)")
    k.srd(12, 8, 9, STZ, 16384)
    k.srd(16, 8, 9, "s34", 393216)
    k.srd(20, 8, 9, "s35", 131072)
    for j in range(4): k(f"buffer_load_dwordx4 {r(A0+4*j)}, v4, s[12:15], 0 offen offset:{j*16}")
    def loads(slot):
        k(f"s_add_u32 m0, s11, {slot*24576}")
        k("s_add_u32 s39, s10, 4096")
        for j in range(4): k(f"buffer_load_dwordx4 v1, s[16:19], s10 offen offset:{j*1024} lds")
        k(f"s_add_u32 m0, s11, {slot*24576+4096}")
        k("s_add_u32 s10, s10, 24576")
        for j in range(2): k(f"buffer_load_dwordx4 v1, s[16:19], s39 offen offset:{j*1024} lds")
        for j in range(4): k(f"buffer_load_dwordx4 {r(WS+16*slot+4*j)}, v1, s[20:23], s7 offen offset:{j*1024}")
        k("s_add_u32 s7, s7, 8192")
    k("s_mov_b32 s11, s10")
    loads(0)
    k.srd(24, 8, 9, Z1, Z_SZ)
    k.srd(28, 40, 41, 0, 4096)
    k(f"buffer_load_dwordx4 {r(Z1R)}, v1, s[24:27], s36 offen")
    k(f"buffer_load_dwordx4 {r(Z1R+4)}, v1, s[24:27], s36 offen offset:2048")
    k(f"buffer_load_dwordx4 {r(Z1R+8)}, v1, s[24:27], s37 offen")
    k(f"buffer_load_ushort v{BSP}, v5, s[28:31], s38 offen")
    loads(1); loads(2); loads(3)
    k("s_mul_i32 s36, s33, 12288")
    k("v_add_u32 v6, s36, v1")
    k("v_add_u32 v7, 49152, v6")
    k("s_lshl_b32 s36, s33, 8")
    k(f"s_add_u32 s36, s36, {RT}")
    k("v_lshl_add_u32 v8, v3, 5, s36")
    k("v_and_b32 v9, 1, v0")
    k("v_lshl_add_u32 v9, v9, 4, v8")
    k("v_add_u32 v9, 8192, v9")
    k("v_lshlrev_b32 v10, 5, v0")
    k(f"v_add_u32 v10, {RT}, v10")
    k(f"v_mov_b32 v11, {hexf(1/768)}")
    k("s_waitcnt vmcnt(44)")
    M = A0 + 16; R = A0 + 24; H = A0 + 32
    for j in range(8): k(f"v_mul_f32 v{M+j}, v11, v{A0+2*j}")
    for j in range(8): k(f"v_fmaak_f32 v{R+j}, v11, v{A0+2*j+1}, {hexf(1e-5)}")
    for j in range(8): k(f"v_fma_f32 v{R+j}, -v{M+j}, v{M+j}, v{R+j}")
    for j in range(8): k(f"v_rsq_f32 v{R+j}, v{R+j}")
    for j in range(4): k(f"v_cvt_pk_bf16_f32 v{H+j}, v{M+2*j}, v{M+2*j+1}")
    k(f"ds_write_b128 v10, {r(R)}")
    k(f"ds_write_b128 v10, {r(R+4)} offset:16")
    for j in range(4):
        k(f"v_lshlrev_b32 v{A0+2*j}, 16, v{H+j}")
        k(f"v_and_b32 v{A0+2*j+1}, 0xffff0000, v{H+j}")
    for j in range(8): k(f"v_sub_f32 v{M+j}, v{M+j}, v{A0+j}")
    for j in range(4): k(f"v_cvt_pk_bf16_f32 v{H+4+j}, v{M+2*j}, v{M+2*j+1}")
    k(f"ds_write_b128 v10, {r(H)} offset:8192")
    k(f"ds_write_b128 v10, {r(H+4)} offset:8208")
    k("s_waitcnt lgkmcnt(0)")
    for i in range(64): k(f"v_mov_b32 v{A0+i}, 0")
    def reads(s, q, par):
        ko = (s * 8 + q) * 64
        k(f"ds_read_b128 {r(RB+8*par)}, v8 offset:{ko}")
        k(f"ds_read_b128 {r(RB+8*par+4)}, v8 offset:{ko+16}")
        sl = s & 3
        a = "v6" if sl < 2 else "v7"
        for n in range(3): k(f"ds_read_b128 {r(ZB+16*par+4*n)}, {a} offset:{(sl&1)*24576 + q*3072 + n*1024}")
        k(f"ds_read_b128 {r(ZB+16*par+12)}, v9 offset:{ko}")
    k("s_waitcnt vmcnt(34)")
    k("s_barrier")
    reads(0, 0, 0)
    k("s_mov_b32 s42, 0")
    k.lines.append(".p2align 6")
    k.label("k5_loop")
    for s in range(4):
        for q in range(4):
            par = q & 1
            w = WS + 16 * s + 4 * q; rb = RB + 8 * par; wp = WP + 4 * par; zb = ZB + 16 * par
            k("s_waitcnt lgkmcnt(4)")
            for j in range(4):
                k(f"v_lshlrev_b32 v{TMP+2*j}, 16, v{w+j}")
                k(f"v_and_b32 v{TMP+2*j+1}, 0xffff0000, v{w+j}")
            for j in range(8): k(f"v_mul_f32 v{TMP+j}, v{TMP+j}, v{rb+j}")
            for j in range(4): k(f"v_cvt_pk_bf16_f32 v{wp+j}, v{TMP+2*j}, v{TMP+2*j+1}")
            if q == 3:
                k("s_waitcnt vmcnt(20) lgkmcnt(0)")
                k("s_barrier")
                reads(s + 1, 0, par ^ 1)
                loads(s)
            else:
                reads(s, q + 1, par ^ 1)
                k("s_waitcnt lgkmcnt(6)")
            for n in range(4):
                k(f"v_mfma_f32_32x32x16_bf16 {r(A0+16*n,16)}, {r(zb+4*n)}, {r(wp)}, {r(A0+16*n,16)}")
    k("v_add_u32 v8, 2048, v8")
    k("v_add_u32 v9, 2048, v9")
    k("s_add_u32 s42, s42, 1")
    k("s_cmp_lt_u32 s42, 4")
    k("s_cbranch_scc1 k5_loop")
    k("s_mul_i32 s36, s5, 7168")
    k(f"s_add_u32 s36, s36, {SCR}")
    k("v_add_u32 v10, s36, v1")
    k("s_xor_b32 s36, s5, 2")
    k("s_mul_i32 s36, s36, 7168")
    k(f"s_add_u32 s36, s36, {SCR}")
    k("v_add_u32 v11, s36, v1")
    k.srd(24, 8, 9, Y, Z_SZ)
    k("s_lshl_b32 s36, s6, 1")
    k("s_mul_i32 s36, s36, 24")
    k("s_mul_i32 s37, s4, 3")
    k("s_add_u32 s36, s36, s37")
    k("s_lshl_b32 s36, s36, 10")
    k("s_lshl_b32 s37, s33, 9")
    k("s_add_u32 s36, s36, s37")
    k("v_lshrrev_b32 v12, 4, v2")
    k("v_mul_u32_u24 v12, 24576, v12")
    k("v_lshl_add_u32 v12, v3, 8, v12")
    k("v_and_b32 v13, 15, v0")
    k("v_lshl_add_u32 v12, v13, 4, v12")
    k(f"v_lshlrev_b32 v{BSP}, 16, v{BSP}")
    k("s_waitcnt vmcnt(0) lgkmcnt(0)")
    k("s_cmp_eq_u32 s33, 0")
    k("s_cbranch_scc0 k5_e1")
    for kh in range(2):
        if kh == 1: k.label("k5_e1")
        keep = 8 * kh; send = 8 * (1 - kh)
        for n in range(3):
            k(f"ds_write_b128 v10, {r(A0+16*n+send)} offset:{n*2048}")
            k(f"ds_write_b128 v10, {r(A0+16*n+send+4)} offset:{n*2048+1024}")
        k(f"ds_write_b128 v10, {r(A0+48)} offset:6144")
        k("s_waitcnt lgkmcnt(0)")
        k("s_barrier")
        G = WS
        for n in range(3):
            k(f"ds_read_b128 {r(G+8*n)}, v11 offset:{n*2048}")
            k(f"ds_read_b128 {r(G+8*n+4)}, v11 offset:{n*2048+1024}")
        k(f"ds_read_b128 {r(G+24)}, v11 offset:6144")
        U = G + 32
        for i in range(12):
            k(f"v_lshlrev_b32 v{U+2*i}, 16, v{Z1R+i}")
            k(f"v_and_b32 v{U+2*i+1}, 0xffff0000, v{Z1R+i}")
        k(f"v_sub_f32 v14, v{BSP}, v{A0+48}")
        k(f"v_sub_f32 v14, v14, v{A0+49}")
        k("s_waitcnt lgkmcnt(0)")
        k(f"v_sub_f32 v14, v14, v{G+24}")
        k(f"v_sub_f32 v14, v14, v{G+25}")
        for n in range(3):
            for i in range(4):
                a = A0 + 16 * n + keep + 2 * i
                k(f"v_pk_add_f32 {r(a,2)}, {r(a,2)}, {r(G+8*n+2*i,2)}")
            for i in range(4):
                a = A0 + 16 * n + keep + 2 * i
                k(f"v_pk_add_f32 {r(a,2)}, {r(a,2)}, v[14:15] op_sel_hi:[1,0]")
            for i in range(4):
                a = A0 + 16 * n + keep + 2 * i
                k(f"v_pk_mul_f32 {r(a,2)}, {r(a,2)}, {r(U+8*n+2*i,2)}")
            P = ZB + 4 * n
            for i in range(4):
                a = A0 + 16 * n + keep + 2 * i
                k(f"v_cvt_pk_bf16_f32 v{P+i}, v{a}, v{a+1}")
            k.nop(1)
            k(f"v_permlane32_swap_b32 v{P}, v{P+2}")
            k(f"v_permlane32_swap_b32 v{P+1}, v{P+3}")
            k(f"buffer_store_dwordx4 {r(P)}, v12, s[24:27], s36 offen offset:{n*1024}")
        if kh == 0: k("s_endpgm")
    k.label("k5_end")
    k("s_endpgm")
    return k
```

```python
MOD = 0x0000
MOD_SZ = 15360
ACC = 0x4000; ACC_SZ = 0xC000
C1 = 0x4000; C2 = 0x5800; ST2 = 0x8000; STZ = 0xC000
KMAX = 0x10000
KV = 0x20000; KV_SZ = 163840
WQF = 0x50000; WQF_SZ = 983040
WOF = 0x140000; WOF_SZ = 819200
WOUTF = 0x210000; WOUTF_SZ = 983040
WINF = 0x300000; WINF_SZ = 1966080
XN = 0x500000; ACT_SZ = 2621440
Q = 0x780000
O = 0xA00000
X1 = 0xC80000
Z1 = 0xF00000; Z_SZ = 3145728
Z2 = 0x1200000
Y = 0x1500000
WSPF = 0x1800000; WSPF_SZ = 8388608
WS_END = 0x2000000
```

```python
import sys
from asmlib import check
from k0 import gen_k0, K0_GRID
from k1 import gen_k1, K1_LDS

NAME = "adaLN_cond__grouped_kv_mqa__mixer_gmlp__prompt"
def build(out, upto=7):
    ref = open(f"cdna_kernels/{NAME}.s.ref").read().split("\n")
    head = [l for l in ref if l.startswith(";") and "@launch" not in l and "Override" not in l and "grid=ceil" not in l]
    ks = []
    ks.append((gen_k0("code_start", "code_end"), K0_GRID, 256, 8448))
    ks.append((gen_k1(), 256, 256, K1_LDS))
    try:
        from k2 import gen_k2, K2_LDS
        ks.append((gen_k2(), 256, 512, K2_LDS))
        from k3 import gen_k3, gen_k6, K3_LDS, K6_LDS
        ks.append((gen_k3(), 256, 256, K3_LDS))
        from k4 import gen_k4, K4_LDS
        ks.append((gen_k4(), 256, 256, K4_LDS))
        from k5 import gen_k5, K5_LDS
        ks.append((gen_k5(), 256, 256, K5_LDS))
        ks.append((gen_k6(), 256, 256, K6_LDS))
    except ImportError as e:
        print("partial:", e)
    ks = ks[:upto]
    s = "\n".join(head) + "\n"
    for k, g, b, l in ks:
        s += f"; @launch kernel={k.name} grid=({g},1,1) block=({b},1,1) lds={l}\n"
    s += '.amdgcn_target "amdgcn-amd-amdhsa--gfx950"\n.text\n'
    bodies = []; kds = []
    nerr = 0
    for i, (k, g, b, l) in enumerate(ks):
        for e in check(k.lines, k.name):
            print("HAZARD", e); nerr += 1
        body, kd = k.text()
        if i == 1: body = ".p2align 8\ncode_start:\n" + body
        bodies.append(body); kds.append(kd)
    s += "".join(bodies) + ".p2align 8\ncode_end:\n    s_endpgm\n" + '.section .rodata,"a"\n' + "".join(kds)
    open(out, "w").write(s)
    print("wrote", out, len(s), "bytes; hazards:", nerr)

if __name__ == "__main__":
    build(sys.argv[1] if len(sys.argv) > 1 else f"cdna_kernels/{NAME}.s")
```

```python
import re, os
STAMPS = bool(os.environ.get('STAMPS'))
STAMP_OFF = 0x2800000

class Kern:
    def __init__(self, name, vgpr, sgpr=96, agpr=0):
        self.name = name; self.lines = []; self.vgpr = vgpr; self.sgpr = sgpr; self.agpr = agpr
        self.nlab = 0
    def __call__(self, s):
        for l in s.split("\n"):
            l = l.strip()
            if l: self.lines.append("    " + l)
    def label(self, l):
        self.lines.append(f"{l}:")
    def newlabel(self, p="L"):
        self.nlab += 1
        return f"{self.name}_{p}{self.nlab}"
    def nop(self, n):
        while n > 0:
            k = min(n, 16); self(f"s_nop {k-1}"); n -= k
    def srd(self, d, lo, hi, off, size):
        if off == 0:
            self(f"s_mov_b32 s{d}, s{lo}")
            self(f"s_mov_b32 s{d+1}, s{hi}")
        else:
            o = off if isinstance(off, str) else hex(off)
            self(f"s_add_u32 s{d}, s{lo}, {o}")
            self(f"s_addc_u32 s{d+1}, s{hi}, 0")
        self(f"s_mov_b32 s{d+2}, {hex(size)}")
        self(f"s_mov_b32 s{d+3}, 0x20000")
    def stamp(self, i):
        if STAMPS: self(f"s_memtime s[{80+2*i}:{81+2*i}]")
    def rstamp(self, i):
        if STAMPS: self(f"s_memrealtime s[{80+2*i}:{81+2*i}]")
    def endpgm(self, kidx=None, ws=(8, 9)):
        if STAMPS and kidx is not None:
            self("s_waitcnt vmcnt(0)")
            self.stamp(8); self.rstamp(9)
            self("s_mov_b64 exec, -1")
            self("v_lshrrev_b32 v1, 6, v0")
            self("v_lshlrev_b32 v1, 6, v1")
            self(f"s_add_u32 s76, s{ws[0]}, {hex(STAMP_OFF + kidx * 1024 * 1024)}")
            self(f"s_addc_u32 s77, s{ws[1]}, 0")
            self("s_mov_b32 s78, 0x100000")
            self("s_mov_b32 s79, 0x20000")
            self("s_lshl_b32 s75, s2, 10")
            self("s_waitcnt lgkmcnt(0)")
            for i in range(10):
                self(f"v_mov_b32 v2, s{80+2*i}")
                self(f"buffer_store_dword v2, v1, s[76:79], s75 offen offset:{4*i}")
        self("s_endpgm")
    def text(self):
        if STAMPS: self.sgpr = 102
        acc = ((self.vgpr + 3) // 4) * 4
        nfv = acc + self.agpr if self.agpr else self.vgpr
        body = f".globl {self.name}\n.p2align 8\n.type {self.name},@function\n{self.name}:\n" + "\n".join(self.lines) + "\n"
        kd = f""".p2align 6
.amdhsa_kernel {self.name}
  .amdhsa_next_free_vgpr {nfv}
  .amdhsa_next_free_sgpr {self.sgpr}
  .amdhsa_accum_offset {acc}
  .amdhsa_group_segment_fixed_size 0
  .amdhsa_kernarg_size 120
  .amdhsa_user_sgpr_count 2
  .amdhsa_user_sgpr_kernarg_segment_ptr 1
  .amdhsa_system_sgpr_workgroup_id_x 1
.end_amdhsa_kernel
"""
        return body, kd

RV = re.compile(r"\b([va])\[(\d+):(\d+)\]|\b([va])(\d+)\b")
RS = re.compile(r"\bs\[(\d+):(\d+)\]|\bs(\d+)\b|\b(vcc|exec|m0)\b")
def vregs(op):
    out = set()
    for m in RV.finditer(op):
        if m.group(1): out |= {(m.group(1), i) for i in range(int(m.group(2)), int(m.group(3)) + 1)}
        else: out.add((m.group(4), int(m.group(5))))
    return out
def sregs(op):
    out = set()
    for m in RS.finditer(op):
        if m.group(1): out |= {("s", i) for i in range(int(m.group(1)), int(m.group(2)) + 1)}
        elif m.group(3): out.add(("s", int(m.group(3))))
        else: out.add((m.group(4), 0))
    return out
TRANS = ("v_exp_", "v_log_", "v_rcp_", "v_rsq_", "v_sqrt_", "v_sin_", "v_cos_")
class I:
    pass
def parse(line):
    line = line.split(";")[0].strip()
    if not line or line.endswith(":") or line.startswith("."): return None
    p = line.split(None, 1)
    mn = p[0]; rest = p[1] if len(p) > 1 else ""
    ops = [o.strip() for o in re.split(r",(?![^\[]*\])", rest)] if rest else []
    i = I(); i.mn = mn; i.ops = ops; i.text = line
    i.vw = set(); i.vr = set(); i.sw = set(); i.sr = set()
    i.states = 1
    i.kind = "other"
    if mn == "s_nop": i.states = int(ops[0], 0) + 1
    if mn.startswith("v_mfma"):
        i.kind = "mfma"; i.vw = vregs(ops[0]); i.a = vregs(ops[1]); i.b = vregs(ops[2]); i.c = vregs(ops[3])
        i.vr = i.a | i.b | i.c
        i.passes = 8 if "32x32" in mn else 4
    elif mn.startswith("v_"):
        i.kind = "valu"
        i.trans = mn.startswith(TRANS)
        i.dpp = "dpp" in mn or "row_" in rest or "quad_perm" in rest
        i.perml = mn.startswith("v_permlane")
        if mn.startswith("v_cmp"):
            i.sw = sregs(ops[0]); srcs = ops[1:]
            if mn.startswith("v_cmpx"): i.sw.add(("exec", 0))
        elif mn.startswith("v_readfirstlane") or mn.startswith("v_readlane"):
            i.sw = sregs(ops[0]); srcs = ops[1:]
        elif i.perml:
            i.vw = vregs(ops[0]) | vregs(ops[1]); srcs = ops
        else:
            i.vw = vregs(ops[0]); srcs = ops[1:]
            if "_co_" in mn: i.sw = sregs(ops[1]); srcs = ops[2:]
            if mn.startswith(("v_fmac", "v_dot2c", "v_pk_fmac")) or i.dpp or "sdwa" in mn: srcs = ops
        for o in srcs:
            o = o.split(" ")[0] if not o.startswith(("v[", "s[", "a[", "-", "abs")) else o
            i.vr |= vregs(o); i.sr |= sregs(o)
    elif mn.startswith(("buffer_", "global_", "ds_")):
        i.kind = "mem"
        load = ("load" in mn or "ds_read" in mn or "bpermute" in mn or "swizzle" in mn)
        lds = rest.rstrip().endswith("lds") or " lds" in rest
        i.lds = lds
        if load and not lds:
            i.vw = vregs(ops[0]); srcs = ops[1:]
        else:
            srcs = ops
        for o in srcs:
            i.vr |= vregs(o); i.sr |= sregs(o)
        if lds: i.sr.add(("m0", 0))
        i.widestore = ("store" in mn and ("x3" in mn or "x4" in mn))
        if i.widestore: i.data = vregs(ops[0]) if mn.startswith("buffer") else vregs(ops[1])
    elif mn.startswith("s_"):
        i.kind = "salu"
        if ops and not mn.startswith(("s_cmp", "s_cbranch", "s_branch", "s_waitcnt", "s_nop", "s_barrier", "s_bitcmp", "s_endpgm", "s_sleep", "s_setprio")):
            i.sw = sregs(ops[0])
            if "saveexec" in mn: i.sw.add(("exec", 0))
    return i

def check(lines, name=""):
    seq = []
    labels = {}
    for l in lines:
        t = l.strip()
        if t.endswith(":") and not t.startswith(";"):
            labels[t[:-1]] = len(seq)
        ins = parse(l)
        if ins: seq.append(ins)
    traces = [list(range(len(seq)))]
    for n, ins in enumerate(seq):
        if ins.mn.startswith(("s_cbranch", "s_branch")) and ins.ops[0] in labels:
            t = labels[ins.ops[0]]
            traces.append(list(range(max(0, n - 24), n + 1)) + list(range(t, min(len(seq), t + 24))))
    errs = set()
    for tr in traces:
        for x in range(len(tr)):
            c = seq[tr[x]]
            dist = 0
            for y in range(x - 1, max(-1, x - 26), -1):
                p = seq[tr[y]]
                if p.mn in ("s_branch", "s_endpgm") and tr[y] + 1 == tr[y + 1]:
                    break
                need = 0; why = ""
                if p.kind == "valu":
                    if c.kind == "mfma" and p.vw & c.vr: need, why = 2, "valu->mfma"
                    if c.kind == "valu":
                        if c.dpp and p.vw & c.vr: need, why = max(need, 2), "valu->dpp"
                        if c.perml and p.vw & c.vr: need, why = max(need, 2), "valu->permlane"
                        if c.mn.startswith(("v_readfirstlane", "v_readlane")) and p.vw & c.vr: need, why = max(need, 1), "valu->readlane"
                        if p.trans and not c.trans and p.vw & c.vr: need, why = max(need, 1), "trans->valu"
                        if p.sw & c.sr: need, why = max(need, 2), "valu sgpr->valu"
                        if ("exec", 0) in p.sw and c.dpp: need, why = max(need, 5), "exec->dpp"
                        if "sdwa" in p.mn and p.vw & c.vr: need, why = max(need, 1), "sdwa->valu"
                    if c.kind == "mfma" and p.trans and p.vw & c.vr: need = max(need, 2)
                    if c.kind == "mem" and p.sw & c.sr: need, why = max(need, 5), "valu sgpr->vmem"
                    if c.kind == "mfma" and ("exec", 0) in p.sw: need, why = max(need, 4), "exec->mfma"
                elif p.kind == "mfma":
                    n4 = p.passes == 4
                    if c.kind == "mfma":
                        if p.vw & (c.a | c.b): need, why = (8 if n4 else 12), "mfma D->A/B"
                        elif p.vw & c.c and not (p.vw == c.c and p.passes == c.passes): need, why = (6 if n4 else 10), "mfma D->C partial"
                        elif p.vw & c.vw and not (p.vw == c.c): need, why = (6 if n4 else 10), "mfma D->D waw?"
                    elif c.kind == "valu":
                        if p.vw & (c.vr | c.vw): need, why = (8 if n4 else 12), "mfma D->valu"
                        elif p.c & c.vw: need, why = (3 if n4 else 7), "mfma C war"
                    elif c.kind == "mem":
                        if p.vw & (c.vr | c.vw): need, why = (8 if n4 else 12), "mfma D->mem"
                elif p.kind == "mem":
                    if getattr(p, "widestore", False) and c.kind in ("valu", "mfma") and p.data & c.vw: need, why = 2, "store data war"
                elif p.kind == "salu":
                    if ("m0", 0) in p.sw and c.kind == "mem" and c.lds: need, why = 1, "m0->ldsdma"
                if need > dist:
                    errs.add((tr[x], f"{name}: need {need} have {dist} [{why}]  {p.text}  ->  {c.text}"))
                dist += p.states
    return [e for _, e in sorted(errs)]
```

```python
from asmlib import Kern
from layout import *
from k0 import hexf, xsum16_32, rowred
import math, os

QSCALE = math.log2(math.e) / math.sqrt(20.0)
def r(b, n=4): return f"v[{b}:{b+n-1}]"
A0 = 16
FB = 40
EP = 100

def ids(k):
    k("v_lshrrev_b32 v1, 6, v0")
    k("s_and_b32 s3, s2, 7")
    k("v_readfirstlane_b32 s5, v1")
    k("s_lshl_b32 s3, s3, 2")
    k("s_bfe_u32 s4, s2, 0x20003")
    k("s_add_u32 s3, s3, s4")
    k("s_lshr_b32 s4, s2, 5")
    k("v_and_b32 v1, 63, v0")
    k("v_lshlrev_b32 v1, 4, v1")
    k("s_lshr_b32 s33, s5, 2")
    k("s_and_b32 s5, s5, 3")
    k("s_lshl_b32 s6, s3, 2")
    k("s_add_u32 s6, s6, s5")

def lds_size(NW): return 3 * 4 * (4 + NW) * 1024

def loader(k, NK, NW, act_off, act_sz, w_off, w_sz, modulate=False):
    NG = NK // 4; BLK = (4 + NW) * 1024; SLOT = 4 * BLK
    k(f"s_mul_i32 s7, s3, {NK}")
    k("s_add_u32 s7, s7, s5")
    k("s_lshl_b32 s7, s7, 12")
    k(f"s_mul_i32 s10, s4, {NK}")
    k("s_add_u32 s10, s10, s5")
    k(f"s_mul_i32 s10, s10, {NW*1024}")
    k(f"s_mul_i32 s11, s5, {BLK}")
    if modulate:
        k("v_bfe_u32 v2, v0, 4, 2")
        k("v_lshlrev_b32 v2, 6, v2")
        k("s_lshl_b32 s34, s5, 8")
        k("v_add_u32 v4, s11, v1")
    k("s_waitcnt lgkmcnt(0)")
    k.stamp(5)
    k.srd(16, 8, 9, w_off, w_sz)
    k.srd(20, 8, 9, act_off, act_sz)
    if modulate: k.srd(12, 8, 9, MOD, 5120)
    per = 4 + NW + (4 if modulate else 0)
    def issue(g):
        sl = (g % 3) * SLOT
        if modulate:
            for j in range(4): k(f"buffer_load_dwordx4 {r(16+32*(g%3)+4*j)}, v1, s[20:23], s7 offen offset:{j*1024}")
            for j in range(4): k(f"buffer_load_dwordx4 {r(32+32*(g%3)+4*j)}, v2, s[12:15], s34 offen offset:{j*16}")
            k("s_add_u32 s34, s34, 1024")
        else:
            k(f"s_add_u32 m0, s11, {sl}")
            k.nop(1)
            for j in range(4): k(f"buffer_load_dwordx4 v1, s[20:23], s7 offen offset:{j*1024} lds")
        k(f"s_add_u32 m0, s11, {sl+4096}")
        k("s_add_u32 s36, s10, 4096")
        for j in range(4): k(f"buffer_load_dwordx4 v1, s[16:19], s10 offen offset:{j*1024} lds")
        k(f"s_add_u32 m0, s11, {sl+8192}")
        k(f"s_add_u32 s10, s10, {4*NW*1024}")
        for j in range(NW - 4): k(f"buffer_load_dwordx4 v1, s[16:19], s36 offen offset:{j*1024} lds")
        k("s_add_u32 s7, s7, 16384")
    issue(0)
    k.stamp(6)
    if os.environ.get("DIAG1"):
        k(f"s_waitcnt vmcnt({per-1})")
        k.stamp(7)
    issue(1)
    k.stamp(2)
    for g in range(NG):
        if modulate:
            left = (per if g + 1 < NG else 0) + NW
            k(f"s_waitcnt vmcnt({left})")
            a = 16 + 32 * (g % 3); c = a + 16; T = 112
            for f in range(4):
                for j in range(4):
                    k(f"v_lshlrev_b32 v{T+2*j}, 16, v{a+4*f+j}")
                    k(f"v_and_b32 v{T+2*j+1}, 0xffff0000, v{a+4*f+j}")
                for j in range(4):
                    k(f"v_pk_fma_f32 {r(T+2*j,2)}, {r(T+2*j,2)}, {r(c+2*j,2)}, {r(c+8+2*j,2)}")
                for j in range(4):
                    k(f"v_cvt_pk_bf16_f32 v{a+4*f+j}, v{T+2*j}, v{T+2*j+1}")
                k(f"ds_write_b128 v4, {r(a+4*f)} offset:{(g%3)*SLOT + f*1024}" if (g % 3) * SLOT + f * 1024 < 65536 else
                  f"ds_write_b128 v6, {r(a+4*f)} offset:{(g%3)*SLOT + f*1024 - 65536}")
                if g == 0 and f == 0: k("v_add_u32 v6, 0x10000, v4")
            k(f"s_waitcnt vmcnt({per if g + 1 < NG else 0}) lgkmcnt(0)")
        else:
            k(f"s_waitcnt vmcnt({per if g + 1 < NG else 0})")
        k("s_barrier")
        if g == 0: k.stamp(3)
        if g == NG - 1: k.stamp(4)
        if g + 2 < NG: issue(g + 2)

def compute(k, NK, NW):
    NG = NK // 4; BLK = (4 + NW) * 1024; SLOT = 4 * BLK
    k("s_lshl_b32 s7, s5, 10")
    for s in range(3):
        k(f"v_add_u32 v{8+s}, {s*SLOT+4096}, v1")
        k(f"s_add_u32 s10, s7, {s*SLOT}")
        k(f"v_add_u32 v{12+s}, s10, v1")
    def rd(ks):
        b = FB + (1 + NW) * 4 * (ks & 1); s = (ks // 4) % 3; o = (ks % 4) * BLK
        k(f"ds_read_b128 {r(b)}, v{12+s} offset:{o}")
        for j in range(NW): k(f"ds_read_b128 {r(b+4+4*j)}, v{8+s} offset:{o + j*1024}")
    k("s_barrier")
    k.stamp(3)
    rd(0)
    for ks in range(NK):
        b = FB + (1 + NW) * 4 * (ks & 1)
        if ks < NK - 1:
            if ks % 4 == 3:
                k("s_waitcnt lgkmcnt(0)")
                k("s_barrier")
                if ks in (3, 7, NK - 5): k.stamp({3: 4, 7: 5}.get(ks, 6))
                rd(ks + 1)
            else:
                rd(ks + 1)
                k(f"s_waitcnt lgkmcnt({1+NW})")
        else:
            k("s_waitcnt lgkmcnt(0)")
        for j in range(NW):
            c = "0" if ks == 0 else r(A0 + 4 * j)
            k(f"v_mfma_f32_16x16x32_bf16 {r(A0+4*j)}, {r(b+4+4*j)}, {r(b)}, {c}")
    k.stamp(7)

def x1_addr(k, dst, tmp):
    k("s_lshr_b32 s36, s6, 3")
    k("s_mul_i32 s36, s36, 40")
    k("s_mul_i32 s37, s4, 5")
    k("s_add_u32 s36, s36, s37")
    k("s_lshl_b32 s36, s36, 12")
    k("s_and_b32 s37, s6, 7")
    k("s_lshl_b32 s37, s37, 8")
    k("s_and_b32 s38, s37, 0x100")
    k("s_and_b32 s37, s37, 0x600")
    k("s_lshl_b32 s37, s37, 1")
    k("s_add_u32 s36, s36, s37")
    k("s_add_u32 s36, s36, s38")
    for j in range(1, 5): k(f"s_add_u32 s{36+j}, s36, {j*4096}")
    k(f"v_lshrrev_b32 v{dst}, 1, v3")
    k(f"v_lshlrev_b32 v{dst}, 9, v{dst}")
    k(f"v_lshl_add_u32 v{dst}, v5, 4, v{dst}")
    k(f"v_and_b32 v{tmp}, 1, v3")
    k(f"v_lshl_add_u32 v{dst}, v{tmp}, 3, v{dst}")

def resid_loads(k, xoff, goff):
    k("v_bfe_u32 v3, v0, 4, 2")
    k("v_and_b32 v5, 15, v0")
    x1_addr(k, 6, 7)
    k("v_lshlrev_b32 v7, 4, v3")
    k("s_mul_i32 s41, s4, 320")
    k("s_waitcnt lgkmcnt(0)")
    k.srd(12, 8, 9, xoff, ACT_SZ)
    k.srd(24, 8, 9, MOD + goff, 2560)
    for j in range(5): k(f"buffer_load_dwordx2 {r(EP+2*j,2)}, v6, s[12:15], s{36+j} offen")
    for j in range(5): k(f"buffer_load_dwordx4 {r(EP+12+4*j)}, v7, s[24:27], s41 offen offset:{j*64}")

def resid(k):
    for j in range(5):
        for h in range(2):
            x = EP + 2 * j + h; t = FB + 4 * j + 2 * h
            k(f"v_lshlrev_b32 v{t}, 16, v{x}")
            k(f"v_and_b32 v{t+1}, 0xffff0000, v{x}")
    for j in range(5):
        for h in range(2):
            a = A0 + 4 * j + 2 * h; g = EP + 12 + 4 * j + 2 * h; t = FB + 4 * j + 2 * h
            k(f"v_pk_fma_f32 {r(a,2)}, {r(a,2)}, {r(g,2)}, {r(t,2)}")
    for j in range(5):
        for h in range(2):
            a = A0 + 4 * j + 2 * h
            k(f"v_cvt_pk_bf16_f32 v{EP+2*j+h}, v{a}, v{a+1}")

def head(k, extra=None):
    n = k.name[:2]
    k("s_cmp_ge_u32 s2, 256")
    k(f"s_cbranch_scc1 {n}_end")
    k.stamp(0); k.rstamp(1)
    k("s_load_dwordx2 s[8:9], s[0:1], 112")
    if extra: k(extra)
    ids(k)
    k("s_cmp_eq_u32 s33, 0")
    k(f"s_cbranch_scc0 {n}_loader")

K1_LDS = lds_size(6); K3_LDS = lds_size(5); K6_LDS = lds_size(5) + 4 * 2816

def gen_k1():
    k = Kern("k1_kernel", 128, 64)
    head(k)
    k("v_bfe_u32 v3, v0, 4, 2")
    k("v_and_b32 v5, 15, v0")
    k("s_and_b32 s36, s6, 1")
    k("s_lshl_b32 s36, s36, 4")
    k("v_add_u32 v6, s36, v5")
    for j in range(5):
        o = EP + j
        k(f"v_add_u32 v7, {4*j}, v3")
        k("v_mul_u32_u24 v2, 52, v7")
        k("v_lshrrev_b32 v2, 8, v2")
        k("v_mul_u32_u24 v4, 5, v2")
        k("v_sub_u32 v7, v7, v4")
        k(f"v_mul_u32_u24 v{o}, 81920, v2")
        k("v_lshrrev_b32 v4, 1, v7")
        k(f"v_lshl_add_u32 v{o}, v4, 9, v{o}")
        k("v_and_b32 v4, 1, v7")
        k(f"v_lshl_add_u32 v{o}, v4, 3, v{o}")
        k("v_lshrrev_b32 v4, 2, v7")
        k("v_sub_u32 v4, 4, v4")
        k("v_lshlrev_b32 v4, v4, v6")
        k(f"v_add_u32 v{o}, v{o}, v4")
    k("s_mul_i32 s40, s4, 327680")
    k("s_lshr_b32 s36, s6, 1")
    k("s_mul_i32 s36, s36, 1280")
    k("s_add_u32 s40, s40, s36")
    k("s_waitcnt lgkmcnt(0)")
    k.srd(24, 8, 9, Q, ACT_SZ)
    k.srd(28, 8, 9, KV, KV_SZ)
    k.srd(12, 8, 9, KMAX, 1024)
    compute(k, 20, 6)
    k(f"v_mov_b32 v8, {hexf(QSCALE)}")
    k.nop(3)
    for j in range(5):
        a = A0 + 4 * j
        k(f"v_pk_mul_f32 {r(a,2)}, {r(a,2)}, v[8:9] op_sel_hi:[1,0]")
        k(f"v_pk_mul_f32 {r(a+2,2)}, {r(a+2,2)}, v[8:9] op_sel_hi:[1,0]")
        k(f"v_cvt_pk_bf16_f32 v{FB+2*j}, v{a}, v{a+1}")
        k(f"v_cvt_pk_bf16_f32 v{FB+2*j+1}, v{a+2}, v{a+3}")
        k(f"buffer_store_dwordx2 {r(FB+2*j,2)}, v{EP+j}, s[24:27], s40 offen")
    k("s_cmp_ge_u32 s4, 4")
    k("s_cbranch_scc1 k1_fin")
    P = FB + 12
    k(f"v_cvt_pk_bf16_f32 v{P}, v{A0+20}, v{A0+21}")
    k(f"v_cvt_pk_bf16_f32 v{P+1}, v{A0+22}, v{A0+23}")
    k("s_lshr_b32 s36, s6, 1")
    k("s_mul_i32 s36, s36, 2560")
    k("s_and_b32 s37, s6, 1")
    k("v_mov_b32 v11, 0x40000000")
    k("s_bitcmp1_b32 s4, 0")
    k("s_cbranch_scc1 k1_V")
    k("s_cmp_eq_u32 s4, 0")
    k("s_cbranch_scc0 k1_K2")
    k("v_lshrrev_b32 v10, 1, v3")
    k("v_lshlrev_b32 v10, 9, v10")
    k("v_lshl_add_u32 v10, v6, 4, v10")
    k("v_and_b32 v12, 1, v3")
    k("v_lshl_add_u32 v10, v12, 3, v10")
    k("s_branch k1_Kst")
    k.label("k1_K2")
    k("v_cmp_eq_u32 vcc, 0, v3")
    k("v_lshlrev_b32 v10, 3, v6")
    k("v_add_u32 v10, 1024, v10")
    k("v_cndmask_b32 v10, v11, v10, vcc")
    k.label("k1_Kst")
    k(f"buffer_store_dwordx2 {r(P,2)}, v10, s[28:31], s36 offen")
    k(f"v_lshlrev_b32 v12, 16, v{P}")
    k(f"v_and_b32 v13, 0xffff0000, v{P}")
    k(f"v_lshlrev_b32 v14, 16, v{P+1}")
    k(f"v_and_b32 v15, 0xffff0000, v{P+1}")
    k("v_mul_f32 v12, v12, v12")
    k("v_fmac_f32 v12, v13, v13")
    k("v_fmac_f32 v12, v14, v14")
    k("v_fmac_f32 v12, v15, v15")
    xsum16_32(k, 12, 13)
    rowred(k, "v_max_f32", 12)
    k("s_lshl_b32 s36, s4, 8")
    k("s_lshl_b32 s37, s6, 2")
    k("s_add_u32 s36, s36, s37")
    k("v_cmp_eq_u32 vcc, 0, v1")
    k("v_mov_b32 v14, 0")
    k.nop(1)
    k("v_cndmask_b32 v14, v11, v14, vcc")
    k("buffer_store_dword v12, v14, s[12:15], s36 offen")
    k("s_branch k1_fin")
    k.label("k1_V")
    k("s_mul_i32 s37, s37, 640")
    k("s_add_u32 s36, s36, s37")
    k("s_add_u32 s36, s36, 1280")
    k("s_cmp_eq_u32 s4, 3")
    k("s_cselect_b32 s37, 256, 0")
    k("s_cselect_b32 s38, 1, 4")
    k("s_add_u32 s36, s36, s37")
    k("v_bfe_u32 v9, v5, 2, 1")
    k("v_mul_u32_u24 v9, 320, v9")
    k("v_lshl_add_u32 v9, v3, 6, v9")
    k("v_lshrrev_b32 v10, 3, v5")
    k("v_lshl_add_u32 v9, v10, 3, v9")
    k("v_and_b32 v10, 3, v5")
    k("v_cmp_gt_u32 vcc, s38, v3")
    k("v_lshl_add_u32 v9, v10, 1, v9")
    k.nop(1)
    k("v_cndmask_b32 v9, v11, v9, vcc")
    k(f"buffer_store_short v{P}, v9, s[28:31], s36 offen")
    k(f"buffer_store_short_d16_hi v{P}, v9, s[28:31], s36 offen offset:16")
    k(f"buffer_store_short v{P+1}, v9, s[28:31], s36 offen offset:32")
    k(f"buffer_store_short_d16_hi v{P+1}, v9, s[28:31], s36 offen offset:48")
    k.label("k1_fin")
    k.endpgm(1)
    k.label("k1_loader")
    loader(k, 20, 6, XN, ACT_SZ, WQF, WQF_SZ, modulate=True)
    k.endpgm(1)
    k.label("k1_end")
    k("s_endpgm")
    return k

def gen_k3():
    k = Kern("k3_kernel", 136, 64)
    head(k)
    resid_loads(k, XR, 5120)
    k.srd(28, 8, 9, X1, ACT_SZ)
    k.srd(44, 8, 9, ST2, 16384)
    compute(k, 20, 5)
    k("s_waitcnt vmcnt(0)")
    resid(k)
    for j in range(5): k(f"buffer_store_dwordx2 {r(EP+2*j,2)}, v6, s[28:31], s{36+j} offen")
    for i in range(10):
        k(f"v_lshlrev_b32 v{A0+2*i}, 16, v{EP+i}")
        k(f"v_and_b32 v{A0+2*i+1}, 0xffff0000, v{EP+i}")
    k(f"v_pk_add_f32 v[10:11], {r(A0,2)}, {r(A0+2,2)}")
    k(f"v_pk_mul_f32 v[12:13], {r(A0,2)}, {r(A0,2)}")
    for i in range(1, 10):
        if i > 1: k(f"v_pk_add_f32 v[10:11], v[10:11], {r(A0+2*i,2)}")
        k(f"v_pk_fma_f32 v[12:13], {r(A0+2*i,2)}, {r(A0+2*i,2)}, v[12:13]")
    k("v_add_f32 v10, v10, v11")
    k("v_add_f32 v12, v12, v13")
    k("s_lshl_b32 s36, s6, 7")
    k("v_lshlrev_b32 v7, 3, v5")
    k("v_permlane16_swap_b32 v10, v12")
    k("v_add_f32 v10, v10, v12")
    k("v_mov_b32 v12, v10")
    k("v_and_b32 v8, 1, v3")
    k("v_lshl_add_u32 v7, v8, 2, v7")
    k("v_permlane32_swap_b32 v10, v12")
    k("v_add_f32 v10, v10, v12")
    k("v_lshrrev_b32 v8, 1, v3")
    k("v_lshl_add_u32 v7, v8, 30, v7")
    k("buffer_atomic_add_f32 v10, v7, s[44:47], s36 offen")
    k.endpgm(3)
    k.label("k3_loader")
    loader(k, 20, 5, O, ACT_SZ, WOF, WOF_SZ)
    k.endpgm(3)
    k.label("k3_end")
    k("s_endpgm")
    return k

def gen_k6():
    k = Kern("k6_kernel", 136, 64)
    head(k, "s_load_dwordx2 s[42:43], s[0:1], 96")
    resid_loads(k, X1, 12800)
    k.srd(28, 42, 43, 0, ACT_SZ)
    SC = lds_size(5)
    k("s_mul_i32 s36, s5, 2816")
    k(f"s_add_u32 s36, s36, {SC}")
    k("v_mul_u32_u24 v6, 176, v5")
    k("v_lshl_add_u32 v6, v3, 3, v6")
    k(f"v_add_u32 v{EP+32}, s36, v6")
    for i in range(3):
        k(f"v_lshrrev_b32 v6, 4, v1")
        k(f"v_add_u32 v6, {64*i}, v6")
        k("v_mul_u32_u24 v7, 205, v6")
        k("v_lshrrev_b32 v7, 11, v7")
        k("v_mul_u32_u24 v2, 10, v7")
        k("v_sub_u32 v6, v6, v2")
        k("v_lshlrev_b32 v6, 4, v6")
        k(f"v_mad_u32_u24 v{EP+33+i}, v7, s98, v6" if False else f"v_mul_u32_u24 v2, 176, v7")
        k(f"v_add3_u32 v{EP+33+i}, v2, v6, s36")
        k("v_mul_u32_u24 v2, 1280, v7")
        k("v_add_u32 v6, v6, v2")
        if i == 2:
            k("v_lshrrev_b32 v7, 4, v7")
            k("v_lshl_add_u32 v6, v7, 30, v6")
        k(f"v_mov_b32 v{EP+10 if i == 0 else EP+11 if i == 1 else 15}, v6")
    k("s_mul_i32 s40, s6, 20480")
    k("s_mul_i32 s41, s4, 160")
    k("s_add_u32 s40, s40, s41")
    compute(k, 24, 5)
    k("s_waitcnt vmcnt(0)")
    resid(k)
    for j in range(5): k(f"ds_write_b64 v{EP+32}, {r(EP+2*j,2)} offset:{j*32}")
    k("s_waitcnt lgkmcnt(0)")
    for i in range(3): k(f"ds_read_b128 {r(FB+4*i)}, v{EP+33+i}")
    for i in range(3):
        k(f"s_waitcnt lgkmcnt({2-i})")
        k(f"buffer_store_dwordx4 {r(FB+4*i)}, v{EP+10 if i == 0 else EP+11 if i == 1 else 15}, s[28:31], s40 offen")
    k.endpgm(6)
    k.label("k6_loader")
    loader(k, 24, 5, Y, Z_SZ, WOUTF, WOUTF_SZ)
    k.endpgm(6)
    k.label("k6_end")
    k("s_endpgm")
    return k
```

```python
from asmlib import Kern
from layout import *

NM, NL, NW, NP = 240, 128, 220, 20
K0_GRID = NM + NL + NW + NP
K0_LDS = 41472

def xsum16_32(k, v, t):
    k(f"v_mov_b32 v{t}, v{v}")
    k.nop(2)
    k(f"v_permlane16_swap_b32 v{v}, v{t}")
    k(f"v_add_f32 v{v}, v{v}, v{t}")
    k(f"v_mov_b32 v{t}, v{v}")
    k.nop(2)
    k(f"v_permlane32_swap_b32 v{v}, v{t}")
    k(f"v_add_f32 v{v}, v{v}, v{t}")

def rowred(k, op, v, extra=None):
    for r in (1, 2, 4, 8):
        k.nop(2)
        k(f"{op}_dpp v{v}, v{v}, v{v} row_ror:{r} row_mask:0xf bank_mask:0xf")

def gen_k0(code_start, code_end):
    k = Kern("k0_kernel", 72, 48)
    k(f"s_cmp_ge_u32 s2, {K0_GRID}")
    k("s_cbranch_scc1 k0_end")
    k.stamp(0); k.rstamp(1)
    k("s_load_dwordx2 s[8:9], s[0:1], 112")
    k(f"s_cmp_ge_u32 s2, {NM + NL + NW}")
    k("s_cbranch_scc1 k0_P")
    k(f"s_cmp_ge_u32 s2, {NM + NL}")
    k("s_cbranch_scc1 k0_W")
    k(f"s_cmp_ge_u32 s2, {NM}")
    k("s_cbranch_scc1 k0_L")
    k("s_load_dwordx4 s[4:7], s[0:1], 80")
    k("s_and_b32 s3, s2, 7")
    k("s_mul_i32 s3, s3, 30")
    k("s_lshr_b32 s10, s2, 3")
    k("s_add_u32 s3, s3, s10")
    k("v_lshrrev_b32 v1, 1, v0")
    k("v_and_b32 v2, 1, v0")
    k("v_mul_u32_u24 v3, 7680, v1")
    k("v_lshl_add_u32 v3, v2, 4, v3")
    k("v_lshlrev_b32 v4, 1, v1")
    k("s_lshl_b32 s20, s3, 5")
    for p in range(1, 5):
        k(f"s_add_u32 s{20+p}, s20, {p * 128 * 7680}")
    k("s_waitcnt lgkmcnt(0)")
    k.srd(12, 4, 5, 0, 1280)
    k.srd(16, 6, 7, 0, 640 * 7680)
    for p in range(5):
        k(f"buffer_load_ushort v{8+p}, v4, s[12:15], 0 offen offset:{p*256}")
    for p in range(5):
        k(f"buffer_load_dwordx4 v[{16+4*p}:{19+4*p}], v3, s[16:19], s{20+p} offen")
    k.srd(12 + 16, 8, 9, MOD, MOD_SZ)
    k("v_lshlrev_b32 v5, 6, v1")
    k("v_lshl_add_u32 v5, v2, 5, v5")
    k.stamp(2)
    k("s_waitcnt vmcnt(5)")
    k.stamp(3)
    for p in range(5):
        k(f"v_lshlrev_b32 v{8+p}, 16, v{8+p}")
    for p in range(5):
        k(f"v_mul_f32 v{40+p}, 0xbfb8aa3b, v{8+p}")
    for p in range(5):
        k(f"v_exp_f32 v{40+p}, v{40+p}")
    k.nop(1)
    for p in range(5):
        k(f"v_add_f32 v{40+p}, 1.0, v{40+p}")
    for p in range(5):
        k(f"v_rcp_f32 v{40+p}, v{40+p}")
    k.nop(1)
    for p in range(5):
        k(f"v_mul_f32 v{8+p}, v{8+p}, v{40+p}")
    for p in range(5):
        k(f"v_cvt_pk_bf16_f32 v{8+p}, v{8+p}, v{8+p}")
    for p in range(5):
        k(f"v_and_b32 v{8+p}, 0xffff0000, v{8+p}")
    for p in range(5):
        k(f"s_waitcnt vmcnt({4-p})")
        for j in range(4):
            k(f"v_lshlrev_b32 v40, 16, v{16+4*p+j}")
            k(f"v_and_b32 v41, 0xffff0000, v{16+4*p+j}")
            if p == 0:
                k(f"v_mul_f32 v{48+2*j}, v8, v40")
                k(f"v_mul_f32 v{49+2*j}, v8, v41")
            else:
                k(f"v_fmac_f32 v{48+2*j}, v{8+p}, v40")
                k(f"v_fmac_f32 v{49+2*j}, v{8+p}, v41")
    k.stamp(4)
    k("ds_write_b128 v5, v[48:51]")
    k("ds_write_b128 v5, v[52:55] offset:16")
    k("v_and_b32 v6, 15, v0")
    k("v_lshrrev_b32 v7, 4, v0")
    k("v_lshlrev_b32 v7, 9, v7")
    k("v_lshl_add_u32 v7, v6, 2, v7")
    k("s_waitcnt lgkmcnt(0)")
    k("s_barrier")
    for i in range(8):
        k(f"ds_read_b32 v{16+i}, v7 offset:{i*64}")
    k("v_lshrrev_b32 v8, 6, v0")
    k("v_lshlrev_b32 v8, 6, v8")
    k("v_lshl_add_u32 v8, v6, 2, v8")
    k("v_lshlrev_b32 v9, 2, v6")
    k("s_waitcnt lgkmcnt(0)")
    for a, b in ((16, 17), (18, 19), (20, 21), (22, 23), (16, 18), (20, 22), (16, 20)):
        k(f"v_add_f32 v{a}, v{a}, v{b}")
    xsum16_32(k, 16, 17)
    k("ds_write_b32 v8, v16 offset:8192")
    k("s_mul_i32 s20, s3, 205")
    k("s_lshr_b32 s20, s20, 13")
    k("s_mul_i32 s21, s20, 40")
    k("s_sub_u32 s21, s3, s21")
    k("s_waitcnt lgkmcnt(0)")
    k("s_barrier")
    for i in range(4):
        k(f"ds_read_b32 v{16+i}, v9 offset:{8192+i*64}")
    k("s_cmp_lt_u32 s20, 2")
    k("s_cbranch_scc1 k0_M_t1")
    k("s_lshl_b32 s22, s3, 6")
    k("v_add_u32 v10, s22, v9")
    k("s_branch k0_M_st")
    k.label("k0_M_t1")
    k("s_lshl_b32 s22, s21, 7")
    k("s_xor_b32 s23, s20, 1")
    k("s_lshl_b32 s23, s23, 5")
    k("s_add_u32 s22, s22, s23")
    k("v_lshrrev_b32 v10, 3, v6")
    k("v_lshlrev_b32 v10, 6, v10")
    k("v_and_b32 v11, 7, v6")
    k("v_lshl_add_u32 v10, v11, 2, v10")
    k("v_add_u32 v10, s22, v10")
    k.label("k0_M_st")
    k("s_waitcnt lgkmcnt(0)")
    k("v_add_f32 v16, v16, v17")
    k("v_add_f32 v18, v18, v19")
    k("v_add_f32 v16, v16, v18")
    k("v_cvt_pk_bf16_f32 v16, v16, v16")
    k("v_and_b32 v16, 0xffff0000, v16")
    k("s_cmp_eq_u32 s20, 1")
    k("s_cselect_b32 s24, 1.0, 0")
    k("s_cmp_eq_u32 s20, 4")
    k("s_cselect_b32 s24, 1.0, s24")
    k("v_add_f32 v16, s24, v16")
    k("v_cvt_pk_bf16_f32 v16, v16, v16")
    k("v_and_b32 v16, 0xffff0000, v16")
    k("v_cmp_gt_u32 vcc, 16, v0")
    k("s_and_saveexec_b64 s[34:35], vcc")
    k("s_cbranch_execz k0_end")
    k("buffer_store_dword v16, v10, s[28:31], 0 offen")
    k.endpgm(0)
    k.label("k0_L")
    k("s_load_dwordx2 s[4:5], s[0:1], 0")
    k(f"s_sub_u32 s3, s2, {NM}")
    k("s_and_b32 s10, s3, 7")
    k("s_lshl_b32 s10, s10, 4")
    k("s_lshr_b32 s11, s3, 3")
    k("s_add_u32 s10, s10, s11")
    k("v_lshrrev_b32 v1, 4, v0")
    k("v_and_b32 v2, 15, v0")
    k("v_mul_u32_u24 v3, 1280, v1")
    k("v_lshl_add_u32 v3, v2, 4, v3")
    k("s_mul_i32 s20, s10, 20480")
    k("s_waitcnt lgkmcnt(0)")
    k.srd(12, 4, 5, 0, ACT_SZ)
    for i in range(5):
        k(f"buffer_load_dwordx4 v[{8+4*i}:{11+4*i}], v3, s[12:15], s20 offen offset:{i*256}")
    k.srd(16, 8, 9, ZR, ZR_SZ)
    k.srd(24, 8, 9, XN, ACT_SZ)
    k.srd(28, 8, 9, XR, ACT_SZ)
    k("s_lshl_b32 s21, s3, 12")
    k("v_lshlrev_b32 v4, 4, v0")
    for i in range(4): k(f"v_mov_b32 v{28+i}, 0")
    k("buffer_store_dwordx4 v[28:31], v4, s[16:19], s21 offen")
    k("v_lshl_add_u32 v4, v1, 4, v3")
    k("v_lshrrev_b32 v68, 6, v0")
    k("v_bfe_u32 v69, v0, 4, 2")
    k("v_readfirstlane_b32 s22, v68")
    k("v_mul_u32_u24 v70, 1296, v2")
    k("v_lshl_add_u32 v70, v69, 4, v70")
    k("v_mul_u32_u24 v68, 320, v68")
    k("v_add_u32 v70, v70, v68")
    k("v_lshrrev_b32 v68, 1, v69")
    k("v_lshlrev_b32 v68, 12, v68")
    k("v_and_b32 v69, 1, v69")
    k("v_lshl_add_u32 v68, v69, 9, v68")
    k("v_lshl_add_u32 v68, v2, 4, v68")
    k("v_and_b32 v69, 63, v0")
    k("v_lshlrev_b32 v69, 4, v69")
    k("s_mul_i32 s22, s22, 5")
    k("s_lshr_b32 s23, s10, 2")
    k("s_mul_i32 s23, s23, 20")
    k("s_add_u32 s23, s23, s22")
    k("s_lshl_b32 s23, s23, 12")
    k("s_and_b32 s34, s10, 3")
    k("s_lshl_b32 s34, s34, 10")
    k("s_add_u32 s23, s23, s34")
    k("s_lshr_b32 s34, s10, 3")
    k("s_mul_i32 s34, s34, 20")
    k("s_add_u32 s34, s34, s22")
    k("s_lshl_b32 s34, s34, 13")
    k("s_bfe_u32 s35, s10, 0x20001")
    k("s_lshl_b32 s35, s35, 10")
    k("s_add_u32 s34, s34, s35")
    k("s_and_b32 s35, s10, 1")
    k("s_lshl_b32 s35, s35, 8")
    k("s_add_u32 s34, s34, s35")
    k.stamp(2)
    k("s_waitcnt vmcnt(1)")
    k.stamp(3)
    for i in range(5):
        k(f"ds_write_b128 v4, v[{8+4*i}:{11+4*i}] offset:{20736 + i*256}")
    for i in range(20):
        k(f"v_lshlrev_b32 v{28+2*i}, 16, v{8+i}")
        k(f"v_and_b32 v{29+2*i}, 0xffff0000, v{8+i}")
    k("v_pk_add_f32 v[6:7], v[28:29], v[30:31]")
    for i in range(2, 20):
        k(f"v_pk_add_f32 v[6:7], v[6:7], v[{28+2*i}:{29+2*i}]")
    k("v_add_f32 v6, v6, v7")
    rowred(k, "v_add_f32", 6)
    k(f"v_mul_f32 v6, {hexf(-1.0/640)}, v6")
    for i in range(20):
        k(f"v_pk_add_f32 v[{28+2*i}:{29+2*i}], v[{28+2*i}:{29+2*i}], v[6:7] op_sel_hi:[1,0]")
    k("v_pk_mul_f32 v[6:7], v[28:29], v[28:29]")
    for i in range(1, 20):
        k(f"v_pk_fma_f32 v[6:7], v[{28+2*i}:{29+2*i}], v[{28+2*i}:{29+2*i}], v[6:7]")
    k("v_add_f32 v6, v6, v7")
    rowred(k, "v_add_f32", 6)
    k(f"v_mov_b32 v7, {hexf(1e-5)}")
    k(f"v_fmac_f32 v7, {hexf(1.0/640)}, v6")
    k("v_rsq_f32 v6, v7")
    k("s_waitcnt lgkmcnt(0)")
    for i in range(20):
        k(f"v_pk_mul_f32 v[{28+2*i}:{29+2*i}], v[{28+2*i}:{29+2*i}], v[6:7] op_sel_hi:[1,0]")
    for i in range(20):
        k(f"v_cvt_pk_bf16_f32 v{8+i}, v{28+2*i}, v{29+2*i}")
    for i in range(5):
        k(f"ds_write_b128 v4, v[{8+4*i}:{11+4*i}] offset:{i*256}")
    k("s_waitcnt lgkmcnt(0)")
    k("s_barrier")
    for i in range(5):
        k(f"ds_read_b128 v[{8+4*i}:{11+4*i}], v70 offset:{i*64}")
    for i in range(5):
        k(f"ds_read_b128 v[{28+4*i}:{31+4*i}], v70 offset:{20736 + i*64}")
    for i in range(5):
        k(f"s_waitcnt lgkmcnt({9-i})")
        k(f"buffer_store_dwordx4 v[{8+4*i}:{11+4*i}], v69, s[24:27], s23 offen")
        k("s_add_u32 s23, s23, 4096")
    for i in range(5):
        k(f"s_waitcnt lgkmcnt({4-i})")
        k(f"buffer_store_dwordx4 v[{28+4*i}:{31+4*i}], v68, s[28:31], s34 offen")
        k("s_add_u32 s34, s34, 8192")
    k.endpgm(0)
    k.label("k0_W")
    k("s_load_dwordx4 s[4:7], s[0:1], 8")
    k("s_load_dwordx2 s[10:11], s[0:1], 24")
    k("v_lshrrev_b32 v1, 6, v0")
    k(f"s_sub_u32 s3, s2, {NM + NL}")
    k("v_readfirstlane_b32 s20, v1")
    k("s_lshl_b32 s3, s3, 2")
    k("v_and_b32 v2, 15, v0")
    k("v_bfe_u32 v3, v0, 4, 2")
    k("s_add_u32 s3, s3, s20")
    k("s_mul_i32 s20, s3, 3277")
    k("s_lshr_b32 s20, s20, 16")
    k("s_mul_i32 s21, s20, 20")
    k("s_sub_u32 s21, s3, s21")
    k("s_waitcnt lgkmcnt(0)")
    k("s_cmp_ge_u32 s20, 40")
    k("s_cbranch_scc1 k0_W_kv")
    k.srd(12, 4, 5, 0, 819200)
    k("s_mov_b32 s22, 1280")
    k("s_lshl_b32 s23, s20, 5")
    k("s_mov_b32 s24, 16")
    k("s_mul_i32 s25, s20, 52")
    k("s_lshr_b32 s25, s25, 8")
    k("s_mul_i32 s26, s25, 5")
    k("s_sub_u32 s26, s20, s26")
    k("s_branch k0_W_go")
    k.label("k0_W_kv")
    k("s_sub_u32 s25, s20, 40")
    k("s_bitcmp1_b32 s25, 0")
    k("s_cselect_b32 s6, s10, s6")
    k("s_cselect_b32 s7, s11, s7")
    k.srd(12, 6, 7, 0, 25600)
    k("s_mov_b32 s22, 40")
    k("s_cmp_ge_u32 s25, 2")
    k("s_cselect_b32 s23, 32, 0")
    k("s_cselect_b32 s24, 4, 16")
    k("s_mov_b32 s26, 5")
    k.label("k0_W_go")
    k("s_lshl_b32 s27, s22, 3")
    k("v_mul_lo_u32 v4, v3, s27")
    k("v_lshl_add_u32 v4, v2, 1, v4")
    k("v_mov_b32 v5, 0x40000000")
    k("v_cmp_gt_u32 vcc, s24, v2")
    k("s_lshl_b32 s28, s21, 5")
    k("s_mul_i32 s28, s28, s22")
    k("s_add_u32 s28, s28, s23")
    k("v_cndmask_b32 v4, v5, v4, vcc")
    for j in range(8):
        k(f"buffer_load_ushort v{8+j}, v4, s[12:15], s28 offen")
        if j < 7: k("s_add_u32 s28, s28, s22")
    k.srd(16, 8, 9, WQF, WQF_SZ)
    k("s_mul_i32 s29, s25, 20")
    k("s_add_u32 s29, s29, s21")
    k("s_mul_i32 s29, s29, 6")
    k("s_add_u32 s29, s29, s26")
    k("s_lshl_b32 s29, s29, 10")
    k("v_and_b32 v6, 63, v0")
    k("v_lshlrev_b32 v6, 4, v6")
    k("s_waitcnt vmcnt(0)")
    for j in range(4):
        k(f"v_lshl_or_b32 v{16+j}, v{9+2*j}, 16, v{8+2*j}")
    k("buffer_store_dwordx4 v[16:19], v6, s[16:19], s29 offen")
    k.endpgm(0)
    k.label("k0_P")
    k("s_getpc_b64 s[4:5]")
    k.label("k0_pc")
    k(f"s_add_u32 s4, s4, {code_start}-k0_pc")
    k("s_addc_u32 s5, s5, 0")
    k(f"s_mov_b32 s6, {code_end}-{code_start}")
    k("s_mov_b32 s7, 0x20000")
    k("v_lshlrev_b32 v1, 4, v0")
    k("s_bfe_u32 s10, s2, 0x10003")
    k("s_lshl_b32 s10, s10, 12")
    k.label("k0_P_loop")
    k("buffer_load_dwordx4 v[4:7], v1, s[4:7], s10 offen")
    k("s_add_u32 s10, s10, 8192")
    k("s_cmp_lt_u32 s10, s6")
    k("s_cbranch_scc1 k0_P_loop")
    k("s_waitcnt vmcnt(0)")
    k.label("k0_end")
    k("s_endpgm")
    return k

import struct
def hexf(x):
    return hex(struct.unpack("<I", struct.pack("<f", x))[0])
```

```python
from asmlib import Kern
from layout import *
from k0 import hexf, rowred
import os, math

K234_LDS = 163840
QA, QB, CM, S0, S1, OO, PP = 4, 8, 16, 32, 48, 64, 80
KF1 = (88, 92); KF2 = (96, 100); VF = (104, 112)
AK1, AK2, AV = 12, 13, 14
SIDE_SC = os.environ.get("SIDE_SC", "sc1")
Z_SC = os.environ.get("Z_SC", "")
SPIN = 200000
PF_WIN = int(os.environ.get('PF_WIN', '1'))
PF_NEXT = int(os.environ.get('PF_NEXT', '0'))
GA_ = -2 * math.log2(math.e) * math.sqrt(2 / math.pi)
GB_ = GA_ * 0.044715
RB, CB8, W3, VV, RB128, CB16 = 24, 25, 26, 27, 28, 29

def prio(k, n):
    if not os.environ.get("NOPRIO"): k(f"s_setprio {n}")
def r(b, n=4): return f"v[{b}:{b+n-1}]"

def poll(k, name, srd, soff, nflag, vo, vf):
    k(f"v_and_b32 v{vo}, {nflag-1}, v0")
    k(f"v_lshlrev_b32 v{vo}, 2, v{vo}")
    k("s_mov_b32 s38, 0")
    k.label(name)
    k(f"buffer_load_dword v{vf}, v{vo}, s[{srd}:{srd+3}], {soff} offen sc1")
    k("s_add_u32 s38, s38, 1")
    k("s_waitcnt vmcnt(0)")
    k(f"v_cmp_ne_u32 vcc, 0, v{vf}")
    k("s_cmp_eq_u64 vcc, -1")
    k(f"s_cbranch_scc1 {name}_ok")
    k("s_sleep 1")
    k(f"s_cmp_lt_u32 s38, {SPIN}")
    k(f"s_cbranch_scc1 {name}")
    k.label(name + "_ok")

def setflag(k, srd, soff, lab, v=10):
    k("s_cmp_lg_u32 s5, 0")
    k(f"s_cbranch_scc1 {lab}")
    k(f"v_mov_b32 v{v}, 1")
    k("s_mov_b64 exec, 1")
    k(f"buffer_store_dword v{v}, off, s[{srd}:{srd+3}], {soff} sc1")
    k("s_mov_b64 exec, -1")
    k.label(lab)

def gelu(k, X, T, n):
    for i in range(n): k(f"v_pk_mul_f32 {r(T+2*i,2)}, {r(X+2*i,2)}, {r(X+2*i,2)}")
    for i in range(n): k(f"v_pk_fma_f32 {r(T+2*i,2)}, {r(T+2*i,2)}, v[12:13], v[12:13] op_sel:[0,1,0] op_sel_hi:[1,1,0]")
    for i in range(n): k(f"v_pk_mul_f32 {r(T+2*i,2)}, {r(T+2*i,2)}, {r(X+2*i,2)}")
    for i in range(2 * n): k(f"v_exp_f32 v{T+i}, v{T+i}")
    for i in range(n): k(f"v_pk_add_f32 {r(T+2*i,2)}, {r(T+2*i,2)}, 1.0 op_sel_hi:[1,0]")
    for i in range(2 * n): k(f"v_rcp_f32 v{T+i}, v{T+i}")
    for i in range(n): k(f"v_pk_mul_f32 {r(X+2*i,2)}, {r(X+2*i,2)}, {r(T+2*i,2)}")

def x1_addr(k, rt, cb, s0, dst, tmp, kg=3, l16=5):
    k(f"s_lshr_b32 s{s0}, s{rt}, 3")
    k(f"s_mul_i32 s{s0}, s{s0}, 40")
    k(f"s_mul_i32 s{s0+1}, s{cb}, 5")
    k(f"s_add_u32 s{s0}, s{s0}, s{s0+1}")
    k(f"s_lshl_b32 s{s0}, s{s0}, 12")
    k(f"s_bfe_u32 s{s0+1}, s{rt}, 0x20001")
    k(f"s_lshl_b32 s{s0+1}, s{s0+1}, 10")
    k(f"s_add_u32 s{s0}, s{s0}, s{s0+1}")
    k(f"s_and_b32 s{s0+1}, s{rt}, 1")
    k(f"s_lshl_b32 s{s0+1}, s{s0+1}, 8")
    k(f"s_add_u32 s{s0}, s{s0}, s{s0+1}")
    for j in range(1, 5): k(f"s_add_u32 s{s0+j}, s{s0}, {j*4096}")
    k(f"v_lshrrev_b32 v{dst}, 1, v{kg}")
    k(f"v_lshlrev_b32 v{dst}, 9, v{dst}")
    k(f"v_lshl_add_u32 v{dst}, v{l16}, 4, v{dst}")
    k(f"v_and_b32 v{tmp}, 1, v{kg}")
    k(f"v_lshl_add_u32 v{dst}, v{tmp}, 3, v{dst}")

def gemm80_resident(k, NK, order, ACT, A0, WB, srd, soff, lds_base, mid=None):
    for i, ks in enumerate(order):
        k(f"s_add_u32 s38, s{soff}, {ks*4096}")
        k(f"buffer_load_dwordx4 {r(ACT+4*i)}, v1, s[{srd}:{srd+3}], s38 offen sc1")
    k(f"v_add_u32 v8, {lds_base}, v1")
    k(f"v_add_u32 v9, {lds_base+61440}, v1")
    def rd(i):
        ks = order[i]; b = WB + 20 * (i & 1)
        if mid and mid[0] == i: mid[1]()
        a, base = ("v8", 0) if ks < 12 else ("v9", 61440)
        for j in range(5): k(f"ds_read_b128 {r(b+4*j)}, {a} offset:{ks*5120 + j*1024 - base}")
    rd(0)
    for i in range(NK):
        b = WB + 20 * (i & 1)
        if i < NK - 1:
            rd(i + 1)
            k(f"s_waitcnt vmcnt({NK-1-i}) lgkmcnt(5)")
        else:
            k("s_waitcnt vmcnt(0) lgkmcnt(0)")
        for j in range(5):
            c = "0" if i == 0 else r(A0 + 4 * j)
            k(f"v_mfma_f32_16x16x32_bf16 {r(A0+4*j)}, {r(b+4*j)}, {r(ACT+4*i)}, {c}")

def resid(k, A0, X, G, T):
    for i in range(10):
        k(f"v_lshlrev_b32 v{T+2*i}, 16, v{X+i}")
        k(f"v_and_b32 v{T+2*i+1}, 0xffff0000, v{X+i}")
    for i in range(10): k(f"v_pk_fma_f32 {r(A0+2*i,2)}, {r(A0+2*i,2)}, {r(G+2*i,2)}, {r(T+2*i,2)}")
    for i in range(10): k(f"v_cvt_pk_bf16_f32 v{X+i}, v{A0+2*i}, v{A0+2*i+1}")

def gen_k234():
    k = Kern("k2_kernel", 192, 100)
    k("s_cmp_ge_u32 s2, 256")
    k("s_cbranch_scc1 k2_end")
    k.stamp(0); k.rstamp(1)
    k("s_load_dwordx2 s[8:9], s[0:1], 112")
    k("v_lshrrev_b32 v1, 6, v0")
    k("s_and_b32 s3, s2, 7")
    k("v_readfirstlane_b32 s5, v1")
    k(f"s_lshl_b32 s{RB}, s3, 2")
    k("s_bfe_u32 s4, s2, 0x20003")
    k(f"s_add_u32 s{RB}, s{RB}, s4")
    k(f"s_lshr_b32 s{CB8}, s2, 5")
    k("v_and_b32 v1, 63, v0")
    k("v_and_b32 v2, 31, v0")
    k("v_bfe_u32 v3, v0, 5, 1")
    k("v_lshlrev_b32 v1, 4, v1")
    k(f"s_lshl_b32 s4, s{CB8}, 2")
    k(f"s_and_b32 s{W3}, s5, 3")
    k(f"s_add_u32 s4, s4, s{W3}")
    k(f"s_lshl_b32 s6, s{RB}, 1")
    k("s_lshr_b32 s43, s5, 2")
    k("s_add_u32 s6, s6, s43")
    k("v_lshlrev_b32 v15, 30, v3")
    k("v_lshl_add_u32 v15, v2, 3, v15")
    k("s_lshl_b32 s7, s4, 6")
    k("s_add_u32 s7, s7, s6")
    k("s_mul_i32 s7, s7, 1280")
    k("s_lshl_b32 s10, s5, 10")
    k("s_mov_b32 m0, s10")
    k("s_waitcnt lgkmcnt(0)")
    k.srd(20, 8, 9, KV, KV_SZ)
    k.srd(12, 8, 9, Q, ACT_SZ)
    k("buffer_load_dwordx4 v1, s[20:23], m0 offen lds")
    k.srd(16, 8, 9, KMAX, 1024)
    k(f"buffer_load_dwordx4 {r(QA)}, v1, s[12:15], s7 offen")
    k(f"buffer_load_dwordx2 {r(QB,2)}, v15, s[12:15], s7 offen offset:1024")
    k("s_add_u32 m0, m0, 0x2000")
    k(f"buffer_load_dwordx4 {r(S0)}, v1, s[16:19], 0 offen")
    for i in range(3):
        k("buffer_load_dwordx4 v1, s[20:23], m0 offen lds")
        if i < 2:
            k("s_add_u32 m0, m0, 0x2000")
            k.nop(1)
    k("s_load_dwordx2 s[44:45], s[0:1], 32")
    k("s_load_dwordx4 s[48:51], s[0:1], 48")
    k("s_load_dwordx2 s[46:47], s[0:1], 72")
    prio(k, 3)
    k(f"s_bfe_u32 s{VV}, s2, 0x10003")
    k(f"s_lshr_b32 s{RB128}, s{RB}, 1")
    k(f"s_lshl_b32 s{CB16}, s{CB8}, 1")
    k(f"s_add_u32 s{CB16}, s{CB16}, s{VV}")
    k(f"v_mov_b32 v{AK1}, v1")
    k(f"v_lshlrev_b32 v{AK2}, 3, v2")
    k(f"v_add_u32 v{AK2}, 1024, v{AK2}")
    k(f"v_mul_u32_u24 v{AV}, 20, v3")
    k(f"v_add_u32 v{AV}, v{AV}, v2")
    k(f"v_lshlrev_b32 v{AV}, 4, v{AV}")
    k(f"v_add_u32 v{AV}, 1280, v{AV}")
    k("s_mov_b32 s40, 0x000fffff")
    k("s_mov_b32 s41, 0x000fffff")
    k("v_or_b32 v15, 4, v2")
    k("v_cmp_eq_u32 vcc, 28, v15")
    k("v_mov_b32 v15, 0x3f803f80")
    k("s_add_u32 s43, s43, 1")
    k(f"v_cndmask_b32 v{VF[0]}, 0, v15, vcc")
    for i in range(16): k(f"v_mov_b32 v{OO+i}, 0")
    for i in range(1, 16): k(f"v_mov_b32 v{VF[0]+i}, v{VF[0]}")
    for i in range(4, 8): k(f"v_mov_b32 v{PP+i}, 0")
    for b in (QB, KF2[0], KF2[1]):
        k(f"v_mov_b32 v{b+2}, 0"); k(f"v_mov_b32 v{b+3}, 0")
    k.srd(12, 8, 9, O, ACT_SZ)
    k.srd(16, 8, 9, F2, FL_SZ)
    k(f"s_mul_i32 s7, s{CB8}, 102400")
    k(f"s_add_u32 s7, s7, {WOF}")
    k.srd(16 + 16, 8, 9, "s7", 102400)
    k("s_waitcnt vmcnt(3)")
    k(f"v_max3_f32 v{S1}, v{S0}, v{S0+1}, v{S0+2}")
    k(f"v_max_f32 v{S1}, v{S1}, v{S0+3}")
    k(f"v_dot2_f32_bf16 v{S1+2}, v{QA}, v{QA}, 0")
    rowred(k, "v_max_f32", S1)
    for b in (QA + 1, QA + 2, QA + 3, QB, QB + 1):
        k(f"v_dot2_f32_bf16 v{S1+2}, v{b}, v{b}, v{S1+2}")
    k(f"v_mov_b32 v{S1+1}, v{S1}")
    k.nop(3)
    k(f"v_mov_b32 v{S1+3}, v{S1+2}")
    k(f"v_permlane16_swap_b32 v{S1}, v{S1+1}")
    k(f"v_max_f32 v{S1}, v{S1}, v{S1+1}")
    k(f"v_permlane32_swap_b32 v{S1+2}, v{S1+3}")
    k(f"v_mov_b32 v{S1+1}, v{S1}")
    k(f"v_add_f32 v{S1+2}, v{S1+2}, v{S1+3}")
    k.nop(1)
    k(f"v_permlane32_swap_b32 v{S1}, v{S1+1}")
    k(f"v_add_f32 v{S1}, v{S1}, v{S1+1}")
    k(f"v_mul_f32 v{S1}, v{S1}, v{S1+2}")
    k(f"v_sqrt_f32 v{S1}, v{S1}")
    k.nop(1)
    k(f"v_mul_f32 v{CM}, {hexf(-1.001)}, v{S1}")
    for i in range(1, 16): k(f"v_mov_b32 v{CM+i}, v{CM}")
    def rdK(t, buf):
        k(f"ds_read_b128 {r(KF1[buf])}, v{AK1} offset:{t*2560}")
        k(f"ds_read_b64 {r(KF2[buf],2)}, v{AK2} offset:{t*2560}")
    def rdV(t, buf):
        k("s_mov_b64 exec, s[40:41]")
        k(f"ds_read_b128 {r(VF[buf])}, v{AV} offset:{t*2560}")
        k(f"ds_read_b128 {r(VF[buf]+4)}, v{AV} offset:{t*2560+640}")
        k("s_mov_b64 exec, -1")
    SB = (S0, S1)
    k("s_waitcnt vmcnt(0) lgkmcnt(0)")
    k("s_barrier")
    if not os.environ.get("ITER"): k.stamp(2)
    rdK(0, 0); rdK(1, 1); rdV(0, 0)
    k("s_waitcnt lgkmcnt(4)")
    k(f"v_mfma_f32_32x32x16_bf16 {r(S0,16)}, {r(KF1[0])}, {r(QA)}, {r(CM,16)}")
    k(f"v_mfma_f32_32x32x16_bf16 {r(S0,16)}, {r(KF2[0])}, {r(QB)}, {r(S0,16)}")
    k.nop(8)
    def body(dma, every=5, last=False, first=False):
        left = list(dma)
        body.n0 = len(k.lines)
        def ex(reg):
            if left and ex.n % every == 1:
                srd, pre, fl = left.pop(0)
                k(pre)
                k(f"v_exp_f32 v{reg}, v{reg}")
                k(f"buffer_load_dwordx4 v1, s[{srd}:{srd+3}], m0 offen {fl}lds")
            else:
                k(f"v_exp_f32 v{reg}, v{reg}")
            ex.n += 1
        ex.n = 0
        for t in range(8):
            cur = SB[t & 1]; nxt = SB[(t + 1) & 1]
            def E(lo):
                for i in range(lo, lo + 4): ex(cur + i)
                for i in range(lo // 2, lo // 2 + 2): k(f"v_cvt_pk_bf16_f32 v{PP+i}, v{cur+2*i}, v{cur+2*i+1}")
            fin = last and t == 7
            if (last or first) and t in (2, 4, 6): prio(k, 3 - t // 2)
            k("s_waitcnt lgkmcnt(0)")
            if not (last and t >= 6): rdK(t + 2, t & 1)
            else: k.nop(1)
            k(f"v_mfma_f32_32x32x16_bf16 {r(OO,16)}, {r(VF[(t+1)&1]+4)}, {r(PP+4)}, {r(OO,16)}")
            E(0)
            if not fin:
                k(f"v_mfma_f32_32x32x16_bf16 {r(nxt,16)}, {r(KF1[(t+1)&1])}, {r(QA)}, {r(CM,16)}")
                rdV(t + 1, (t + 1) & 1)
            E(4)
            if not fin: k(f"v_mfma_f32_32x32x16_bf16 {r(nxt,16)}, {r(KF2[(t+1)&1])}, {r(QB)}, {r(nxt,16)}")
            if t == 7 and not last:
                k(f"v_add_u32 v{AK1}, 20480, v{AK1}")
                k(f"v_add_u32 v{AK2}, 20480, v{AK2}")
                k(f"v_add_u32 v{AV}, 20480, v{AV}")
            E(8)
            k(f"v_mfma_f32_32x32x16_bf16 {r(OO,16)}, {r(VF[t&1])}, {r(PP)}, {r(OO,16)}")
            E(12)
        assert not left
        X = os.environ.get("XP", "")
        if X:
            new = []
            for l in k.lines[body.n0:]:
                if "nopv" in X and "v_mfma" in l and l.split()[1].startswith(f"v[{OO}:"): l = "    s_nop 0"
                if "noqk2" in X and "v_mfma" in l and f"{r(QB)}" in l: l = "    s_nop 0"
                if "nolds" in X and "ds_read" in l: l = "    s_nop 0"
                if "noexp" in X and "v_exp" in l: l = l.replace("v_exp_f32", "v_mov_b32")
                if "nocvt" in X and "v_cvt_pk" in l: l = "    s_nop 0"
                if "qk8" in X and "v_mfma" in l and f"{r(QB)}" in l:
                    l = l.replace("v_mfma_f32_32x32x16_bf16", "v_mfma_f32_32x32x8bf16_1k").replace(r(QB), r(QB, 2)).replace(r(KF2[0]), r(KF2[0], 2)).replace(r(KF2[1]), r(KF2[1], 2))
                new.append(l)
            k.lines[body.n0:] = new
        if last:
            k.nop(2)
            k(f"v_mfma_f32_32x32x16_bf16 {r(OO,16)}, {r(VF[1]+4)}, {r(PP+4)}, {r(OO,16)}")
    INC = "s_add_u32 m0, m0, 0x2000"
    body([(20, INC, '')] * 16, first=True)
    k("s_waitcnt vmcnt(0)")
    k("s_barrier")
    k("s_mov_b32 s42, 1")
    k("s_add_u32 s39, s43, 1")
    k("s_branch k2_disp")
    k.lines.append(".p2align 6")
    k.label("k2_loop")
    body([])
    k("s_add_u32 s42, s42, 1")
    k.label("k2_disp")
    if os.environ.get("ITER"):
        for i in range(1, 7):
            k(f"s_cmp_eq_u32 s42, {i}")
            k(f"s_cbranch_scc0 k2_it{i}")
            k.stamp(i + 1)
            k.label(f"k2_it{i}")
    if not os.environ.get("NOSIDE"):
        k("s_cmp_eq_u32 s42, s43")
        k("s_cbranch_scc1 k2_sideld")
        k("s_cmp_eq_u32 s42, s39")
        k("s_cbranch_scc1 k2_side")
    k.label("k2_cont")
    prio(k, 2)
    k("s_cmp_eq_u32 s42, 1")
    k("s_cbranch_scc1 k2_loop")
    k("s_cmp_eq_u32 s42, 5")
    k("s_cbranch_scc1 " + ("k2_loop" if os.environ.get("NOBLK") else "k2_blk5"))
    prio(k, 1)
    k("s_cmp_eq_u32 s42, 2")
    k("s_cbranch_scc1 k2_loop")
    k("s_cmp_eq_u32 s42, 6")
    k("s_cbranch_scc1 " + ("k2_loop" if os.environ.get("NOBLK") else "k2_blk6"))
    prio(k, 0)
    k("s_cmp_eq_u32 s42, 3")
    k("s_cbranch_scc1 k2_loop")
    prio(k, 3)
    k("s_cmp_eq_u32 s42, 4")
    k("s_cbranch_scc1 " + ("k2_loop" if os.environ.get("NOBLK") else "k2_blk4"))
    k("s_sub_u32 m0, s10, 0x2000")
    k(f"s_mul_i32 s7, s{CB16}, 122880")
    k(f"s_add_u32 s7, s7, {WINF - 40960}")
    k.srd(72, 8, 9, "s7", 163840)
    k("s_cmp_lt_u32 s5, 4")
    k("s_cselect_b32 s11, 98304, 0")
    k("s_add_u32 s11, s11, s10")
    k("s_cmp_lg_u32 s5, " + ("99" if os.environ.get("NOBLK") else "0"))
    k("s_cbranch_scc1 k2_fsok")
    k("s_mov_b32 s38, 0")
    k.label("k2_fschk")
    k("s_waitcnt vmcnt(0)")
    k("v_min3_u32 v168, v168, v169, v170")
    k("v_min_u32 v168, v168, v171")
    k("v_cmp_ne_u32 vcc, 0, v168")
    k("s_cmp_eq_u64 vcc, -1")
    k("s_cbranch_scc1 k2_fsok")
    k("s_sleep 1")
    k(f"buffer_load_dwordx4 v[168:171], v1, s[16:19], s37 offen sc1")
    k("s_add_u32 s38, s38, 1")
    k(f"s_cmp_lt_u32 s38, {SPIN}")
    k("s_cbranch_scc1 k2_fschk")
    k.label("k2_fsok")
    k("s_barrier")
    body([(32, INC, 'sc1 ')] * 12 + [(32, 's_mov_b32 m0, s11', 'sc1 ')] + [(72, 's_add_u32 m0, s10, 102400', 'sc1 ')] + [(72, INC, 'sc1 ')] * 4, every=7, last=True)
    if os.environ.get("ITER"):
        k.endpgm(2)
    k.stamp(3)
    k(f"v_mov_b32 v15, {hexf(2.0**-80)}")
    k.nop(11)
    k(f"v_cmp_nge_f32 vcc, v{OO+12}, v15")
    k.nop(5)
    k("s_cbranch_vccnz k2_slow")
    k.label("k2_epi")
    k(f"v_rcp_f32 v{S0}, v{OO+12}")
    k(f"s_mul_i32 s7, s{RB}, 81920")
    k("s_and_b32 s10, s6, 1")
    k("s_lshl_b32 s10, s10, 11")
    k("s_add_u32 s10, s7, s10")
    k(f"v_lshrrev_b32 v{S0+3}, 4, v2")
    k(f"v_lshlrev_b32 v{S0+3}, 10, v{S0+3}")
    k(f"v_and_b32 v{S0+2}, 15, v2")
    k(f"v_lshl_add_u32 v{S0+3}, v{S0+2}, 4, v{S0+3}")
    k("s_mul_i32 s11, s4, 20")
    k(f"v_lshl_add_u32 v{S0+4}, v3, 2, s11")
    for i in range(6):
        k(f"v_pk_mul_f32 {r(OO+2*i,2)}, {r(OO+2*i,2)}, {r(S0,2)} op_sel_hi:[1,0]")
    for i in range(6):
        k(f"v_cvt_pk_bf16_f32 v{PP+i}, v{OO+2*i}, v{OO+2*i+1}")
    for i in range(3):
        c = S0 + 8 + 4 * i
        k(f"v_add_u32 v{c}, {8*i}, v{S0+4}")
        k(f"v_lshrrev_b32 v{c+1}, 5, v{c}")
        k(f"v_lshl_add_u32 v{c+1}, v{c+1}, 12, v{S0+3}")
        k(f"v_bfe_u32 v{c+2}, v{c}, 3, 2")
        k(f"v_lshl_add_u32 v{c+1}, v{c+2}, 8, v{c+1}")
        k(f"v_and_b32 v{c+2}, 4, v{c}")
        k(f"v_lshl_add_u32 v{c+1}, v{c+2}, 1, v{c+1}")
        if i == 2:
            k(f"v_lshl_add_u32 v{c+1}, v3, 30, v{c+1}")
        k(f"buffer_store_dwordx2 {r(PP+2*i,2)}, v{c+1}, s[12:15], s10 offen sc1")
    k(f"s_lshl_b32 s36, s{RB}, 7")
    k(f"s_lshl_b32 s37, s{CB8}, 2")
    k("s_add_u32 s37, s37, s36")
    k("s_cmp_ge_u32 s5, 4")
    k("s_cbranch_scc1 k2_loader")
    XR_, GA_R, ACT, A0, WB = 120, 132, 16, 96, 152
    k("s_waitcnt vmcnt(0)")
    k("s_barrier")
    setflag(k, 16, "s37", "k2_f2done")
    k.stamp(4)
    k("v_bfe_u32 v3, v0, 4, 2")
    k("v_and_b32 v5, 15, v0")
    k(f"s_lshl_b32 s6, s{RB}, 2")
    k("s_add_u32 s6, s6, s5")
    x1_addr(k, 6, CB8, 60, 6, 7)
    k("s_lshl_b32 s10, s5, 10")
    k("s_add_u32 s7, s7, s10")
    k.srd(52, 8, 9, X1, ACT_SZ)
    k.srd(56, 8, 9, SP2, SP2_SZ)
    poll(k, "k2_p2", 16, "s36", 8, 10, 11)
    k.stamp(5)
    gemm80_resident(k, 20, list(range(20)), ACT, A0, WB, 12, 7, 0)
    if os.environ.get("FINE"): k.stamp(2)
    k("s_barrier")
    k.nop(4)
    resid(k, A0, XR_, GA_R, WB)
    k("v_and_b32 v7, 1, v3")
    k("v_mul_u32_u24 v7, 4088, v7")
    k("v_add_u32 v7, v7, v6")
    for i in range(10):
        k(f"v_lshlrev_b32 v{A0+2*i}, 16, v{XR_+i}")
        k(f"v_and_b32 v{A0+2*i+1}, 0xffff0000, v{XR_+i}")
    for p in range(2):
        k(f"v_permlane16_swap_b32 v{XR_+4*p}, v{XR_+4*p+2}")
        k(f"v_permlane16_swap_b32 v{XR_+4*p+1}, v{XR_+4*p+3}")
        k(f"buffer_store_dwordx4 {r(XR_+4*p)}, v7, s[52:55], s{60+2*p} offen sc1")
    k(f"buffer_store_dwordx2 {r(XR_+8,2)}, v6, s[52:55], s64 offen sc1")
    k(f"v_pk_add_f32 v[10:11], {r(A0,2)}, {r(A0+2,2)}")
    k(f"v_pk_mul_f32 v[12:13], {r(A0,2)}, {r(A0,2)}")
    for i in range(1, 10):
        if i > 1: k(f"v_pk_add_f32 v[10:11], v[10:11], {r(A0+2*i,2)}")
        k(f"v_pk_fma_f32 v[12:13], {r(A0+2*i,2)}, {r(A0+2*i,2)}, v[12:13]")
    k("v_add_f32 v10, v10, v11")
    k("v_add_f32 v12, v12, v13")
    k(f"s_lshl_b32 s36, s{RB}, 3")
    k(f"s_add_u32 s36, s36, s{CB8}")
    k("v_lshlrev_b32 v7, 3, v5")
    k("v_permlane16_swap_b32 v10, v12")
    k("v_add_f32 v10, v10, v12")
    k("v_mov_b32 v12, v10")
    k("v_and_b32 v8, 1, v3")
    k("v_lshl_add_u32 v7, v8, 2, v7")
    k("v_permlane32_swap_b32 v10, v12")
    k("v_add_f32 v10, v10, v12")
    k("v_lshrrev_b32 v8, 1, v3")
    k("v_lshl_add_u32 v7, v8, 30, v7")
    k("s_lshl_b32 s36, s36, 9")
    k("s_lshl_b32 s37, s5, 7")
    k("s_add_u32 s36, s36, s37")
    k("buffer_store_dword v10, v7, s[56:59], s36 offen sc1")
    k(f"s_lshl_b32 s36, s{RB128}, 7")
    k(f"s_add_u32 s36, s36, {F3 - F2}")
    k(f"s_lshl_b32 s37, s{CB16}, 2")
    k("s_add_u32 s37, s37, s36")
    if os.environ.get("FINE"): k.stamp(3)
    k("s_waitcnt vmcnt(0)")
    k("s_barrier")
    if os.environ.get("FINE"): k.stamp(4)
    setflag(k, 16, "s37", "k2_f3done")
    ACT, A0, WB, ST = 16, 80, 128, 152
    NR = 16; AH = 12
    k("v_bfe_u32 v3, v0, 5, 1")
    k(f"s_lshl_b32 s6, s{RB128}, 2")
    k("s_add_u32 s6, s6, s5")
    k(f"s_mul_i32 s7, s{RB128}, 163840")
    k("s_add_u32 s7, s7, s10")
    k("s_lshl_b32 s11, s6, 11")
    k("s_and_b32 s37, s5, 1")
    k("s_mul_i32 s37, s37, 1792")
    k("s_sub_u32 s11, s11, s37")
    k("v_lshlrev_b32 v4, 3, v2")
    k("v_lshl_add_u32 v6, v3, 11, v4")
    k("v_add_u32 v7, 40960, v1")
    k("v_add_u32 v14, 102400, v1")
    k(f"v_mov_b32 v12, {hexf(GA_)}")
    k(f"v_mov_b32 v13, {hexf(GB_)}")
    order = list(range(20, 40)) + list(range(20))
    def ld(i):
        k(f"s_add_u32 s38, s7, {order[i]*4096}")
        k(f"buffer_load_dwordx4 {r(ACT+4*(i%NR))}, v1, s[52:55], s38 offen sc1")
    def rd(i):
        ks = order[i]; b = WB + 12 * (i & 1)
        a, base = ("v7", 0) if ks < 20 else ("v14", 61440)
        for j in range(3): k(f"ds_read_b128 {r(b+4*j)}, {a} offset:{ks*3072 + j*1024 - base}")
    rd(0)
    poll(k, "k2_p3", 16, "s36", 16, 10, 11)
    k.stamp(6)
    for i in range(4): k(f"buffer_load_dwordx2 {r(ST+2*i,2)}, v6, s[56:59], s11 offen offset:{i*512} sc1")
    for i in range(AH): ld(i)
    k(f"s_cmp_eq_u32 s{VV}, 0")
    k("s_cbranch_scc0 k2_p4B")
    LC1, LC2, LTAB = 0, 1024, 2048
    def rowtab(S, n, bias_s, bias_q):
        k(f"v_mov_b32 v{S+2}, v{S}")
        k(f"v_mov_b32 v{S+3}, v{S+1}")
        k("s_lshl_b32 s36, s5, 8")
        k(f"s_add_u32 s36, s36, {LTAB}")
        k(f"v_permlane32_swap_b32 v{S}, v{S+2}")
        k(f"v_permlane32_swap_b32 v{S+1}, v{S+3}")
        k(f"v_pk_add_f32 {r(S,2)}, {r(S,2)}, {r(S+2,2)}")
        k("v_lshl_add_u32 v10, v2, 2, s36")
        k(f"v_mov_b32 v{S+2}, {hexf(1.0/n)}")
        k(f"v_fmaak_f32 v8, v{S}, v{S+2}, {hexf(-bias_s/n)}")
        k(f"v_fmaak_f32 v9, v{S+1}, v{S+2}, {hexf(1e-5 - bias_q/n)}")
        k("v_fma_f32 v9, -v8, v8, v9")
        k("v_rsq_f32 v11, v9")
        k.nop(1)
        k("v_mul_f32 v9, v8, v11")
        k("v_sub_f32 v9, 0, v9")
        k("v_mov_b32 v8, v11")
        k("ds_write_b32 v10, v8")
        k("ds_write_b32 v10, v9 offset:128")
    for var in range(2):
        if var == 1: k.label("k2_p4B")
        types = ("z2", "z2", "z1") if var == 0 else ("z2", "z1", "z1")
        for i in range(40):
            b = WB + 12 * (i & 1); a = ACT + 4 * (i % NR)
            if i + AH < 40: ld(i + AH)
            if i == 19: k("s_barrier")
            if i < 39:
                rd(i + 1)
                k(f"s_waitcnt vmcnt({min(AH, 39 - i)}) lgkmcnt(3)")
            else:
                k("s_waitcnt vmcnt(0) lgkmcnt(0)")
            for j in range(3):
                c = "0" if i == 0 else r(A0 + 16 * j, 16)
                x, y = (r(a), r(b + 4 * j)) if types[j] == "z2" else (r(b + 4 * j), r(a))
                k(f"v_mfma_f32_32x32x16_bf16 {r(A0+16*j,16)}, {x}, {y}, {c}")
            if i == 21:
                k(f"v_pk_add_f32 {r(ST,2)}, {r(ST,2)}, {r(ST+2,2)}")
                k(f"v_pk_add_f32 {r(ST+4,2)}, {r(ST+4,2)}, {r(ST+6,2)}")
                k(f"v_pk_add_f32 {r(ST,2)}, {r(ST,2)}, {r(ST+4,2)}")
                rowtab(ST, 640, 0.0, 0.0)
                k("s_waitcnt lgkmcnt(0)")
        k.stamp(7)
        RR, NN, CC, SS, QQ, T, CV = 16, 32, 48, 128, 144, 56, 160
        nz2 = types.count("z2")
        k("v_lshl_add_u32 v10, v3, 4, s36")
        k("v_lshlrev_b32 v11, 2, v2")
        def rd_tab():
            for a in range(4):
                k(f"ds_read_b128 {r(RR+4*a)}, v10 offset:{a*32}")
                k(f"ds_read_b128 {r(NN+4*a)}, v10 offset:{128 + a*32}")
        rd_tab()
        for n in range(nz2):
            k(f"ds_read_b32 v{CC+2*n}, v11 offset:{LC1 + n*128}")
            k(f"ds_read_b32 v{CC+2*n+1}, v11 offset:{LC2 + n*128}")
        k.srd(60, 8, 9, STP, STP_SZ)
        k.srd(64, 8, 9, Z1, Z_SZ)
        k.srd(68, 8, 9, Z2, Z_SZ)
        k("v_lshlrev_b32 v15, 4, v3")
        def rd_c(n):
            for a in range(4):
                k(f"ds_read_b128 {r(CV+4*a)}, v15 offset:{LC1 + n*128 + a*32}")
                k(f"ds_read_b128 {r(CV+16+4*a)}, v15 offset:{LC2 + n*128 + a*32}")
        k("s_waitcnt lgkmcnt(0)")
        rd_c(nz2)
        for n in range(nz2):
            X = A0 + 16 * n; c = r(CC + 2 * n, 2)
            for i in range(8): k(f"v_pk_fma_f32 {r(T+2*i,2)}, {r(NN+2*i,2)}, {c}, {c} op_sel:[0,0,1] op_sel_hi:[1,0,1]")
            for i in range(8): k(f"v_pk_fma_f32 {r(X+2*i,2)}, {r(X+2*i,2)}, {r(RR+2*i,2)}, {r(T+2*i,2)}")
            gelu(k, X, T, 8)
            for i in range(8):
                if n == 0: k(f"v_pk_mul_f32 {r(QQ+2*i,2)}, {r(X+2*i,2)}, {r(X+2*i,2)}")
                else: k(f"v_pk_fma_f32 {r(QQ+2*i,2)}, {r(X+2*i,2)}, {r(X+2*i,2)}, {r(QQ+2*i,2)}")
        for i in range(8):
            if nz2 == 2: k(f"v_pk_add_f32 {r(SS+2*i,2)}, {r(A0+2*i,2)}, {r(A0+16+2*i,2)}")
            else: k(f"v_pk_mul_f32 {r(SS+2*i,2)}, {r(A0+2*i,2)}, 1.0 op_sel_hi:[1,0]")
        k("v_and_b32 v4, 3, v0")
        k("v_bfe_u32 v5, v0, 2, 2")
        for i in range(16): k(f"v_permlane16_swap_b32 v{SS+i}, v{QQ+i}")
        for i in range(16): k(f"v_add_f32 v{SS+i}, v{SS+i}, v{QQ+i}")
        for j in range(8): k(f"v_add_f32_dpp v{SS+j}, v{SS+j}, v{SS+j} row_ror:8 row_mask:0xf bank_mask:0x3")
        for j in range(8): k(f"v_add_f32_dpp v{SS+j}, v{SS+8+j}, v{SS+8+j} row_ror:8 row_mask:0xf bank_mask:0xc")
        for j in range(4): k(f"v_add_f32_dpp v{SS+j}, v{SS+j}, v{SS+j} row_half_mirror row_mask:0xf bank_mask:0x5")
        for j in range(4): k(f"v_add_f32_dpp v{SS+j}, v{SS+4+j}, v{SS+4+j} row_half_mirror row_mask:0xf bank_mask:0xa")
        for j in range(4): k(f"v_add_f32_dpp v{SS+j}, v{SS+j}, v{SS+j} quad_perm:[2,3,0,1] row_mask:0xf bank_mask:0xf")
        for j in range(4): k(f"v_add_f32_dpp v{SS+j}, v{SS+j}, v{SS+j} quad_perm:[1,0,3,2] row_mask:0xf bank_mask:0xf")
        k("v_lshl_add_u32 v4, v5, 3, v4")
        k("v_lshl_add_u32 v4, v3, 2, v4")
        k("v_lshlrev_b32 v4, 3, v4")
        k("v_bfe_u32 v5, v0, 4, 1")
        k("v_lshl_add_u32 v4, v5, 2, v4")
        k("v_cvt_f32_u32 v5, v5")
        k(f"v_fmaak_f32 v5, {hexf(-15.0)}, v5, {hexf(16.0)}" if False else f"v_mul_f32 v5, {hexf(-15.0)}, v5")
        k(f"v_add_f32 v5, {hexf(16.0)}, v5")
        for j in range(1, 4):
            m = hex(0x11111111 << j)
            k(f"s_mov_b32 s40, {m}")
            k(f"s_mov_b32 s41, {m}")
            k(f"v_cndmask_b32 v{SS}, v{SS}, v{SS+j}, s[40:41]")
        k(f"s_lshl_b32 s37, s{RB128}, 14")
        k("s_lshl_b32 s38, s5, 8")
        k("s_add_u32 s37, s37, s38")
        k(f"s_lshl_b32 s38, s{CB16}, 10")
        k("s_add_u32 s38, s38, s37")
        k(f"v_add_f32 v{SS}, v{SS}, v5")
        k(f"buffer_store_dword v{SS}, v4, s[60:63], s38 offen sc1")
        k("s_mul_i32 s39, s6, 24")
        k(f"s_mul_i32 s38, s{CB8}, 3")
        k("s_add_u32 s39, s39, s38")
        k(f"s_add_u32 s39, s39, {var}")
        k("s_lshl_b32 s39, s39, 11")
        for n in range(nz2, 3):
            X = A0 + 16 * n
            k("s_waitcnt lgkmcnt(0)")
            for i in range(8):
                k(f"v_pk_fma_f32 {r(T+2*i,2)}, v[8:9], {r(CV+2*i,2)}, {r(CV+16+2*i,2)} op_sel:[1,0,0] op_sel_hi:[1,1,1]")
            if n < 2: rd_c(n + 1)
            for i in range(8):
                k(f"v_pk_fma_f32 {r(X+2*i,2)}, {r(X+2*i,2)}, v[8:9], {r(T+2*i,2)} op_sel_hi:[1,0,1]")
            gelu(k, X, T, 8)
            P = SS + 8 * (n - nz2)
            for i in range(8): k(f"v_cvt_pk_bf16_f32 v{P+i}, v{X+2*i}, v{X+2*i+1}")
            for ap in range(2):
                k(f"buffer_store_dwordx4 {r(P+4*ap)}, v1, s[64:67], s39 offen offset:{(n-nz2)*2048 + ap*1024} {Z_SC}")
        G = CV
        k("v_lshlrev_b32 v4, 3, v2")
        k("v_lshl_add_u32 v4, v3, 13, v4")
        k("s_add_u32 s38, s37, 4096")
        k("s_mov_b32 s42, 0")
        lab = f"k2_st{var}"
        k.label(lab)
        for i in range(8):
            k(f"buffer_load_dwordx2 {r(G+2*i,2)}, v4, s[60:63], {'s37' if i < 4 else 's38'} offen offset:{(i&3)*1024} sc1")
        k("s_add_u32 s42, s42, 1")
        k("s_waitcnt vmcnt(0)")
        k(f"v_min3_u32 v5, v{G}, v{G+1}, v{G+2}")
        for i in range(6): k(f"v_min3_u32 v5, v5, v{G+3+2*i}, v{G+4+2*i}")
        k(f"v_min_u32 v5, v5, v{G+15}")
        k("v_cmp_ne_u32 vcc, 0, v5")
        k("s_cmp_eq_u64 vcc, -1")
        k(f"s_cbranch_scc1 {lab}_ok")
        k("s_sleep 1")
        k(f"s_cmp_lt_u32 s42, {SPIN}")
        k(f"s_cbranch_scc1 {lab}")
        k.label(lab + "_ok")
        for a, b_ in ((0, 2), (4, 6), (8, 10), (12, 14), (0, 4), (8, 12), (0, 8)):
            k(f"v_pk_add_f32 {r(G+a,2)}, {r(G+a,2)}, {r(G+b_,2)}")
        rowtab(G, 768, 256.0, 16.0)
        k("v_lshl_add_u32 v10, v3, 4, s36")
        k(f"s_lshl_b32 s37, s{CB8}, 7")
        k("s_lshl_b32 s38, s6, 1")
        k("s_add_u32 s37, s37, s38")
        k("s_mul_i32 s37, s37, 3072")
        k(f"s_add_u32 s37, s37, {2048*var}")
        k("s_add_u32 s38, s37, 3072")
        k("s_waitcnt lgkmcnt(0)")
        rd_tab()
        k("s_waitcnt lgkmcnt(0)")
        for n in range(nz2):
            X = A0 + 16 * n; P = T + 8 * n
            for i in range(8): k(f"v_pk_fma_f32 {r(X+2*i,2)}, {r(X+2*i,2)}, {r(RR+2*i,2)}, {r(NN+2*i,2)}")
            for i in range(8): k(f"v_cvt_pk_bf16_f32 v{P+i}, v{X+2*i}, v{X+2*i+1}")
            k.nop(1)
            for h in range(2):
                k(f"v_permlane32_swap_b32 v{P+4*h}, v{P+4*h+2}")
                k(f"v_permlane32_swap_b32 v{P+4*h+1}, v{P+4*h+3}")
                k(f"buffer_store_dwordx4 {r(P+4*h)}, v1, s[68:71], {'s37' if h == 0 else 's38'} offen offset:{n*1024} {Z_SC}")
        k.endpgm(2)
    k.label("k2_loader")
    k.srd(56, 8, 9, C1, 12288)
    k(f"s_lshl_b32 s10, s{W3}, 10")
    k("s_waitcnt vmcnt(0)")
    k("s_barrier")
    k.stamp(4)
    k("s_add_u32 m0, s10, 143360")
    for i in range(5):
        k.nop(1)
        k("buffer_load_dwordx4 v1, s[72:75], m0 offen sc1 lds")
        if i < 4: k("s_add_u32 m0, m0, 4096")
    k("s_waitcnt vmcnt(0)")
    k.stamp(5)
    k("s_barrier")
    k(f"s_mul_i32 s11, s{CB16}, 384")
    k("s_and_b32 s36, s5, 1")
    k("s_mul_i32 s37, s36, 6144")
    k("s_add_u32 s11, s11, s37")
    k("s_lshl_b32 m0, s36, 10")
    k.nop(1)
    k("buffer_load_dwordx4 v1, s[56:59], s11 offen sc1 lds")
    k("s_add_u32 m0, s10, 40960")
    for i in range(15):
        k.nop(1)
        k("buffer_load_dwordx4 v1, s[72:75], m0 offen sc1 lds")
        if i < 14: k("s_add_u32 m0, m0, 4096")
    k("s_barrier")
    k("s_waitcnt vmcnt(0)")
    k.stamp(6)
    k("s_barrier")
    k("s_lshl_b32 s7, s3, 20")
    k(f"s_add_u32 s7, s7, {WSPF}")
    k.srd(52, 8, 9, "s7", 0x100000)
    k.srd(56, 8, 9, WOUTF, WOUTF_SZ)
    k("s_lshr_b32 s7, s2, 3")
    k("s_lshl_b32 s7, s7, 2")
    k(f"s_add_u32 s7, s7, s{W3}")
    k("s_mul_i32 s11, s7, 7680")
    k("s_lshl_b32 s7, s7, 13")
    for h in range(2 if PF_NEXT & 1 else 0):
        for i in range(4): k(f"buffer_load_dwordx4 v[16:19], v1, s[52:55], s7 offen offset:{i*1024}")
        k("s_add_u32 s7, s7, 4096")
    for h in range(2 if PF_NEXT & 2 else 0):
        for i in range(4): k(f"buffer_load_dwordx4 v[16:19], v1, s[56:59], s11 offen offset:{i*1024}")
        k("s_add_u32 s11, s11, 4096")
    k.endpgm(2)
    k.label("k2_end")
    k("s_endpgm")
    k.label("k2_blk4")
    k("s_lshl_b32 s37, s2, 2")
    k(f"s_add_u32 s37, s37, {FS - F2}")
    k("s_waitcnt vmcnt(0)")
    k("s_barrier")
    setflag(k, 16, "s37", "k2_fsdone", 168)
    k("s_branch k2_loop")
    k.label("k2_blk5")
    k.srd(68, 8, 9, WINF, WINF_SZ)
    k("s_mul_i32 s53, s53, 7680")
    for i in range(4 if PF_WIN else 0): k(f"buffer_load_dwordx4 v[172:175], v1, s[68:71], s53 offen offset:{i*1024} {os.environ.get('PF_SC', 'sc1')}")
    k("s_branch k2_loop")
    k.label("k2_blk6")
    k.srd(68, 8, 9, WINF, WINF_SZ)
    k("s_add_u32 s53, s53, 4096")
    for i in range(4 if PF_WIN else 0): k(f"buffer_load_dwordx4 v[172:175], v1, s[68:71], s53 offen offset:{i*1024} {os.environ.get('PF_SC', 'sc1')}")
    k("s_cmp_ge_u32 s5, 4")
    k("s_cbranch_scc1 k2_loop")
    k("v_bfe_u32 v176, v0, 4, 2")
    k("v_and_b32 v177, 15, v0")
    k(f"s_lshl_b32 s59, s{RB}, 2")
    k("s_add_u32 s59, s59, s5")
    x1_addr(k, 59, CB8, 60, 178, 179, 176, 177)
    k("v_lshlrev_b32 v179, 4, v176")
    k(f"s_mul_i32 s38, s{CB8}, 320")
    k.srd(52, 8, 9, XR, ACT_SZ)
    k.srd(56, 8, 9, MOD + 5120, 2560)
    for j in range(5): k(f"buffer_load_dwordx2 {r(120+2*j,2)}, v178, s[52:55], s{60+j} offen")
    for j in range(5): k(f"buffer_load_dwordx4 {r(132+4*j)}, v179, s[56:59], s38 offen offset:{j*64}")
    k("s_cmp_lg_u32 s5, 0")
    k("s_cbranch_scc1 k2_loop")
    k(f"s_movk_i32 s37, {hex(FS - F2)}")
    k(f"buffer_load_dwordx4 v[168:171], v1, s[16:19], s37 offen sc1")
    k("s_branch k2_loop")
    k.label("k2_sideld")
    k("s_lshl_b32 s52, s2, 3")
    k("s_add_u32 s52, s52, s5")
    k("s_lshr_b32 s53, s2, 3")
    k("s_lshl_b32 s53, s53, 3")
    k("s_add_u32 s53, s53, s5")
    k.srd(56, 48, 49, 0, 640 * 3072)
    k.srd(64, 8, 9, MOD + 7680, 5120)
    k("s_mul_i32 s62, s52, 1639")
    k("s_lshr_b32 s62, s62, 16")
    k("s_mul_i32 s63, s62, 40")
    k("s_sub_u32 s63, s52, s63")
    k("s_mul_i32 s68, s63, 49152")
    k("s_lshl_b32 s69, s62, 6")
    k("s_add_u32 s68, s68, s69")
    k("s_cmp_lt_u32 s52, 1920")
    k("s_cselect_b32 s70, 0, 0x40000000")
    k("s_add_u32 s68, s68, s70")
    k("v_mul_u32_u24 v15, 24576, v3")
    k("v_lshl_add_u32 v15, v2, 1, v15")
    for j in range(8):
        k(f"buffer_load_ushort v{136+j}, v15, s[56:59], s68 offen")
        if j < 7: k("s_add_u32 s68, s68, 3072")
    k("s_lshl_b32 s68, s63, 6")
    k("v_lshlrev_b32 v15, 5, v3")
    k(f"buffer_load_dwordx4 {r(144)}, v15, s[64:67], s68 offen")
    k(f"buffer_load_dwordx4 {r(148)}, v15, s[64:67], s68 offen offset:16")
    k(f"buffer_load_dwordx4 {r(152)}, v15, s[64:67], s68 offen offset:2560")
    k(f"buffer_load_dwordx4 {r(156)}, v15, s[64:67], s68 offen offset:2576")
    k("s_cmp_ge_u32 s62, 24")
    k("s_cselect_b32 s68, 24, 0")
    k("s_cselect_b32 s71, 0x310, 0")
    k("s_cselect_b32 s72, 0, 0x542")
    k("s_or_b32 s71, s71, s72")
    k("s_sub_u32 s62, s62, s68")
    k("s_mul_i32 s68, s62, 86")
    k("s_lshr_b32 s68, s68, 8")
    k("s_mul_i32 s69, s68, 3")
    k("s_sub_u32 s69, s62, s69")
    k("s_lshl_b32 s69, s69, 2")
    k("s_lshr_b32 s71, s71, s69")
    k("s_and_b32 s71, s71, 15")
    k("s_mul_i32 s62, s68, 6")
    k("s_add_u32 s62, s62, s71")
    k("s_mul_i32 s68, s62, 86")
    k("s_lshr_b32 s68, s68, 8")
    k("s_mul_i32 s69, s68, 3")
    k("s_sub_u32 s69, s62, s69")
    k("s_mul_i32 s68, s68, 40")
    k("s_add_u32 s68, s68, s63")
    k("s_mul_i32 s68, s68, 3")
    k("s_add_u32 s68, s68, s69")
    k("s_lshl_b32 s68, s68, 10")
    k("s_add_u32 s63, s68, s70")
    k("s_lshl_b32 s62, s62, 7")
    k("s_add_u32 s62, s62, s70")
    k("s_cmp_lt_u32 s52, 800")
    k("s_cselect_b32 s56, s44, s46")
    k("s_cselect_b32 s57, s45, s47")
    k("s_mov_b32 s58, 983040")
    k("s_cselect_b32 s58, 819200, s58")
    k("s_mov_b32 s59, 0x20000")
    k("s_cselect_b32 s68, 0, 800")
    k("s_movk_i32 s69, 2731")
    k("s_cselect_b32 s69, 3277, s69")
    k("s_cselect_b32 s71, 20, 24")
    k(f"s_cselect_b32 s72, 0, {WOUTF - WOF}")
    k("s_sub_u32 s68, s52, s68")
    k("s_mul_i32 s69, s68, s69")
    k("s_lshr_b32 s69, s69, 16")
    k("s_mul_i32 s73, s69, s71")
    k("s_sub_u32 s68, s68, s73")
    k("s_cmp_lt_u32 s52, 1760")
    k("s_cselect_b32 s70, 0, 0x40000000")
    k("s_mul_i32 s73, s68, 40960")
    k("s_lshl_b32 s74, s69, 5")
    k("s_add_u32 s73, s73, s74")
    k("s_add_u32 s73, s73, s70")
    k("s_add_u32 s74, s73, 5120")
    k("v_bfe_u32 v15, v0, 4, 2")
    k("v_mul_u32_u24 v15, 10240, v15")
    k("v_and_b32 v160, 15, v0")
    k("v_lshl_add_u32 v15, v160, 1, v15")
    for j in range(8):
        k(f"buffer_load_ushort v{160+j}, v15, s[56:59], {'s73' if j < 4 else 's74'} offen offset:{(j&3)*1280}")
    k("s_mul_i32 s73, s69, 52")
    k("s_lshr_b32 s73, s73, 8")
    k("s_mul_i32 s74, s73, 5")
    k("s_sub_u32 s74, s69, s74")
    k("s_mul_i32 s73, s73, s71")
    k("s_add_u32 s73, s73, s68")
    k("s_mul_i32 s73, s73, 5")
    k("s_add_u32 s73, s73, s74")
    k("s_lshl_b32 s73, s73, 10")
    k("s_add_u32 s73, s73, s72")
    k("s_add_u32 s60, s73, s70")
    k.srd(56, 50, 51, 0, WSPF_SZ)
    k("s_lshl_b32 s54, s3, 3")
    k("s_lshr_b32 s55, s53, 5")
    k("s_add_u32 s54, s54, s55")
    k("s_and_b32 s55, s53, 31")
    k("s_lshl_b32 s68, s54, 17")
    k("s_lshl_b32 s69, s55, 7")
    k("s_add_u32 s68, s68, s69")
    k("s_lshr_b32 s61, s54, 1")
    k("s_lshl_b32 s61, s61, 18")
    k("s_lshl_b32 s69, s55, 13")
    k("s_add_u32 s61, s61, s69")
    k("s_and_b32 s69, s54, 1")
    k("s_lshl_b32 s69, s69, 10")
    k("s_add_u32 s61, s61, s69")
    k("v_lshlrev_b32 v15, 12, v2")
    k("v_lshl_add_u32 v15, v3, 4, v15")
    for q in range(4):
        k(f"buffer_load_dwordx4 {r(120+4*q)}, v15, s[56:59], s68 offen offset:{q*32}")
    k("s_branch k2_cont")
    k.label("k2_side")
    k.srd(64, 8, 9, WSPF, WSPF_SZ)
    k.srd(68, 8, 9, WINF, WINF_SZ)
    k.srd(72, 8, 9, C1, 12288)
    k.srd(56, 8, 9, WOF, WOUTF + WOUTF_SZ - WOF)
    k("s_add_u32 s54, s61, 4096")
    k("s_waitcnt vmcnt(0)")
    for j in range(4):
        k(f"v_lshl_or_b32 v{160+j}, v{161+2*j}, 16, v{160+2*j}")
    k(f"buffer_store_dwordx4 {r(160)}, v1, s[56:59], s60 offen {SIDE_SC}")
    for j in range(8): k(f"v_lshlrev_b32 v{136+j}, 16, v{136+j}")
    k("v_mul_f32 v165, v136, v144")
    for j in range(1, 8): k(f"v_fmac_f32 v165, v{136+j}, v{144+j}")
    for j in range(8): k(f"v_mul_f32 v{136+j}, v{136+j}, v{152+j}")
    for j in range(4): k(f"v_cvt_pk_bf16_f32 v{144+j}, v{136+2*j}, v{137+2*j}")
    k(f"buffer_store_dwordx4 {r(144)}, v1, s[68:71], s63 offen {SIDE_SC}")
    for j in range(4):
        k(f"v_lshlrev_b32 v{136+2*j}, 16, v{144+j}")
        k(f"v_and_b32 v{137+2*j}, 0xffff0000, v{144+j}")
    for a, b in ((136, 137), (138, 139), (140, 141), (142, 143), (136, 138), (140, 142)):
        k(f"v_add_f32 v{a}, v{a}, v{b}")
    k("v_add_f32 v164, v136, v140")
    k("v_mul_u32_u24 v166, 6144, v3")
    k("v_lshl_add_u32 v166, v2, 2, v166")
    k("v_permlane32_swap_b32 v164, v165")
    k("v_add_f32 v164, v164, v165")
    k("buffer_atomic_add_f32 v164, v166, s[72:75], s62 offen")
    for q in range(4):
        k(f"buffer_store_dwordx4 {r(120+4*q)}, v1, s[64:67], {'s61' if q < 2 else 's54'} offen offset:{(q&1)*2048} {SIDE_SC}")
    k("s_branch k2_cont")
    k.label("k2_slow")
    T = S1
    k(f"v_subrev_u32 v{AK2}, 143360, v{AK2}")
    k(f"v_subrev_u32 v{AV}, 143360, v{AV}")
    k(f"v_mov_b32 v{T}, 0xff800000")
    k("s_mov_b32 s42, 0")
    def ldK():
        k(f"buffer_load_dwordx4 {r(KF1[0])}, v1, s[20:23], s42 offen")
        k(f"buffer_load_dwordx2 {r(KF2[0],2)}, v{AK2}, s[20:23], s42 offen")
    k.label("k2_slow1")
    ldK()
    k("s_waitcnt vmcnt(0)")
    k(f"v_mfma_f32_32x32x16_bf16 {r(S0,16)}, {r(KF1[0])}, {r(QA)}, 0")
    k(f"v_mfma_f32_32x32x16_bf16 {r(S0,16)}, {r(KF2[0])}, {r(QB)}, {r(S0,16)}")
    k.nop(12)
    for i in range(8): k(f"v_max3_f32 v{T}, v{T}, v{S0+2*i}, v{S0+2*i+1}")
    k("s_add_u32 s42, s42, 2560")
    k("s_cmp_lt_u32 s42, 163840")
    k("s_cbranch_scc1 k2_slow1")
    k(f"v_mov_b32 v{T+1}, v{T}")
    k("s_mov_b32 s42, 0")
    k.nop(1)
    k(f"v_permlane32_swap_b32 v{T}, v{T+1}")
    k(f"v_max_f32 v{T}, v{T}, v{T+1}")
    for i in range(16): k(f"v_sub_f32 v{CM+i}, 0, v{T}")
    for i in range(16): k(f"v_mov_b32 v{OO+i}, 0")
    k.label("k2_slow2")
    ldK()
    k("s_mov_b64 exec, s[40:41]")
    k(f"buffer_load_dwordx4 {r(VF[0])}, v{AV}, s[20:23], s42 offen")
    k(f"buffer_load_dwordx4 {r(VF[0]+4)}, v{AV}, s[20:23], s42 offen offset:640")
    k("s_mov_b64 exec, -1")
    k("s_waitcnt vmcnt(0)")
    k(f"v_mfma_f32_32x32x16_bf16 {r(S0,16)}, {r(KF1[0])}, {r(QA)}, {r(CM,16)}")
    k(f"v_mfma_f32_32x32x16_bf16 {r(S0,16)}, {r(KF2[0])}, {r(QB)}, {r(S0,16)}")
    k.nop(12)
    for i in range(16): k(f"v_exp_f32 v{S0+i}, v{S0+i}")
    k.nop(1)
    for i in range(8): k(f"v_cvt_pk_bf16_f32 v{PP+i}, v{S0+2*i}, v{S0+2*i+1}")
    k.nop(2)
    k(f"v_mfma_f32_32x32x16_bf16 {r(OO,16)}, {r(VF[0])}, {r(PP)}, {r(OO,16)}")
    k(f"v_mfma_f32_32x32x16_bf16 {r(OO,16)}, {r(VF[0]+4)}, {r(PP+4)}, {r(OO,16)}")
    k("s_add_u32 s42, s42, 2560")
    k("s_cmp_lt_u32 s42, 163840")
    k("s_cbranch_scc1 k2_slow2")
    k.nop(12)
    k("s_branch k2_epi")
    return k
```

```python
from asmlib import Kern
from layout import *
from k0 import hexf
from k234 import poll, setflag, x1_addr, gemm80_resident, resid, r
import os

SLOT = 20480; BLK = 5120
K56_LDS = 163840
A0 = 16; ZB = 64; Z1R = 96; BSP = 108
ROTW = int(os.environ.get("K5ROTW", "0"))

def gen_k56():
    k = Kern("k5_kernel", 212, 80)
    k("s_cmp_ge_u32 s2, 256")
    k("s_cbranch_scc1 k5_end")
    k.stamp(0); k.rstamp(1)
    k("s_load_dwordx2 s[8:9], s[0:1], 112")
    k("v_lshrrev_b32 v1, 6, v0")
    k("s_and_b32 s3, s2, 7")
    k("v_readfirstlane_b32 s5, v1")
    k("s_lshl_b32 s3, s3, 2")
    k("s_bfe_u32 s4, s2, 0x20003")
    k("s_add_u32 s3, s3, s4")
    k("s_lshl_b32 s32, s4, 1")
    k("s_lshr_b32 s4, s2, 5")
    k("s_add_u32 s32, s32, s4")
    k(f"s_and_b32 s32, s32, {ROTW}")
    k("v_and_b32 v1, 63, v0")
    k("v_lshlrev_b32 v1, 4, v1")
    k("s_cmp_ge_u32 s5, 4")
    k("s_cbranch_scc1 k5_loader")
    k("s_load_dwordx2 s[40:41], s[0:1], 64")
    k("s_load_dwordx2 s[42:43], s[0:1], 96")
    k("v_and_b32 v2, 31, v0")
    k("v_bfe_u32 v3, v0, 5, 1")
    k("s_and_b32 s6, s5, 1")
    k("s_lshl_b32 s34, s3, 1")
    k("s_add_u32 s34, s34, s6")
    k("s_lshr_b32 s33, s5, 1")
    k("s_mul_i32 s36, s34, 24")
    k("s_mul_i32 s37, s4, 3")
    k("s_add_u32 s36, s36, s37")
    k("s_lshl_b32 s36, s36, 1")
    k("s_add_u32 s36, s36, s33")
    k("s_lshl_b32 s36, s36, 10")
    k("s_add_u32 s37, s36, 4096")
    k("s_lshl_b32 s38, s34, 6")
    k("v_lshlrev_b32 v5, 1, v2")
    k(f"s_mul_i32 s39, s33, {2*BLK}")
    k("v_add_u32 v6, s39, v1")
    k(f"v_add_u32 v7, {2*SLOT}, v6")
    k("s_lshl_b32 s39, s6, 10")
    k("s_add_u32 s39, s39, 3072")
    k("v_add_u32 v8, s39, v6")
    k(f"v_add_u32 v9, {2*SLOT}, v8")
    for i in range(48): k(f"v_mov_b32 v{A0+i}, 0")
    k("s_waitcnt lgkmcnt(0)")
    k.srd(24, 8, 9, Z1, Z_SZ)
    k.srd(28, 40, 41, 0, 4096)
    def reads(s, q, par):
        sl = s & 3; o = (sl & 1) * SLOT + q * BLK; b = ZB + 16 * par
        for n in range(3): k(f"ds_read_b128 {r(b+4*n)}, {'v6' if sl < 2 else 'v7'} offset:{o + n*1024}")
        k(f"ds_read_b128 {r(b+12)}, {'v8' if sl < 2 else 'v9'} offset:{o}")
    k("s_barrier")
    k.stamp(2)
    reads(0, 0, 0)
    k(f"buffer_load_dwordx4 {r(Z1R)}, v1, s[24:27], s36 offen")
    k(f"buffer_load_dwordx4 {r(Z1R+4)}, v1, s[24:27], s36 offen offset:2048")
    k(f"buffer_load_dwordx4 {r(Z1R+8)}, v1, s[24:27], s37 offen")
    k(f"buffer_load_ushort v{BSP}, v5, s[28:31], s38 offen")
    k("v_bfe_u32 v204, v0, 4, 2")
    k("v_and_b32 v205, 15, v0")
    k("s_lshl_b32 s59, s3, 2")
    k("s_add_u32 s59, s59, s5")
    x1_addr(k, 59, 4, 60, 206, 207, 204, 205)
    k("v_lshlrev_b32 v207, 4, v204")
    k("s_mul_i32 s41, s4, 320")
    k.srd(52, 8, 9, X1, ACT_SZ)
    k.srd(56, 8, 9, MOD + 12800, 2560)
    for j in range(5): k(f"buffer_load_dwordx2 {r(172+2*j,2)}, v206, s[52:55], s{60+j} offen")
    for j in range(5): k(f"buffer_load_dwordx4 {r(184+4*j)}, v207, s[56:59], s41 offen offset:{j*64}")
    k("s_mov_b32 s44, 0")
    k.lines.append(".p2align 6")
    k.label("k5_loop")
    for s in range(4):
        for q in range(2):
            b = ZB + 16 * q
            if q == 1:
                k("s_waitcnt lgkmcnt(0)")
                if s == 3:
                    k("s_add_u32 s44, s44, 1")
                    k("s_cmp_eq_u32 s44, 8")
                    k("s_cbranch_scc1 k5_last")
                k("s_barrier")
                reads(s + 1, 0, 0)
            else:
                reads(s, 1, 1)
                k("s_waitcnt lgkmcnt(4)")
            for n in range(3):
                k(f"v_mfma_f32_32x32x16_bf16 {r(A0+16*n,16)}, {r(b+4*n)}, {r(b+12)}, {r(A0+16*n,16)}")
    k("s_branch k5_loop")
    k.label("k5_last")
    b = ZB + 16
    for n in range(3):
        k(f"v_mfma_f32_32x32x16_bf16 {r(A0+16*n,16)}, {r(b+4*n)}, {r(b+12)}, {r(A0+16*n,16)}")
    k.stamp(3)
    k("s_mul_i32 s36, s5, 6144")
    k("v_add_u32 v10, s36, v1")
    k("s_xor_b32 s36, s5, 2")
    k("s_mul_i32 s36, s36, 6144")
    k("v_add_u32 v11, s36, v1")
    k.srd(24, 8, 9, Y, Z_SZ)
    k("s_mul_i32 s7, s3, 98304")
    k("s_mul_i32 s37, s4, 12288")
    k("s_add_u32 s36, s7, s37")
    k("s_lshl_b32 s37, s6, 11")
    k("s_add_u32 s36, s36, s37")
    k("s_lshl_b32 s37, s33, 9")
    k("s_add_u32 s36, s36, s37")
    k("s_add_u32 s37, s36, 4096")
    k("s_add_u32 s38, s36, 8192")
    k("v_lshrrev_b32 v12, 4, v2")
    k("v_lshlrev_b32 v12, 10, v12")
    k("v_lshl_add_u32 v12, v3, 8, v12")
    k("v_and_b32 v13, 15, v0")
    k("v_lshl_add_u32 v12, v13, 4, v12")
    k("s_waitcnt vmcnt(0)")
    k(f"v_lshlrev_b32 v14, 16, v{BSP}")
    k("s_cmp_eq_u32 s33, 0")
    k("s_cbranch_scc0 k5_e1")
    for kh in range(2):
        if kh == 1: k.label("k5_e1")
        keep = 8 * kh; send = 8 * (1 - kh)
        for n in range(3):
            k(f"ds_write_b128 v10, {r(A0+16*n+send)} offset:{n*2048}")
            k(f"ds_write_b128 v10, {r(A0+16*n+send+4)} offset:{n*2048+1024}")
        U = ZB
        for i in range(12):
            k(f"v_lshlrev_b32 v{U+2*i}, 16, v{Z1R+i}")
            k(f"v_and_b32 v{U+2*i+1}, 0xffff0000, v{Z1R+i}")
        for n in range(3):
            for i in range(4):
                a = A0 + 16 * n + keep + 2 * i
                k(f"v_pk_add_f32 {r(a,2)}, {r(a,2)}, v[14:15] op_sel_hi:[1,0]")
        k("s_waitcnt lgkmcnt(0)")
        k("s_barrier")
        for n in range(3):
            k(f"ds_read_b128 {r(A0+16*n+send)}, v11 offset:{n*2048}")
            k(f"ds_read_b128 {r(A0+16*n+send+4)}, v11 offset:{n*2048+1024}")
        for n in range(3):
            k(f"s_waitcnt lgkmcnt({4-2*n})")
            for i in range(4):
                a = A0 + 16 * n + keep + 2 * i
                k(f"v_pk_add_f32 {r(a,2)}, {r(a,2)}, {r(A0+16*n+send+2*i,2)}")
            for i in range(4):
                a = A0 + 16 * n + keep + 2 * i
                k(f"v_pk_mul_f32 {r(a,2)}, {r(a,2)}, {r(U+8*n+2*i,2)}")
            P = Z1R + 4 * n
            for i in range(4):
                a = A0 + 16 * n + keep + 2 * i
                k(f"v_cvt_pk_bf16_f32 v{P+i}, v{a}, v{a+1}")
            k.nop(2)
            k(f"v_permlane32_swap_b32 v{P}, v{P+2}")
            k(f"v_permlane32_swap_b32 v{P+1}, v{P+3}")
            k(f"buffer_store_dwordx4 {r(P)}, v12, s[24:27], s{36+n} offen sc1")
        if kh == 0: k("s_branch k5_p6")
    k.label("k5_p6")
    ACT, A6, WB, XR_, GB_R, AD = 16, 112, 132, 172, 184, 204
    k.srd(16, 8, 9, F2, FL_SZ)
    k("s_lshl_b32 s36, s3, 7")
    k(f"s_add_u32 s36, s36, {F5 - F2}")
    k("s_lshl_b32 s37, s4, 2")
    k("s_add_u32 s37, s37, s36")
    k("s_waitcnt vmcnt(0)")
    k("s_barrier")
    setflag(k, 16, "s37", "k5_f5done")
    k.stamp(4)
    k("v_bfe_u32 v3, v0, 4, 2")
    k("v_and_b32 v5, 15, v0")
    k("s_lshl_b32 s6, s3, 2")
    k("s_add_u32 s6, s6, s5")
    k("s_lshl_b32 s10, s5, 10")
    k("s_add_u32 s7, s7, s10")
    k.srd(28, 42, 43, 0, ACT_SZ)
    k("s_mul_i32 s39, s5, 2816")
    k("v_mul_u32_u24 v6, 176, v5")
    k("v_lshl_add_u32 v6, v3, 3, v6")
    k(f"v_add_u32 v{AD}, s39, v6")
    for i in range(3):
        k("v_lshrrev_b32 v6, 4, v1")
        k(f"v_add_u32 v6, {64*i}, v6")
        k("v_mul_u32_u24 v7, 205, v6")
        k("v_lshrrev_b32 v7, 11, v7")
        k("v_mul_u32_u24 v2, 10, v7")
        k("v_sub_u32 v6, v6, v2")
        k("v_lshlrev_b32 v6, 4, v6")
        k("v_mul_u32_u24 v2, 176, v7")
        k(f"v_add3_u32 v{AD+1+i}, v2, v6, s39")
        k("v_mul_u32_u24 v2, 1280, v7")
        k(f"v_add_u32 v{AD+4+i}, v6, v2")
        if i == 2:
            k("v_lshrrev_b32 v7, 4, v7")
            k(f"v_lshl_add_u32 v{AD+4+i}, v7, 30, v{AD+4+i}")
    k("s_mul_i32 s40, s6, 20480")
    k("s_mul_i32 s41, s4, 160")
    k("s_add_u32 s40, s40, s41")
    poll(k, "k5_p5", 16, "s36", 8, 10, 11)
    k.stamp(5)
    gemm80_resident(k, 24, list(range(12, 24)) + list(range(12)), ACT, A6, WB, 24, 7, 40960, mid=(12, lambda: k("s_barrier")))
    k.stamp(6)
    k.nop(4)
    resid(k, A6, XR_, GB_R, WB)
    for j in range(5): k(f"ds_write_b64 v{AD}, {r(XR_+2*j,2)} offset:{j*32}")
    k("s_waitcnt lgkmcnt(0)")
    for i in range(3): k(f"ds_read_b128 {r(WB+4*i)}, v{AD+1+i}")
    for i in range(3):
        k(f"s_waitcnt lgkmcnt({2-i})")
        k(f"buffer_store_dwordx4 {r(WB+4*i)}, v{AD+4+i}, s[28:31], s40 offen")
    k.endpgm(3)
    k.label("k5_loader")
    k("s_and_b32 s5, s5, 3")
    k("s_mul_i32 s34, s4, 393216")
    k(f"s_add_u32 s34, s34, {Z2}")
    k("s_lshl_b32 s35, s3, 18")
    k(f"s_add_u32 s35, s35, {WSPF}")
    k(f"s_mul_i32 s11, s5, {BLK}")
    k("s_mov_b32 s43, 0")
    k("s_mul_i32 s33, s4, 122880")
    k(f"s_add_u32 s33, s33, {WOUTF - 40960}")
    k("s_lshl_b32 s10, s5, 10")
    k("s_waitcnt lgkmcnt(0)")
    k.srd(16, 8, 9, "s34", 393216)
    k.srd(20, 8, 9, "s35", 262144)
    def issue(sl):
        k("s_add_u32 s7, s43, s32")
        k("s_and_b32 s7, s7, 7")
        k("s_and_b32 s36, s43, 24")
        k("s_or_b32 s7, s7, s36")
        k("s_lshl_b32 s7, s7, 2")
        k("s_add_u32 s7, s7, s5")
        k("s_mul_i32 s37, s7, 3072")
        k(f"s_add_u32 m0, s11, {sl*SLOT}")
        k("s_lshl_b32 s36, s7, 11")
        for j in range(3): k(f"buffer_load_dwordx4 v1, s[16:19], s37 offen offset:{j*1024} lds")
        k(f"s_add_u32 m0, s11, {sl*SLOT+3072}")
        k("s_add_u32 s43, s43, 1")
        for j in range(2): k(f"buffer_load_dwordx4 v1, s[20:23], s36 offen offset:{j*1024} lds")
    issue(0); issue(1); issue(2)
    k.srd(24, 8, 9, "s33", 163840)
    k.stamp(2)
    k("s_mov_b32 s42, 0")
    k.lines.append(".p2align 6")
    k.label("k5_lloop")
    for s in range(4):
        k("s_waitcnt vmcnt(10)")
        k("s_barrier")
        issue((s + 3) & 3)
    k("s_add_u32 s42, s42, 1")
    k("s_cmp_lt_u32 s42, 7")
    k("s_cbranch_scc1 k5_lloop")
    def wout(base, n):
        k(f"s_add_u32 m0, s10, {base}")
        for i in range(n):
            k.nop(1)
            k("buffer_load_dwordx4 v1, s[24:27], m0 offen lds")
            if i < n - 1: k("s_add_u32 m0, m0, 4096")
    for s in range(4):
        k("s_waitcnt vmcnt(10)")
        k("s_barrier")
        if s == 0: issue(3)
        else: wout(102400 + (s - 1) * 20480, 5)
    k.stamp(3)
    k("s_barrier")
    wout(40960, 15)
    k("s_waitcnt vmcnt(15)")
    k("s_barrier")
    k("s_waitcnt vmcnt(0)")
    k.stamp(4)
    k("s_barrier")
    k.endpgm(3)
    k.label("k5_end")
    k("s_endpgm")
    return k
```

```python
MOD = 0x0000
MOD_SZ = 15360
KMAX = 0x3C00
ZR = 0x4000; ZR_SZ = 0x4C000
C1 = 0x4000; C2 = 0x5800
F2 = 0x7000; F3 = 0x8000; F5 = 0x9000; FS = 0xA000; FL_SZ = 0x3400
STP = 0x10000; STP_SZ = 0x40000
SP2 = 0x50000; SP2_SZ = 0x20000
KV = 0x70000; KV_SZ = 163840
WQF = 0xA0000; WQF_SZ = 983040
WOF = 0x190000; WOF_SZ = 819200
WOUTF = 0x260000; WOUTF_SZ = 983040
WINF = 0x350000; WINF_SZ = 1966080
ACT_SZ = 2621440; Z_SZ = 3145728
XN = 0x540000
Q = 0x7C0000
O = 0xA40000
X1 = 0xCC0000
XR = 0xF40000
Z1 = 0x11C0000
Z2 = 0x14C0000
Y = 0x17C0000
WSPF = 0x1B00000; WSPF_SZ = 8388608
WS_END = 0x2300000
```

```python
import sys
from asmlib import check
from k0 import gen_k0, K0_GRID, K0_LDS
from g16 import gen_k1, K1_LDS
from k234 import gen_k234, K234_LDS
from k56 import gen_k56, K56_LDS

NAME = "adaLN_cond__grouped_kv_mqa__mixer_gmlp__prompt"
def build(out, upto=7):
    ref = open(f"cdna_kernels/{NAME}.s.ref").read().split("\n")
    head = [l for l in ref if l.startswith(";") and "@launch" not in l and "Override" not in l and "grid=ceil" not in l]
    ks = []
    ks.append((gen_k0("code_start", "code_end"), K0_GRID, 256, K0_LDS))
    ks.append((gen_k1(), 256, 512, K1_LDS))
    ks.append((gen_k234(), 256, 512, K234_LDS))
    ks.append((gen_k56(), 256, 512, K56_LDS))
    ks = ks[:upto]
    s = "\n".join(head) + "\n"
    for k, g, b, l in ks:
        s += f"; @launch kernel={k.name} grid=({g},1,1) block=({b},1,1) lds={l}\n"
    s += '.amdgcn_target "amdgcn-amd-amdhsa--gfx950"\n.text\n'
    bodies = []; kds = []
    nerr = 0
    for i, (k, g, b, l) in enumerate(ks):
        for e in check(k.lines, k.name):
            print("HAZARD", e); nerr += 1
        body, kd = k.text()
        if i == 1: body = ".p2align 8\ncode_start:\n" + body
        bodies.append(body); kds.append(kd)
    s += "".join(bodies) + ".p2align 8\ncode_end:\n    s_endpgm\n" + '.section .rodata,"a"\n' + "".join(kds)
    open(out, "w").write(s)
    print("wrote", out, len(s), "bytes; hazards:", nerr)

if __name__ == "__main__":
    import os
    build(sys.argv[1] if len(sys.argv) > 1 else f"cdna_kernels/{NAME}.s", int(os.environ.get("UPTO", "7")))
```

```python
from asmlib import Kern
from layout import *
from k0 import hexf, xsum16_32, rowred
import math, os

QSCALE = math.log2(math.e) / math.sqrt(20.0)
def r(b, n=4): return f"v[{b}:{b+n-1}]"
A0 = 16
FB = 40
EP = 100

def ids(k):
    k("v_lshrrev_b32 v1, 6, v0")
    k("s_and_b32 s3, s2, 7")
    k("v_readfirstlane_b32 s5, v1")
    k("s_lshl_b32 s3, s3, 2")
    k("s_bfe_u32 s4, s2, 0x20003")
    k("s_add_u32 s3, s3, s4")
    k("s_lshr_b32 s4, s2, 5")
    k("v_and_b32 v1, 63, v0")
    k("v_lshlrev_b32 v1, 4, v1")
    k("s_lshr_b32 s33, s5, 2")
    k("s_and_b32 s5, s5, 3")
    k("s_lshl_b32 s6, s3, 2")
    k("s_add_u32 s6, s6, s5")

NW6 = 6; BLK = (4 + NW6) * 1024; SLOT = 4 * BLK; LT1 = 3 * SLOT
WO_IN_K1 = int(os.environ.get("WO_IN_K1", "1"))

def loader(k):
    k("s_load_dwordx2 s[40:41], s[0:1], 32")
    k("s_mul_i32 s7, s3, 20")
    k("s_add_u32 s7, s7, s5")
    k("s_lshl_b32 s7, s7, 12")
    k(f"s_mul_i32 s11, s5, {BLK}")
    k("s_mul_i32 s34, s5, 1280")
    k(f"s_add_u32 s35, s34, {LT1}")
    k("v_bfe_u32 v2, v0, 4, 2")
    k("v_lshl_add_u32 v3, v2, 6, s35")
    k("v_add_u32 v4, s11, v1")
    k("v_add_u32 v6, 0x10000, v4")
    k("v_lshrrev_b32 v5, 2, v1")
    k("s_mov_b32 m0, s35")
    k("s_waitcnt lgkmcnt(0)")
    k.stamp(5)
    k.srd(20, 8, 9, XN, ACT_SZ)
    k.srd(12, 8, 9, MOD, 5120)
    def issue(g):
        for j in range(4): k(f"buffer_load_dwordx4 {r(16+16*g+4*j)}, v1, s[20:23], s7 offen offset:{j*1024}")
        k("s_add_u32 s7, s7, 16384")
    k("buffer_load_dwordx4 v1, s[12:15], s34 offen lds")
    k("buffer_load_dword v5, s[12:15], s34 offen offset:1024 lds")
    issue(0)
    if WO_IN_K1:
        k("s_lshl_b32 s36, s2, 2")
        k("s_add_u32 s36, s36, s5")
        k("s_mul_i32 s37, s36, 3277")
        k("s_lshr_b32 s37, s37, 16")
        k("s_mul_i32 s38, s37, 20")
        k("s_sub_u32 s38, s36, s38")
        k("s_cmp_lt_u32 s36, 800")
        k("s_cselect_b32 s39, 0, 0x40000000")
        k("s_mul_i32 s42, s38, 40960")
        k("s_lshl_b32 s43, s37, 5")
        k("s_add_u32 s42, s42, s43")
        k("s_add_u32 s42, s42, s39")
        k("s_add_u32 s43, s42, 5120")
        k("v_mul_u32_u24 v7, 10240, v2")
        k("v_and_b32 v8, 15, v0")
        k("v_lshl_add_u32 v7, v8, 1, v7")
        k.srd(24, 40, 41, 0, 819200)
        k.srd(28, 8, 9, WOF, WOF_SZ)
        k("s_mul_i32 s36, s37, 52")
        k("s_lshr_b32 s36, s36, 8")
        k("s_mul_i32 s44, s36, 5")
        k("s_sub_u32 s44, s37, s44")
        k("s_mul_i32 s36, s36, 20")
        k("s_add_u32 s36, s36, s38")
        k("s_mul_i32 s36, s36, 5")
        k("s_add_u32 s36, s36, s44")
        k("s_lshl_b32 s36, s36, 10")
        k("s_add_u32 s36, s36, s39")
    issue(1)
    k.stamp(2)
    CO = 96; T = 112
    for g in range(5):
        younger = 4 if g < 4 else 0
        if WO_IN_K1 and g >= 3: younger += 8
        if g == 0: k("s_waitcnt vmcnt(8)")
        for j in range(4): k(f"ds_read_b128 {r(CO+4*j)}, v3 offset:{g*256 + j*16}")
        k(f"s_waitcnt vmcnt({younger}) lgkmcnt(0)")
        a = 16 + 16 * g
        for f in range(4):
            for j in range(4):
                k(f"v_lshlrev_b32 v{T+2*j}, 16, v{a+4*f+j}")
                k(f"v_and_b32 v{T+2*j+1}, 0xffff0000, v{a+4*f+j}")
            for j in range(4):
                k(f"v_pk_fma_f32 {r(T+2*j,2)}, {r(T+2*j,2)}, {r(CO+2*j,2)}, {r(CO+8+2*j,2)}")
            for j in range(4):
                k(f"v_cvt_pk_bf16_f32 v{a+4*f+j}, v{T+2*j}, v{T+2*j+1}")
            o = (g % 3) * SLOT + f * 1024
            k(f"ds_write_b128 {'v4' if o < 65536 else 'v6'}, {r(a+4*f)} offset:{o & 65535}")
        if g + 2 < 5: issue(g + 2)
        if WO_IN_K1 and g == 2:
            for j in range(8):
                k(f"buffer_load_ushort v{120+j}, v7, s[24:27], {'s42' if j < 4 else 's43'} offen offset:{(j&3)*1280}")
        k("s_waitcnt lgkmcnt(0)")
        k("s_barrier")
        if g == 0: k.stamp(3)
        if g == 4: k.stamp(4)
    if WO_IN_K1:
        k("s_waitcnt vmcnt(0)")
        for j in range(4): k(f"v_lshl_or_b32 v{120+j}, v{121+2*j}, 16, v{120+2*j}")
        k(f"buffer_store_dwordx4 {r(120)}, v1, s[28:31], s36 offen")

def compute(k):
    NK = 20; NW = NW6
    k("s_mul_i32 s10, s4, 20")
    k("s_add_u32 s10, s10, s5")
    k(f"s_mul_i32 s10, s10, {NW*1024}")
    k(f"s_mul_i32 s11, s5, {BLK}")
    k("s_add_u32 s11, s11, 4096")
    k("s_waitcnt lgkmcnt(0)")
    k.srd(16, 8, 9, WQF, WQF_SZ)
    def dma(g):
        sl = (g % 3) * SLOT
        out = [f"s_add_u32 m0, s11, {sl}\ns_add_u32 s36, s10, 4096\nbuffer_load_dwordx4 v1, s[16:19], s10 offen lds"]
        for j in range(1, 4): out.append(f"buffer_load_dwordx4 v1, s[16:19], s10 offen offset:{j*1024} lds")
        out.append(f"s_add_u32 m0, s11, {sl+4096}\ns_add_u32 s10, s10, {4*NW*1024}\nbuffer_load_dwordx4 v1, s[16:19], s36 offen lds")
        out.append("buffer_load_dwordx4 v1, s[16:19], s36 offen offset:1024 lds")
        return out
    for l in dma(0): k(l)
    return dma

def compute_main(k, dma):
    NK = 20; NW = NW6
    for l in dma(1): k(l)
    k("s_lshl_b32 s7, s5, 10")
    for s in range(3):
        k(f"v_add_u32 v{8+s}, {s*SLOT+4096}, v1")
        k(f"s_add_u32 s37, s7, {s*SLOT}")
        k(f"v_add_u32 v{12+s}, s37, v1")
    def rd(ks):
        b = FB + (1 + NW) * 4 * (ks & 1); s = (ks // 4) % 3; o = (ks % 4) * BLK
        return [f"ds_read_b128 {r(b)}, v{12+s} offset:{o}"] + [f"ds_read_b128 {r(b+4+4*j)}, v{8+s} offset:{o + j*1024}" for j in range(NW)]
    k("s_waitcnt vmcnt(6)")
    k("s_barrier")
    k.stamp(3)
    for l in rd(0): k(l)
    pend = []
    for ks in range(NK):
        b = FB + (1 + NW) * 4 * (ks & 1); g = ks // 4
        k("s_waitcnt lgkmcnt(0)")
        if ks % 4 == 3 and ks < NK - 1:
            assert not pend
            k(f"s_waitcnt vmcnt({6 if g + 2 < 5 else 0})")
            k("s_barrier")
            if ks in (3, 7, NK - 5): k.stamp({3: 4, 7: 5}.get(ks, 6))
        if ks % 4 == 0 and g + 2 < 5: pend = dma(g + 2)
        fill = rd(ks + 1) if ks < NK - 1 else []
        for j in range(NW):
            c = "0" if ks == 0 else r(A0 + 4 * j)
            k(f"v_mfma_f32_16x16x32_bf16 {r(A0+4*j)}, {r(b+4+4*j)}, {r(b)}, {c}")
            if fill: k(fill.pop(0))
            if j == 0 and fill: k(fill.pop(0))
            if j in (2, 5) and pend: k(pend.pop(0))
    k.stamp(7)

def x1_addr(k, dst, tmp):
    k("s_lshr_b32 s36, s6, 3")
    k("s_mul_i32 s36, s36, 40")
    k("s_mul_i32 s37, s4, 5")
    k("s_add_u32 s36, s36, s37")
    k("s_lshl_b32 s36, s36, 12")
    k("s_and_b32 s37, s6, 7")
    k("s_lshl_b32 s37, s37, 8")
    k("s_and_b32 s38, s37, 0x100")
    k("s_and_b32 s37, s37, 0x600")
    k("s_lshl_b32 s37, s37, 1")
    k("s_add_u32 s36, s36, s37")
    k("s_add_u32 s36, s36, s38")
    for j in range(1, 5): k(f"s_add_u32 s{36+j}, s36, {j*4096}")
    k(f"v_lshrrev_b32 v{dst}, 1, v3")
    k(f"v_lshlrev_b32 v{dst}, 9, v{dst}")
    k(f"v_lshl_add_u32 v{dst}, v5, 4, v{dst}")
    k(f"v_and_b32 v{tmp}, 1, v3")
    k(f"v_lshl_add_u32 v{dst}, v{tmp}, 3, v{dst}")

def resid_loads(k, xoff, goff):
    k("v_bfe_u32 v3, v0, 4, 2")
    k("v_and_b32 v5, 15, v0")
    x1_addr(k, 6, 7)
    k("v_lshlrev_b32 v7, 4, v3")
    k("s_mul_i32 s41, s4, 320")
    k("s_waitcnt lgkmcnt(0)")
    k.srd(12, 8, 9, xoff, ACT_SZ)
    k.srd(24, 8, 9, MOD + goff, 2560)
    for j in range(5): k(f"buffer_load_dwordx2 {r(EP+2*j,2)}, v6, s[12:15], s{36+j} offen")
    for j in range(5): k(f"buffer_load_dwordx4 {r(EP+12+4*j)}, v7, s[24:27], s41 offen offset:{j*64}")

def resid(k):
    for j in range(5):
        for h in range(2):
            x = EP + 2 * j + h; t = FB + 4 * j + 2 * h
            k(f"v_lshlrev_b32 v{t}, 16, v{x}")
            k(f"v_and_b32 v{t+1}, 0xffff0000, v{x}")
    for j in range(5):
        for h in range(2):
            a = A0 + 4 * j + 2 * h; g = EP + 12 + 4 * j + 2 * h; t = FB + 4 * j + 2 * h
            k(f"v_pk_fma_f32 {r(a,2)}, {r(a,2)}, {r(g,2)}, {r(t,2)}")
    for j in range(5):
        for h in range(2):
            a = A0 + 4 * j + 2 * h
            k(f"v_cvt_pk_bf16_f32 v{EP+2*j+h}, v{a}, v{a+1}")

def head(k, extra=None):
    n = k.name[:2]
    k("s_cmp_ge_u32 s2, 256")
    k(f"s_cbranch_scc1 {n}_end")
    k.stamp(0); k.rstamp(1)
    k("s_load_dwordx2 s[8:9], s[0:1], 112")
    if extra: k(extra)
    ids(k)
    k("s_cmp_eq_u32 s33, 0")
    k(f"s_cbranch_scc0 {n}_loader")

K1_LDS = LT1 + 5120

def gen_k1():
    k = Kern("k1_kernel", 128, 64)
    head(k)
    dma = compute(k)
    k("v_bfe_u32 v3, v0, 4, 2")
    k("v_and_b32 v5, 15, v0")
    k("s_and_b32 s36, s6, 1")
    k("s_lshl_b32 s36, s36, 4")
    k("v_add_u32 v6, s36, v5")
    for j in range(5):
        o = EP + j
        k(f"v_add_u32 v7, {4*j}, v3")
        k("v_mul_u32_u24 v2, 52, v7")
        k("v_lshrrev_b32 v2, 8, v2")
        k("v_mul_u32_u24 v4, 5, v2")
        k("v_sub_u32 v7, v7, v4")
        k(f"v_mul_u32_u24 v{o}, 81920, v2")
        k("v_lshrrev_b32 v4, 1, v7")
        k(f"v_lshl_add_u32 v{o}, v4, 9, v{o}")
        k("v_and_b32 v4, 1, v7")
        k(f"v_lshl_add_u32 v{o}, v4, 3, v{o}")
        k("v_lshrrev_b32 v4, 2, v7")
        k("v_sub_u32 v4, 4, v4")
        k("v_lshlrev_b32 v4, v4, v6")
        k(f"v_add_u32 v{o}, v{o}, v4")
    k("s_mul_i32 s40, s4, 327680")
    k("s_lshr_b32 s36, s6, 1")
    k("s_mul_i32 s36, s36, 1280")
    k("s_add_u32 s40, s40, s36")
    k.srd(24, 8, 9, Q, ACT_SZ)
    k.srd(28, 8, 9, KV, KV_SZ)
    k.srd(12, 8, 9, KMAX, 1024)
    compute_main(k, dma)
    k(f"v_mov_b32 v8, {hexf(QSCALE)}")
    k.nop(3)
    for j in range(5):
        a = A0 + 4 * j
        k(f"v_pk_mul_f32 {r(a,2)}, {r(a,2)}, v[8:9] op_sel_hi:[1,0]")
        k(f"v_pk_mul_f32 {r(a+2,2)}, {r(a+2,2)}, v[8:9] op_sel_hi:[1,0]")
        k(f"v_cvt_pk_bf16_f32 v{FB+2*j}, v{a}, v{a+1}")
        k(f"v_cvt_pk_bf16_f32 v{FB+2*j+1}, v{a+2}, v{a+3}")
        k(f"buffer_store_dwordx2 {r(FB+2*j,2)}, v{EP+j}, s[24:27], s40 offen")
    k("s_cmp_ge_u32 s4, 4")
    k("s_cbranch_scc1 k1_fin")
    P = FB + 12
    k(f"v_cvt_pk_bf16_f32 v{P}, v{A0+20}, v{A0+21}")
    k(f"v_cvt_pk_bf16_f32 v{P+1}, v{A0+22}, v{A0+23}")
    k("s_lshr_b32 s36, s6, 1")
    k("s_mul_i32 s36, s36, 2560")
    k("s_and_b32 s37, s6, 1")
    k("v_mov_b32 v11, 0x40000000")
    k("s_bitcmp1_b32 s4, 0")
    k("s_cbranch_scc1 k1_V")
    k("s_cmp_eq_u32 s4, 0")
    k("s_cbranch_scc0 k1_K2")
    k("v_lshrrev_b32 v10, 1, v3")
    k("v_lshlrev_b32 v10, 9, v10")
    k("v_lshl_add_u32 v10, v6, 4, v10")
    k("v_and_b32 v12, 1, v3")
    k("v_lshl_add_u32 v10, v12, 3, v10")
    k("s_branch k1_Kst")
    k.label("k1_K2")
    k("v_cmp_eq_u32 vcc, 0, v3")
    k("v_lshlrev_b32 v10, 3, v6")
    k("v_add_u32 v10, 1024, v10")
    k("v_cndmask_b32 v10, v11, v10, vcc")
    k.label("k1_Kst")
    k(f"buffer_store_dwordx2 {r(P,2)}, v10, s[28:31], s36 offen")
    k(f"v_lshlrev_b32 v12, 16, v{P}")
    k(f"v_and_b32 v13, 0xffff0000, v{P}")
    k(f"v_lshlrev_b32 v14, 16, v{P+1}")
    k(f"v_and_b32 v15, 0xffff0000, v{P+1}")
    k("v_mul_f32 v12, v12, v12")
    k("v_fmac_f32 v12, v13, v13")
    k("v_fmac_f32 v12, v14, v14")
    k("v_fmac_f32 v12, v15, v15")
    xsum16_32(k, 12, 13)
    rowred(k, "v_max_f32", 12)
    k("s_lshl_b32 s36, s4, 8")
    k("s_lshl_b32 s37, s6, 2")
    k("s_add_u32 s36, s36, s37")
    k("v_cmp_eq_u32 vcc, 0, v1")
    k("v_mov_b32 v14, 0")
    k.nop(1)
    k("v_cndmask_b32 v14, v11, v14, vcc")
    k("buffer_store_dword v12, v14, s[12:15], s36 offen")
    k("s_branch k1_fin")
    k.label("k1_V")
    k("s_mul_i32 s37, s37, 640")
    k("s_add_u32 s36, s36, s37")
    k("s_add_u32 s36, s36, 1280")
    k("s_cmp_eq_u32 s4, 3")
    k("s_cselect_b32 s37, 256, 0")
    k("s_cselect_b32 s38, 1, 4")
    k("s_add_u32 s36, s36, s37")
    k("v_bfe_u32 v9, v5, 2, 1")
    k("v_mul_u32_u24 v9, 320, v9")
    k("v_lshl_add_u32 v9, v3, 6, v9")
    k("v_lshrrev_b32 v10, 3, v5")
    k("v_lshl_add_u32 v9, v10, 3, v9")
    k("v_and_b32 v10, 3, v5")
    k("v_cmp_gt_u32 vcc, s38, v3")
    k("v_lshl_add_u32 v9, v10, 1, v9")
    k.nop(1)
    k("v_cndmask_b32 v9, v11, v9, vcc")
    k(f"buffer_store_short v{P}, v9, s[28:31], s36 offen")
    k(f"buffer_store_short_d16_hi v{P}, v9, s[28:31], s36 offen offset:16")
    k(f"buffer_store_short v{P+1}, v9, s[28:31], s36 offen offset:32")
    k(f"buffer_store_short_d16_hi v{P+1}, v9, s[28:31], s36 offen offset:48")
    k.label("k1_fin")
    k.endpgm(1)
    k.label("k1_loader")
    loader(k)
    k.endpgm(1)
    k.label("k1_end")
    k("s_endpgm")
    return k
```

```python
from asmlib import Kern
from layout import *

import os
NM, NL, NW, NP = 240, 128, (220 if int(os.environ.get('WO_IN_K1', '1')) else 420), 20
K0_GRID = NM + NL + NW + NP
K0_LDS = 20736

def xsum16_32(k, v, t):
    k(f"v_mov_b32 v{t}, v{v}")
    k.nop(2)
    k(f"v_permlane16_swap_b32 v{v}, v{t}")
    k(f"v_add_f32 v{v}, v{v}, v{t}")
    k(f"v_mov_b32 v{t}, v{v}")
    k.nop(2)
    k(f"v_permlane32_swap_b32 v{v}, v{t}")
    k(f"v_add_f32 v{v}, v{v}, v{t}")

def rowred(k, op, v, extra=None):
    for r in (1, 2, 4, 8):
        k.nop(2)
        k(f"{op}_dpp v{v}, v{v}, v{v} row_ror:{r} row_mask:0xf bank_mask:0xf")

def gen_k0(code_start, code_end):
    k = Kern("k0_kernel", 80, 48)
    k(f"s_cmp_ge_u32 s2, {K0_GRID}")
    k("s_cbranch_scc1 k0_end")
    k.stamp(0); k.rstamp(1)
    k("s_load_dwordx2 s[8:9], s[0:1], 112")
    k(f"s_cmp_ge_u32 s2, {NM + NL + NW}")
    k("s_cbranch_scc1 k0_P")
    k(f"s_cmp_ge_u32 s2, {NM + NL}")
    k("s_cbranch_scc1 k0_W")
    k(f"s_cmp_ge_u32 s2, {NM}")
    k("s_cbranch_scc1 k0_L")
    k("s_load_dwordx4 s[4:7], s[0:1], 80")
    k("s_and_b32 s3, s2, 7")
    k("s_mul_i32 s3, s3, 30")
    k("s_lshr_b32 s10, s2, 3")
    k("s_add_u32 s3, s3, s10")
    k("v_lshrrev_b32 v1, 1, v0")
    k("v_and_b32 v2, 1, v0")
    k("v_mul_u32_u24 v3, 7680, v1")
    k("v_lshl_add_u32 v3, v2, 4, v3")
    k("v_lshlrev_b32 v4, 1, v1")
    k("s_lshl_b32 s20, s3, 5")
    k("s_waitcnt lgkmcnt(0)")
    k.srd(16, 6, 7, 0, 640 * 7680)
    k.srd(12, 4, 5, 0, 1280)
    for p in range(5):
        k(f"buffer_load_ushort v{8+p}, v4, s[12:15], 0 offen offset:{p*256}")
    for p in range(5):
        k(f"buffer_load_dwordx4 v[{20+4*p}:{23+4*p}], v3, s[16:19], s20 offen")
        if p < 4: k(f"s_add_u32 s20, s20, {128 * 7680}")
    k.srd(28, 8, 9, MOD, MOD_SZ)
    k("v_lshlrev_b32 v5, 3, v2")
    k("v_bfe_u32 v6, v0, 5, 1")
    k("v_lshl_add_u32 v5, v6, 2, v5")
    k("v_bfe_u32 v6, v0, 4, 1")
    k("v_lshl_add_u32 v5, v6, 1, v5")
    k("v_bfe_u32 v6, v0, 3, 1")
    k("v_add_u32 v5, v5, v6")
    k("v_lshlrev_b32 v5, 2, v5")
    k("v_lshrrev_b32 v6, 6, v0")
    k("v_lshl_add_u32 v5, v6, 6, v5")
    k("v_bfe_u32 v6, v0, 2, 1")
    k("v_lshl_add_u32 v5, v6, 10, v5")
    k("v_and_b32 v6, 15, v0")
    k("v_lshlrev_b32 v7, 2, v6")
    k("s_mul_i32 s20, s3, 205")
    k("s_lshr_b32 s20, s20, 13")
    k("s_mul_i32 s21, s20, 40")
    k("s_sub_u32 s21, s3, s21")
    k("s_cmp_lt_u32 s20, 2")
    k("s_cbranch_scc1 k0_M_t1")
    k("s_lshl_b32 s22, s3, 6")
    k("v_add_u32 v19, s22, v7")
    k("s_branch k0_M_st")
    k.label("k0_M_t1")
    k("s_bfe_u32 s22, s21, 0x20001")
    k("s_mul_i32 s22, s22, 1280")
    k("s_lshr_b32 s23, s21, 3")
    k("s_lshl_b32 s23, s23, 8")
    k("s_add_u32 s22, s22, s23")
    k("s_and_b32 s23, s21, 1")
    k("s_lshl_b32 s23, s23, 7")
    k("s_add_u32 s22, s22, s23")
    k("s_xor_b32 s23, s20, 1")
    k("s_lshl_b32 s23, s23, 5")
    k("s_add_u32 s22, s22, s23")
    k("v_lshrrev_b32 v19, 3, v6")
    k("v_lshlrev_b32 v19, 6, v19")
    k("v_and_b32 v18, 7, v6")
    k("v_lshl_add_u32 v19, v18, 2, v19")
    k("v_add_u32 v19, s22, v19")
    k.label("k0_M_st")
    k("s_cmp_eq_u32 s20, 1")
    k("s_cselect_b32 s24, 1.0, 0")
    k("s_cmp_eq_u32 s20, 4")
    k("s_cselect_b32 s24, 1.0, s24")
    k.stamp(2)
    k("s_waitcnt vmcnt(5)")
    k.stamp(3)
    T = 60
    for p in range(5): k(f"v_lshlrev_b32 v{8+p}, 16, v{8+p}")
    for p in range(5): k(f"v_mul_f32 v{T+p}, 0xbfb8aa3b, v{8+p}")
    for p in range(5): k(f"v_exp_f32 v{T+p}, v{T+p}")
    for p in range(5): k(f"v_add_f32 v{T+p}, 1.0, v{T+p}")
    for p in range(5): k(f"v_rcp_f32 v{T+p}, v{T+p}")
    for p in range(5): k(f"v_mul_f32 v{8+p}, v{8+p}, v{T+p}")
    for p in range(5): k(f"v_cvt_pk_bf16_f32 v{8+p}, v{8+p}, v{8+p}")
    for p in range(5): k(f"v_and_b32 v{8+p}, 0xffff0000, v{8+p}")
    A = 72
    for p in range(5):
        k(f"s_waitcnt vmcnt({4-p})")
        for j in range(4):
            k(f"v_lshlrev_b32 v{T+2*j}, 16, v{20+4*p+j}")
            k(f"v_and_b32 v{T+2*j+1}, 0xffff0000, v{20+4*p+j}")
        sp = f"v[{8+p-(p&1)}:{9+p-(p&1)}]"
        for j in range(4):
            if p == 0: k(f"v_pk_mul_f32 v[{A+2*j}:{A+2*j+1}], v[{T+2*j}:{T+2*j+1}], {sp} op_sel_hi:[1,0]")
            else:
                sel3 = "op_sel_hi:[1,0,1]" if p % 2 == 0 else "op_sel:[0,1,0] op_sel_hi:[1,1,1]"
                k(f"v_pk_fma_f32 v[{A+2*j}:{A+2*j+1}], v[{T+2*j}:{T+2*j+1}], {sp}, v[{A+2*j}:{A+2*j+1}] {sel3}")
    k.stamp(4)
    k.nop(1)
    for j in range(4): k(f"v_permlane32_swap_b32 v{A+j}, v{A+4+j}")
    for j in range(4): k(f"v_add_f32 v{A+j}, v{A+j}, v{A+4+j}")
    k.nop(1)
    for j in range(2): k(f"v_permlane16_swap_b32 v{A+j}, v{A+2+j}")
    for j in range(2): k(f"v_add_f32 v{A+j}, v{A+j}, v{A+2+j}")
    k.nop(2)
    k(f"v_add_f32_dpp v{A}, v{A}, v{A} row_ror:8 row_mask:0xf bank_mask:0x3")
    k.nop(2)
    k(f"v_add_f32_dpp v{A}, v{A+1}, v{A+1} row_ror:8 row_mask:0xf bank_mask:0xc")
    k.nop(2)
    k(f"v_add_f32_dpp v{A}, v{A}, v{A} row_shl:4 row_mask:0xf bank_mask:0x5")
    k.nop(2)
    k(f"v_add_f32_dpp v{A}, v{A}, v{A} quad_perm:[2,3,0,1] row_mask:0xf bank_mask:0xf")
    k(f"ds_write_b32 v5, v{A}")
    k("v_cmp_gt_u32 vcc, 16, v0")
    k("s_waitcnt lgkmcnt(0)")
    k("s_barrier")
    k("s_and_saveexec_b64 s[34:35], vcc")
    k("s_cbranch_execz k0_end")
    for i in range(4): k(f"ds_read_b32 v{20+i}, v7 offset:{i*64}")
    k("s_waitcnt lgkmcnt(0)")
    k("v_add_f32 v20, v20, v21")
    k("v_add_f32 v22, v22, v23")
    k("v_add_f32 v20, v20, v22")
    k("v_cvt_pk_bf16_f32 v20, v20, v20")
    k("v_and_b32 v20, 0xffff0000, v20")
    k("v_add_f32 v20, s24, v20")
    k("v_cvt_pk_bf16_f32 v20, v20, v20")
    k("v_and_b32 v20, 0xffff0000, v20")
    k("buffer_store_dword v20, v19, s[28:31], 0 offen")
    k.endpgm(0)
    k.label("k0_L")
    k("s_load_dwordx2 s[4:5], s[0:1], 0")
    k(f"s_sub_u32 s3, s2, {NM}")
    k("s_and_b32 s10, s3, 7")
    k("s_lshl_b32 s10, s10, 4")
    k("s_lshr_b32 s11, s3, 3")
    k("s_add_u32 s10, s10, s11")
    k("v_lshrrev_b32 v1, 4, v0")
    k("v_and_b32 v2, 15, v0")
    k("v_mul_u32_u24 v3, 1280, v1")
    k("v_lshl_add_u32 v3, v2, 4, v3")
    k("s_mul_i32 s20, s10, 20480")
    k("s_waitcnt lgkmcnt(0)")
    k.srd(12, 4, 5, 0, ACT_SZ)
    for i in range(5):
        k(f"buffer_load_dwordx4 v[{8+4*i}:{11+4*i}], v3, s[12:15], s20 offen offset:{i*256}")
    k.srd(16, 8, 9, ZR, ZR_SZ)
    k.srd(24, 8, 9, XN, ACT_SZ)
    k("s_lshl_b32 s21, s3, 12")
    k("v_lshlrev_b32 v4, 4, v0")
    for i in range(4): k(f"v_mov_b32 v{28+i}, 0")
    k("buffer_store_dwordx4 v[28:31], v4, s[16:19], s21 offen")
    k("v_lshl_add_u32 v4, v1, 4, v3")
    k("v_lshrrev_b32 v68, 6, v0")
    k("v_bfe_u32 v69, v0, 4, 2")
    k("v_readfirstlane_b32 s22, v68")
    k("v_mul_u32_u24 v70, 1296, v2")
    k("v_lshl_add_u32 v70, v69, 4, v70")
    k("v_mul_u32_u24 v68, 320, v68")
    k("v_add_u32 v70, v70, v68")
    k("v_and_b32 v69, 63, v0")
    k("v_lshlrev_b32 v69, 4, v69")
    k("s_mul_i32 s22, s22, 5")
    k("s_lshr_b32 s23, s10, 2")
    k("s_mul_i32 s23, s23, 20")
    k("s_add_u32 s23, s23, s22")
    k("s_lshl_b32 s23, s23, 12")
    k("s_and_b32 s34, s10, 3")
    k("s_lshl_b32 s34, s34, 10")
    k("s_add_u32 s23, s23, s34")
    k.stamp(2)
    k("s_waitcnt vmcnt(1)")
    k.stamp(3)
    for i in range(20):
        k(f"v_lshlrev_b32 v{28+2*i}, 16, v{8+i}")
        k(f"v_and_b32 v{29+2*i}, 0xffff0000, v{8+i}")
    k("v_pk_add_f32 v[6:7], v[28:29], v[30:31]")
    for i in range(2, 20):
        k(f"v_pk_add_f32 v[6:7], v[6:7], v[{28+2*i}:{29+2*i}]")
    k("v_add_f32 v6, v6, v7")
    rowred(k, "v_add_f32", 6)
    k(f"v_mul_f32 v6, {hexf(-1.0/640)}, v6")
    for i in range(20):
        k(f"v_pk_add_f32 v[{28+2*i}:{29+2*i}], v[{28+2*i}:{29+2*i}], v[6:7] op_sel_hi:[1,0]")
    k("v_pk_mul_f32 v[6:7], v[28:29], v[28:29]")
    for i in range(1, 20):
        k(f"v_pk_fma_f32 v[6:7], v[{28+2*i}:{29+2*i}], v[{28+2*i}:{29+2*i}], v[6:7]")
    k("v_add_f32 v6, v6, v7")
    rowred(k, "v_add_f32", 6)
    k(f"v_mov_b32 v7, {hexf(1e-5)}")
    k(f"v_fmac_f32 v7, {hexf(1.0/640)}, v6")
    k("v_rsq_f32 v6, v7")
    k.nop(1)
    for i in range(20):
        k(f"v_pk_mul_f32 v[{28+2*i}:{29+2*i}], v[{28+2*i}:{29+2*i}], v[6:7] op_sel_hi:[1,0]")
    for i in range(20):
        k(f"v_cvt_pk_bf16_f32 v{8+i}, v{28+2*i}, v{29+2*i}")
    for i in range(5):
        k(f"ds_write_b128 v4, v[{8+4*i}:{11+4*i}] offset:{i*256}")
    k("s_waitcnt lgkmcnt(0)")
    k("s_barrier")
    for i in range(5):
        k(f"ds_read_b128 v[{8+4*i}:{11+4*i}], v70 offset:{i*64}")
    for i in range(5):
        k(f"s_waitcnt lgkmcnt({4-i})")
        k(f"buffer_store_dwordx4 v[{8+4*i}:{11+4*i}], v69, s[24:27], s23 offen")
        k("s_add_u32 s23, s23, 4096")
    k.endpgm(0)
    k.label("k0_W")
    k("s_load_dwordx4 s[4:7], s[0:1], 8")
    k("s_load_dwordx4 s[36:39], s[0:1], 24")
    k("v_lshrrev_b32 v1, 6, v0")
    k(f"s_sub_u32 s3, s2, {NM + NL}")
    k("v_readfirstlane_b32 s20, v1")
    k("s_lshl_b32 s3, s3, 2")
    k("v_and_b32 v2, 15, v0")
    k("v_bfe_u32 v3, v0, 4, 2")
    k("s_add_u32 s3, s3, s20")
    k("s_cmp_ge_u32 s3, 880")
    k("s_cselect_b32 s30, 880, 0")
    k("s_cselect_b32 s31, 5, 6")
    k(f"s_cselect_b32 s32, {WOF - WQF}, 0")
    k("s_sub_u32 s3, s3, s30")
    k("s_mul_i32 s20, s3, 3277")
    k("s_lshr_b32 s20, s20, 16")
    k("s_mul_i32 s21, s20, 20")
    k("s_sub_u32 s21, s3, s21")
    k("s_waitcnt lgkmcnt(0)")
    k("s_cmp_eq_u32 s31, 5")
    k("s_cselect_b32 s4, s38, s4")
    k("s_cselect_b32 s5, s39, s5")
    k("s_cmp_ge_u32 s20, 40")
    k("s_cbranch_scc1 k0_W_kv")
    k.srd(12, 4, 5, 0, 819200)
    k("s_mov_b32 s22, 1280")
    k("s_lshl_b32 s23, s20, 5")
    k("s_mov_b32 s24, 16")
    k("s_mul_i32 s25, s20, 52")
    k("s_lshr_b32 s25, s25, 8")
    k("s_mul_i32 s26, s25, 5")
    k("s_sub_u32 s26, s20, s26")
    k("s_branch k0_W_go")
    k.label("k0_W_kv")
    k("s_sub_u32 s25, s20, 40")
    k("s_bitcmp1_b32 s25, 0")
    k("s_cselect_b32 s6, s36, s6")
    k("s_cselect_b32 s7, s37, s7")
    k.srd(12, 6, 7, 0, 25600)
    k("s_mov_b32 s22, 40")
    k("s_cmp_ge_u32 s25, 2")
    k("s_cselect_b32 s23, 32, 0")
    k("s_cselect_b32 s24, 4, 16")
    k("s_mov_b32 s26, 5")
    k.label("k0_W_go")
    k("s_lshl_b32 s27, s22, 3")
    k("v_mul_lo_u32 v4, v3, s27")
    k("v_lshl_add_u32 v4, v2, 1, v4")
    k("v_mov_b32 v5, 0x40000000")
    k("v_cmp_gt_u32 vcc, s24, v2")
    k("s_lshl_b32 s28, s21, 5")
    k("s_mul_i32 s28, s28, s22")
    k("s_add_u32 s28, s28, s23")
    k("v_cndmask_b32 v4, v5, v4, vcc")
    for j in range(8):
        k(f"buffer_load_ushort v{8+j}, v4, s[12:15], s28 offen")
        if j < 7: k("s_add_u32 s28, s28, s22")
    k.srd(16, 8, 9, WQF, WOF + WOF_SZ - WQF)
    k("s_mul_i32 s29, s25, 20")
    k("s_add_u32 s29, s29, s21")
    k("s_mul_i32 s29, s29, s31")
    k("s_add_u32 s29, s29, s26")
    k("s_lshl_b32 s29, s29, 10")
    k("s_add_u32 s29, s29, s32")
    k("v_and_b32 v6, 63, v0")
    k("v_lshlrev_b32 v6, 4, v6")
    k("s_waitcnt vmcnt(0)")
    for j in range(4):
        k(f"v_lshl_or_b32 v{16+j}, v{9+2*j}, 16, v{8+2*j}")
    k("buffer_store_dwordx4 v[16:19], v6, s[16:19], s29 offen")
    k.endpgm(0)
    k.label("k0_P")
    k("s_getpc_b64 s[4:5]")
    k.label("k0_pc")
    k(f"s_add_u32 s4, s4, {code_start}-k0_pc")
    k("s_addc_u32 s5, s5, 0")
    k(f"s_mov_b32 s6, {code_end}-{code_start}")
    k("s_mov_b32 s7, 0x20000")
    k("v_lshlrev_b32 v1, 4, v0")
    k("s_bfe_u32 s10, s2, 0x10003")
    k("s_lshl_b32 s10, s10, 12")
    k.label("k0_P_loop")
    k("buffer_load_dwordx4 v[4:7], v1, s[4:7], s10 offen")
    k("s_add_u32 s10, s10, 8192")
    k("s_cmp_lt_u32 s10, s6")
    k("s_cbranch_scc1 k0_P_loop")
    k("s_waitcnt vmcnt(0)")
    k.label("k0_end")
    k("s_endpgm")
    return k

import struct
def hexf(x):
    return hex(struct.unpack("<I", struct.pack("<f", x))[0])
```

```python
from asmlib import Kern
from layout import *
from k0 import hexf, rowred
import os, math

K234_LDS = 163840
QA, QB, CM, S0, S1, OO, PP = 4, 8, 16, 32, 48, 64, 80
KF1 = (88, 92); KF2 = (96, 100); VF = (104, 112)
AK1, AK2, AV = 12, 13, 14
SIDE_SC = os.environ.get("SIDE_SC", "sc1")
Z_SC = os.environ.get("Z_SC", "")
SPIN = 200000
TOUCH = int(os.environ.get('TOUCH', '0'))
PF_WIN = int(os.environ.get('PF_WIN', '0'))
RETRY = 2000
PF_NEXT = int(os.environ.get('PF_NEXT', '0'))
GA_ = -2 * math.log2(math.e) * math.sqrt(2 / math.pi)
GB_ = GA_ * 0.044715
RB, CB8, W3, VV, RB128, CB16 = 24, 25, 26, 27, 28, 29

def prio(k, n):
    if not os.environ.get("NOPRIO"): k(f"s_setprio {n}")
def r(b, n=4): return f"v[{b}:{b+n-1}]"

def poll(k, name, srd, soff, nflag, vo, vf):
    k(f"v_and_b32 v{vo}, {nflag-1}, v0")
    k(f"v_lshlrev_b32 v{vo}, 7, v{vo}")
    k("s_mov_b32 s38, 0")
    k(f"buffer_load_dword v{vf}, v{vo}, s[{srd}:{srd+3}], {soff} offen sc1")
    k("s_sleep 4")
    k.label(name)
    for h in range(2):
        k(f"buffer_load_dword v{vf+1-h}, v{vo}, s[{srd}:{srd+3}], {soff} offen sc1")
        k("s_waitcnt vmcnt(1)")
        k(f"v_cmp_ne_u32 vcc, 0, v{vf+h}")
        k("s_cmp_eq_u64 vcc, -1")
        k(f"s_cbranch_scc1 {name}_ok")
    k("s_add_u32 s38, s38, 1")
    k(f"s_cmp_lt_u32 s38, {SPIN}")
    k(f"s_cbranch_scc1 {name}")
    k.label(name + "_ok")

def setflag(k, srd, soff, lab, v=10):
    k("s_cmp_lg_u32 s5, 0")
    k(f"s_cbranch_scc1 {lab}")
    k(f"v_mov_b32 v{v}, 1")
    k("s_mov_b64 exec, 1")
    k(f"buffer_store_dword v{v}, off, s[{srd}:{srd+3}], {soff} sc1")
    k("s_mov_b64 exec, -1")
    k.label(lab)

def hint(k, srd, soff, v=10):
    k(f"v_mov_b32 v{v}, 1")
    k("s_mov_b64 exec, 1")
    k(f"buffer_store_dword v{v}, off, s[{srd}:{srd+3}], {soff} sc1")
    k("s_mov_b64 exec, -1")

def chk(k, c, b, n=4):
    for i in range(0, n, 2): k(f"v_max3_u32 v{c}, v{c}, v{b+i}, v{b+i+1}")

def verify(k, c, again, cnt):
    k(f"v_cmp_eq_u32 vcc, -1, v{c}")
    k(f"s_add_u32 s{cnt}, s{cnt}, 1")
    k(f"s_cmp_lt_u32 s{cnt}, {RETRY}")
    k("s_cselect_b64 s[70:71], vcc, 0")
    k("s_cmp_lg_u64 s[70:71], 0")
    k(f"s_cbranch_scc1 {again}")

def gelu(k, X, T, n):
    for i in range(n): k(f"v_pk_mul_f32 {r(T+2*i,2)}, {r(X+2*i,2)}, {r(X+2*i,2)}")
    for i in range(n): k(f"v_pk_fma_f32 {r(T+2*i,2)}, {r(T+2*i,2)}, v[12:13], v[12:13] op_sel:[0,1,0] op_sel_hi:[1,1,0]")
    for i in range(n): k(f"v_pk_mul_f32 {r(T+2*i,2)}, {r(T+2*i,2)}, {r(X+2*i,2)}")
    for i in range(2 * n): k(f"v_exp_f32 v{T+i}, v{T+i}")
    for i in range(n): k(f"v_pk_add_f32 {r(T+2*i,2)}, {r(T+2*i,2)}, 1.0 op_sel_hi:[1,0]")
    for i in range(2 * n): k(f"v_rcp_f32 v{T+i}, v{T+i}")
    for i in range(n): k(f"v_pk_mul_f32 {r(X+2*i,2)}, {r(X+2*i,2)}, {r(T+2*i,2)}")

def x1_addr(k, rt, cb, s0, dst, tmp, kg=3, l16=5):
    k(f"s_lshr_b32 s{s0}, s{rt}, 3")
    k(f"s_mul_i32 s{s0}, s{s0}, 40")
    k(f"s_mul_i32 s{s0+1}, s{cb}, 5")
    k(f"s_add_u32 s{s0}, s{s0}, s{s0+1}")
    k(f"s_lshl_b32 s{s0}, s{s0}, 12")
    k(f"s_bfe_u32 s{s0+1}, s{rt}, 0x20001")
    k(f"s_lshl_b32 s{s0+1}, s{s0+1}, 10")
    k(f"s_add_u32 s{s0}, s{s0}, s{s0+1}")
    k(f"s_and_b32 s{s0+1}, s{rt}, 1")
    k(f"s_lshl_b32 s{s0+1}, s{s0+1}, 8")
    k(f"s_add_u32 s{s0}, s{s0}, s{s0+1}")
    for j in range(1, 5): k(f"s_add_u32 s{s0+j}, s{s0}, {j*4096}")
    k(f"v_lshrrev_b32 v{dst}, 1, v{kg}")
    k(f"v_lshlrev_b32 v{dst}, 9, v{dst}")
    k(f"v_lshl_add_u32 v{dst}, v{l16}, 4, v{dst}")
    k(f"v_and_b32 v{tmp}, 1, v{kg}")
    k(f"v_lshl_add_u32 v{dst}, v{tmp}, 3, v{dst}")

def gemm80_resident(k, NK, order, ACT, A0, WB, srd, soff, lds_addr, wait, cb, bars={}, AH=11):
    k("v_add_u32 v8, 0xf000, v1")
    k("v_add_u32 v9, 0x1e000, v1")
    def ld(i):
        return [f"s_add_u32 s38, s{soff}, {order[i]*4096}\nbuffer_load_dwordx4 {r(ACT+4*i)}, v1, s[{srd}:{srd+3}], s38 offen sc1"]
    def rd(i):
        ks = order[i]; b = WB[i % 3]
        ad = lds_addr(ks); n = ad // 0xf000
        return [f"ds_read_b128 {r(b+4*j)}, {('v1', 'v8', 'v9')[n]} offset:{ad + j*1024 - n*0xf000}" for j in range(5)]
    for l in rd(0) + rd(1): k(l)
    wait()
    for i in range(AH): k(ld(i)[0])
    for i in range(NK):
        b = WB[i % 3]
        if i in bars: k("s_barrier")
        k(f"s_waitcnt vmcnt({min(AH-1, NK-1-i)}) lgkmcnt({5 if i < NK-1 else 0})")
        if os.environ.get("FINE3") and i in (0, 5, 12): k.stamp({0: 2, 5: 3, 12: 4}[i])
        fill = (rd(i + 2) if i + 2 < NK else [""] * 5)
        for j in range(5):
            c = "0" if i == 0 else r(A0 + 4 * j)
            k(f"v_mfma_f32_16x16x32_bf16 {r(A0+4*j)}, {r(b+4*j)}, {r(ACT+4*i)}, {c}")
            k(fill[j])
        if i + AH < NK: k(ld(i + AH)[0])
    if os.environ.get("FINE3"): k.stamp(7 if NK == 24 else 6)

def resid(k, A0, X, G, T):
    for i in range(10):
        k(f"v_lshlrev_b32 v{T+2*i}, 16, v{X+i}")
        k(f"v_and_b32 v{T+2*i+1}, 0xffff0000, v{X+i}")
    for i in range(10): k(f"v_pk_fma_f32 {r(A0+2*i,2)}, {r(A0+2*i,2)}, {r(G+2*i,2)}, {r(T+2*i,2)}")
    for i in range(10): k(f"v_cvt_pk_bf16_f32 v{X+i}, v{A0+2*i}, v{A0+2*i+1}")

def gen_k234():
    k = Kern("k2_kernel", 212, 100)
    k("s_cmp_ge_u32 s2, 256")
    k("s_cbranch_scc1 k2_end")
    k.stamp(0); k.rstamp(1)
    k("s_load_dwordx2 s[8:9], s[0:1], 112")
    k("v_lshrrev_b32 v1, 6, v0")
    k("s_and_b32 s3, s2, 7")
    k("v_readfirstlane_b32 s5, v1")
    k(f"s_lshl_b32 s{RB}, s3, 2")
    k("s_bfe_u32 s4, s2, 0x20003")
    k(f"s_add_u32 s{RB}, s{RB}, s4")
    k(f"s_lshr_b32 s{CB8}, s2, 5")
    k("v_and_b32 v1, 63, v0")
    k("v_and_b32 v2, 31, v0")
    k("v_bfe_u32 v3, v0, 5, 1")
    k("v_lshlrev_b32 v1, 4, v1")
    k(f"s_lshl_b32 s4, s{CB8}, 2")
    k(f"s_and_b32 s{W3}, s5, 3")
    k(f"s_add_u32 s4, s4, s{W3}")
    k(f"s_lshl_b32 s6, s{RB}, 1")
    k("s_lshr_b32 s43, s5, 2")
    k("s_add_u32 s6, s6, s43")
    k("v_lshlrev_b32 v15, 30, v3")
    k("v_lshl_add_u32 v15, v2, 3, v15")
    k("s_lshl_b32 s7, s4, 6")
    k("s_add_u32 s7, s7, s6")
    k("s_mul_i32 s7, s7, 1280")
    k("s_lshl_b32 s10, s5, 10")
    k("s_mov_b32 m0, s10")
    k("s_waitcnt lgkmcnt(0)")
    k.srd(20, 8, 9, KV, KV_SZ)
    k.srd(12, 8, 9, Q, ACT_SZ)
    k("buffer_load_dwordx4 v1, s[20:23], m0 offen lds")
    k.srd(16, 8, 9, KMAX, 1024)
    k(f"buffer_load_dwordx4 {r(QA)}, v1, s[12:15], s7 offen")
    k(f"buffer_load_dwordx2 {r(QB,2)}, v15, s[12:15], s7 offen offset:1024")
    k("s_add_u32 m0, m0, 0x2000")
    k(f"buffer_load_dwordx4 {r(S0)}, v1, s[16:19], 0 offen")
    for i in range(3):
        k("buffer_load_dwordx4 v1, s[20:23], m0 offen lds")
        if i < 2:
            k("s_add_u32 m0, m0, 0x2000")
            k.nop(1)
    k("s_load_dwordx2 s[44:45], s[0:1], 0")
    k("s_load_dwordx4 s[48:51], s[0:1], 48")
    k("s_load_dwordx2 s[46:47], s[0:1], 72")
    prio(k, 3)
    k(f"s_bfe_u32 s{VV}, s2, 0x10003")
    k(f"s_lshr_b32 s{RB128}, s{RB}, 1")
    k(f"s_lshl_b32 s{CB16}, s{CB8}, 1")
    k(f"s_add_u32 s{CB16}, s{CB16}, s{VV}")
    k(f"v_mov_b32 v{AK1}, v1")
    k(f"v_lshlrev_b32 v{AK2}, 3, v2")
    k(f"v_add_u32 v{AK2}, 1024, v{AK2}")
    k(f"v_mul_u32_u24 v{AV}, 20, v3")
    k(f"v_add_u32 v{AV}, v{AV}, v2")
    k(f"v_lshlrev_b32 v{AV}, 4, v{AV}")
    k(f"v_add_u32 v{AV}, 1280, v{AV}")
    k("s_mov_b32 s40, 0x000fffff")
    k("s_mov_b32 s41, 0x000fffff")
    k("v_or_b32 v15, 4, v2")
    k("v_cmp_eq_u32 vcc, 28, v15")
    k("v_mov_b32 v15, 0x3f803f80")
    k("s_add_u32 s43, s43, 1")
    k(f"v_cndmask_b32 v{VF[0]}, 0, v15, vcc")
    for i in range(16): k(f"v_mov_b32 v{OO+i}, 0")
    for i in range(1, 16): k(f"v_mov_b32 v{VF[0]+i}, v{VF[0]}")
    for i in range(4, 8): k(f"v_mov_b32 v{PP+i}, 0")
    for b in (QB, KF2[0], KF2[1]):
        k(f"v_mov_b32 v{b+2}, 0"); k(f"v_mov_b32 v{b+3}, 0")
    k.srd(12, 8, 9, O, ACT_SZ)
    k.srd(16, 8, 9, FL, FL_SZ)
    k(f"s_mul_i32 s7, s{CB8}, 102400")
    k(f"s_add_u32 s7, s7, {WOF}")
    k.srd(16 + 16, 8, 9, "s7", 102400)
    k("s_waitcnt vmcnt(3)")
    k(f"v_max3_f32 v{S1}, v{S0}, v{S0+1}, v{S0+2}")
    k(f"v_max_f32 v{S1}, v{S1}, v{S0+3}")
    k(f"v_dot2_f32_bf16 v{S1+2}, v{QA}, v{QA}, 0")
    rowred(k, "v_max_f32", S1)
    for b in (QA + 1, QA + 2, QA + 3, QB, QB + 1):
        k(f"v_dot2_f32_bf16 v{S1+2}, v{b}, v{b}, v{S1+2}")
    k(f"v_mov_b32 v{S1+1}, v{S1}")
    k.nop(3)
    k(f"v_mov_b32 v{S1+3}, v{S1+2}")
    k(f"v_permlane16_swap_b32 v{S1}, v{S1+1}")
    k(f"v_max_f32 v{S1}, v{S1}, v{S1+1}")
    k(f"v_permlane32_swap_b32 v{S1+2}, v{S1+3}")
    k(f"v_mov_b32 v{S1+1}, v{S1}")
    k(f"v_add_f32 v{S1+2}, v{S1+2}, v{S1+3}")
    k.nop(1)
    k(f"v_permlane32_swap_b32 v{S1}, v{S1+1}")
    k(f"v_add_f32 v{S1}, v{S1}, v{S1+1}")
    k(f"v_mul_f32 v{S1}, v{S1}, v{S1+2}")
    k(f"v_sqrt_f32 v{S1}, v{S1}")
    k.nop(1)
    k(f"v_mul_f32 v{CM}, {hexf(-1.001)}, v{S1}")
    for i in range(1, 16): k(f"v_mov_b32 v{CM+i}, v{CM}")
    def rdK(t, buf):
        k(f"ds_read_b128 {r(KF1[buf])}, v{AK1} offset:{t*2560}")
        k(f"ds_read_b64 {r(KF2[buf],2)}, v{AK2} offset:{t*2560}")
    def rdV(t, buf):
        k("s_mov_b64 exec, s[40:41]")
        k(f"ds_read_b128 {r(VF[buf])}, v{AV} offset:{t*2560}")
        k(f"ds_read_b128 {r(VF[buf]+4)}, v{AV} offset:{t*2560+640}")
        k("s_mov_b64 exec, -1")
    SB = (S0, S1)
    k("s_waitcnt vmcnt(0) lgkmcnt(0)")
    k("s_barrier")
    if not os.environ.get("ITER"): k.stamp(2)
    rdK(0, 0); rdK(1, 1); rdV(0, 0)
    k("s_waitcnt lgkmcnt(4)")
    k(f"v_mfma_f32_32x32x16_bf16 {r(S0,16)}, {r(KF1[0])}, {r(QA)}, {r(CM,16)}")
    k(f"v_mfma_f32_32x32x16_bf16 {r(S0,16)}, {r(KF2[0])}, {r(QB)}, {r(S0,16)}")
    k.nop(8)
    def body(dma, every=5, last=False, first=False):
        left = list(dma)
        body.n0 = len(k.lines)
        def ex(reg):
            if left and ex.n % every == 1:
                srd, pre, fl = left.pop(0)
                k(pre)
                k(f"v_exp_f32 v{reg}, v{reg}")
                k(f"buffer_load_dwordx4 v1, s[{srd}:{srd+3}], m0 offen {fl}lds")
            else:
                k(f"v_exp_f32 v{reg}, v{reg}")
            ex.n += 1
        ex.n = 0
        for t in range(8):
            cur = SB[t & 1]; nxt = SB[(t + 1) & 1]
            def E(lo):
                for i in range(lo, lo + 4): ex(cur + i)
                for i in range(lo // 2, lo // 2 + 2): k(f"v_cvt_pk_bf16_f32 v{PP+i}, v{cur+2*i}, v{cur+2*i+1}")
            fin = last and t == 7
            if (last or first) and t in (2, 4, 6): prio(k, 3 - t // 2)
            k("s_waitcnt lgkmcnt(0)")
            if not (last and t >= 6): rdK(t + 2, t & 1)
            else: k.nop(1)
            k(f"v_mfma_f32_32x32x16_bf16 {r(OO,16)}, {r(VF[(t+1)&1]+4)}, {r(PP+4)}, {r(OO,16)}")
            E(0)
            if not fin:
                k(f"v_mfma_f32_32x32x16_bf16 {r(nxt,16)}, {r(KF1[(t+1)&1])}, {r(QA)}, {r(CM,16)}")
                rdV(t + 1, (t + 1) & 1)
            E(4)
            if not fin: k(f"v_mfma_f32_32x32x16_bf16 {r(nxt,16)}, {r(KF2[(t+1)&1])}, {r(QB)}, {r(nxt,16)}")
            if t == 7 and not last:
                k(f"v_add_u32 v{AK1}, 20480, v{AK1}")
                k(f"v_add_u32 v{AK2}, 20480, v{AK2}")
                k(f"v_add_u32 v{AV}, 20480, v{AV}")
            E(8)
            k(f"v_mfma_f32_32x32x16_bf16 {r(OO,16)}, {r(VF[t&1])}, {r(PP)}, {r(OO,16)}")
            E(12)
        assert not left
        X = os.environ.get("XP", "")
        if X:
            new = []
            for l in k.lines[body.n0:]:
                if "nopv" in X and "v_mfma" in l and l.split()[1].startswith(f"v[{OO}:"): l = "    s_nop 0"
                if "noqk2" in X and "v_mfma" in l and f"{r(QB)}" in l: l = "    s_nop 0"
                if "nolds" in X and "ds_read" in l: l = "    s_nop 0"
                if "noexp" in X and "v_exp" in l: l = l.replace("v_exp_f32", "v_mov_b32")
                if "nocvt" in X and "v_cvt_pk" in l: l = "    s_nop 0"
                if "qk8" in X and "v_mfma" in l and f"{r(QB)}" in l:
                    l = l.replace("v_mfma_f32_32x32x16_bf16", "v_mfma_f32_32x32x8bf16_1k").replace(r(QB), r(QB, 2)).replace(r(KF2[0]), r(KF2[0], 2)).replace(r(KF2[1]), r(KF2[1], 2))
                new.append(l)
            k.lines[body.n0:] = new
        if last:
            k.nop(2)
            k(f"v_mfma_f32_32x32x16_bf16 {r(OO,16)}, {r(VF[1]+4)}, {r(PP+4)}, {r(OO,16)}")
    INC = "s_add_u32 m0, m0, 0x2000"
    body([(20, INC, '')] * 16, first=True)
    k("s_waitcnt vmcnt(0)")
    k("s_barrier")
    k("s_mov_b32 s42, 1")
    k("s_add_u32 s39, s43, 2")
    k("s_branch k2_disp")
    k.lines.append(".p2align 6")
    k.label("k2_loop")
    body([])
    k("s_add_u32 s42, s42, 1")
    k.label("k2_disp")
    if os.environ.get("ITER"):
        for i in range(1, 7):
            k(f"s_cmp_eq_u32 s42, {i}")
            k(f"s_cbranch_scc0 k2_it{i}")
            k.stamp(i + 1)
            k.label(f"k2_it{i}")
    if not os.environ.get("NOSIDE"):
        k("s_cmp_eq_u32 s42, s43")
        k("s_cbranch_scc1 k2_sideld")
        k("s_cmp_eq_u32 s42, s39")
        k("s_cbranch_scc1 k2_side")
    k.label("k2_cont")
    prio(k, 3)
    k("s_cmp_eq_u32 s42, 1")
    k("s_cbranch_scc1 k2_loop")
    k("s_cmp_eq_u32 s42, 5")
    k("s_cbranch_scc1 " + ("k2_loop" if os.environ.get("NOBLK") else "k2_blk5"))
    prio(k, 2)
    k("s_cmp_eq_u32 s42, 2")
    k("s_cbranch_scc1 k2_loop")
    k("s_cmp_eq_u32 s42, 6")
    k("s_cbranch_scc1 " + ("k2_loop" if os.environ.get("NOBLK") else "k2_blk6"))
    prio(k, 1)
    k("s_cmp_eq_u32 s42, 3")
    k("s_cbranch_scc1 k2_loop")
    prio(k, 0)
    k("s_cmp_eq_u32 s42, 4")
    k("s_cbranch_scc1 k2_loop")
    prio(k, 3)
    k("s_sub_u32 m0, s10, 0x2000")
    k(f"s_mul_i32 s7, s{CB16}, 122880")
    k(f"s_add_u32 s7, s7, {WINF - 40960}")
    k.srd(72, 8, 9, "s7", 163840)
    k("s_cmp_lg_u32 s5, " + ("99" if os.environ.get("NOBLK") else "0"))
    k("s_cbranch_scc1 k2_fsok")
    k("s_mov_b32 s38, 0")
    k.label("k2_fschk")
    k("s_waitcnt vmcnt(0)")
    k("v_min3_u32 v168, v168, v169, v170")
    k("v_min_u32 v168, v168, v171")
    k("v_cmp_ne_u32 vcc, 0, v168")
    k("s_cmp_eq_u64 vcc, -1")
    k("s_cbranch_scc1 k2_fsok")
    k("s_sleep 1")
    k(f"buffer_load_dwordx4 v[168:171], v1, s[16:19], s37 offen sc1")
    k("s_add_u32 s38, s38, 1")
    k(f"s_cmp_lt_u32 s38, {SPIN}")
    k("s_cbranch_scc1 k2_fschk")
    k.label("k2_fsok")
    k("s_barrier")
    body([(72, 's_add_u32 m0, s10, 102400', 'sc1 ')] + [(72, INC, 'sc1 ')] * 4, every=7, last=True)
    if os.environ.get("ITER"):
        k.endpgm(2)
    k.stamp(3)
    k(f"v_mov_b32 v15, {hexf(2.0**-80)}")
    k.nop(11)
    k(f"v_cmp_nge_f32 vcc, v{OO+12}, v15")
    k.nop(5)
    k("s_cbranch_vccnz k2_slow")
    k.label("k2_epi")
    k(f"v_rcp_f32 v{S0}, v{OO+12}")
    k(f"s_mul_i32 s7, s{RB}, 81920")
    k("s_and_b32 s10, s6, 1")
    k("s_lshl_b32 s10, s10, 11")
    k("s_add_u32 s10, s7, s10")
    k(f"v_lshrrev_b32 v{S0+3}, 4, v2")
    k(f"v_lshlrev_b32 v{S0+3}, 10, v{S0+3}")
    k(f"v_and_b32 v{S0+2}, 15, v2")
    k(f"v_lshl_add_u32 v{S0+3}, v{S0+2}, 4, v{S0+3}")
    k("s_mul_i32 s11, s4, 20")
    k(f"v_lshl_add_u32 v{S0+4}, v3, 2, s11")
    for i in range(6):
        k(f"v_pk_mul_f32 {r(OO+2*i,2)}, {r(OO+2*i,2)}, {r(S0,2)} op_sel_hi:[1,0]")
    for i in range(6):
        k(f"v_cvt_pk_bf16_f32 v{PP+i}, v{OO+2*i}, v{OO+2*i+1}")
    for i in range(3):
        c = S0 + 8 + 4 * i
        k(f"v_add_u32 v{c}, {8*i}, v{S0+4}")
        k(f"v_lshrrev_b32 v{c+1}, 5, v{c}")
        k(f"v_lshl_add_u32 v{c+1}, v{c+1}, 12, v{S0+3}")
        k(f"v_bfe_u32 v{c+2}, v{c}, 3, 2")
        k(f"v_lshl_add_u32 v{c+1}, v{c+2}, 8, v{c+1}")
        k(f"v_and_b32 v{c+2}, 4, v{c}")
        k(f"v_lshl_add_u32 v{c+1}, v{c+2}, 1, v{c+1}")
        if i == 2:
            k(f"v_lshl_add_u32 v{c+1}, v3, 30, v{c+1}")
        k(f"buffer_store_dwordx2 {r(PP+2*i,2)}, v{c+1}, s[12:15], s10 offen sc1")
    k(f"s_lshl_b32 s36, s{RB}, 10")
    k(f"s_add_u32 s36, s36, {F2 - FL}")
    k(f"s_lshl_b32 s37, s{CB8}, 7")
    k("s_add_u32 s37, s37, s36")
    k("s_cmp_ge_u32 s5, 4")
    k("s_cbranch_scc1 k2_loader")
    XR_, GA_R, ACT, A0, WB = 120, 132, 16, 96, (152, 172, 192)
    k("s_waitcnt vmcnt(0)")
    k("s_barrier")
    setflag(k, 16, "s37", "k2_f2done")
    k.stamp(4)
    k("v_bfe_u32 v3, v0, 4, 2")
    k("v_and_b32 v5, 15, v0")
    k(f"s_lshl_b32 s6, s{RB}, 2")
    k("s_add_u32 s6, s6, s5")
    x1_addr(k, 6, CB8, 60, 6, 7)
    k("s_lshl_b32 s10, s5, 10")
    k("s_add_u32 s7, s7, s10")
    k.srd(52, 8, 9, X1, ACT_SZ)
    k.srd(56, 8, 9, SP2, SP2_SZ)
    def w3():
        poll(k, "k2_p2", 16, "s36", 8, 10, 11)
        k.stamp(5)
    gemm80_resident(k, 20, list(range(8, 20)) + list(range(8)), ACT, A0, WB, 12, 7, lambda ks: ks * 5120,
                    w3, CB8, bars={9: 1, 12: 1})
    if os.environ.get("FINE"): k.stamp(2)
    k("s_barrier")
    k.nop(4)
    resid(k, A0, XR_, GA_R, WB[0])
    k("v_and_b32 v7, 1, v3")
    k("v_mul_u32_u24 v7, 4088, v7")
    k("v_add_u32 v7, v7, v6")
    for i in range(10):
        k(f"v_lshlrev_b32 v{A0+2*i}, 16, v{XR_+i}")
        k(f"v_and_b32 v{A0+2*i+1}, 0xffff0000, v{XR_+i}")
    for p in range(2):
        k(f"v_permlane16_swap_b32 v{XR_+4*p}, v{XR_+4*p+2}")
        k(f"v_permlane16_swap_b32 v{XR_+4*p+1}, v{XR_+4*p+3}")
        k(f"buffer_store_dwordx4 {r(XR_+4*p)}, v7, s[52:55], s{60+2*p} offen sc1")
    k(f"buffer_store_dwordx2 {r(XR_+8,2)}, v6, s[52:55], s64 offen sc1")
    k(f"v_pk_add_f32 v[10:11], {r(A0,2)}, {r(A0+2,2)}")
    k(f"v_pk_mul_f32 v[12:13], {r(A0,2)}, {r(A0,2)}")
    for i in range(1, 10):
        if i > 1: k(f"v_pk_add_f32 v[10:11], v[10:11], {r(A0+2*i,2)}")
        k(f"v_pk_fma_f32 v[12:13], {r(A0+2*i,2)}, {r(A0+2*i,2)}, v[12:13]")
    k("v_add_f32 v10, v10, v11")
    k("v_add_f32 v12, v12, v13")
    k(f"s_lshl_b32 s36, s{RB}, 3")
    k(f"s_add_u32 s36, s36, s{CB8}")
    k("v_lshlrev_b32 v7, 3, v5")
    k("v_permlane16_swap_b32 v10, v12")
    k("v_add_f32 v10, v10, v12")
    k("v_mov_b32 v12, v10")
    k("v_and_b32 v8, 1, v3")
    k("v_lshl_add_u32 v7, v8, 2, v7")
    k("v_permlane32_swap_b32 v10, v12")
    k("v_add_f32 v10, v10, v12")
    k("v_lshrrev_b32 v8, 1, v3")
    k("v_lshl_add_u32 v7, v8, 30, v7")
    k("s_lshl_b32 s36, s36, 9")
    k("s_lshl_b32 s37, s5, 7")
    k("s_add_u32 s36, s36, s37")
    k("buffer_store_dword v10, v7, s[56:59], s36 offen sc1")
    k(f"s_lshl_b32 s36, s{RB128}, 11")
    k(f"s_add_u32 s36, s36, {F3 - FL}")
    k(f"s_lshl_b32 s37, s{CB16}, 7")
    k("s_add_u32 s37, s37, s36")
    if os.environ.get("FINE"): k.stamp(3)
    k("s_waitcnt vmcnt(0)")
    k("s_barrier")
    setflag(k, 16, "s37", "k2_f3done", 11)
    if os.environ.get("FINE"): k.stamp(4)
    ACT, A0, WB, ST = 16, 80, 128, 152
    NR = 16; AH = 12
    k("v_bfe_u32 v3, v0, 5, 1")
    k(f"s_lshl_b32 s6, s{RB128}, 2")
    k("s_add_u32 s6, s6, s5")
    k(f"s_mul_i32 s7, s{RB128}, 163840")
    k("s_add_u32 s7, s7, s10")
    k("s_lshl_b32 s11, s6, 11")
    k("s_and_b32 s37, s5, 1")
    k("s_mul_i32 s37, s37, 1792")
    k("s_sub_u32 s11, s11, s37")
    k("v_lshlrev_b32 v4, 3, v2")
    k("v_lshl_add_u32 v6, v3, 11, v4")
    k("v_add_u32 v7, 40960, v1")
    k("v_add_u32 v14, 102400, v1")
    k(f"v_mov_b32 v12, {hexf(GA_)}")
    k(f"v_mov_b32 v13, {hexf(GB_)}")
    order = list(range(20, 40)) + list(range(20))
    def ld(i):
        k(f"s_add_u32 s38, s7, {order[i]*4096}")
        k(f"buffer_load_dwordx4 {r(ACT+4*(i%NR))}, v1, s[52:55], s38 offen sc1")
    def rd(i):
        ks = order[i]; b = WB + 12 * (i & 1)
        a, base = ("v7", 0) if ks < 20 else ("v14", 61440)
        for j in range(3): k(f"ds_read_b128 {r(b+4*j)}, {a} offset:{ks*3072 + j*1024 - base}")
    rd(0)
    k(f"s_mul_i32 s37, s{RB128}, 163840")
    k(f"s_mul_i32 s39, s{CB16}, 10240")
    k("s_add_u32 s37, s37, s39")
    k("s_mul_i32 s39, s5, 2560")
    k("s_add_u32 s37, s37, s39")
    poll(k, "k2_p3", 16, "s36", 16, 10, 164)
    if not os.environ.get("FINE3"): k.stamp(6)
    for i in range(4): k(f"buffer_load_dwordx2 {r(ST+2*i,2)}, v6, s[56:59], s11 offen offset:{i*512} sc1")
    ld(0); ld(1)
    if TOUCH:
        for i in range(3): k(f"buffer_load_dwordx4 {r(160)}, v1, s[52:55], s37 offen offset:{min(i*1024, 1536)} sc1")
    for i in range(2, AH): ld(i)
    k(f"s_cmp_eq_u32 s{VV}, 0")
    k("s_cbranch_scc0 k2_p4B")
    LC1, LC2, LTAB = 0, 1024, 2048
    def rowtab(S, n, bias_s, bias_q):
        k(f"v_mov_b32 v{S+2}, v{S}")
        k(f"v_mov_b32 v{S+3}, v{S+1}")
        k("s_lshl_b32 s36, s5, 8")
        k(f"s_add_u32 s36, s36, {LTAB}")
        k(f"v_permlane32_swap_b32 v{S}, v{S+2}")
        k(f"v_permlane32_swap_b32 v{S+1}, v{S+3}")
        k(f"v_pk_add_f32 {r(S,2)}, {r(S,2)}, {r(S+2,2)}")
        k("v_lshl_add_u32 v10, v2, 2, s36")
        k(f"v_mov_b32 v{S+2}, {hexf(1.0/n)}")
        k(f"v_fmaak_f32 v8, v{S}, v{S+2}, {hexf(-bias_s/n)}")
        k(f"v_fmaak_f32 v9, v{S+1}, v{S+2}, {hexf(1e-5 - bias_q/n)}")
        k("v_fma_f32 v9, -v8, v8, v9")
        k("v_rsq_f32 v11, v9")
        k.nop(1)
        k("v_mul_f32 v9, v8, v11")
        k("v_sub_f32 v9, 0, v9")
        k("v_mov_b32 v8, v11")
        k("ds_write_b32 v10, v8")
        k("ds_write_b32 v10, v9 offset:128")
    for var in range(2):
        if var == 1: k.label("k2_p4B")
        types = ("z2", "z2", "z1") if var == 0 else ("z2", "z1", "z1")
        for i in range(40):
            b = WB + 12 * (i & 1); a = ACT + 4 * (i % NR)
            if i == 12: k("s_barrier")
            k(f"s_waitcnt vmcnt({min(AH-1, 39 - i)}) lgkmcnt(0)")
            if os.environ.get("FINE4") and i in (0, 6, 13, 26): k.stamp({0: 2, 6: 3, 13: 4, 26: 5}[i])
            for j in range(3):
                c = "0" if i == 0 else r(A0 + 16 * j, 16)
                x, y = (r(a), r(b + 4 * j)) if types[j] == "z2" else (r(b + 4 * j), r(a))
                k(f"v_mfma_f32_32x32x16_bf16 {r(A0+16*j,16)}, {x}, {y}, {c}")
                if j == 0 and i < 39: rd(i + 1)
                if j == 1 and i + AH < 40: ld(i + AH)
            if i == 21:
                k(f"v_pk_add_f32 {r(ST,2)}, {r(ST,2)}, {r(ST+2,2)}")
                k(f"v_pk_add_f32 {r(ST+4,2)}, {r(ST+4,2)}, {r(ST+6,2)}")
                k(f"v_pk_add_f32 {r(ST,2)}, {r(ST,2)}, {r(ST+4,2)}")
                rowtab(ST, 640, 0.0, 0.0)
                k("s_waitcnt lgkmcnt(0)")
        k.stamp(7)
        RR, NN, CC, SS, QQ, T, CV = 16, 32, 48, 128, 144, 56, 160
        nz2 = types.count("z2")
        k("v_lshl_add_u32 v10, v3, 4, s36")
        k("v_lshlrev_b32 v11, 2, v2")
        def rd_tab():
            for a in range(4):
                k(f"ds_read_b128 {r(RR+4*a)}, v10 offset:{a*32}")
                k(f"ds_read_b128 {r(NN+4*a)}, v10 offset:{128 + a*32}")
        rd_tab()
        for n in range(nz2):
            k(f"ds_read_b32 v{CC+2*n}, v11 offset:{LC1 + n*128}")
            k(f"ds_read_b32 v{CC+2*n+1}, v11 offset:{LC2 + n*128}")
        k.srd(60, 8, 9, STP, STP_SZ)
        k.srd(64, 8, 9, Z1, Z_SZ)
        k.srd(68, 8, 9, Z2, Z_SZ)
        k("v_lshlrev_b32 v15, 4, v3")
        def rd_c(n):
            for a in range(4):
                k(f"ds_read_b128 {r(CV+4*a)}, v15 offset:{LC1 + n*128 + a*32}")
                k(f"ds_read_b128 {r(CV+16+4*a)}, v15 offset:{LC2 + n*128 + a*32}")
        k("s_waitcnt lgkmcnt(0)")
        rd_c(nz2)
        for n in range(nz2):
            X = A0 + 16 * n; c = r(CC + 2 * n, 2)
            for i in range(8): k(f"v_pk_fma_f32 {r(T+2*i,2)}, {r(NN+2*i,2)}, {c}, {c} op_sel:[0,0,1] op_sel_hi:[1,0,1]")
            for i in range(8): k(f"v_pk_fma_f32 {r(X+2*i,2)}, {r(X+2*i,2)}, {r(RR+2*i,2)}, {r(T+2*i,2)}")
            gelu(k, X, T, 8)
            for i in range(8):
                if n == 0: k(f"v_pk_mul_f32 {r(QQ+2*i,2)}, {r(X+2*i,2)}, {r(X+2*i,2)}")
                else: k(f"v_pk_fma_f32 {r(QQ+2*i,2)}, {r(X+2*i,2)}, {r(X+2*i,2)}, {r(QQ+2*i,2)}")
        for i in range(8):
            if nz2 == 2: k(f"v_pk_add_f32 {r(SS+2*i,2)}, {r(A0+2*i,2)}, {r(A0+16+2*i,2)}")
            else: k(f"v_pk_mul_f32 {r(SS+2*i,2)}, {r(A0+2*i,2)}, 1.0 op_sel_hi:[1,0]")
        k("v_and_b32 v4, 3, v0")
        k("v_bfe_u32 v5, v0, 2, 2")
        for i in range(16): k(f"v_permlane16_swap_b32 v{SS+i}, v{QQ+i}")
        for i in range(16): k(f"v_add_f32 v{SS+i}, v{SS+i}, v{QQ+i}")
        for j in range(8): k(f"v_add_f32_dpp v{SS+j}, v{SS+j}, v{SS+j} row_ror:8 row_mask:0xf bank_mask:0x3")
        for j in range(8): k(f"v_add_f32_dpp v{SS+j}, v{SS+8+j}, v{SS+8+j} row_ror:8 row_mask:0xf bank_mask:0xc")
        for j in range(4): k(f"v_add_f32_dpp v{SS+j}, v{SS+j}, v{SS+j} row_half_mirror row_mask:0xf bank_mask:0x5")
        for j in range(4): k(f"v_add_f32_dpp v{SS+j}, v{SS+4+j}, v{SS+4+j} row_half_mirror row_mask:0xf bank_mask:0xa")
        for j in range(4): k(f"v_add_f32_dpp v{SS+j}, v{SS+j}, v{SS+j} quad_perm:[2,3,0,1] row_mask:0xf bank_mask:0xf")
        for j in range(4): k(f"v_add_f32_dpp v{SS+j}, v{SS+j}, v{SS+j} quad_perm:[1,0,3,2] row_mask:0xf bank_mask:0xf")
        k("v_lshl_add_u32 v4, v5, 3, v4")
        k("v_lshl_add_u32 v4, v3, 2, v4")
        k("v_lshlrev_b32 v4, 3, v4")
        k("v_bfe_u32 v5, v0, 4, 1")
        k("v_lshl_add_u32 v4, v5, 2, v4")
        k("v_cvt_f32_u32 v5, v5")
        k(f"v_fmaak_f32 v5, {hexf(-15.0)}, v5, {hexf(16.0)}" if False else f"v_mul_f32 v5, {hexf(-15.0)}, v5")
        k(f"v_add_f32 v5, {hexf(16.0)}, v5")
        for j in range(1, 4):
            m = hex(0x11111111 << j)
            k(f"s_mov_b32 s40, {m}")
            k(f"s_mov_b32 s41, {m}")
            k(f"v_cndmask_b32 v{SS}, v{SS}, v{SS+j}, s[40:41]")
        k(f"s_lshl_b32 s37, s{RB128}, 14")
        k("s_lshl_b32 s38, s5, 8")
        k("s_add_u32 s37, s37, s38")
        k(f"s_lshl_b32 s38, s{CB16}, 10")
        k("s_add_u32 s38, s38, s37")
        k(f"v_add_f32 v{SS}, v{SS}, v5")
        k(f"buffer_store_dword v{SS}, v4, s[60:63], s38 offen sc1")
        k("s_mul_i32 s39, s6, 24")
        k(f"s_mul_i32 s38, s{CB8}, 3")
        k("s_add_u32 s39, s39, s38")
        k(f"s_add_u32 s39, s39, {var}")
        k("s_lshl_b32 s39, s39, 11")
        for n in range(nz2, 3):
            X = A0 + 16 * n
            k("s_waitcnt lgkmcnt(0)")
            for i in range(8):
                k(f"v_pk_fma_f32 {r(T+2*i,2)}, v[8:9], {r(CV+2*i,2)}, {r(CV+16+2*i,2)} op_sel:[1,0,0] op_sel_hi:[1,1,1]")
            if n < 2: rd_c(n + 1)
            for i in range(8):
                k(f"v_pk_fma_f32 {r(X+2*i,2)}, {r(X+2*i,2)}, v[8:9], {r(T+2*i,2)} op_sel_hi:[1,0,1]")
            gelu(k, X, T, 8)
            P = SS + 8 * (n - nz2)
            for i in range(8): k(f"v_cvt_pk_bf16_f32 v{P+i}, v{X+2*i}, v{X+2*i+1}")
            for ap in range(2):
                k(f"buffer_store_dwordx4 {r(P+4*ap)}, v1, s[64:67], s39 offen offset:{(n-nz2)*2048 + ap*1024} {Z_SC}")
        G = CV
        k("v_lshlrev_b32 v4, 3, v2")
        k("v_lshl_add_u32 v4, v3, 13, v4")
        k("s_add_u32 s38, s37, 4096")
        k("s_mov_b32 s42, 0")
        lab = f"k2_st{var}"
        k.label(lab)
        for i in range(8):
            k(f"buffer_load_dwordx2 {r(G+2*i,2)}, v4, s[60:63], {'s37' if i < 4 else 's38'} offen offset:{(i&3)*1024} sc1")
        k("s_add_u32 s42, s42, 1")
        k("s_waitcnt vmcnt(0)")
        k(f"v_min3_u32 v5, v{G}, v{G+1}, v{G+2}")
        for i in range(6): k(f"v_min3_u32 v5, v5, v{G+3+2*i}, v{G+4+2*i}")
        k(f"v_min_u32 v5, v5, v{G+15}")
        k("v_cmp_ne_u32 vcc, 0, v5")
        k("s_cmp_eq_u64 vcc, -1")
        k(f"s_cbranch_scc1 {lab}_ok")
        k("s_sleep 1")
        k(f"s_cmp_lt_u32 s42, {SPIN}")
        k(f"s_cbranch_scc1 {lab}")
        k.label(lab + "_ok")
        for a, b_ in ((0, 2), (4, 6), (8, 10), (12, 14), (0, 4), (8, 12), (0, 8)):
            k(f"v_pk_add_f32 {r(G+a,2)}, {r(G+a,2)}, {r(G+b_,2)}")
        rowtab(G, 768, 256.0, 16.0)
        k("v_lshl_add_u32 v10, v3, 4, s36")
        k(f"s_lshl_b32 s37, s{CB8}, 7")
        k("s_lshl_b32 s38, s6, 1")
        k("s_add_u32 s37, s37, s38")
        k("s_mul_i32 s37, s37, 3072")
        k(f"s_add_u32 s37, s37, {2048*var}")
        k("s_add_u32 s38, s37, 3072")
        k("s_waitcnt lgkmcnt(0)")
        rd_tab()
        k("s_waitcnt lgkmcnt(0)")
        for n in range(nz2):
            X = A0 + 16 * n; P = T + 8 * n
            for i in range(8): k(f"v_pk_fma_f32 {r(X+2*i,2)}, {r(X+2*i,2)}, {r(RR+2*i,2)}, {r(NN+2*i,2)}")
            for i in range(8): k(f"v_cvt_pk_bf16_f32 v{P+i}, v{X+2*i}, v{X+2*i+1}")
            k.nop(1)
            for h in range(2):
                k(f"v_permlane32_swap_b32 v{P+4*h}, v{P+4*h+2}")
                k(f"v_permlane32_swap_b32 v{P+4*h+1}, v{P+4*h+3}")
                k(f"buffer_store_dwordx4 {r(P+4*h)}, v1, s[68:71], {'s37' if h == 0 else 's38'} offen offset:{n*1024} {Z_SC}")
        k.endpgm(2)
    k.label("k2_loader")
    k.srd(56, 8, 9, C1, 12288)
    k(f"s_lshl_b32 s10, s{W3}, 10")
    k("s_waitcnt vmcnt(0)")
    k("s_barrier")
    k.stamp(4)
    def win(base, n):
        k(f"s_add_u32 m0, s10, {base}")
        for i in range(n):
            k.nop(1)
            k("buffer_load_dwordx4 v1, s[72:75], m0 offen sc1 lds")
            if i < n - 1: k("s_add_u32 m0, m0, 4096")
    k("s_barrier")
    win(143360, 5)
    k("s_barrier")
    win(40960, 15)
    k.stamp(5)
    k(f"s_mul_i32 s11, s{CB16}, 384")
    k("s_and_b32 s36, s5, 1")
    k("s_mul_i32 s37, s36, 6144")
    k("s_add_u32 s11, s11, s37")
    k("s_lshl_b32 m0, s36, 10")
    k("s_barrier")
    k("buffer_load_dwordx4 v1, s[56:59], s11 offen sc1 lds")
    k("s_barrier")
    k("s_waitcnt vmcnt(0)")
    k.stamp(6)
    k("s_barrier")
    k("s_lshl_b32 s7, s3, 20")
    k(f"s_add_u32 s7, s7, {WSPF}")
    k.srd(52, 8, 9, "s7", 0x100000)
    k.srd(56, 8, 9, WOUTF, WOUTF_SZ)
    k("s_lshr_b32 s7, s2, 3")
    k("s_lshl_b32 s7, s7, 2")
    k(f"s_add_u32 s7, s7, s{W3}")
    k("s_mul_i32 s11, s7, 7680")
    k("s_lshl_b32 s7, s7, 13")
    for h in range(2 if PF_NEXT & 1 else 0):
        for i in range(4): k(f"buffer_load_dwordx4 v[16:19], v1, s[52:55], s7 offen offset:{i*1024}")
        k("s_add_u32 s7, s7, 4096")
    for h in range(2 if PF_NEXT & 2 else 0):
        for i in range(4): k(f"buffer_load_dwordx4 v[16:19], v1, s[56:59], s11 offen offset:{i*1024}")
        k("s_add_u32 s11, s11, 4096")
    k.endpgm(2)
    k.label("k2_end")
    k("s_endpgm")
    k.label("k2_blk5")
    k("s_lshl_b32 s37, s2, 2")
    k(f"s_add_u32 s37, s37, {FS - FL}")
    k("s_waitcnt vmcnt(0)")
    k("s_barrier")
    setflag(k, 16, "s37", "k2_fsdone", 172)
    k("s_cmp_ge_u32 s5, 4")
    k("s_cbranch_scc1 k2_loop")
    def wo_burst(first, n):
        k(f"s_lshl_b32 m0, s{W3}, 10")
        k(f"s_add_u32 m0, m0, {first}")
        for i in range(n):
            k.nop(1)
            k("buffer_load_dwordx4 v1, s[32:35], m0 offen lds")
            if i < n - 1: k("s_add_u32 m0, m0, 4096")
    wo_burst(0, 13)
    k("s_branch k2_loop")
    k.label("k2_blk6")
    k.srd(68, 8, 9, WINF, WINF_SZ)
    k("s_mul_i32 s53, s53, 7680")
    k("s_add_u32 s54, s53, 4096")
    for i in range(8 if PF_WIN else 0): k(f"buffer_load_dwordx4 v[172:175], v1, s[68:71], {'s53' if i < 4 else 's54'} offen offset:{(i&3)*1024} sc1")
    k("s_cmp_lt_u32 s5, 4")
    k("s_cbranch_scc1 k2_blk6a")
    wo_burst(53248, 12)
    k("s_branch k2_loop")
    k.label("k2_blk6a")
    k("v_bfe_u32 v176, v0, 4, 2")
    k("v_and_b32 v177, 15, v0")
    k(f"s_lshl_b32 s59, s{RB}, 2")
    k("s_add_u32 s59, s59, s5")
    k("v_mul_u32_u24 v178, 1280, v177")
    k("v_lshl_add_u32 v178, v176, 3, v178")
    k("s_mul_i32 s60, s59, 20480")
    k(f"s_mul_i32 s61, s{CB8}, 160")
    k("s_add_u32 s60, s60, s61")
    k("v_lshlrev_b32 v179, 4, v176")
    k(f"s_mul_i32 s38, s{CB8}, 320")
    k.srd(52, 44, 45, 0, ACT_SZ)
    k.srd(56, 8, 9, MOD + 5120, 2560)
    for j in range(5): k(f"buffer_load_dwordx2 {r(120+2*j,2)}, v178, s[52:55], s60 offen offset:{j*32}")
    for j in range(5): k(f"buffer_load_dwordx4 {r(132+4*j)}, v179, s[56:59], s38 offen offset:{j*64}")
    k("s_cmp_lg_u32 s5, 0")
    k("s_cbranch_scc1 k2_loop")
    k(f"s_movk_i32 s37, {hex(FS - FL)}")
    k(f"buffer_load_dwordx4 v[168:171], v1, s[16:19], s37 offen sc1")
    k("s_branch k2_loop")
    k.label("k2_sideld")
    k("s_lshl_b32 s52, s2, 3")
    k("s_add_u32 s52, s52, s5")
    k("s_lshr_b32 s53, s2, 3")
    k("s_lshl_b32 s53, s53, 3")
    k("s_add_u32 s53, s53, s5")
    k.srd(56, 48, 49, 0, 640 * 3072)
    k.srd(64, 8, 9, MOD + 7680, 5120)
    k("s_mul_i32 s62, s52, 1639")
    k("s_lshr_b32 s62, s62, 16")
    k("s_mul_i32 s63, s62, 40")
    k("s_sub_u32 s63, s52, s63")
    k("s_mul_i32 s68, s63, 49152")
    k("s_lshl_b32 s69, s62, 6")
    k("s_add_u32 s68, s68, s69")
    k("s_cmp_lt_u32 s52, 1920")
    k("s_cselect_b32 s70, 0, 0x40000000")
    k("s_add_u32 s68, s68, s70")
    k("v_mul_u32_u24 v15, 24576, v3")
    k("v_lshl_add_u32 v15, v2, 1, v15")
    for j in range(8):
        k(f"buffer_load_ushort v{136+j}, v15, s[56:59], s68 offen")
        if j < 7: k("s_add_u32 s68, s68, 3072")
    k("s_lshl_b32 s68, s63, 6")
    k("v_lshlrev_b32 v15, 5, v3")
    k(f"buffer_load_dwordx4 {r(144)}, v15, s[64:67], s68 offen")
    k(f"buffer_load_dwordx4 {r(148)}, v15, s[64:67], s68 offen offset:16")
    k(f"buffer_load_dwordx4 {r(152)}, v15, s[64:67], s68 offen offset:2560")
    k(f"buffer_load_dwordx4 {r(156)}, v15, s[64:67], s68 offen offset:2576")
    k("s_cmp_ge_u32 s62, 24")
    k("s_cselect_b32 s68, 24, 0")
    k("s_cselect_b32 s71, 0x310, 0")
    k("s_cselect_b32 s72, 0, 0x542")
    k("s_or_b32 s71, s71, s72")
    k("s_sub_u32 s62, s62, s68")
    k("s_mul_i32 s68, s62, 86")
    k("s_lshr_b32 s68, s68, 8")
    k("s_mul_i32 s69, s68, 3")
    k("s_sub_u32 s69, s62, s69")
    k("s_lshl_b32 s69, s69, 2")
    k("s_lshr_b32 s71, s71, s69")
    k("s_and_b32 s71, s71, 15")
    k("s_mul_i32 s62, s68, 6")
    k("s_add_u32 s62, s62, s71")
    k("s_mul_i32 s68, s62, 86")
    k("s_lshr_b32 s68, s68, 8")
    k("s_mul_i32 s69, s68, 3")
    k("s_sub_u32 s69, s62, s69")
    k("s_mul_i32 s68, s68, 40")
    k("s_add_u32 s68, s68, s63")
    k("s_mul_i32 s68, s68, 3")
    k("s_add_u32 s68, s68, s69")
    k("s_lshl_b32 s68, s68, 10")
    k("s_add_u32 s63, s68, s70")
    k("s_lshl_b32 s62, s62, 7")
    k("s_add_u32 s62, s62, s70")
    k.srd(56, 46, 47, 0, 983040)
    k("s_mul_i32 s69, s52, 2731")
    k("s_lshr_b32 s69, s69, 16")
    k("s_mul_i32 s73, s69, 24")
    k("s_sub_u32 s68, s52, s73")
    k("s_cmp_lt_u32 s52, 960")
    k("s_cselect_b32 s70, 0, 0x40000000")
    k("s_mul_i32 s73, s68, 40960")
    k("s_lshl_b32 s74, s69, 5")
    k("s_add_u32 s73, s73, s74")
    k("s_add_u32 s73, s73, s70")
    k("s_add_u32 s74, s73, 5120")
    k("v_bfe_u32 v15, v0, 4, 2")
    k("v_mul_u32_u24 v15, 10240, v15")
    k("v_and_b32 v160, 15, v0")
    k("v_lshl_add_u32 v15, v160, 1, v15")
    for j in range(8):
        k(f"buffer_load_ushort v{160+j}, v15, s[56:59], {'s73' if j < 4 else 's74'} offen offset:{(j&3)*1280}")
    k("s_mul_i32 s73, s69, 52")
    k("s_lshr_b32 s73, s73, 8")
    k("s_mul_i32 s74, s73, 5")
    k("s_sub_u32 s74, s69, s74")
    k("s_mul_i32 s73, s73, 24")
    k("s_add_u32 s73, s73, s68")
    k("s_mul_i32 s73, s73, 5")
    k("s_add_u32 s73, s73, s74")
    k("s_lshl_b32 s73, s73, 10")
    k("s_add_u32 s60, s73, s70")
    k.srd(56, 50, 51, 0, WSPF_SZ)
    k("s_lshl_b32 s54, s3, 3")
    k("s_lshr_b32 s55, s53, 5")
    k("s_add_u32 s54, s54, s55")
    k("s_and_b32 s55, s53, 31")
    k("s_lshl_b32 s68, s54, 17")
    k("s_lshl_b32 s69, s55, 7")
    k("s_add_u32 s68, s68, s69")
    k("s_lshr_b32 s61, s54, 1")
    k("s_lshl_b32 s61, s61, 18")
    k("s_lshl_b32 s69, s55, 13")
    k("s_add_u32 s61, s61, s69")
    k("s_and_b32 s69, s54, 1")
    k("s_lshl_b32 s69, s69, 10")
    k("s_add_u32 s61, s61, s69")
    k("v_lshlrev_b32 v15, 12, v2")
    k("v_lshl_add_u32 v15, v3, 4, v15")
    for q in range(4):
        k(f"buffer_load_dwordx4 {r(120+4*q)}, v15, s[56:59], s68 offen offset:{q*32}")
    k("s_branch k2_cont")
    k.label("k2_side")
    k.srd(64, 8, 9, WSPF, WSPF_SZ)
    k.srd(68, 8, 9, WINF, WINF_SZ)
    k.srd(72, 8, 9, C1, 12288)
    k.srd(56, 8, 9, WOUTF, WOUTF_SZ)
    k("s_add_u32 s54, s61, 4096")
    k("s_waitcnt vmcnt(0)")
    for j in range(4):
        k(f"v_lshl_or_b32 v{160+j}, v{161+2*j}, 16, v{160+2*j}")
    k(f"buffer_store_dwordx4 {r(160)}, v1, s[56:59], s60 offen {SIDE_SC}")
    for j in range(8): k(f"v_lshlrev_b32 v{136+j}, 16, v{136+j}")
    k("v_mul_f32 v165, v136, v144")
    for j in range(1, 8): k(f"v_fmac_f32 v165, v{136+j}, v{144+j}")
    for j in range(8): k(f"v_mul_f32 v{136+j}, v{136+j}, v{152+j}")
    for j in range(4): k(f"v_cvt_pk_bf16_f32 v{144+j}, v{136+2*j}, v{137+2*j}")
    k(f"buffer_store_dwordx4 {r(144)}, v1, s[68:71], s63 offen {SIDE_SC}")
    for j in range(4):
        k(f"v_lshlrev_b32 v{136+2*j}, 16, v{144+j}")
        k(f"v_and_b32 v{137+2*j}, 0xffff0000, v{144+j}")
    for a, b in ((136, 137), (138, 139), (140, 141), (142, 143), (136, 138), (140, 142)):
        k(f"v_add_f32 v{a}, v{a}, v{b}")
    k("v_add_f32 v164, v136, v140")
    k("v_mul_u32_u24 v166, 6144, v3")
    k("v_lshl_add_u32 v166, v2, 2, v166")
    k("v_permlane32_swap_b32 v164, v165")
    k("v_add_f32 v164, v164, v165")
    k("buffer_atomic_add_f32 v164, v166, s[72:75], s62 offen")
    for q in range(4 if not os.environ.get("NOWSP") else 0):
        k(f"buffer_store_dwordx4 {r(120+4*q)}, v1, s[64:67], {'s61' if q < 2 else 's54'} offen offset:{(q&1)*2048} {SIDE_SC}")
    k("s_branch k2_cont")
    k.label("k2_slow")
    T = S1
    k(f"v_subrev_u32 v{AK2}, 143360, v{AK2}")
    k(f"v_subrev_u32 v{AV}, 143360, v{AV}")
    k(f"v_mov_b32 v{T}, 0xff800000")
    k("s_mov_b32 s42, 0")
    def ldK():
        k(f"buffer_load_dwordx4 {r(KF1[0])}, v1, s[20:23], s42 offen")
        k(f"buffer_load_dwordx2 {r(KF2[0],2)}, v{AK2}, s[20:23], s42 offen")
    k.label("k2_slow1")
    ldK()
    k("s_waitcnt vmcnt(0)")
    k(f"v_mfma_f32_32x32x16_bf16 {r(S0,16)}, {r(KF1[0])}, {r(QA)}, 0")
    k(f"v_mfma_f32_32x32x16_bf16 {r(S0,16)}, {r(KF2[0])}, {r(QB)}, {r(S0,16)}")
    k.nop(12)
    for i in range(8): k(f"v_max3_f32 v{T}, v{T}, v{S0+2*i}, v{S0+2*i+1}")
    k("s_add_u32 s42, s42, 2560")
    k("s_cmp_lt_u32 s42, 163840")
    k("s_cbranch_scc1 k2_slow1")
    k(f"v_mov_b32 v{T+1}, v{T}")
    k("s_mov_b32 s42, 0")
    k.nop(1)
    k(f"v_permlane32_swap_b32 v{T}, v{T+1}")
    k(f"v_max_f32 v{T}, v{T}, v{T+1}")
    for i in range(16): k(f"v_sub_f32 v{CM+i}, 0, v{T}")
    for i in range(16): k(f"v_mov_b32 v{OO+i}, 0")
    k.label("k2_slow2")
    ldK()
    k("s_mov_b64 exec, s[40:41]")
    k(f"buffer_load_dwordx4 {r(VF[0])}, v{AV}, s[20:23], s42 offen")
    k(f"buffer_load_dwordx4 {r(VF[0]+4)}, v{AV}, s[20:23], s42 offen offset:640")
    k("s_mov_b64 exec, -1")
    k("s_waitcnt vmcnt(0)")
    k(f"v_mfma_f32_32x32x16_bf16 {r(S0,16)}, {r(KF1[0])}, {r(QA)}, {r(CM,16)}")
    k(f"v_mfma_f32_32x32x16_bf16 {r(S0,16)}, {r(KF2[0])}, {r(QB)}, {r(S0,16)}")
    k.nop(12)
    for i in range(16): k(f"v_exp_f32 v{S0+i}, v{S0+i}")
    k.nop(1)
    for i in range(8): k(f"v_cvt_pk_bf16_f32 v{PP+i}, v{S0+2*i}, v{S0+2*i+1}")
    k.nop(2)
    k(f"v_mfma_f32_32x32x16_bf16 {r(OO,16)}, {r(VF[0])}, {r(PP)}, {r(OO,16)}")
    k(f"v_mfma_f32_32x32x16_bf16 {r(OO,16)}, {r(VF[0]+4)}, {r(PP+4)}, {r(OO,16)}")
    k("s_add_u32 s42, s42, 2560")
    k("s_cmp_lt_u32 s42, 163840")
    k("s_cbranch_scc1 k2_slow2")
    k.nop(12)
    k("s_branch k2_epi")
    return k
```

```python
from asmlib import Kern
from layout import *
from k0 import hexf
from k234 import poll, hint, setflag, x1_addr, gemm80_resident, resid, r
import os

SLOT = 20480; BLK = 5120
K56_LDS = 163840
A0 = 16; ZB = 64; Z1R = 96; BSP = 108
ROTW = int(os.environ.get("K5ROTW", "0"))

def gen_k56():
    k = Kern("k5_kernel", 232, 80)
    k("s_cmp_ge_u32 s2, 256")
    k("s_cbranch_scc1 k5_end")
    k.stamp(0); k.rstamp(1)
    k("s_load_dwordx2 s[8:9], s[0:1], 112")
    k("v_lshrrev_b32 v1, 6, v0")
    k("s_and_b32 s3, s2, 7")
    k("v_readfirstlane_b32 s5, v1")
    k("s_lshl_b32 s3, s3, 2")
    k("s_bfe_u32 s4, s2, 0x20003")
    k("s_add_u32 s3, s3, s4")
    k("s_lshl_b32 s32, s4, 1")
    k("s_lshr_b32 s4, s2, 5")
    k("s_add_u32 s32, s32, s4")
    k(f"s_and_b32 s32, s32, {ROTW}")
    k("v_and_b32 v1, 63, v0")
    k("v_lshlrev_b32 v1, 4, v1")
    k("s_cmp_ge_u32 s5, 4")
    k("s_cbranch_scc1 k5_loader")
    k("s_load_dwordx2 s[40:41], s[0:1], 64")
    k("s_load_dwordx2 s[42:43], s[0:1], 96")
    k("v_and_b32 v2, 31, v0")
    k("v_bfe_u32 v3, v0, 5, 1")
    k("s_and_b32 s6, s5, 1")
    k("s_lshl_b32 s34, s3, 1")
    k("s_add_u32 s34, s34, s6")
    k("s_lshr_b32 s33, s5, 1")
    k("s_mul_i32 s36, s34, 24")
    k("s_mul_i32 s37, s4, 3")
    k("s_add_u32 s36, s36, s37")
    k("s_lshl_b32 s36, s36, 1")
    k("s_add_u32 s36, s36, s33")
    k("s_lshl_b32 s36, s36, 10")
    k("s_add_u32 s37, s36, 4096")
    k("s_lshl_b32 s38, s34, 6")
    k("v_lshlrev_b32 v5, 1, v2")
    k(f"s_mul_i32 s39, s33, {2*BLK}")
    k("v_add_u32 v6, s39, v1")
    k(f"v_add_u32 v7, {2*SLOT}, v6")
    k("s_lshl_b32 s39, s6, 10")
    k("s_add_u32 s39, s39, 3072")
    k("v_add_u32 v8, s39, v6")
    k(f"v_add_u32 v9, {2*SLOT}, v8")
    for i in range(48): k(f"v_mov_b32 v{A0+i}, 0")
    k("s_waitcnt lgkmcnt(0)")
    k.srd(24, 8, 9, Z1, Z_SZ)
    k.srd(28, 40, 41, 0, 4096)
    def reads(s, q, par):
        sl = s & 3; o = (sl & 1) * SLOT + q * BLK; b = ZB + 16 * par
        for n in range(3): k(f"ds_read_b128 {r(b+4*n)}, {'v6' if sl < 2 else 'v7'} offset:{o + n*1024}")
        k(f"ds_read_b128 {r(b+12)}, {'v8' if sl < 2 else 'v9'} offset:{o}")
    k("s_barrier")
    k.stamp(2)
    reads(0, 0, 0)
    k(f"buffer_load_dwordx4 {r(Z1R)}, v1, s[24:27], s36 offen")
    k(f"buffer_load_dwordx4 {r(Z1R+4)}, v1, s[24:27], s36 offen offset:2048")
    k(f"buffer_load_dwordx4 {r(Z1R+8)}, v1, s[24:27], s37 offen")
    k(f"buffer_load_ushort v{BSP}, v5, s[28:31], s38 offen")
    k("v_bfe_u32 v204, v0, 4, 2")
    k("v_and_b32 v205, 15, v0")
    k("s_lshl_b32 s59, s3, 2")
    k("s_add_u32 s59, s59, s5")
    x1_addr(k, 59, 4, 60, 206, 207, 204, 205)
    k("v_lshlrev_b32 v207, 4, v204")
    k("s_mul_i32 s41, s4, 320")
    k.srd(52, 8, 9, X1, ACT_SZ)
    k.srd(56, 8, 9, MOD + 12800, 2560)
    for j in range(5): k(f"buffer_load_dwordx2 {r(172+2*j,2)}, v206, s[52:55], s{60+j} offen")
    for j in range(5): k(f"buffer_load_dwordx4 {r(184+4*j)}, v207, s[56:59], s41 offen offset:{j*64}")
    k("s_mov_b32 s44, 0")
    k.lines.append(".p2align 6")
    k.label("k5_loop")
    for s in range(4):
        for q in range(2):
            b = ZB + 16 * q
            k("s_waitcnt lgkmcnt(0)")
            if q == 1:
                if s == 3:
                    k("s_add_u32 s44, s44, 1")
                    k("s_cmp_eq_u32 s44, 8")
                    k("s_cbranch_scc1 k5_last")
                k("s_barrier")
            for n in range(3):
                k(f"v_mfma_f32_32x32x16_bf16 {r(A0+16*n,16)}, {r(b+4*n)}, {r(b+12)}, {r(A0+16*n,16)}")
                if n == 0:
                    if q == 1: reads(s + 1, 0, 0)
                    else: reads(s, 1, 1)
    k("s_branch k5_loop")
    k.label("k5_last")
    b = ZB + 16
    for n in range(3):
        k(f"v_mfma_f32_32x32x16_bf16 {r(A0+16*n,16)}, {r(b+4*n)}, {r(b+12)}, {r(A0+16*n,16)}")
    k.stamp(3)
    k("s_barrier")
    k("s_mul_i32 s36, s5, 6144")
    k("s_add_u32 s36, s36, 40960")
    k("v_add_u32 v10, s36, v1")
    k("s_xor_b32 s36, s5, 2")
    k("s_mul_i32 s36, s36, 6144")
    k("s_add_u32 s36, s36, 40960")
    k("v_add_u32 v11, s36, v1")
    k.srd(24, 8, 9, Y, Z_SZ)
    k("s_mul_i32 s7, s3, 98304")
    k("s_mul_i32 s37, s4, 12288")
    k("s_add_u32 s36, s7, s37")
    k("s_lshl_b32 s37, s6, 11")
    k("s_add_u32 s36, s36, s37")
    k("s_lshl_b32 s37, s33, 9")
    k("s_add_u32 s36, s36, s37")
    k("s_add_u32 s37, s36, 4096")
    k("s_add_u32 s38, s36, 8192")
    k("v_lshrrev_b32 v12, 4, v2")
    k("v_lshlrev_b32 v12, 10, v12")
    k("v_lshl_add_u32 v12, v3, 8, v12")
    k("v_and_b32 v13, 15, v0")
    k("v_lshl_add_u32 v12, v13, 4, v12")
    k("s_waitcnt vmcnt(0)")
    k(f"v_lshlrev_b32 v14, 16, v{BSP}")
    k("s_cmp_eq_u32 s33, 0")
    k("s_cbranch_scc0 k5_e1")
    for kh in range(2):
        if kh == 1: k.label("k5_e1")
        keep = 8 * kh; send = 8 * (1 - kh)
        for n in range(3):
            k(f"ds_write_b128 v10, {r(A0+16*n+send)} offset:{n*2048}")
            k(f"ds_write_b128 v10, {r(A0+16*n+send+4)} offset:{n*2048+1024}")
        U = ZB
        for i in range(12):
            k(f"v_lshlrev_b32 v{U+2*i}, 16, v{Z1R+i}")
            k(f"v_and_b32 v{U+2*i+1}, 0xffff0000, v{Z1R+i}")
        for n in range(3):
            for i in range(4):
                a = A0 + 16 * n + keep + 2 * i
                k(f"v_pk_add_f32 {r(a,2)}, {r(a,2)}, v[14:15] op_sel_hi:[1,0]")
        k("s_waitcnt lgkmcnt(0)")
        k("s_barrier")
        for n in range(3):
            k(f"ds_read_b128 {r(A0+16*n+send)}, v11 offset:{n*2048}")
            k(f"ds_read_b128 {r(A0+16*n+send+4)}, v11 offset:{n*2048+1024}")
        for n in range(3):
            k(f"s_waitcnt lgkmcnt({4-2*n})")
            for i in range(4):
                a = A0 + 16 * n + keep + 2 * i
                k(f"v_pk_add_f32 {r(a,2)}, {r(a,2)}, {r(A0+16*n+send+2*i,2)}")
            for i in range(4):
                a = A0 + 16 * n + keep + 2 * i
                k(f"v_pk_mul_f32 {r(a,2)}, {r(a,2)}, {r(U+8*n+2*i,2)}")
            P = Z1R + 4 * n
            for i in range(4):
                a = A0 + 16 * n + keep + 2 * i
                k(f"v_cvt_pk_bf16_f32 v{P+i}, v{a}, v{a+1}")
            k.nop(2)
            k(f"v_permlane32_swap_b32 v{P}, v{P+2}")
            k(f"v_permlane32_swap_b32 v{P+1}, v{P+3}")
            k(f"buffer_store_dwordx4 {r(P)}, v12, s[24:27], s{36+n} offen sc1")
        if kh == 0: k("s_branch k5_p6")
    k.label("k5_p6")
    ACT, A6, WB3, XR_, GB_R, AD = 16, 112, (132, 152, 212), 172, 184, 204
    WB = 132
    k.srd(16, 8, 9, FL, FL_SZ)
    k("s_lshl_b32 s36, s3, 10")
    k(f"s_add_u32 s36, s36, {F5 - FL}")
    k("s_lshl_b32 s37, s4, 7")
    k("s_add_u32 s37, s37, s36")
    k("s_waitcnt vmcnt(0)")
    k("s_barrier")
    setflag(k, 16, "s37", "k5_f5done")
    k.stamp(4)
    k("v_bfe_u32 v3, v0, 4, 2")
    k("v_and_b32 v5, 15, v0")
    k("s_lshl_b32 s6, s3, 2")
    k("s_add_u32 s6, s6, s5")
    k("s_lshl_b32 s10, s5, 10")
    k("s_add_u32 s7, s7, s10")
    k.srd(28, 42, 43, 0, ACT_SZ)
    k("s_mul_i32 s39, s5, 2816")
    k("s_add_u32 s39, s39, 69632")
    k("v_mul_u32_u24 v6, 176, v5")
    k("v_lshl_add_u32 v6, v3, 3, v6")
    k(f"v_add_u32 v{AD}, s39, v6")
    for i in range(3):
        k("v_lshrrev_b32 v6, 4, v1")
        k(f"v_add_u32 v6, {64*i}, v6")
        k("v_mul_u32_u24 v7, 205, v6")
        k("v_lshrrev_b32 v7, 11, v7")
        k("v_mul_u32_u24 v2, 10, v7")
        k("v_sub_u32 v6, v6, v2")
        k("v_lshlrev_b32 v6, 4, v6")
        k("v_mul_u32_u24 v2, 176, v7")
        k(f"v_add3_u32 v{AD+1+i}, v2, v6, s39")
        k("v_mul_u32_u24 v2, 1280, v7")
        k(f"v_add_u32 v{AD+4+i}, v6, v2")
        if i == 2:
            k("v_lshrrev_b32 v7, 4, v7")
            k(f"v_lshl_add_u32 v{AD+4+i}, v7, 30, v{AD+4+i}")
    k("s_mul_i32 s40, s6, 20480")
    k("s_mul_i32 s41, s4, 160")
    k("s_add_u32 s40, s40, s41")
    def w6():
        poll(k, "k5_p5", 16, "s36", 8, 10, 11)
        k.stamp(5)
    gemm80_resident(k, 24, list(range(24)), ACT, A6, WB3, 24, 7, lambda ks: ks * 5120 + (40960 if ks >= 8 else 0), w6, 4)
    k.stamp(6)
    k.nop(4)
    resid(k, A6, XR_, GB_R, WB)
    for j in range(5): k(f"ds_write_b64 v{AD}, {r(XR_+2*j,2)} offset:{j*32}")
    k("s_waitcnt lgkmcnt(0)")
    for i in range(3): k(f"ds_read_b128 {r(WB+4*i)}, v{AD+1+i}")
    for i in range(3):
        k(f"s_waitcnt lgkmcnt({2-i})")
        k(f"buffer_store_dwordx4 {r(WB+4*i)}, v{AD+4+i}, s[28:31], s40 offen")
    k.endpgm(3)
    k.label("k5_loader")
    k("s_and_b32 s5, s5, 3")
    k("s_mul_i32 s34, s4, 393216")
    k(f"s_add_u32 s34, s34, {Z2}")
    k("s_lshl_b32 s35, s3, 18")
    k(f"s_add_u32 s35, s35, {WSPF}")
    k(f"s_mul_i32 s11, s5, {BLK}")
    k("s_mov_b32 s43, 0")
    k("s_mul_i32 s33, s4, 122880")
    k(f"s_add_u32 s33, s33, {WOUTF}")
    k("s_lshl_b32 s10, s5, 10")
    k("s_waitcnt lgkmcnt(0)")
    k.srd(16, 8, 9, "s34", 393216)
    k.srd(20, 8, 9, "s35", 262144)
    def issue(sl):
        k("s_add_u32 s7, s43, s32")
        k("s_and_b32 s7, s7, 7")
        k("s_and_b32 s36, s43, 24")
        k("s_or_b32 s7, s7, s36")
        k("s_lshl_b32 s7, s7, 2")
        k("s_add_u32 s7, s7, s5")
        k("s_mul_i32 s37, s7, 3072")
        k(f"s_add_u32 m0, s11, {sl*SLOT}")
        k("s_lshl_b32 s36, s7, 11")
        for j in range(3): k(f"buffer_load_dwordx4 v1, s[16:19], s37 offen offset:{j*1024} lds")
        k(f"s_add_u32 m0, s11, {sl*SLOT+3072}")
        k("s_add_u32 s43, s43, 1")
        for j in range(2): k(f"buffer_load_dwordx4 v1, s[20:23], s36 offen offset:{j*1024} lds")
    def up():
        k("s_add_u32 m0, s44, 40960")
        k.nop(1)
        k("buffer_load_dwordx4 v1, s[24:27], s44 offen lds")
        k("s_add_u32 s44, s44, 4096")
    issue(0); issue(1)
    k.srd(24, 8, 9, "s33", 122880)
    k("s_add_u32 s44, s10, 40960")
    up(); issue(2)
    k.stamp(2)
    k("s_mov_b32 s42, 0")
    k.lines.append(".p2align 6")
    k.label("k5_lloop")
    for s in range(4):
        extra = sum(1 for q in (s - 2, s - 1) if q % 4 != 3)
        k(f"s_waitcnt vmcnt({10 + extra})")
        k("s_barrier")
        issue((s + 3) & 3)
        if s != 3: up()
    k("s_add_u32 s42, s42, 1")
    k("s_cmp_lt_u32 s42, 7")
    k("s_cbranch_scc1 k5_lloop")
    def low(base, n):
        k(f"s_add_u32 m0, s10, {base}")
        for i in range(n):
            k.nop(1)
            k("buffer_load_dwordx4 v1, s[24:27], m0 offen lds")
            if i < n - 1: k("s_add_u32 m0, m0, 4096")
    k("s_waitcnt vmcnt(11)")
    k("s_barrier")
    issue(3)
    k("s_waitcnt vmcnt(10)")
    k("s_barrier")
    low(0, 5)
    k("s_waitcnt vmcnt(10)")
    k("s_barrier")
    low(20480, 5)
    k("s_waitcnt vmcnt(10)")
    k("s_barrier")
    k.stamp(3)
    k("s_barrier")
    k("s_barrier")
    k("s_waitcnt vmcnt(0)")
    k.stamp(4)
    k("s_barrier")
    k.endpgm(3)
    k.label("k5_end")
    k("s_endpgm")
    return k
```

```python
MOD = 0x0000
MOD_SZ = 15360
KMAX = 0x3C00
ZR = 0x4000; ZR_SZ = 0x6C000
C1 = 0x4000; C2 = 0x5800
FS = 0x7000; F2 = 0x50000; F3 = 0x58000; F5 = 0x60000; FL = FS; FL_SZ = 0x61000
STP = 0x10000; STP_SZ = 0x40000
KV = 0x70000; KV_SZ = 163840
WQF = 0xA0000; WQF_SZ = 983040
WOF = 0x190000; WOF_SZ = 819200
WOUTF = 0x260000; WOUTF_SZ = 983040
WINF = 0x350000; WINF_SZ = 1966080
ACT_SZ = 2621440; Z_SZ = 3145728
XN = 0x540000; O = XN; Y = XN
Q = 0x840000; X1 = Q
import os as _os
if _os.environ.get('NOALIAS'):
    O = 0xCC0000; X1 = 0xF40000; Y = 0x11C0000
SP2 = 0x14C0000; SP2_SZ = 0x20000
Z1 = 0x1500000
Z2 = 0x1800000
WSPF = 0x1B00000; WSPF_SZ = 8388608
WS_END = 0x2300000
```

```python
import re, os
STAMPS = bool(os.environ.get('STAMPS'))
STAMP_OFF = 0x2800000
DBG = int(os.environ.get('DBG', '0'))

class Kern:
    def __init__(self, name, vgpr, sgpr=96, agpr=0):
        self.name = name; self.lines = []; self.vgpr = vgpr; self.sgpr = sgpr; self.agpr = agpr
        self.nlab = 0
    def __call__(self, s):
        for l in s.split("\n"):
            l = l.strip()
            if l: self.lines.append("    " + l)
    def label(self, l):
        self.lines.append(f"{l}:")
    def newlabel(self, p="L"):
        self.nlab += 1
        return f"{self.name}_{p}{self.nlab}"
    def nop(self, n):
        while n > 0:
            k = min(n, 16); self(f"s_nop {k-1}"); n -= k
    def srd(self, d, lo, hi, off, size):
        if off == 0:
            self(f"s_mov_b32 s{d}, s{lo}")
            self(f"s_mov_b32 s{d+1}, s{hi}")
        else:
            o = off if isinstance(off, str) else hex(off)
            self(f"s_add_u32 s{d}, s{lo}, {o}")
            self(f"s_addc_u32 s{d+1}, s{hi}, 0")
        self(f"s_mov_b32 s{d+2}, {hex(size)}")
        self(f"s_mov_b32 s{d+3}, 0x20000")
    def stamp(self, i):
        if STAMPS or (DBG and i == 0): self(f"s_memtime s[{80+2*i}:{81+2*i}]")
    def rstamp(self, i):
        if STAMPS or (DBG and i == 1): self(f"s_memrealtime s[{80+2*i}:{81+2*i}]")
    def endpgm(self, kidx=None, ws=(8, 9)):
        if STAMPS and kidx is not None:
            self("s_waitcnt vmcnt(0)")
            self.stamp(8); self.rstamp(9)
            self("s_mov_b64 exec, -1")
            self("v_lshrrev_b32 v1, 6, v0")
            self("v_lshlrev_b32 v1, 6, v1")
            self(f"s_add_u32 s76, s{ws[0]}, {hex(STAMP_OFF + kidx * 1024 * 1024)}")
            self(f"s_addc_u32 s77, s{ws[1]}, 0")
            self("s_mov_b32 s78, 0x100000")
            self("s_mov_b32 s79, 0x20000")
            self("s_lshl_b32 s75, s2, 10")
            self("s_waitcnt lgkmcnt(0)")
            for i in range(10):
                self(f"v_mov_b32 v2, s{80+2*i}")
                self(f"buffer_store_dword v2, v1, s[76:79], s75 offen offset:{4*i}")
        if DBG and kidx is not None:
            lab = self.newlabel("dbg")
            self("s_waitcnt vmcnt(0)")
            self("s_memrealtime s[96:97]")
            self("s_memtime s[94:95]")
            self("s_load_dwordx2 s[92:93], s[0:1], 104")
            self("s_mov_b64 exec, -1")
            self("s_waitcnt lgkmcnt(0)")
            self(f"s_sub_u32 s76, s92, {kidx * 512 if DBG == 2 else 0}")
            self("s_subb_u32 s77, s93, 0")
            self("s_mov_b32 s78, 256")
            self("s_mov_b32 s79, 0x20000")
            self("v_mov_b32 v2, s82")
            self("v_mov_b32 v3, s96")
            self("s_sub_u32 s94, s94, s80")
            self("v_mov_b32 v4, s94")
            self("v_mov_b32 v1, 0")
            self("s_mov_b64 exec, 1")
            self("v_not_b32 v2, v2")
            self(f"buffer_atomic_umax v2, v1, s[76:79], 0 offen offset:{kidx*16}")
            self(f"buffer_atomic_umax v3, v1, s[76:79], 0 offen offset:{kidx*16+4}")
            self(f"buffer_atomic_umax v4, v1, s[76:79], 0 offen offset:{kidx*16+8}")
        self("s_endpgm")
    def text(self):
        if STAMPS or DBG: self.sgpr = 102
        acc = ((self.vgpr + 3) // 4) * 4
        nfv = acc + self.agpr if self.agpr else self.vgpr
        body = f".globl {self.name}\n.p2align 8\n.type {self.name},@function\n{self.name}:\n" + "\n".join(self.lines) + "\n"
        kd = f""".p2align 6
.amdhsa_kernel {self.name}
  .amdhsa_next_free_vgpr {nfv}
  .amdhsa_next_free_sgpr {self.sgpr}
  .amdhsa_accum_offset {acc}
  .amdhsa_group_segment_fixed_size 0
  .amdhsa_kernarg_size 120
  .amdhsa_user_sgpr_count 2
  .amdhsa_user_sgpr_kernarg_segment_ptr 1
  .amdhsa_system_sgpr_workgroup_id_x 1
.end_amdhsa_kernel
"""
        return body, kd

RV = re.compile(r"\b([va])\[(\d+):(\d+)\]|\b([va])(\d+)\b")
RS = re.compile(r"\bs\[(\d+):(\d+)\]|\bs(\d+)\b|\b(vcc|exec|m0)\b")
def vregs(op):
    out = set()
    for m in RV.finditer(op):
        if m.group(1): out |= {(m.group(1), i) for i in range(int(m.group(2)), int(m.group(3)) + 1)}
        else: out.add((m.group(4), int(m.group(5))))
    return out
def sregs(op):
    out = set()
    for m in RS.finditer(op):
        if m.group(1): out |= {("s", i) for i in range(int(m.group(1)), int(m.group(2)) + 1)}
        elif m.group(3): out.add(("s", int(m.group(3))))
        else: out.add((m.group(4), 0))
    return out
TRANS = ("v_exp_", "v_log_", "v_rcp_", "v_rsq_", "v_sqrt_", "v_sin_", "v_cos_")
class I:
    pass
def parse(line):
    line = line.split(";")[0].strip()
    if not line or line.endswith(":") or line.startswith("."): return None
    p = line.split(None, 1)
    mn = p[0]; rest = p[1] if len(p) > 1 else ""
    ops = [o.strip() for o in re.split(r",(?![^\[]*\])", rest)] if rest else []
    i = I(); i.mn = mn; i.ops = ops; i.text = line
    i.vw = set(); i.vr = set(); i.sw = set(); i.sr = set()
    i.states = 1
    i.kind = "other"
    if mn == "s_nop": i.states = int(ops[0], 0) + 1
    if mn.startswith("v_mfma"):
        i.kind = "mfma"; i.vw = vregs(ops[0]); i.a = vregs(ops[1]); i.b = vregs(ops[2]); i.c = vregs(ops[3])
        i.vr = i.a | i.b | i.c
        i.passes = 8 if "32x32" in mn else 4
    elif mn.startswith("v_"):
        i.kind = "valu"
        i.trans = mn.startswith(TRANS)
        i.dpp = "dpp" in mn or "row_" in rest or "quad_perm" in rest
        i.perml = mn.startswith("v_permlane")
        if mn.startswith("v_cmp"):
            i.sw = sregs(ops[0]); srcs = ops[1:]
            if mn.startswith("v_cmpx"): i.sw.add(("exec", 0))
        elif mn.startswith("v_readfirstlane") or mn.startswith("v_readlane"):
            i.sw = sregs(ops[0]); srcs = ops[1:]
        elif i.perml:
            i.vw = vregs(ops[0]) | vregs(ops[1]); srcs = ops
        else:
            i.vw = vregs(ops[0]); srcs = ops[1:]
            if "_co_" in mn: i.sw = sregs(ops[1]); srcs = ops[2:]
            if mn.startswith(("v_fmac", "v_dot2c", "v_pk_fmac")) or i.dpp or "sdwa" in mn: srcs = ops
        for o in srcs:
            o = o.split(" ")[0] if not o.startswith(("v[", "s[", "a[", "-", "abs")) else o
            i.vr |= vregs(o); i.sr |= sregs(o)
    elif mn.startswith(("buffer_", "global_", "ds_")):
        i.kind = "mem"
        load = ("load" in mn or "ds_read" in mn or "bpermute" in mn or "swizzle" in mn)
        lds = rest.rstrip().endswith("lds") or " lds" in rest
        i.lds = lds
        if load and not lds:
            i.vw = vregs(ops[0]); srcs = ops[1:]
        else:
            srcs = ops
        for o in srcs:
            i.vr |= vregs(o); i.sr |= sregs(o)
        if lds: i.sr.add(("m0", 0))
        i.widestore = ("store" in mn and ("x3" in mn or "x4" in mn))
        if i.widestore: i.data = vregs(ops[0]) if mn.startswith("buffer") else vregs(ops[1])
    elif mn.startswith("s_"):
        i.kind = "salu"
        if ops and not mn.startswith(("s_cmp", "s_cbranch", "s_branch", "s_waitcnt", "s_nop", "s_barrier", "s_bitcmp", "s_endpgm", "s_sleep", "s_setprio")):
            i.sw = sregs(ops[0])
            if "saveexec" in mn: i.sw.add(("exec", 0))
    return i

def check(lines, name=""):
    seq = []
    labels = {}
    for l in lines:
        t = l.strip()
        if t.endswith(":") and not t.startswith(";"):
            labels[t[:-1]] = len(seq)
        ins = parse(l)
        if ins: seq.append(ins)
    traces = [list(range(len(seq)))]
    for n, ins in enumerate(seq):
        if ins.mn.startswith(("s_cbranch", "s_branch")) and ins.ops[0] in labels:
            t = labels[ins.ops[0]]
            traces.append(list(range(max(0, n - 24), n + 1)) + list(range(t, min(len(seq), t + 24))))
    errs = set()
    for tr in traces:
        for x in range(len(tr)):
            c = seq[tr[x]]
            dist = 0
            for y in range(x - 1, max(-1, x - 26), -1):
                p = seq[tr[y]]
                if p.mn in ("s_branch", "s_endpgm") and tr[y] + 1 == tr[y + 1]:
                    break
                need = 0; why = ""
                if p.kind == "valu":
                    if c.kind == "mfma" and p.vw & c.vr: need, why = 2, "valu->mfma"
                    if c.kind == "valu":
                        if c.dpp and p.vw & c.vr: need, why = max(need, 2), "valu->dpp"
                        if c.perml and p.vw & c.vr: need, why = max(need, 2), "valu->permlane"
                        if c.mn.startswith(("v_readfirstlane", "v_readlane")) and p.vw & c.vr: need, why = max(need, 1), "valu->readlane"
                        if p.trans and not c.trans and p.vw & c.vr: need, why = max(need, 1), "trans->valu"
                        if p.sw & c.sr: need, why = max(need, 2), "valu sgpr->valu"
                        if ("exec", 0) in p.sw and c.dpp: need, why = max(need, 5), "exec->dpp"
                        if "sdwa" in p.mn and p.vw & c.vr: need, why = max(need, 1), "sdwa->valu"
                    if c.kind == "mfma" and p.trans and p.vw & c.vr: need = max(need, 2)
                    if c.kind == "mem" and p.sw & c.sr: need, why = max(need, 5), "valu sgpr->vmem"
                    if c.kind == "mfma" and ("exec", 0) in p.sw: need, why = max(need, 4), "exec->mfma"
                elif p.kind == "mfma":
                    n4 = p.passes == 4
                    if c.kind == "mfma":
                        if p.vw & (c.a | c.b): need, why = (8 if n4 else 12), "mfma D->A/B"
                        elif p.vw & c.c and not (p.vw == c.c and p.passes == c.passes): need, why = (6 if n4 else 10), "mfma D->C partial"
                        elif p.vw & c.vw and not (p.vw == c.c): need, why = (6 if n4 else 10), "mfma D->D waw?"
                    elif c.kind == "valu":
                        if p.vw & (c.vr | c.vw): need, why = (8 if n4 else 12), "mfma D->valu"
                        elif p.c & c.vw: need, why = (3 if n4 else 7), "mfma C war"
                    elif c.kind == "mem":
                        if p.vw & (c.vr | c.vw): need, why = (8 if n4 else 12), "mfma D->mem"
                elif p.kind == "mem":
                    if getattr(p, "widestore", False) and c.kind in ("valu", "mfma") and p.data & c.vw: need, why = 2, "store data war"
                elif p.kind == "salu":
                    if ("m0", 0) in p.sw and c.kind == "mem" and c.lds: need, why = 1, "m0->ldsdma"
                if need > dist:
                    errs.add((tr[x], f"{name}: need {need} have {dist} [{why}]  {p.text}  ->  {c.text}"))
                dist += p.states
    return [e for _, e in sorted(errs)]
```

```python
import re, os
STAMPS = bool(os.environ.get('STAMPS'))
STAMP_OFF = 0x2800000
DBG = int(os.environ.get('DBG', '0'))

class Kern:
    def __init__(self, name, vgpr, sgpr=96, agpr=0):
        self.name = name; self.lines = []; self.vgpr = vgpr; self.sgpr = sgpr; self.agpr = agpr
        self.nlab = 0
    def __call__(self, s):
        for l in s.split("\n"):
            l = l.strip()
            if l: self.lines.append("    " + l)
    def label(self, l):
        self.lines.append(f"{l}:")
    def newlabel(self, p="L"):
        self.nlab += 1
        return f"{self.name}_{p}{self.nlab}"
    def nop(self, n):
        while n > 0:
            k = min(n, 16); self(f"s_nop {k-1}"); n -= k
    def srd(self, d, lo, hi, off, size):
        if off == 0:
            self(f"s_mov_b32 s{d}, s{lo}")
            self(f"s_mov_b32 s{d+1}, s{hi}")
        else:
            o = off if isinstance(off, str) else hex(off)
            self(f"s_add_u32 s{d}, s{lo}, {o}")
            self(f"s_addc_u32 s{d+1}, s{hi}, 0")
        self(f"s_mov_b32 s{d+2}, {hex(size)}")
        self(f"s_mov_b32 s{d+3}, 0x20000")
    def stamp(self, i):
        if STAMPS or (DBG and i == 0): self(f"s_memtime s[{80+2*i}:{81+2*i}]")
    def rstamp(self, i):
        if STAMPS or (DBG and i == 1): self(f"s_memrealtime s[{80+2*i}:{81+2*i}]")
    def endpgm(self, kidx=None, ws=(8, 9)):
        if STAMPS and kidx is not None:
            self("s_waitcnt vmcnt(0)")
            self.stamp(8); self.rstamp(9)
            self("s_mov_b64 exec, -1")
            self("v_lshrrev_b32 v1, 6, v0")
            self("v_lshlrev_b32 v1, 6, v1")
            self(f"s_add_u32 s76, s{ws[0]}, {hex(STAMP_OFF + kidx * 1024 * 1024)}")
            self(f"s_addc_u32 s77, s{ws[1]}, 0")
            self("s_mov_b32 s78, 0x100000")
            self("s_mov_b32 s79, 0x20000")
            self("s_lshl_b32 s75, s2, 10")
            self("s_waitcnt lgkmcnt(0)")
            for i in range(10):
                self(f"v_mov_b32 v2, s{80+2*i}")
                self(f"buffer_store_dword v2, v1, s[76:79], s75 offen offset:{4*i}")
        if DBG and kidx is not None:
            lab = self.newlabel("dbg")
            self("v_readfirstlane_b32 s75, v0")
            self("s_or_b32 s75, s75, s2")
            self("s_cmp_lg_u32 s75, 0")
            self(f"s_cbranch_scc1 {lab}")
            self("s_waitcnt vmcnt(0)")
            self("s_memrealtime s[96:97]")
            self("s_memtime s[94:95]")
            self("s_load_dwordx2 s[92:93], s[0:1], 104")
            self("s_mov_b64 exec, -1")
            self(f"s_add_u32 s76, s{ws[0]}, {hex(STAMP_OFF)}")
            self(f"s_addc_u32 s77, s{ws[1]}, 0")
            self("s_mov_b32 s78, 256")
            self("s_mov_b32 s79, 0x20000")
            self("s_waitcnt lgkmcnt(0)")
            self("v_mov_b32 v2, s82")
            self("v_mov_b32 v3, s96")
            self("s_sub_u32 s94, s94, s80")
            self("v_mov_b32 v4, s94")
            self("v_mov_b32 v5, 0")
            self("v_mov_b32 v1, 0")
            self(f"buffer_store_dwordx4 v[2:5], v1, s[76:79], 0 offen offset:{kidx*16} sc1")
            if kidx == 3:
                self("s_waitcnt vmcnt(0)")
                self("v_lshlrev_b32 v1, 2, v0")
                self("buffer_load_dword v2, v1, s[76:79], 0 offen sc1")
                self("s_mov_b32 s76, s92")
                self("s_mov_b32 s77, s93")
                self("s_waitcnt vmcnt(0)")
                self("buffer_store_dword v2, v1, s[76:79], 0 offen")
            self.label(lab)
        self("s_endpgm")
    def text(self):
        if STAMPS or DBG: self.sgpr = 102
        acc = ((self.vgpr + 3) // 4) * 4
        nfv = acc + self.agpr if self.agpr else self.vgpr
        body = f".globl {self.name}\n.p2align 8\n.type {self.name},@function\n{self.name}:\n" + "\n".join(self.lines) + "\n"
        kd = f""".p2align 6
.amdhsa_kernel {self.name}
  .amdhsa_next_free_vgpr {nfv}
  .amdhsa_next_free_sgpr {self.sgpr}
  .amdhsa_accum_offset {acc}
  .amdhsa_group_segment_fixed_size 0
  .amdhsa_kernarg_size 120
  .amdhsa_user_sgpr_count 2
  .amdhsa_user_sgpr_kernarg_segment_ptr 1
  .amdhsa_system_sgpr_workgroup_id_x 1
.end_amdhsa_kernel
"""
        return body, kd

RV = re.compile(r"\b([va])\[(\d+):(\d+)\]|\b([va])(\d+)\b")
RS = re.compile(r"\bs\[(\d+):(\d+)\]|\bs(\d+)\b|\b(vcc|exec|m0)\b")
def vregs(op):
    out = set()
    for m in RV.finditer(op):
        if m.group(1): out |= {(m.group(1), i) for i in range(int(m.group(2)), int(m.group(3)) + 1)}
        else: out.add((m.group(4), int(m.group(5))))
    return out
def sregs(op):
    out = set()
    for m in RS.finditer(op):
        if m.group(1): out |= {("s", i) for i in range(int(m.group(1)), int(m.group(2)) + 1)}
        elif m.group(3): out.add(("s", int(m.group(3))))
        else: out.add((m.group(4), 0))
    return out
TRANS = ("v_exp_", "v_log_", "v_rcp_", "v_rsq_", "v_sqrt_", "v_sin_", "v_cos_")
class I:
    pass
def parse(line):
    line = line.split(";")[0].strip()
    if not line or line.endswith(":") or line.startswith("."): return None
    p = line.split(None, 1)
    mn = p[0]; rest = p[1] if len(p) > 1 else ""
    ops = [o.strip() for o in re.split(r",(?![^\[]*\])", rest)] if rest else []
    i = I(); i.mn = mn; i.ops = ops; i.text = line
    i.vw = set(); i.vr = set(); i.sw = set(); i.sr = set()
    i.states = 1
    i.kind = "other"
    if mn == "s_nop": i.states = int(ops[0], 0) + 1
    if mn.startswith("v_mfma"):
        i.kind = "mfma"; i.vw = vregs(ops[0]); i.a = vregs(ops[1]); i.b = vregs(ops[2]); i.c = vregs(ops[3])
        i.vr = i.a | i.b | i.c
        i.passes = 8 if "32x32" in mn else 4
    elif mn.startswith("v_"):
        i.kind = "valu"
        i.trans = mn.startswith(TRANS)
        i.dpp = "dpp" in mn or "row_" in rest or "quad_perm" in rest
        i.perml = mn.startswith("v_permlane")
        if mn.startswith("v_cmp"):
            i.sw = sregs(ops[0]); srcs = ops[1:]
            if mn.startswith("v_cmpx"): i.sw.add(("exec", 0))
        elif mn.startswith("v_readfirstlane") or mn.startswith("v_readlane"):
            i.sw = sregs(ops[0]); srcs = ops[1:]
        elif i.perml:
            i.vw = vregs(ops[0]) | vregs(ops[1]); srcs = ops
        else:
            i.vw = vregs(ops[0]); srcs = ops[1:]
            if "_co_" in mn: i.sw = sregs(ops[1]); srcs = ops[2:]
            if mn.startswith(("v_fmac", "v_dot2c", "v_pk_fmac")) or i.dpp or "sdwa" in mn: srcs = ops
        for o in srcs:
            o = o.split(" ")[0] if not o.startswith(("v[", "s[", "a[", "-", "abs")) else o
            i.vr |= vregs(o); i.sr |= sregs(o)
    elif mn.startswith(("buffer_", "global_", "ds_")):
        i.kind = "mem"
        load = ("load" in mn or "ds_read" in mn or "bpermute" in mn or "swizzle" in mn)
        lds = rest.rstrip().endswith("lds") or " lds" in rest
        i.lds = lds
        if load and not lds:
            i.vw = vregs(ops[0]); srcs = ops[1:]
        else:
            srcs = ops
        for o in srcs:
            i.vr |= vregs(o); i.sr |= sregs(o)
        if lds: i.sr.add(("m0", 0))
        i.widestore = ("store" in mn and ("x3" in mn or "x4" in mn))
        if i.widestore: i.data = vregs(ops[0]) if mn.startswith("buffer") else vregs(ops[1])
    elif mn.startswith("s_"):
        i.kind = "salu"
        if ops and not mn.startswith(("s_cmp", "s_cbranch", "s_branch", "s_waitcnt", "s_nop", "s_barrier", "s_bitcmp", "s_endpgm", "s_sleep", "s_setprio")):
            i.sw = sregs(ops[0])
            if "saveexec" in mn: i.sw.add(("exec", 0))
    return i

def check(lines, name=""):
    seq = []
    labels = {}
    for l in lines:
        t = l.strip()
        if t.endswith(":") and not t.startswith(";"):
            labels[t[:-1]] = len(seq)
        ins = parse(l)
        if ins: seq.append(ins)
    traces = [list(range(len(seq)))]
    for n, ins in enumerate(seq):
        if ins.mn.startswith(("s_cbranch", "s_branch")) and ins.ops[0] in labels:
            t = labels[ins.ops[0]]
            traces.append(list(range(max(0, n - 24), n + 1)) + list(range(t, min(len(seq), t + 24))))
    errs = set()
    for tr in traces:
        for x in range(len(tr)):
            c = seq[tr[x]]
            dist = 0
            for y in range(x - 1, max(-1, x - 26), -1):
                p = seq[tr[y]]
                if p.mn in ("s_branch", "s_endpgm") and tr[y] + 1 == tr[y + 1]:
                    break
                need = 0; why = ""
                if p.kind == "valu":
                    if c.kind == "mfma" and p.vw & c.vr: need, why = 2, "valu->mfma"
                    if c.kind == "valu":
                        if c.dpp and p.vw & c.vr: need, why = max(need, 2), "valu->dpp"
                        if c.perml and p.vw & c.vr: need, why = max(need, 2), "valu->permlane"
                        if c.mn.startswith(("v_readfirstlane", "v_readlane")) and p.vw & c.vr: need, why = max(need, 1), "valu->readlane"
                        if p.trans and not c.trans and p.vw & c.vr: need, why = max(need, 1), "trans->valu"
                        if p.sw & c.sr: need, why = max(need, 2), "valu sgpr->valu"
                        if ("exec", 0) in p.sw and c.dpp: need, why = max(need, 5), "exec->dpp"
                        if "sdwa" in p.mn and p.vw & c.vr: need, why = max(need, 1), "sdwa->valu"
                    if c.kind == "mfma" and p.trans and p.vw & c.vr: need = max(need, 2)
                    if c.kind == "mem" and p.sw & c.sr: need, why = max(need, 5), "valu sgpr->vmem"
                    if c.kind == "mfma" and ("exec", 0) in p.sw: need, why = max(need, 4), "exec->mfma"
                elif p.kind == "mfma":
                    n4 = p.passes == 4
                    if c.kind == "mfma":
                        if p.vw & (c.a | c.b): need, why = (8 if n4 else 12), "mfma D->A/B"
                        elif p.vw & c.c and not (p.vw == c.c and p.passes == c.passes): need, why = (6 if n4 else 10), "mfma D->C partial"
                        elif p.vw & c.vw and not (p.vw == c.c): need, why = (6 if n4 else 10), "mfma D->D waw?"
                    elif c.kind == "valu":
                        if p.vw & (c.vr | c.vw): need, why = (8 if n4 else 12), "mfma D->valu"
                        elif p.c & c.vw: need, why = (3 if n4 else 7), "mfma C war"
                    elif c.kind == "mem":
                        if p.vw & (c.vr | c.vw): need, why = (8 if n4 else 12), "mfma D->mem"
                elif p.kind == "mem":
                    if getattr(p, "widestore", False) and c.kind in ("valu", "mfma") and p.data & c.vw: need, why = 2, "store data war"
                elif p.kind == "salu":
                    if ("m0", 0) in p.sw and c.kind == "mem" and c.lds: need, why = 1, "m0->ldsdma"
                if need > dist:
                    errs.add((tr[x], f"{name}: need {need} have {dist} [{why}]  {p.text}  ->  {c.text}"))
                dist += p.states
    return [e for _, e in sorted(errs)]
```

```python
from asmlib import Kern
from layout import *
from k0 import hexf, xsum16_32, rowred
import math, os

QSCALE = math.log2(math.e) / math.sqrt(20.0)
def r(b, n=4): return f"v[{b}:{b+n-1}]"
A0 = 16
FB = 40
EP = 100

def st1(k, i):
    if os.environ.get('FINE1'): k.stamp(i)

def ids(k):
    k("v_lshrrev_b32 v1, 6, v0")
    k("s_and_b32 s3, s2, 7")
    k("v_readfirstlane_b32 s5, v1")
    k("s_lshl_b32 s3, s3, 2")
    k("s_bfe_u32 s4, s2, 0x20003")
    k("s_add_u32 s3, s3, s4")
    k("s_lshr_b32 s4, s2, 5")
    k("v_and_b32 v1, 63, v0")
    k("v_lshlrev_b32 v1, 4, v1")
    k("s_lshr_b32 s33, s5, 2")
    k("s_and_b32 s5, s5, 3")
    k("s_lshl_b32 s6, s3, 2")
    k("s_add_u32 s6, s6, s5")

NW6 = 6; BLK = (4 + NW6) * 1024; SLOT = 4 * BLK; LT1 = 3 * SLOT
K1A = int(os.environ.get('K1A', '0'))
WO_IN_K1 = int(os.environ.get("WO_IN_K1", "1"))

def loader(k):
    k("s_load_dwordx2 s[40:41], s[0:1], 32")
    k("s_mul_i32 s7, s3, 20")
    k("s_add_u32 s7, s7, s5")
    k("s_lshl_b32 s7, s7, 12")
    k(f"s_mul_i32 s11, s5, {BLK}")
    k("s_mul_i32 s34, s5, 1280")
    k(f"s_add_u32 s35, s34, {LT1}")
    k("v_bfe_u32 v2, v0, 4, 2")
    k("v_lshl_add_u32 v3, v2, 6, s35")
    k("v_add_u32 v4, s11, v1")
    k("v_add_u32 v6, 0x10000, v4")
    k("v_lshrrev_b32 v5, 2, v1")
    k("v_add_u32 v9, s35, v1")
    k("v_add_u32 v10, s35, v5")
    k("s_waitcnt lgkmcnt(0)")
    st1(k, 5)
    k.srd(20, 8, 9, XN, ACT_SZ)
    k.srd(12, 8, 9, MODP, 4 * MODP_ST)
    def issue(g):
        for j in range(4): k(f"buffer_load_dwordx4 {r(16+16*g+4*j)}, v1, s[20:23], s7 offen offset:{j*1024}")
        k("s_add_u32 s7, s7, 16384")
    for q in range(4):
        k(f"buffer_load_dwordx4 {r(96+4*q)}, v1, s[12:15], s34 offen")
        k(f"buffer_load_dword v{112+q}, v5, s[12:15], s34 offen offset:1024")
        if q < 3: k(f"s_add_u32 s34, s34, {MODP_ST}")
    issue(0)
    if WO_IN_K1:
        k("s_lshl_b32 s36, s2, 2")
        k("s_add_u32 s36, s36, s5")
        k("s_mul_i32 s37, s36, 3277")
        k("s_lshr_b32 s37, s37, 16")
        k("s_mul_i32 s38, s37, 20")
        k("s_sub_u32 s38, s36, s38")
        k("s_cmp_lt_u32 s36, 800")
        k("s_cselect_b32 s39, 0, 0x40000000")
        k("s_mul_i32 s42, s38, 40960")
        k("s_lshl_b32 s43, s37, 5")
        k("s_add_u32 s42, s42, s43")
        k("s_add_u32 s42, s42, s39")
        k("s_add_u32 s43, s42, 5120")
        k("v_mul_u32_u24 v7, 10240, v2")
        k("v_and_b32 v8, 15, v0")
        k("v_lshl_add_u32 v7, v8, 1, v7")
        k.srd(24, 40, 41, 0, 819200)
        k.srd(28, 8, 9, WOF, WOF_SZ)
        k("s_mul_i32 s36, s37, 52")
        k("s_lshr_b32 s36, s36, 8")
        k("s_mul_i32 s44, s36, 5")
        k("s_sub_u32 s44, s37, s44")
        k("s_mul_i32 s36, s36, 20")
        k("s_add_u32 s36, s36, s38")
        k("s_mul_i32 s36, s36, 5")
        k("s_add_u32 s36, s36, s44")
        k("s_lshl_b32 s36, s36, 10")
        k("s_add_u32 s36, s36, s39")
    st1(k, 2)
    CO = 96; T = 112
    for g in range(5):
        younger = 4 if g < 4 else 0
        if g == 0 and not K1A: younger = 0
        if WO_IN_K1 and g >= 3: younger += 8
        if g == 0:
            k("v_bfe_u32 v116, v0, 1, 1")
            k("v_bfe_u32 v117, v0, 3, 1")
            k("v_cvt_f32_u32 v116, v116")
            k("v_cvt_f32_u32 v117, v117")
            k("v_sub_f32 v116, 1.0, v116")
            k("v_sub_f32 v117, 1.0, v117")
            k("s_waitcnt vmcnt(4)")
            for h in range(2):
                k(f"v_pk_add_f32 {r(96+2*h,2)}, {r(96+2*h,2)}, {r(100+2*h,2)}")
                k(f"v_pk_add_f32 {r(104+2*h,2)}, {r(104+2*h,2)}, {r(108+2*h,2)}")
            k("v_add_f32 v112, v112, v113")
            k("v_add_f32 v114, v114, v115")
            for h in range(2): k(f"v_pk_add_f32 {r(96+2*h,2)}, {r(96+2*h,2)}, {r(104+2*h,2)}")
            k("v_add_f32 v100, v112, v114")
            for rnd in range(2):
                for i in range(5): k(f"v_cvt_pk_bf16_f32 v{96+i}, v{96+i}, v{96+i}")
                for i in range(5): k(f"v_and_b32 v{96+i}, 0xffff0000, v{96+i}")
                if rnd == 0:
                    for i in range(5): k(f"v_add_f32 v{96+i}, v{96+i}, v{116 if i < 4 else 117}")
            k(f"ds_write_b128 v9, {r(96)}")
            k("ds_write_b32 v10, v100 offset:1024")
            st1(k, 6)
            if K1A: issue(1)
            k("s_waitcnt lgkmcnt(0)")
        for j in range(4): k(f"ds_read_b128 {r(CO+4*j)}, v3 offset:{g*256 + j*16}")
        k(f"s_waitcnt vmcnt({younger}) lgkmcnt(0)")
        a = 16 + 16 * g
        for f in range(4):
            for j in range(4):
                k(f"v_lshlrev_b32 v{T+2*j}, 16, v{a+4*f+j}")
                k(f"v_and_b32 v{T+2*j+1}, 0xffff0000, v{a+4*f+j}")
            for j in range(4):
                k(f"v_pk_fma_f32 {r(T+2*j,2)}, {r(T+2*j,2)}, {r(CO+2*j,2)}, {r(CO+8+2*j,2)}")
            for j in range(4):
                k(f"v_cvt_pk_bf16_f32 v{a+4*f+j}, v{T+2*j}, v{T+2*j+1}")
            o = (g % 3) * SLOT + f * 1024
            k(f"ds_write_b128 {'v4' if o < 65536 else 'v6'}, {r(a+4*f)} offset:{o & 65535}")
        if g == 0 and not K1A: issue(1)
        if g + 2 < 5: issue(g + 2)
        if WO_IN_K1 and g == 2:
            for j in range(8):
                k(f"buffer_load_ushort v{120+j}, v7, s[24:27], {'s42' if j < 4 else 's43'} offen offset:{(j&3)*1280}")
        if g == 4:
            k("s_lshl_b32 s46, s2, 2")
            k("s_add_u32 s46, s46, s5")
            k("s_sub_u32 s47, s46, 20")
            k("s_cmp_lt_u32 s47, 10")
            k("s_cselect_b32 s45, 1.0, 0")
            k("s_cmp_lt_u32 s46, 40")
            k("s_cselect_b32 s47, 0, 0x40000000")
            k("s_lshl_b32 s46, s46, 8")
            k("s_add_u32 s46, s46, 5120")
            k("s_add_u32 s46, s46, s47")
            k.srd(48, 8, 9, MOD, MOD_SZ)
            k("s_mov_b32 s47, s46")
            for q in range(4):
                k(f"buffer_load_dword v{96+q}, v5, s[12:15], s47 offen")
                if q < 3: k(f"s_add_u32 s47, s47, {MODP_ST}")
        k("s_waitcnt lgkmcnt(0)")
        k("s_barrier")
        if g == 0: st1(k, 3)
        if g == 4: st1(k, 4)
    k("s_waitcnt vmcnt(0)")
    k("v_add_f32 v96, v96, v97")
    k("v_add_f32 v98, v98, v99")
    k("v_add_f32 v96, v96, v98")
    k("v_cvt_pk_bf16_f32 v96, v96, v96")
    k("v_and_b32 v96, 0xffff0000, v96")
    k("v_add_f32 v96, s45, v96")
    k("v_cvt_pk_bf16_f32 v96, v96, v96")
    k("v_and_b32 v96, 0xffff0000, v96")
    k("buffer_store_dword v96, v5, s[48:51], s46 offen sc1")
    if WO_IN_K1:
        for j in range(4): k(f"v_lshl_or_b32 v{120+j}, v{121+2*j}, 16, v{120+2*j}")
        k(f"buffer_store_dwordx4 {r(120)}, v1, s[28:31], s36 offen sc1")

def compute(k):
    NK = 20; NW = NW6
    k("s_mul_i32 s10, s4, 20")
    k("s_add_u32 s10, s10, s5")
    k(f"s_mul_i32 s10, s10, {NW*1024}")
    k(f"s_mul_i32 s11, s5, {BLK}")
    k("s_add_u32 s11, s11, 4096")
    k("s_waitcnt lgkmcnt(0)")
    k.srd(16, 8, 9, WQF, WQF_SZ)
    def dma(g):
        sl = (g % 3) * SLOT
        out = [f"s_add_u32 m0, s11, {sl}\ns_add_u32 s36, s10, 4096\nbuffer_load_dwordx4 v1, s[16:19], s10 offen lds"]
        for j in range(1, 4): out.append(f"buffer_load_dwordx4 v1, s[16:19], s10 offen offset:{j*1024} lds")
        out.append(f"s_add_u32 m0, s11, {sl+4096}\ns_add_u32 s10, s10, {4*NW*1024}\nbuffer_load_dwordx4 v1, s[16:19], s36 offen lds")
        out.append("buffer_load_dwordx4 v1, s[16:19], s36 offen offset:1024 lds")
        return out
    for l in dma(0): k(l)
    return dma

def compute_main(k, dma):
    NK = 20; NW = NW6
    for l in dma(1): k(l)
    k("s_lshl_b32 s7, s5, 10")
    for s in range(3):
        k(f"v_add_u32 v{8+s}, {s*SLOT+4096}, v1")
        k(f"s_add_u32 s37, s7, {s*SLOT}")
        k(f"v_add_u32 v{12+s}, s37, v1")
    def rd(ks):
        b = FB + (1 + NW) * 4 * (ks & 1); s = (ks // 4) % 3; o = (ks % 4) * BLK
        return [f"ds_read_b128 {r(b)}, v{12+s} offset:{o}"] + [f"ds_read_b128 {r(b+4+4*j)}, v{8+s} offset:{o + j*1024}" for j in range(NW)]
    k("s_waitcnt vmcnt(6)")
    k("s_barrier")
    st1(k, 3)
    for l in rd(0): k(l)
    pend = []
    for ks in range(NK):
        b = FB + (1 + NW) * 4 * (ks & 1); g = ks // 4
        k("s_waitcnt lgkmcnt(0)")
        if ks % 4 == 3 and ks < NK - 1:
            assert not pend
            k(f"s_waitcnt vmcnt({6 if g + 2 < 5 else 0})")
            k("s_barrier")
            if ks in (3, 7, NK - 5): st1(k, {3: 4, 7: 5}.get(ks, 6))
        if ks % 4 == 0 and g + 2 < 5: pend = dma(g + 2)
        fill = rd(ks + 1) if ks < NK - 1 else []
        for j in range(NW):
            c = "0" if ks == 0 else r(A0 + 4 * j)
            k(f"v_mfma_f32_16x16x32_bf16 {r(A0+4*j)}, {r(b+4+4*j)}, {r(b)}, {c}")
            if fill: k(fill.pop(0))
            if j == 0 and fill: k(fill.pop(0))
            if j in (2, 5) and pend: k(pend.pop(0))
        k(f"v_mfma_f32_16x16x32_bf16 {r(96)}, {r(b)}, {r(b+24)}, {'0' if ks == 0 else r(96)}")
    st1(k, 7)

def x1_addr(k, dst, tmp):
    k("s_lshr_b32 s36, s6, 3")
    k("s_mul_i32 s36, s36, 40")
    k("s_mul_i32 s37, s4, 5")
    k("s_add_u32 s36, s36, s37")
    k("s_lshl_b32 s36, s36, 12")
    k("s_and_b32 s37, s6, 7")
    k("s_lshl_b32 s37, s37, 8")
    k("s_and_b32 s38, s37, 0x100")
    k("s_and_b32 s37, s37, 0x600")
    k("s_lshl_b32 s37, s37, 1")
    k("s_add_u32 s36, s36, s37")
    k("s_add_u32 s36, s36, s38")
    for j in range(1, 5): k(f"s_add_u32 s{36+j}, s36, {j*4096}")
    k(f"v_lshrrev_b32 v{dst}, 1, v3")
    k(f"v_lshlrev_b32 v{dst}, 9, v{dst}")
    k(f"v_lshl_add_u32 v{dst}, v5, 4, v{dst}")
    k(f"v_and_b32 v{tmp}, 1, v3")
    k(f"v_lshl_add_u32 v{dst}, v{tmp}, 3, v{dst}")

def resid_loads(k, xoff, goff):
    k("v_bfe_u32 v3, v0, 4, 2")
    k("v_and_b32 v5, 15, v0")
    x1_addr(k, 6, 7)
    k("v_lshlrev_b32 v7, 4, v3")
    k("s_mul_i32 s41, s4, 320")
    k("s_waitcnt lgkmcnt(0)")
    k.srd(12, 8, 9, xoff, ACT_SZ)
    k.srd(24, 8, 9, MOD + goff, 2560)
    for j in range(5): k(f"buffer_load_dwordx2 {r(EP+2*j,2)}, v6, s[12:15], s{36+j} offen")
    for j in range(5): k(f"buffer_load_dwordx4 {r(EP+12+4*j)}, v7, s[24:27], s41 offen offset:{j*64}")

def resid(k):
    for j in range(5):
        for h in range(2):
            x = EP + 2 * j + h; t = FB + 4 * j + 2 * h
            k(f"v_lshlrev_b32 v{t}, 16, v{x}")
            k(f"v_and_b32 v{t+1}, 0xffff0000, v{x}")
    for j in range(5):
        for h in range(2):
            a = A0 + 4 * j + 2 * h; g = EP + 12 + 4 * j + 2 * h; t = FB + 4 * j + 2 * h
            k(f"v_pk_fma_f32 {r(a,2)}, {r(a,2)}, {r(g,2)}, {r(t,2)}")
    for j in range(5):
        for h in range(2):
            a = A0 + 4 * j + 2 * h
            k(f"v_cvt_pk_bf16_f32 v{EP+2*j+h}, v{a}, v{a+1}")

K1_LDS = LT1 + 5120

def gen_p1(k):
    ids(k)
    k("s_cmp_eq_u32 s33, 0")
    k("s_cbranch_scc0 k1_loader")
    dma = compute(k)
    k("v_bfe_u32 v3, v0, 4, 2")
    k("v_and_b32 v5, 15, v0")
    k("s_and_b32 s36, s6, 1")
    k("s_lshl_b32 s36, s36, 4")
    k("v_add_u32 v6, s36, v5")
    for j in range(5):
        o = EP + j
        k(f"v_add_u32 v7, {4*j}, v3")
        k("v_mul_u32_u24 v2, 52, v7")
        k("v_lshrrev_b32 v2, 8, v2")
        k("v_mul_u32_u24 v4, 5, v2")
        k("v_sub_u32 v7, v7, v4")
        k(f"v_mul_u32_u24 v{o}, 81920, v2")
        k("v_lshrrev_b32 v4, 1, v7")
        k(f"v_lshl_add_u32 v{o}, v4, 9, v{o}")
        k("v_and_b32 v4, 1, v7")
        k(f"v_lshl_add_u32 v{o}, v4, 3, v{o}")
        k("v_lshrrev_b32 v4, 2, v7")
        k("v_sub_u32 v4, 4, v4")
        k("v_lshlrev_b32 v4, v4, v6")
        k(f"v_add_u32 v{o}, v{o}, v4")
    k("s_mul_i32 s40, s4, 327680")
    k("s_lshr_b32 s36, s6, 1")
    k("s_mul_i32 s36, s36, 1280")
    k("s_add_u32 s40, s40, s36")
    k.srd(24, 8, 9, Q, ACT_SZ)
    k.srd(28, 8, 9, KV, KV_SZ)
    k.srd(12, 8, 9, KMAX, 1024)
    compute_main(k, dma)
    k.nop(6)
    k("s_cmp_ge_u32 s4, 4")
    k("s_cbranch_scc1 k1_fin")
    P = FB + 12
    k(f"v_cvt_pk_bf16_f32 v{P}, v{A0+20}, v{A0+21}")
    k(f"v_cvt_pk_bf16_f32 v{P+1}, v{A0+22}, v{A0+23}")
    k("s_lshr_b32 s36, s6, 1")
    k("s_mul_i32 s36, s36, 2560")
    k("s_and_b32 s37, s6, 1")
    k("v_mov_b32 v11, 0x40000000")
    k("s_bitcmp1_b32 s4, 0")
    k("s_cbranch_scc1 k1_V")
    k("s_cmp_eq_u32 s4, 0")
    k("s_cbranch_scc0 k1_K2")
    k("v_lshrrev_b32 v10, 1, v3")
    k("v_lshlrev_b32 v10, 9, v10")
    k("v_lshl_add_u32 v10, v6, 4, v10")
    k("v_and_b32 v12, 1, v3")
    k("v_lshl_add_u32 v10, v12, 3, v10")
    k("s_branch k1_Kst")
    k.label("k1_K2")
    k("v_cmp_eq_u32 vcc, 0, v3")
    k("v_lshlrev_b32 v10, 3, v6")
    k("v_add_u32 v10, 1024, v10")
    k("v_cndmask_b32 v10, v11, v10, vcc")
    k.label("k1_Kst")
    k(f"buffer_store_dwordx2 {r(P,2)}, v10, s[28:31], s36 offen sc1")
    k(f"v_lshlrev_b32 v12, 16, v{P}")
    k(f"v_and_b32 v13, 0xffff0000, v{P}")
    k(f"v_lshlrev_b32 v14, 16, v{P+1}")
    k(f"v_and_b32 v15, 0xffff0000, v{P+1}")
    k("v_mul_f32 v12, v12, v12")
    k("v_fmac_f32 v12, v13, v13")
    k("v_fmac_f32 v12, v14, v14")
    k("v_fmac_f32 v12, v15, v15")
    xsum16_32(k, 12, 13)
    rowred(k, "v_max_f32", 12)
    k("s_lshl_b32 s36, s4, 8")
    k("s_lshl_b32 s37, s6, 2")
    k("s_add_u32 s36, s36, s37")
    k("v_cmp_eq_u32 vcc, 0, v1")
    k("v_mov_b32 v14, 0")
    k.nop(1)
    k("v_cndmask_b32 v14, v11, v14, vcc")
    k("buffer_store_dword v12, v14, s[12:15], s36 offen sc1")
    k("s_branch k1_fin")
    k.label("k1_V")
    k(f"v_cvt_pk_bf16_f32 v{P}, v96, v97")
    k(f"v_cvt_pk_bf16_f32 v{P+1}, v98, v99")
    k("s_mul_i32 s37, s37, 640")
    k("s_add_u32 s36, s36, s37")
    k("s_add_u32 s36, s36, 1280")
    k("s_cmp_eq_u32 s4, 3")
    k("s_cselect_b32 s37, 256, 0")
    k("s_cselect_b32 s38, 4, 16")
    k("s_add_u32 s36, s36, s37")
    k("v_and_b32 v9, 1, v3")
    k("v_mul_u32_u24 v9, 320, v9")
    k("v_lshl_add_u32 v9, v5, 4, v9")
    k("v_cmp_gt_u32 vcc, s38, v5")
    k("v_lshrrev_b32 v10, 1, v3")
    k("v_lshl_add_u32 v9, v10, 3, v9")
    k("v_cndmask_b32 v9, v11, v9, vcc")
    k(f"buffer_store_dwordx2 {r(P,2)}, v9, s[28:31], s36 offen sc1")
    k.label("k1_fin")
    k(f"v_mov_b32 v8, {hexf(QSCALE)}")
    for j in range(5):
        a = A0 + 4 * j
        k(f"v_pk_mul_f32 {r(a,2)}, {r(a,2)}, v[8:9] op_sel_hi:[1,0]")
        k(f"v_pk_mul_f32 {r(a+2,2)}, {r(a+2,2)}, v[8:9] op_sel_hi:[1,0]")
        k(f"v_cvt_pk_bf16_f32 v{FB+2*j}, v{a}, v{a+1}")
        k(f"v_cvt_pk_bf16_f32 v{FB+2*j+1}, v{a+2}, v{a+3}")
        k(f"buffer_store_dwordx2 {r(FB+2*j,2)}, v{EP+j}, s[24:27], s40 offen")
    k("s_waitcnt vmcnt(5)")
    k("s_branch k1_done")
    k.label("k1_loader")
    loader(k)
    k("s_waitcnt vmcnt(0)")
    k.label("k1_done")
```

```python
from asmlib import Kern
from layout import *

import os
NM, NL, NW, NP = 240, 128, (220 if int(os.environ.get('WO_IN_K1', '1')) else 420), 20
K0_GRID = NM + NL + NW + NP
K0_LDS = 20736

def xsum16_32(k, v, t):
    k(f"v_mov_b32 v{t}, v{v}")
    k.nop(2)
    k(f"v_permlane16_swap_b32 v{v}, v{t}")
    k(f"v_add_f32 v{v}, v{v}, v{t}")
    k(f"v_mov_b32 v{t}, v{v}")
    k.nop(2)
    k(f"v_permlane32_swap_b32 v{v}, v{t}")
    k(f"v_add_f32 v{v}, v{v}, v{t}")

def rowred(k, op, v, extra=None):
    for r in (1, 2, 4, 8):
        k.nop(2)
        k(f"{op}_dpp v{v}, v{v}, v{v} row_ror:{r} row_mask:0xf bank_mask:0xf")

def gen_k0(code_start, code_end):
    k = Kern("k0_kernel", 80, 48)
    k(f"s_cmp_ge_u32 s2, {K0_GRID}")
    k("s_cbranch_scc1 k0_end")
    k.stamp(0); k.rstamp(1)
    k("s_load_dwordx2 s[8:9], s[0:1], 112")
    k(f"s_cmp_ge_u32 s2, {NM + NL + NW}")
    k("s_cbranch_scc1 k0_P")
    k(f"s_cmp_ge_u32 s2, {NM + NL}")
    k("s_cbranch_scc1 k0_W")
    k(f"s_cmp_lt_u32 s2, {NL}")
    k("s_cbranch_scc1 k0_L")
    k("s_load_dwordx4 s[4:7], s[0:1], 80")
    k(f"s_sub_u32 s10, s2, {NL}")
    k("s_and_b32 s21, s10, 3")
    k("s_lshr_b32 s3, s10, 2")
    k("v_lshrrev_b32 v1, 3, v0")
    k("v_and_b32 v2, 7, v0")
    k("v_mul_u32_u24 v3, 7680, v1")
    k("v_lshl_add_u32 v3, v2, 4, v3")
    k("v_lshlrev_b32 v4, 1, v1")
    k(f"s_mul_i32 s20, s21, {160*7680}")
    k("s_lshl_b32 s22, s3, 7")
    k("s_add_u32 s20, s20, s22")
    k("s_mul_i32 s22, s21, 320")
    k("s_waitcnt lgkmcnt(0)")
    k.srd(16, 6, 7, 0, 640 * 7680)
    k.srd(12, 4, 5, 0, 1280)
    for p in range(5):
        k(f"buffer_load_ushort v{8+p}, v4, s[12:15], s22 offen offset:{p*64}")
    for p in range(5):
        k(f"buffer_load_dwordx4 v[{20+4*p}:{23+4*p}], v3, s[16:19], s20 offen")
        if p < 4: k(f"s_add_u32 s20, s20, {32 * 7680}")
    k.srd(28, 8, 9, MODP, 4 * MODP_ST)
    k("v_lshlrev_b32 v5, 3, v2")
    k("v_bfe_u32 v6, v0, 5, 1")
    k("v_lshl_add_u32 v5, v6, 2, v5")
    k("v_bfe_u32 v6, v0, 4, 1")
    k("v_lshl_add_u32 v5, v6, 1, v5")
    k("v_bfe_u32 v6, v0, 3, 1")
    k("v_add_u32 v5, v5, v6")
    k("v_lshlrev_b32 v5, 2, v5")
    k("v_lshrrev_b32 v6, 6, v0")
    k("v_lshl_add_u32 v5, v6, 8, v5")
    k("v_and_b32 v6, 63, v0")
    k("v_lshlrev_b32 v7, 2, v6")
    k(f"s_mul_i32 s24, s21, {MODP_ST}")
    k("s_cmp_lt_u32 s3, 20")
    k("s_cbranch_scc1 k0_M_t1")
    k("s_lshl_b32 s22, s3, 8")
    k("v_add_u32 v19, s22, v7")
    k("s_branch k0_M_st")
    k.label("k0_M_t1")
    k("s_cmp_lt_u32 s3, 10")
    k("s_cselect_b32 s23, 32, 0")
    k("s_cselect_b32 s22, 0, 10")
    k("s_sub_u32 s22, s3, s22")
    k("s_lshr_b32 s25, s22, 1")
    k("s_lshl_b32 s25, s25, 8")
    k("s_add_u32 s23, s23, s25")
    k("s_and_b32 s22, s22, 1")
    k("s_mul_i32 s22, s22, 2560")
    k("s_add_u32 s22, s22, s23")
    k("v_lshrrev_b32 v19, 5, v6")
    k("v_mul_u32_u24 v19, 1280, v19")
    k("v_bfe_u32 v18, v6, 3, 2")
    k("v_lshl_add_u32 v19, v18, 6, v19")
    k("v_and_b32 v18, 7, v6")
    k("v_lshl_add_u32 v19, v18, 2, v19")
    k("v_add_u32 v19, s22, v19")
    k.label("k0_M_st")
    k.stamp(2)
    k("s_waitcnt vmcnt(5)")
    k.stamp(3)
    T = 60
    for p in range(5): k(f"v_lshlrev_b32 v{8+p}, 16, v{8+p}")
    for p in range(5): k(f"v_mul_f32 v{T+p}, 0xbfb8aa3b, v{8+p}")
    for p in range(5): k(f"v_exp_f32 v{T+p}, v{T+p}")
    for p in range(5): k(f"v_add_f32 v{T+p}, 1.0, v{T+p}")
    for p in range(5): k(f"v_rcp_f32 v{T+p}, v{T+p}")
    for p in range(5): k(f"v_mul_f32 v{8+p}, v{8+p}, v{T+p}")
    for p in range(5): k(f"v_cvt_pk_bf16_f32 v{8+p}, v{8+p}, v{8+p}")
    for p in range(5): k(f"v_and_b32 v{8+p}, 0xffff0000, v{8+p}")
    A = 72
    for p in range(5):
        k(f"s_waitcnt vmcnt({4-p})")
        for j in range(4):
            k(f"v_lshlrev_b32 v{T+2*j}, 16, v{20+4*p+j}")
            k(f"v_and_b32 v{T+2*j+1}, 0xffff0000, v{20+4*p+j}")
        sp = f"v[{8+p-(p&1)}:{9+p-(p&1)}]"
        for j in range(4):
            if p == 0: k(f"v_pk_mul_f32 v[{A+2*j}:{A+2*j+1}], v[{T+2*j}:{T+2*j+1}], {sp} op_sel_hi:[1,0]")
            else:
                sel3 = "op_sel_hi:[1,0,1]" if p % 2 == 0 else "op_sel:[0,1,0] op_sel_hi:[1,1,1]"
                k(f"v_pk_fma_f32 v[{A+2*j}:{A+2*j+1}], v[{T+2*j}:{T+2*j+1}], {sp}, v[{A+2*j}:{A+2*j+1}] {sel3}")
    k.stamp(4)
    k.nop(1)
    for j in range(4): k(f"v_permlane32_swap_b32 v{A+j}, v{A+4+j}")
    for j in range(4): k(f"v_add_f32 v{A+j}, v{A+j}, v{A+4+j}")
    k.nop(1)
    for j in range(2): k(f"v_permlane16_swap_b32 v{A+j}, v{A+2+j}")
    for j in range(2): k(f"v_add_f32 v{A+j}, v{A+j}, v{A+2+j}")
    k.nop(2)
    k(f"v_add_f32_dpp v{A}, v{A}, v{A} row_ror:8 row_mask:0xf bank_mask:0x3")
    k.nop(2)
    k(f"v_add_f32_dpp v{A}, v{A+1}, v{A+1} row_ror:8 row_mask:0xf bank_mask:0xc")
    k(f"ds_write_b32 v5, v{A}")
    k("v_cmp_gt_u32 vcc, 64, v0")
    k("s_waitcnt lgkmcnt(0)")
    k("s_barrier")
    k("s_and_saveexec_b64 s[34:35], vcc")
    k("s_cbranch_execz k0_end")
    for i in range(4): k(f"ds_read_b32 v{20+i}, v7 offset:{i*256}")
    k("s_waitcnt lgkmcnt(0)")
    k("v_add_f32 v20, v20, v21")
    k("v_add_f32 v22, v22, v23")
    k("v_add_f32 v20, v20, v22")
    k("buffer_store_dword v20, v19, s[28:31], s24 offen")
    k.endpgm(0)
    k.label("k0_L")
    k("s_load_dwordx2 s[4:5], s[0:1], 0")
    k("s_mov_b32 s3, s2")
    k("s_and_b32 s10, s3, 7")
    k("s_lshl_b32 s10, s10, 4")
    k("s_lshr_b32 s11, s3, 3")
    k("s_add_u32 s10, s10, s11")
    k("v_lshrrev_b32 v1, 4, v0")
    k("v_and_b32 v2, 15, v0")
    k("v_mul_u32_u24 v3, 1280, v1")
    k("v_lshl_add_u32 v3, v2, 4, v3")
    k("s_mul_i32 s20, s10, 20480")
    k("s_waitcnt lgkmcnt(0)")
    k.srd(12, 4, 5, 0, ACT_SZ)
    for i in range(5):
        k(f"buffer_load_dwordx4 v[{8+4*i}:{11+4*i}], v3, s[12:15], s20 offen offset:{i*256}")
    k.srd(16, 8, 9, ZR, ZR_SZ)
    k.srd(24, 8, 9, XN, ACT_SZ)
    k("s_lshl_b32 s21, s3, 12")
    k("v_lshlrev_b32 v4, 4, v0")
    for i in range(4): k(f"v_mov_b32 v{28+i}, 0")
    k("buffer_store_dwordx4 v[28:31], v4, s[16:19], s21 offen")
    k("s_add_u32 s21, s21, 0x80000")
    k("buffer_store_dwordx4 v[28:31], v4, s[16:19], s21 offen")
    k("v_lshl_add_u32 v4, v1, 4, v3")
    k("v_lshrrev_b32 v68, 6, v0")
    k("v_bfe_u32 v69, v0, 4, 2")
    k("v_readfirstlane_b32 s22, v68")
    k("v_mul_u32_u24 v70, 1296, v2")
    k("v_lshl_add_u32 v70, v69, 4, v70")
    k("v_mul_u32_u24 v68, 320, v68")
    k("v_add_u32 v70, v70, v68")
    k("v_and_b32 v69, 63, v0")
    k("v_lshlrev_b32 v69, 4, v69")
    k("s_mul_i32 s22, s22, 5")
    k("s_lshr_b32 s23, s10, 2")
    k("s_mul_i32 s23, s23, 20")
    k("s_add_u32 s23, s23, s22")
    k("s_lshl_b32 s23, s23, 12")
    k("s_and_b32 s34, s10, 3")
    k("s_lshl_b32 s34, s34, 10")
    k("s_add_u32 s23, s23, s34")
    k.stamp(2)
    k("s_waitcnt vmcnt(2)")
    k.stamp(3)
    for i in range(20):
        k(f"v_lshlrev_b32 v{28+2*i}, 16, v{8+i}")
        k(f"v_and_b32 v{29+2*i}, 0xffff0000, v{8+i}")
    k("v_pk_add_f32 v[6:7], v[28:29], v[30:31]")
    for i in range(2, 20):
        k(f"v_pk_add_f32 v[6:7], v[6:7], v[{28+2*i}:{29+2*i}]")
    k("v_add_f32 v6, v6, v7")
    rowred(k, "v_add_f32", 6)
    k(f"v_mul_f32 v6, {hexf(-1.0/640)}, v6")
    for i in range(20):
        k(f"v_pk_add_f32 v[{28+2*i}:{29+2*i}], v[{28+2*i}:{29+2*i}], v[6:7] op_sel_hi:[1,0]")
    k("v_pk_mul_f32 v[6:7], v[28:29], v[28:29]")
    for i in range(1, 20):
        k(f"v_pk_fma_f32 v[6:7], v[{28+2*i}:{29+2*i}], v[{28+2*i}:{29+2*i}], v[6:7]")
    k("v_add_f32 v6, v6, v7")
    rowred(k, "v_add_f32", 6)
    k(f"v_mov_b32 v7, {hexf(1e-5)}")
    k(f"v_fmac_f32 v7, {hexf(1.0/640)}, v6")
    k("v_rsq_f32 v6, v7")
    k.nop(1)
    for i in range(20):
        k(f"v_pk_mul_f32 v[{28+2*i}:{29+2*i}], v[{28+2*i}:{29+2*i}], v[6:7] op_sel_hi:[1,0]")
    for i in range(20):
        k(f"v_cvt_pk_bf16_f32 v{8+i}, v{28+2*i}, v{29+2*i}")
    for i in range(5):
        k(f"ds_write_b128 v4, v[{8+4*i}:{11+4*i}] offset:{i*256}")
    k("s_waitcnt lgkmcnt(0)")
    k("s_barrier")
    for i in range(5):
        k(f"ds_read_b128 v[{8+4*i}:{11+4*i}], v70 offset:{i*64}")
    for i in range(5):
        k(f"s_waitcnt lgkmcnt({4-i})")
        k(f"buffer_store_dwordx4 v[{8+4*i}:{11+4*i}], v69, s[24:27], s23 offen")
        k("s_add_u32 s23, s23, 4096")
    k.endpgm(0)
    k.label("k0_W")
    k("s_load_dwordx4 s[4:7], s[0:1], 8")
    k("s_load_dwordx4 s[36:39], s[0:1], 24")
    k("v_lshrrev_b32 v1, 6, v0")
    k(f"s_sub_u32 s3, s2, {NM + NL}")
    k("v_readfirstlane_b32 s20, v1")
    k("s_lshl_b32 s3, s3, 2")
    k("v_and_b32 v2, 15, v0")
    k("v_bfe_u32 v3, v0, 4, 2")
    k("s_add_u32 s3, s3, s20")
    k("s_cmp_ge_u32 s3, 880")
    k("s_cselect_b32 s30, 880, 0")
    k("s_cselect_b32 s31, 5, 6")
    k(f"s_cselect_b32 s32, {WOF - WQF}, 0")
    k("s_sub_u32 s3, s3, s30")
    k("s_mul_i32 s20, s3, 3277")
    k("s_lshr_b32 s20, s20, 16")
    k("s_mul_i32 s21, s20, 20")
    k("s_sub_u32 s21, s3, s21")
    k("s_waitcnt lgkmcnt(0)")
    k("s_cmp_eq_u32 s31, 5")
    k("s_cselect_b32 s4, s38, s4")
    k("s_cselect_b32 s5, s39, s5")
    k("s_cmp_ge_u32 s20, 40")
    k("s_cbranch_scc1 k0_W_kv")
    k.srd(12, 4, 5, 0, 819200)
    k("s_mov_b32 s22, 1280")
    k("s_lshl_b32 s23, s20, 5")
    k("s_mov_b32 s24, 16")
    k("s_mul_i32 s25, s20, 52")
    k("s_lshr_b32 s25, s25, 8")
    k("s_mul_i32 s26, s25, 5")
    k("s_sub_u32 s26, s20, s26")
    k("s_branch k0_W_go")
    k.label("k0_W_kv")
    k("s_sub_u32 s25, s20, 40")
    k("s_bitcmp1_b32 s25, 0")
    k("s_cselect_b32 s6, s36, s6")
    k("s_cselect_b32 s7, s37, s7")
    k.srd(12, 6, 7, 0, 25600)
    k("s_mov_b32 s22, 40")
    k("s_cmp_ge_u32 s25, 2")
    k("s_cselect_b32 s23, 32, 0")
    k("s_cselect_b32 s24, 4, 16")
    k("s_mov_b32 s26, 5")
    k.label("k0_W_go")
    k("s_lshl_b32 s27, s22, 3")
    k("v_mul_lo_u32 v4, v3, s27")
    k("v_lshl_add_u32 v4, v2, 1, v4")
    k("v_mov_b32 v5, 0x40000000")
    k("v_cmp_gt_u32 vcc, s24, v2")
    k("s_lshl_b32 s28, s21, 5")
    k("s_mul_i32 s28, s28, s22")
    k("s_add_u32 s28, s28, s23")
    k("v_cndmask_b32 v4, v5, v4, vcc")
    for j in range(8):
        k(f"buffer_load_ushort v{8+j}, v4, s[12:15], s28 offen")
        if j < 7: k("s_add_u32 s28, s28, s22")
    k.srd(16, 8, 9, WQF, WOF + WOF_SZ - WQF)
    k("s_mul_i32 s29, s25, 20")
    k("s_add_u32 s29, s29, s21")
    k("s_mul_i32 s29, s29, s31")
    k("s_add_u32 s29, s29, s26")
    k("s_lshl_b32 s29, s29, 10")
    k("s_add_u32 s29, s29, s32")
    k("v_and_b32 v6, 63, v0")
    k("v_lshlrev_b32 v6, 4, v6")
    k("s_waitcnt vmcnt(0)")
    for j in range(4):
        k(f"v_lshl_or_b32 v{16+j}, v{9+2*j}, 16, v{8+2*j}")
    k("buffer_store_dwordx4 v[16:19], v6, s[16:19], s29 offen")
    k.endpgm(0)
    k.label("k0_P")
    k("s_getpc_b64 s[4:5]")
    k.label("k0_pc")
    k(f"s_add_u32 s4, s4, {code_start}-k0_pc")
    k("s_addc_u32 s5, s5, 0")
    k(f"s_mov_b32 s6, {code_end}-{code_start}")
    k("s_mov_b32 s7, 0x20000")
    k("v_lshlrev_b32 v1, 4, v0")
    k("s_bfe_u32 s10, s2, 0x10003")
    k("s_lshl_b32 s10, s10, 12")
    k.label("k0_P_loop")
    k("buffer_load_dwordx4 v[4:7], v1, s[4:7], s10 offen")
    k("s_add_u32 s10, s10, 8192")
    k("s_cmp_lt_u32 s10, s6")
    k("s_cbranch_scc1 k0_P_loop")
    k("s_waitcnt vmcnt(0)")
    k.label("k0_end")
    k("s_endpgm")
    return k

import struct
def hexf(x):
    return hex(struct.unpack("<I", struct.pack("<f", x))[0])
```

```python
from asmlib import Kern
from layout import *
from k0 import hexf, rowred
import os, math

K234_LDS = 163840
QA, QB, CM, S0, S1, OO, PP = 4, 8, 16, 32, 48, 64, 80
KF1 = (88, 92); KF2 = (96, 100); VF = (104, 112)
AK1, AK2, AV = 12, 13, 14
SIDE_SC = os.environ.get("SIDE_SC", "sc1")
Z_SC = os.environ.get("Z_SC", "sc1")
SPIN = 200000
F1SH = int(os.environ.get('F1SH', '4'))
PF7 = int(os.environ.get('PF7', '1'))
TOUCH = int(os.environ.get('TOUCH', '0'))
PF_WIN = int(os.environ.get('PF_WIN', '0'))
RETRY = 2000
PF_NEXT = int(os.environ.get('PF_NEXT', '0'))
GA_ = -2 * math.log2(math.e) * math.sqrt(2 / math.pi)
GB_ = GA_ * 0.044715
RB, CB8, W3, VV, RB128, CB16 = 24, 25, 26, 27, 28, 29

def prio(k, n):
    if not os.environ.get("NOPRIO"): k(f"s_setprio {n}")
def r(b, n=4): return f"v[{b}:{b+n-1}]"

def poll(k, name, srd, soff, nflag, vo, vf):
    if nflag:
        k(f"v_and_b32 v{vo}, {nflag-1}, v0")
        k(f"v_lshlrev_b32 v{vo}, 7, v{vo}")
    k("s_mov_b32 s38, 0")
    k(f"buffer_load_dword v{vf}, v{vo}, s[{srd}:{srd+3}], {soff} offen sc1")
    k("s_sleep 4")
    k.label(name)
    for h in range(2):
        k(f"buffer_load_dword v{vf+1-h}, v{vo}, s[{srd}:{srd+3}], {soff} offen sc1")
        if os.environ.get("PSLEEP"): k(f"s_sleep {os.environ['PSLEEP']}")
        k("s_waitcnt vmcnt(1)")
        k(f"v_cmp_ne_u32 vcc, 0, v{vf+h}")
        k("s_cmp_eq_u64 vcc, -1")
        k(f"s_cbranch_scc1 {name}_ok")
    k("s_add_u32 s38, s38, 1")
    k(f"s_cmp_lt_u32 s38, {SPIN}")
    k(f"s_cbranch_scc1 {name}")
    k.label(name + "_ok")

def setflag(k, srd, soff, lab, v=10):
    k("s_cmp_lg_u32 s5, 0")
    k(f"s_cbranch_scc1 {lab}")
    k(f"v_mov_b32 v{v}, 1")
    k("s_mov_b64 exec, 1")
    k(f"buffer_store_dword v{v}, off, s[{srd}:{srd+3}], {soff} sc1")
    k("s_mov_b64 exec, -1")
    k.label(lab)

def hint(k, srd, soff, v=10):
    k(f"v_mov_b32 v{v}, 1")
    k("s_mov_b64 exec, 1")
    k(f"buffer_store_dword v{v}, off, s[{srd}:{srd+3}], {soff} sc1")
    k("s_mov_b64 exec, -1")

def chk(k, c, b, n=4):
    for i in range(0, n, 2): k(f"v_max3_u32 v{c}, v{c}, v{b+i}, v{b+i+1}")

def verify(k, c, again, cnt):
    k(f"v_cmp_eq_u32 vcc, -1, v{c}")
    k(f"s_add_u32 s{cnt}, s{cnt}, 1")
    k(f"s_cmp_lt_u32 s{cnt}, {RETRY}")
    k("s_cselect_b64 s[70:71], vcc, 0")
    k("s_cmp_lg_u64 s[70:71], 0")
    k(f"s_cbranch_scc1 {again}")

def gelu(k, X, T, n):
    for i in range(n): k(f"v_pk_mul_f32 {r(T+2*i,2)}, {r(X+2*i,2)}, {r(X+2*i,2)}")
    for i in range(n): k(f"v_pk_fma_f32 {r(T+2*i,2)}, {r(T+2*i,2)}, v[12:13], v[12:13] op_sel:[0,1,0] op_sel_hi:[1,1,0]")
    for i in range(n): k(f"v_pk_mul_f32 {r(T+2*i,2)}, {r(T+2*i,2)}, {r(X+2*i,2)}")
    for i in range(2 * n): k(f"v_exp_f32 v{T+i}, v{T+i}")
    for i in range(n): k(f"v_pk_add_f32 {r(T+2*i,2)}, {r(T+2*i,2)}, 1.0 op_sel_hi:[1,0]")
    for i in range(2 * n): k(f"v_rcp_f32 v{T+i}, v{T+i}")
    for i in range(n): k(f"v_pk_mul_f32 {r(X+2*i,2)}, {r(X+2*i,2)}, {r(T+2*i,2)}")

def x1_addr(k, rt, cb, s0, dst, tmp, kg=3, l16=5):
    k(f"s_lshr_b32 s{s0}, s{rt}, 3")
    k(f"s_mul_i32 s{s0}, s{s0}, 40")
    k(f"s_mul_i32 s{s0+1}, s{cb}, 5")
    k(f"s_add_u32 s{s0}, s{s0}, s{s0+1}")
    k(f"s_lshl_b32 s{s0}, s{s0}, 12")
    k(f"s_bfe_u32 s{s0+1}, s{rt}, 0x20001")
    k(f"s_lshl_b32 s{s0+1}, s{s0+1}, 10")
    k(f"s_add_u32 s{s0}, s{s0}, s{s0+1}")
    k(f"s_and_b32 s{s0+1}, s{rt}, 1")
    k(f"s_lshl_b32 s{s0+1}, s{s0+1}, 8")
    k(f"s_add_u32 s{s0}, s{s0}, s{s0+1}")
    for j in range(1, 5): k(f"s_add_u32 s{s0+j}, s{s0}, {j*4096}")
    k(f"v_lshrrev_b32 v{dst}, 1, v{kg}")
    k(f"v_lshlrev_b32 v{dst}, 9, v{dst}")
    k(f"v_lshl_add_u32 v{dst}, v{l16}, 4, v{dst}")
    k(f"v_and_b32 v{tmp}, 1, v{kg}")
    k(f"v_lshl_add_u32 v{dst}, v{tmp}, 3, v{dst}")

def gemm80_resident(k, NK, order, ACT, A0, WB, srd, soff, lds_addr, wait, cb, bars={}, AH=11):
    k("v_add_u32 v8, 0xf000, v1")
    k("v_add_u32 v9, 0x1e000, v1")
    def ld(i):
        return [f"s_add_u32 s38, s{soff}, {order[i]*4096}\nbuffer_load_dwordx4 {r(ACT+4*i)}, v1, s[{srd}:{srd+3}], s38 offen sc1"]
    def rd(i):
        ks = order[i]; b = WB[i % 3]
        ad = lds_addr(ks); n = ad // 0xf000
        return [f"ds_read_b128 {r(b+4*j)}, {('v1', 'v8', 'v9')[n]} offset:{ad + j*1024 - n*0xf000}" for j in range(5)]
    for l in rd(0) + rd(1): k(l)
    wait()
    for i in range(AH): k(ld(i)[0])
    for i in range(NK):
        b = WB[i % 3]
        if i in bars: k("s_barrier")
        k(f"s_waitcnt vmcnt({min(AH-1, NK-1-i)}) lgkmcnt({5 if i < NK-1 else 0})")
        if os.environ.get("FINE3") and i in (0, 5, 12): k.stamp({0: 2, 5: 3, 12: 4}[i])
        fill = (rd(i + 2) if i + 2 < NK else [""] * 5)
        for j in range(5):
            c = "0" if i == 0 else r(A0 + 4 * j)
            k(f"v_mfma_f32_16x16x32_bf16 {r(A0+4*j)}, {r(b+4*j)}, {r(ACT+4*i)}, {c}")
            k(fill[j])
        if i + AH < NK: k(ld(i + AH)[0])
    if os.environ.get("FINE3"): k.stamp(7 if NK == 24 else 6)

def resid(k, A0, X, G, T):
    for i in range(10):
        k(f"v_lshlrev_b32 v{T+2*i}, 16, v{X+i}")
        k(f"v_and_b32 v{T+2*i+1}, 0xffff0000, v{X+i}")
    for i in range(10): k(f"v_pk_fma_f32 {r(A0+2*i,2)}, {r(A0+2*i,2)}, {r(G+2*i,2)}, {r(T+2*i,2)}")
    for i in range(10): k(f"v_cvt_pk_bf16_f32 v{X+i}, v{A0+2*i}, v{A0+2*i+1}")

def gen_k234():
    k = Kern("k2_kernel", 244, 100)
    k("s_cmp_ge_u32 s2, 256")
    k("s_cbranch_scc1 k2_end")
    k.stamp(0); k.rstamp(1)
    k("s_load_dwordx2 s[8:9], s[0:1], 112")
    from g16 import gen_p1
    gen_p1(k)
    k.srd(16, 8, 9, FL, FL_SZ)
    k(f"s_lshl_b32 s37, s2, {F1SH}")
    k(f"s_add_u32 s37, s37, {F1 - FL}")
    k("v_lshrrev_b32 v1, 6, v0")
    k("s_barrier")
    k("v_readfirstlane_b32 s5, v1")
    k.nop(1)
    setflag(k, 16, "s37", "k2_f1done")
    if os.environ.get("FINE2"): k.stamp(4)
    k("s_load_dwordx2 s[44:45], s[0:1], 0")
    k("s_load_dwordx4 s[48:51], s[0:1], 48")
    k("s_load_dwordx2 s[46:47], s[0:1], 72")
    k("s_and_b32 s3, s2, 7")
    k(f"s_lshl_b32 s{RB}, s3, 2")
    k("s_bfe_u32 s4, s2, 0x20003")
    k(f"s_add_u32 s{RB}, s{RB}, s4")
    k(f"s_lshr_b32 s{CB8}, s2, 5")
    k("v_and_b32 v1, 63, v0")
    k("v_and_b32 v2, 31, v0")
    k("v_bfe_u32 v3, v0, 5, 1")
    k("v_lshlrev_b32 v1, 4, v1")
    k(f"s_lshl_b32 s4, s{CB8}, 2")
    k(f"s_and_b32 s{W3}, s5, 3")
    k(f"s_add_u32 s4, s4, s{W3}")
    k(f"s_lshl_b32 s6, s{RB}, 1")
    k("s_lshr_b32 s43, s5, 2")
    k("s_add_u32 s6, s6, s43")
    k("v_lshlrev_b32 v15, 30, v3")
    k("v_lshl_add_u32 v15, v2, 3, v15")
    k("s_lshl_b32 s7, s4, 6")
    k("s_add_u32 s7, s7, s6")
    k("s_mul_i32 s7, s7, 1280")
    k("s_lshl_b32 s10, s5, 10")
    k("v_mov_b32 v120, v15")
    k.srd(20, 8, 9, KV, KV_SZ)
    k.srd(52, 8, 9, Q, ACT_SZ)
    k.srd(56, 8, 9, KMAX, 1024)
    k("s_mov_b32 s31, s7")
    prio(k, 3)
    k(f"s_bfe_u32 s{VV}, s2, 0x10003")
    k(f"s_lshr_b32 s{RB128}, s{RB}, 1")
    k(f"s_lshl_b32 s{CB16}, s{CB8}, 1")
    k(f"s_add_u32 s{CB16}, s{CB16}, s{VV}")
    k(f"v_mov_b32 v{AK1}, v1")
    k(f"v_lshlrev_b32 v{AK2}, 3, v2")
    k(f"v_add_u32 v{AK2}, 1024, v{AK2}")
    k(f"v_mul_u32_u24 v{AV}, 20, v3")
    k(f"v_add_u32 v{AV}, v{AV}, v2")
    k(f"v_lshlrev_b32 v{AV}, 4, v{AV}")
    k(f"v_add_u32 v{AV}, 1280, v{AV}")
    k("s_mov_b32 s40, 0x000fffff")
    k("s_mov_b32 s41, 0x000fffff")
    k("v_or_b32 v15, 4, v2")
    k("v_cmp_eq_u32 vcc, 28, v15")
    k("v_mov_b32 v15, 0x3f803f80")
    k("s_add_u32 s43, s43, 1")
    k(f"v_cndmask_b32 v{VF[0]}, 0, v15, vcc")
    for i in range(16): k(f"v_mov_b32 v{OO+i}, 0")
    for i in range(1, 16): k(f"v_mov_b32 v{VF[0]+i}, v{VF[0]}")
    for i in range(4, 8): k(f"v_mov_b32 v{PP+i}, 0")
    for b in (QB, KF2[0], KF2[1]):
        k(f"v_mov_b32 v{b+2}, 0"); k(f"v_mov_b32 v{b+3}, 0")
    k.srd(12, 8, 9, O, ACT_SZ)
    k(f"s_mul_i32 s7, s{CB8}, 102400")
    k(f"s_add_u32 s7, s7, {WOF}")
    k.srd(16 + 16, 8, 9, "s7", 102400)
    k("s_cmp_lg_u32 s5, 0")
    k("s_cbranch_scc1 k2_p1_ok")
    k(f"v_lshlrev_b32 v{S1}, {F1SH}, v0")
    k(f"s_mov_b32 s36, {F1 - FL}")
    k("s_mov_b32 s38, 0")
    k.label("k2_p1")
    for q in range(4):
        if (64 << F1SH) * q < 4096: k(f"buffer_load_dword v{S1+1+q}, v{S1}, s[16:19], s36 offen offset:{(64 << F1SH) * q} sc1")
        else:
            k(f"s_add_u32 s39, s36, {(64 << F1SH) * q}")
            k(f"buffer_load_dword v{S1+1+q}, v{S1}, s[16:19], s39 offen sc1")
    k("s_add_u32 s38, s38, 1")
    k("s_waitcnt vmcnt(0)")
    k(f"v_min3_u32 v{S1+1}, v{S1+1}, v{S1+2}, v{S1+3}")
    k(f"v_min_u32 v{S1+1}, v{S1+1}, v{S1+4}")
    k(f"v_cmp_ne_u32 vcc, 0, v{S1+1}")
    k("s_cmp_eq_u64 vcc, -1")
    k("s_cbranch_scc1 k2_p1_ok")
    k(f"s_sleep {os.environ.get('F1SL', '2')}")
    k(f"s_cmp_lt_u32 s38, {SPIN}")
    k("s_cbranch_scc1 k2_p1")
    k.label("k2_p1_ok")
    k("s_mov_b32 m0, s10")
    k("s_waitcnt vmcnt(0)")
    k("s_barrier")
    if os.environ.get("FINE2"): k.stamp(5)
    k("buffer_load_dwordx4 v1, s[20:23], m0 offen sc1 lds")
    k(f"buffer_load_dwordx4 {r(QA)}, v1, s[52:55], s31 offen sc1")
    k(f"buffer_load_dwordx2 {r(QB,2)}, v120, s[52:55], s31 offen offset:1024 sc1")
    k("s_add_u32 m0, m0, 0x2000")
    k(f"buffer_load_dwordx4 {r(S0)}, v1, s[56:59], 0 offen sc1")
    for i in range(3):
        k("buffer_load_dwordx4 v1, s[20:23], m0 offen sc1 lds")
        if i < 2:
            k("s_add_u32 m0, m0, 0x2000")
            k.nop(1)
    k("s_waitcnt vmcnt(3)")
    k(f"v_max3_f32 v{S1}, v{S0}, v{S0+1}, v{S0+2}")
    k(f"v_max_f32 v{S1}, v{S1}, v{S0+3}")
    k(f"v_dot2_f32_bf16 v{S1+2}, v{QA}, v{QA}, 0")
    rowred(k, "v_max_f32", S1)
    for b in (QA + 1, QA + 2, QA + 3, QB, QB + 1):
        k(f"v_dot2_f32_bf16 v{S1+2}, v{b}, v{b}, v{S1+2}")
    k(f"v_mov_b32 v{S1+1}, v{S1}")
    k.nop(3)
    k(f"v_mov_b32 v{S1+3}, v{S1+2}")
    k(f"v_permlane16_swap_b32 v{S1}, v{S1+1}")
    k(f"v_max_f32 v{S1}, v{S1}, v{S1+1}")
    k(f"v_permlane32_swap_b32 v{S1+2}, v{S1+3}")
    k(f"v_mov_b32 v{S1+1}, v{S1}")
    k(f"v_add_f32 v{S1+2}, v{S1+2}, v{S1+3}")
    k.nop(1)
    k(f"v_permlane32_swap_b32 v{S1}, v{S1+1}")
    k(f"v_add_f32 v{S1}, v{S1}, v{S1+1}")
    k(f"v_mul_f32 v{S1}, v{S1}, v{S1+2}")
    k(f"v_sqrt_f32 v{S1}, v{S1}")
    k.nop(1)
    k(f"v_mov_b32 v{S1+1}, {hexf(-1.001)}")
    k(f"v_fmaak_f32 v{CM}, v{S1}, v{S1+1}, {hexf(60.0)}")
    for i in range(1, 16): k(f"v_mov_b32 v{CM+i}, v{CM}")
    def rdK(t, buf):
        k(f"ds_read_b128 {r(KF1[buf])}, v{AK1} offset:{t*2560}")
        k(f"ds_read_b64 {r(KF2[buf],2)}, v{AK2} offset:{t*2560}")
    def rdV(t, buf):
        k("s_mov_b64 exec, s[40:41]")
        k(f"ds_read_b128 {r(VF[buf])}, v{AV} offset:{t*2560}")
        k(f"ds_read_b128 {r(VF[buf]+4)}, v{AV} offset:{t*2560+640}")
        k("s_mov_b64 exec, -1")
    SB = (S0, S1)
    k("s_waitcnt vmcnt(0) lgkmcnt(0)")
    k("s_barrier")
    if not (os.environ.get("ITER") or os.environ.get("FINE1")): k.stamp(2)
    rdK(0, 0); rdK(1, 1); rdV(0, 0)
    k("s_waitcnt lgkmcnt(4)")
    k(f"v_mfma_f32_32x32x16_bf16 {r(S0,16)}, {r(KF1[0])}, {r(QA)}, {r(CM,16)}")
    k(f"v_mfma_f32_32x32x16_bf16 {r(S0,16)}, {r(KF2[0])}, {r(QB)}, {r(S0,16)}")
    k.nop(8)
    def body(dma, every=5, last=False, first=False):
        left = list(dma)
        body.n0 = len(k.lines)
        def ex(reg):
            if left and ex.n % every == 1:
                srd, pre, fl = left.pop(0)
                k(pre)
                k(f"v_exp_f32 v{reg}, v{reg}")
                if fl is None: k(f"buffer_load_dwordx4 v[172:175], v1, s[{srd}:{srd+3}], s53 offen sc1")
                else: k(f"buffer_load_dwordx4 v1, s[{srd}:{srd+3}], m0 offen {fl}lds")
            else:
                k(f"v_exp_f32 v{reg}, v{reg}")
            ex.n += 1
        ex.n = 0
        for t in range(8):
            cur = SB[t & 1]; nxt = SB[(t + 1) & 1]
            def E(lo):
                for i in range(lo, lo + 4): ex(cur + i)
                for i in range(lo // 2, lo // 2 + 2): k(f"v_cvt_pk_bf16_f32 v{PP+i}, v{cur+2*i}, v{cur+2*i+1}")
            fin = last and t == 7
            if (last or first) and t in (2, 4, 6): prio(k, 3 - t // 2)
            k("s_waitcnt lgkmcnt(0)")
            if not (last and t >= 6): rdK(t + 2, t & 1)
            else: k.nop(1)
            k(f"v_mfma_f32_32x32x16_bf16 {r(OO,16)}, {r(VF[(t+1)&1]+4)}, {r(PP+4)}, {r(OO,16)}")
            E(0)
            if not fin:
                k(f"v_mfma_f32_32x32x16_bf16 {r(nxt,16)}, {r(KF1[(t+1)&1])}, {r(QA)}, {r(CM,16)}")
                rdV(t + 1, (t + 1) & 1)
            E(4)
            if not fin: k(f"v_mfma_f32_32x32x16_bf16 {r(nxt,16)}, {r(KF2[(t+1)&1])}, {r(QB)}, {r(nxt,16)}")
            if t == 7 and not last:
                k(f"v_add_u32 v{AK1}, 20480, v{AK1}")
                k(f"v_add_u32 v{AK2}, 20480, v{AK2}")
                k(f"v_add_u32 v{AV}, 20480, v{AV}")
            E(8)
            k(f"v_mfma_f32_32x32x16_bf16 {r(OO,16)}, {r(VF[t&1])}, {r(PP)}, {r(OO,16)}")
            E(12)
        assert not left
        X = os.environ.get("XP", "")
        if X:
            new = []
            for l in k.lines[body.n0:]:
                if "nopv" in X and "v_mfma" in l and l.split()[1].startswith(f"v[{OO}:"): l = "    s_nop 0"
                if "noqk2" in X and "v_mfma" in l and f"{r(QB)}" in l: l = "    s_nop 0"
                if "nolds" in X and "ds_read" in l: l = "    s_nop 0"
                if "noexp" in X and "v_exp" in l: l = l.replace("v_exp_f32", "v_mov_b32")
                if "nocvt" in X and "v_cvt_pk" in l: l = "    s_nop 0"
                if "qk8" in X and "v_mfma" in l and f"{r(QB)}" in l:
                    l = l.replace("v_mfma_f32_32x32x16_bf16", "v_mfma_f32_32x32x8bf16_1k").replace(r(QB), r(QB, 2)).replace(r(KF2[0]), r(KF2[0], 2)).replace(r(KF2[1]), r(KF2[1], 2))
                new.append(l)
            k.lines[body.n0:] = new
        if last:
            k.nop(2)
            k(f"v_mfma_f32_32x32x16_bf16 {r(OO,16)}, {r(VF[1]+4)}, {r(PP+4)}, {r(OO,16)}")
    INC = "s_add_u32 m0, m0, 0x2000"
    body([(20, INC, 'sc1 ')] * 16, first=True)
    k("s_waitcnt vmcnt(0)")
    k("s_barrier")
    k("s_mov_b32 s42, 1")
    k("s_add_u32 s39, s43, 2")
    k("s_branch k2_disp")
    k.lines.append(".p2align 6")
    k.label("k2_loop")
    body([])
    k("s_add_u32 s42, s42, 1")
    k.label("k2_disp")
    if os.environ.get("ITER"):
        for i in range(1, 7):
            k(f"s_cmp_eq_u32 s42, {i}")
            k(f"s_cbranch_scc0 k2_it{i}")
            k.stamp(i + 1)
            k.label(f"k2_it{i}")
    if not os.environ.get("NOSIDE"):
        k("s_cmp_eq_u32 s42, s43")
        k("s_cbranch_scc1 k2_sideld")
        k("s_cmp_eq_u32 s42, s39")
        k("s_cbranch_scc1 k2_side")
    k.label("k2_cont")
    prio(k, 3)
    k("s_cmp_eq_u32 s42, 1")
    k("s_cbranch_scc1 k2_loop")
    k("s_cmp_eq_u32 s42, 5")
    k("s_cbranch_scc1 " + ("k2_loop" if os.environ.get("NOBLK") else "k2_blk5"))
    prio(k, 2)
    k("s_cmp_eq_u32 s42, 2")
    k("s_cbranch_scc1 k2_loop")
    k("s_cmp_eq_u32 s42, 6")
    k("s_cbranch_scc1 " + ("k2_loop" if os.environ.get("NOBLK") else "k2_blk6"))
    prio(k, 1)
    k("s_cmp_eq_u32 s42, 3")
    k("s_cbranch_scc1 k2_loop")
    prio(k, 0)
    k("s_cmp_eq_u32 s42, 4")
    k("s_cbranch_scc1 k2_loop")
    prio(k, 3)
    k("s_sub_u32 m0, s10, 0x2000")
    k(f"s_mul_i32 s7, s{CB16}, 122880")
    k(f"s_add_u32 s7, s7, {WINF - 40960}")
    k.srd(72, 8, 9, "s7", 163840)
    k.srd(68, 8, 9, WINF, WINF_SZ)
    k("s_lshr_b32 s53, s2, 3")
    k("s_lshl_b32 s53, s53, 3")
    k("s_add_u32 s53, s53, s5")
    k("s_mul_i32 s53, s53, 7680")
    k("s_sub_u32 s53, s53, 1024")
    k("s_cmp_lg_u32 s5, " + ("99" if os.environ.get("NOBLK") else "0"))
    k("s_cbranch_scc1 k2_fsok")
    k("s_mov_b32 s38, 0")
    k.label("k2_fschk")
    k("s_waitcnt vmcnt(0)")
    k("v_min3_u32 v168, v168, v169, v170")
    k("v_min_u32 v168, v168, v171")
    k("v_cmp_ne_u32 vcc, 0, v168")
    k("s_cmp_eq_u64 vcc, -1")
    k("s_cbranch_scc1 k2_fsok")
    k("s_sleep 1")
    k(f"buffer_load_dwordx4 v[168:171], v1, s[16:19], s37 offen sc1")
    k("s_add_u32 s38, s38, 1")
    k(f"s_cmp_lt_u32 s38, {SPIN}")
    k("s_cbranch_scc1 k2_fschk")
    k.label("k2_fsok")
    k("s_barrier")
    body([(72, 's_add_u32 m0, s10, 102400', 'sc1 ')] + [(72, INC, 'sc1 ')] * 4 + [(68, 's_add_u32 s53, s53, 1024', None)] * (8 if PF7 else 0), every=4 if PF7 else 7, last=True)
    if os.environ.get("ITER"):
        k.endpgm(1)
    if not os.environ.get("FINE1"): k.stamp(3)
    k(f"v_mov_b32 v15, {hexf(2.0**-100)}")
    k.nop(11)
    k(f"v_cmp_nge_f32 vcc, v{OO+12}, v15")
    k.nop(5)
    k("s_cbranch_vccnz k2_slow")
    k.label("k2_epi")
    k(f"v_rcp_f32 v{S0}, v{OO+12}")
    k(f"s_mul_i32 s7, s{RB}, 81920")
    k("s_and_b32 s10, s6, 1")
    k("s_lshl_b32 s10, s10, 11")
    k("s_add_u32 s10, s7, s10")
    k(f"v_lshrrev_b32 v{S0+3}, 4, v2")
    k(f"v_lshlrev_b32 v{S0+3}, 10, v{S0+3}")
    k(f"v_and_b32 v{S0+2}, 15, v2")
    k(f"v_lshl_add_u32 v{S0+3}, v{S0+2}, 4, v{S0+3}")
    k("s_mul_i32 s11, s4, 20")
    k(f"v_lshl_add_u32 v{S0+4}, v3, 2, s11")
    for i in range(6):
        k(f"v_pk_mul_f32 {r(OO+2*i,2)}, {r(OO+2*i,2)}, {r(S0,2)} op_sel_hi:[1,0]")
    for i in range(6):
        k(f"v_cvt_pk_bf16_f32 v{PP+i}, v{OO+2*i}, v{OO+2*i+1}")
    for i in range(3):
        c = S0 + 8 + 4 * i
        k(f"v_add_u32 v{c}, {8*i}, v{S0+4}")
        k(f"v_lshrrev_b32 v{c+1}, 5, v{c}")
        k(f"v_lshl_add_u32 v{c+1}, v{c+1}, 12, v{S0+3}")
        k(f"v_bfe_u32 v{c+2}, v{c}, 3, 2")
        k(f"v_lshl_add_u32 v{c+1}, v{c+2}, 8, v{c+1}")
        k(f"v_and_b32 v{c+2}, 4, v{c}")
        k(f"v_lshl_add_u32 v{c+1}, v{c+2}, 1, v{c+1}")
        if i == 2:
            k(f"v_lshl_add_u32 v{c+1}, v3, 30, v{c+1}")
        k(f"buffer_store_dwordx2 {r(PP+2*i,2)}, v{c+1}, s[12:15], s10 offen sc1")
    k(f"s_lshl_b32 s36, s{RB}, 10")
    k(f"s_add_u32 s36, s36, {F2 - FL}")
    k(f"s_lshl_b32 s37, s{CB8}, 7")
    k("s_add_u32 s37, s37, s36")
    k("s_load_dwordx2 s[44:45], s[0:1], 64")
    k("s_load_dwordx2 s[46:47], s[0:1], 96")
    k("s_cmp_ge_u32 s5, 4")
    k("s_cbranch_scc1 k2_loader")
    XR_, GA_R, ACT, A0, WB = 120, 132, 16, 96, (152, 172, 192)
    k("s_waitcnt vmcnt(0) lgkmcnt(0)")
    k("s_barrier")
    setflag(k, 16, "s37", "k2_f2done")
    if not (os.environ.get("FINE1") or os.environ.get("FINE2")): k.stamp(4)
    k("v_bfe_u32 v3, v0, 4, 2")
    k("v_and_b32 v5, 15, v0")
    k(f"s_lshl_b32 s6, s{RB}, 2")
    k("s_add_u32 s6, s6, s5")
    x1_addr(k, 6, CB8, 60, 6, 7)
    k("s_lshl_b32 s10, s5, 10")
    k("s_add_u32 s7, s7, s10")
    k.srd(52, 8, 9, X1, ACT_SZ)
    k.srd(56, 8, 9, SP2, SP2_SZ)
    def w3():
        poll(k, "k2_p2", 16, "s36", 8, 10, 11)
        if not (os.environ.get("FINE1") or os.environ.get("FINE2")): k.stamp(5)
    gemm80_resident(k, 20, list(range(8, 20)) + list(range(8)), ACT, A0, WB, 12, 7, lambda ks: ks * 5120,
                    w3, CB8, bars={9: 1, 12: 1})
    if os.environ.get("FINE"): k.stamp(2)
    k.nop(5)
    resid(k, A0, XR_, GA_R, WB[0])
    k("v_and_b32 v7, 1, v3")
    k("v_mul_u32_u24 v7, 4088, v7")
    k("v_add_u32 v7, v7, v6")
    for i in range(10):
        k(f"v_lshlrev_b32 v{A0+2*i}, 16, v{XR_+i}")
        k(f"v_and_b32 v{A0+2*i+1}, 0xffff0000, v{XR_+i}")
    for i in range(10): k(f"v_mov_b32 v{232+i}, v{XR_+i}")
    for p in range(2):
        k(f"v_permlane16_swap_b32 v{XR_+4*p}, v{XR_+4*p+2}")
        k(f"v_permlane16_swap_b32 v{XR_+4*p+1}, v{XR_+4*p+3}")
        k(f"buffer_store_dwordx4 {r(XR_+4*p)}, v7, s[52:55], s{60+2*p} offen sc1")
    k(f"buffer_store_dwordx2 {r(XR_+8,2)}, v6, s[52:55], s64 offen sc1")
    k(f"v_pk_add_f32 v[10:11], {r(A0,2)}, {r(A0+2,2)}")
    k(f"v_pk_mul_f32 v[12:13], {r(A0,2)}, {r(A0,2)}")
    for i in range(1, 10):
        if i > 1: k(f"v_pk_add_f32 v[10:11], v[10:11], {r(A0+2*i,2)}")
        k(f"v_pk_fma_f32 v[12:13], {r(A0+2*i,2)}, {r(A0+2*i,2)}, v[12:13]")
    k("v_add_f32 v10, v10, v11")
    k("v_add_f32 v12, v12, v13")
    k(f"s_lshl_b32 s36, s{RB}, 3")
    k(f"s_add_u32 s36, s36, s{CB8}")
    k("v_lshlrev_b32 v7, 3, v5")
    k("v_permlane16_swap_b32 v10, v12")
    k("v_add_f32 v10, v10, v12")
    k("v_mov_b32 v12, v10")
    k("v_and_b32 v8, 1, v3")
    k("v_lshl_add_u32 v7, v8, 2, v7")
    k("v_permlane32_swap_b32 v10, v12")
    k("v_add_f32 v10, v10, v12")
    k("v_lshrrev_b32 v8, 1, v3")
    k("v_lshl_add_u32 v7, v8, 30, v7")
    k("s_lshl_b32 s36, s36, 9")
    k("s_lshl_b32 s37, s5, 7")
    k("s_add_u32 s36, s36, s37")
    k("buffer_store_dword v10, v7, s[56:59], s36 offen sc1")
    k(f"s_lshl_b32 s36, s{RB128}, 11")
    k(f"s_add_u32 s36, s36, {F3 - FL}")
    k(f"s_lshl_b32 s37, s{CB16}, 7")
    k("s_add_u32 s37, s37, s36")
    if os.environ.get("FINE"): k.stamp(3)
    k("s_waitcnt vmcnt(0)")
    k("s_barrier")
    setflag(k, 16, "s37", "k2_f3done", 11)
    if os.environ.get("FINE"): k.stamp(4)
    ACT, A0, WB, ST = 16, 80, 128, 152
    NR = 16; AH = 12
    k("v_bfe_u32 v3, v0, 5, 1")
    k(f"s_lshl_b32 s6, s{RB128}, 2")
    k("s_add_u32 s6, s6, s5")
    k(f"s_mul_i32 s7, s{RB128}, 163840")
    k("s_add_u32 s7, s7, s10")
    k("s_lshl_b32 s11, s6, 11")
    k("s_and_b32 s37, s5, 1")
    k("s_mul_i32 s37, s37, 1792")
    k("s_sub_u32 s11, s11, s37")
    k("v_lshlrev_b32 v4, 3, v2")
    k("v_lshl_add_u32 v6, v3, 11, v4")
    k("v_add_u32 v7, 40960, v1")
    k("v_add_u32 v14, 102400, v1")
    k(f"v_mov_b32 v12, {hexf(GA_)}")
    k(f"v_mov_b32 v13, {hexf(GB_)}")
    order = list(range(20, 40)) + list(range(20))
    def ld(i):
        k(f"s_add_u32 s38, s7, {order[i]*4096}")
        k(f"buffer_load_dwordx4 {r(ACT+4*(i%NR))}, v1, s[52:55], s38 offen sc1")
    def rd(i):
        ks = order[i]; b = WB + 12 * (i & 1)
        a, base = ("v7", 0) if ks < 20 else ("v14", 61440)
        for j in range(3): k(f"ds_read_b128 {r(b+4*j)}, {a} offset:{ks*3072 + j*1024 - base}")
    rd(0)
    k(f"s_mul_i32 s37, s{RB128}, 163840")
    k(f"s_mul_i32 s39, s{CB16}, 10240")
    k("s_add_u32 s37, s37, s39")
    k("s_mul_i32 s39, s5, 2560")
    k("s_add_u32 s37, s37, s39")
    poll(k, "k2_p3", 16, "s36", 16, 10, 164)
    if not os.environ.get("FINE1") and not os.environ.get("FINE3"): k.stamp(6)
    for i in range(4): k(f"buffer_load_dwordx2 {r(ST+2*i,2)}, v6, s[56:59], s11 offen offset:{i*512} sc1")
    ld(0); ld(1)
    if TOUCH:
        for i in range(3): k(f"buffer_load_dwordx4 {r(160)}, v1, s[52:55], s37 offen offset:{min(i*1024, 1536)} sc1")
    for i in range(2, AH): ld(i)
    k(f"s_cmp_eq_u32 s{VV}, 0")
    k("s_cbranch_scc0 k2_p4B")
    LC1, LC2, LTAB = 0, 1024, 2048
    def rowtab(S, n, bias_s, bias_q):
        k(f"v_mov_b32 v{S+2}, v{S}")
        k(f"v_mov_b32 v{S+3}, v{S+1}")
        k("s_lshl_b32 s36, s5, 8")
        k(f"s_add_u32 s36, s36, {LTAB}")
        k(f"v_permlane32_swap_b32 v{S}, v{S+2}")
        k(f"v_permlane32_swap_b32 v{S+1}, v{S+3}")
        k(f"v_pk_add_f32 {r(S,2)}, {r(S,2)}, {r(S+2,2)}")
        k("v_lshl_add_u32 v10, v2, 2, s36")
        k(f"v_mov_b32 v{S+2}, {hexf(1.0/n)}")
        k(f"v_fmaak_f32 v8, v{S}, v{S+2}, {hexf(-bias_s/n)}")
        k(f"v_fmaak_f32 v9, v{S+1}, v{S+2}, {hexf(1e-5 - bias_q/n)}")
        k("v_fma_f32 v9, -v8, v8, v9")
        k("v_rsq_f32 v11, v9")
        k.nop(1)
        k("v_mul_f32 v9, v8, v11")
        k("v_sub_f32 v9, 0, v9")
        k("v_mov_b32 v8, v11")
        k("ds_write_b32 v10, v8")
        k("ds_write_b32 v10, v9 offset:128")
    for var in range(2):
        if var == 1: k.label("k2_p4B")
        types = ("z2", "z2", "z1") if var == 0 else ("z2", "z1", "z1")
        for i in range(40):
            b = WB + 12 * (i & 1); a = ACT + 4 * (i % NR)
            if i == 12: k("s_barrier")
            k(f"s_waitcnt vmcnt({min(AH-1, 39 - i)}) lgkmcnt(0)")
            if os.environ.get("FINE4") and i in (0, 6, 13, 26): k.stamp({0: 2, 6: 3, 13: 4, 26: 5}[i])
            for j in range(3):
                c = "0" if i == 0 else r(A0 + 16 * j, 16)
                x, y = (r(a), r(b + 4 * j)) if types[j] == "z2" else (r(b + 4 * j), r(a))
                k(f"v_mfma_f32_32x32x16_bf16 {r(A0+16*j,16)}, {x}, {y}, {c}")
                if j == 0 and i < 39: rd(i + 1)
                if j == 1 and i + AH < 40: ld(i + AH)
            if i == 21:
                k(f"v_pk_add_f32 {r(ST,2)}, {r(ST,2)}, {r(ST+2,2)}")
                k(f"v_pk_add_f32 {r(ST+4,2)}, {r(ST+4,2)}, {r(ST+6,2)}")
                k(f"v_pk_add_f32 {r(ST,2)}, {r(ST,2)}, {r(ST+4,2)}")
                rowtab(ST, 640, 0.0, 0.0)
                k("s_waitcnt lgkmcnt(0)")
        k("s_barrier")
        if not os.environ.get("FINE1") and not os.environ.get("FINE5"): k.stamp(7)
        RR, NN, CC, SS, QQ, T, CV = 16, 32, 48, 128, 144, 56, 160
        nz2 = types.count("z2")
        k("v_lshl_add_u32 v10, v3, 4, s36")
        k("v_lshlrev_b32 v11, 2, v2")
        def rd_tab():
            for a in range(4):
                k(f"ds_read_b128 {r(RR+4*a)}, v10 offset:{a*32}")
                k(f"ds_read_b128 {r(NN+4*a)}, v10 offset:{128 + a*32}")
        rd_tab()
        for n in range(nz2):
            k(f"ds_read_b32 v{CC+2*n}, v11 offset:{LC1 + n*128}")
            k(f"ds_read_b32 v{CC+2*n+1}, v11 offset:{LC2 + n*128}")
        k.srd(60, 8, 9, STP, STP_SZ)
        k.srd(64, 8, 9, Z1, Z_SZ)
        k.srd(68, 8, 9, Z2, Z_SZ)
        k("v_lshlrev_b32 v15, 4, v3")
        def rd_c(n):
            for a in range(4):
                k(f"ds_read_b128 {r(CV+4*a)}, v15 offset:{LC1 + n*128 + a*32}")
                k(f"ds_read_b128 {r(CV+16+4*a)}, v15 offset:{LC2 + n*128 + a*32}")
        k("s_waitcnt lgkmcnt(0)")
        rd_c(nz2)
        for n in range(nz2):
            X = A0 + 16 * n; c = r(CC + 2 * n, 2)
            for i in range(8): k(f"v_pk_fma_f32 {r(T+2*i,2)}, {r(NN+2*i,2)}, {c}, {c} op_sel:[0,0,1] op_sel_hi:[1,0,1]")
            for i in range(8): k(f"v_pk_fma_f32 {r(X+2*i,2)}, {r(X+2*i,2)}, {r(RR+2*i,2)}, {r(T+2*i,2)}")
            gelu(k, X, T, 8)
            for i in range(8):
                if n == 0: k(f"v_pk_mul_f32 {r(QQ+2*i,2)}, {r(X+2*i,2)}, {r(X+2*i,2)}")
                else: k(f"v_pk_fma_f32 {r(QQ+2*i,2)}, {r(X+2*i,2)}, {r(X+2*i,2)}, {r(QQ+2*i,2)}")
        for i in range(8):
            if nz2 == 2: k(f"v_pk_add_f32 {r(SS+2*i,2)}, {r(A0+2*i,2)}, {r(A0+16+2*i,2)}")
            else: k(f"v_pk_mul_f32 {r(SS+2*i,2)}, {r(A0+2*i,2)}, 1.0 op_sel_hi:[1,0]")
        k("v_and_b32 v4, 3, v0")
        k("v_bfe_u32 v5, v0, 2, 2")
        for i in range(16): k(f"v_permlane16_swap_b32 v{SS+i}, v{QQ+i}")
        for i in range(16): k(f"v_add_f32 v{SS+i}, v{SS+i}, v{QQ+i}")
        for j in range(8): k(f"v_add_f32_dpp v{SS+j}, v{SS+j}, v{SS+j} row_ror:8 row_mask:0xf bank_mask:0x3")
        for j in range(8): k(f"v_add_f32_dpp v{SS+j}, v{SS+8+j}, v{SS+8+j} row_ror:8 row_mask:0xf bank_mask:0xc")
        for j in range(4): k(f"v_add_f32_dpp v{SS+j}, v{SS+j}, v{SS+j} row_half_mirror row_mask:0xf bank_mask:0x5")
        for j in range(4): k(f"v_add_f32_dpp v{SS+j}, v{SS+4+j}, v{SS+4+j} row_half_mirror row_mask:0xf bank_mask:0xa")
        for j in range(4): k(f"v_add_f32_dpp v{SS+j}, v{SS+j}, v{SS+j} quad_perm:[2,3,0,1] row_mask:0xf bank_mask:0xf")
        for j in range(4): k(f"v_add_f32_dpp v{SS+j}, v{SS+j}, v{SS+j} quad_perm:[1,0,3,2] row_mask:0xf bank_mask:0xf")
        k("v_lshl_add_u32 v4, v5, 3, v4")
        k("v_lshl_add_u32 v4, v3, 2, v4")
        k("v_lshlrev_b32 v4, 3, v4")
        k("v_bfe_u32 v5, v0, 4, 1")
        k("v_lshl_add_u32 v4, v5, 2, v4")
        k("v_cvt_f32_u32 v5, v5")
        k(f"v_fmaak_f32 v5, {hexf(-15.0)}, v5, {hexf(16.0)}" if False else f"v_mul_f32 v5, {hexf(-15.0)}, v5")
        k(f"v_add_f32 v5, {hexf(16.0)}, v5")
        for j in range(1, 4):
            m = hex(0x11111111 << j)
            k(f"s_mov_b32 s40, {m}")
            k(f"s_mov_b32 s41, {m}")
            k(f"v_cndmask_b32 v{SS}, v{SS}, v{SS+j}, s[40:41]")
        k(f"s_lshl_b32 s37, s{RB128}, 14")
        k("s_lshl_b32 s38, s5, 8")
        k("s_add_u32 s37, s37, s38")
        k(f"s_lshl_b32 s38, s{CB16}, 10")
        k("s_add_u32 s38, s38, s37")
        k(f"v_add_f32 v{SS}, v{SS}, v5")
        k(f"buffer_store_dword v{SS}, v4, s[60:63], s38 offen sc1")
        k("s_mul_i32 s39, s6, 24")
        k(f"s_mul_i32 s38, s{CB8}, 3")
        k("s_add_u32 s39, s39, s38")
        k(f"s_add_u32 s39, s39, {var}")
        k("s_lshl_b32 s39, s39, 11")
        for n in range(nz2, 3):
            X = A0 + 16 * n
            k("s_waitcnt lgkmcnt(0)")
            for i in range(8):
                k(f"v_pk_fma_f32 {r(T+2*i,2)}, v[8:9], {r(CV+2*i,2)}, {r(CV+16+2*i,2)} op_sel:[1,0,0] op_sel_hi:[1,1,1]")
            if n < 2: rd_c(n + 1)
            for i in range(8):
                k(f"v_pk_fma_f32 {r(X+2*i,2)}, {r(X+2*i,2)}, v[8:9], {r(T+2*i,2)} op_sel_hi:[1,0,1]")
            gelu(k, X, T, 8)
            P = SS + 8 * (n - nz2)
            for i in range(8): k(f"v_cvt_pk_bf16_f32 v{P+i}, v{X+2*i}, v{X+2*i+1}")
            if n < 2:
                for ap in range(2):
                    k(f"buffer_store_dwordx4 {r(P+4*ap)}, v1, s[64:67], s39 offen offset:{(n-nz2)*2048 + ap*1024} {Z_SC}")
        G = CV
        k("v_lshlrev_b32 v4, 3, v2")
        k("v_lshl_add_u32 v4, v3, 13, v4")
        k("s_add_u32 s38, s37, 4096")
        k("s_mov_b32 s42, 0")
        lab = f"k2_st{var}"
        k.label(lab)
        for i in range(8):
            k(f"buffer_load_dwordx2 {r(G+2*i,2)}, v4, s[60:63], {'s37' if i < 4 else 's38'} offen offset:{(i&3)*1024} sc1")
        k("s_cmp_lg_u32 s42, 0")
        k(f"s_cbranch_scc1 {lab}_w0")
        for ap in range(2):
            k(f"buffer_store_dwordx4 {r(P+4*ap)}, v1, s[64:67], s39 offen offset:{(2-nz2)*2048 + ap*1024} {Z_SC}")
        k("s_waitcnt vmcnt(2)")
        k(f"s_branch {lab}_w1")
        k.label(lab + "_w0")
        k("s_waitcnt vmcnt(0)")
        k.label(lab + "_w1")
        k("s_add_u32 s42, s42, 1")
        k(f"v_min3_u32 v5, v{G}, v{G+1}, v{G+2}")
        for i in range(6): k(f"v_min3_u32 v5, v5, v{G+3+2*i}, v{G+4+2*i}")
        k(f"v_min_u32 v5, v5, v{G+15}")
        k("v_cmp_ne_u32 vcc, 0, v5")
        k("s_cmp_eq_u64 vcc, -1")
        k(f"s_cbranch_scc1 {lab}_ok")
        k("s_sleep 1")
        k(f"s_cmp_lt_u32 s42, {SPIN}")
        k(f"s_cbranch_scc1 {lab}")
        k.label(lab + "_ok")
        for a, b_ in ((0, 2), (4, 6), (8, 10), (12, 14), (0, 4), (8, 12), (0, 8)):
            k(f"v_pk_add_f32 {r(G+a,2)}, {r(G+a,2)}, {r(G+b_,2)}")
        rowtab(G, 768, 256.0, 16.0)
        k("v_lshl_add_u32 v10, v3, 4, s36")
        k(f"s_lshl_b32 s37, s{CB8}, 7")
        k("s_lshl_b32 s38, s6, 1")
        k("s_add_u32 s37, s37, s38")
        k("s_mul_i32 s37, s37, 3072")
        k(f"s_add_u32 s37, s37, {2048*var}")
        k("s_add_u32 s38, s37, 3072")
        k("s_waitcnt lgkmcnt(0)")
        rd_tab()
        k("s_waitcnt lgkmcnt(0)")
        for n in range(nz2):
            X = A0 + 16 * n; P = T + 8 * n
            for i in range(8): k(f"v_pk_fma_f32 {r(X+2*i,2)}, {r(X+2*i,2)}, {r(RR+2*i,2)}, {r(NN+2*i,2)}")
            for i in range(8): k(f"v_cvt_pk_bf16_f32 v{P+i}, v{X+2*i}, v{X+2*i+1}")
            k.nop(1)
            for h in range(2):
                k(f"v_permlane32_swap_b32 v{P+4*h}, v{P+4*h+2}")
                k(f"v_permlane32_swap_b32 v{P+4*h+1}, v{P+4*h+3}")
                k(f"buffer_store_dwordx4 {r(P+4*h)}, v1, s[68:71], {'s37' if h == 0 else 's38'} offen offset:{n*1024} {Z_SC}")
        if var == 0: k("s_branch k2_zdone")
    k.label("k2_zdone")
    k(f"s_lshl_b32 s37, s{RB128}, 4")
    k(f"s_add_u32 s37, s37, s{CB16}")
    k("s_lshl_b32 s37, s37, 7")
    k(f"s_add_u32 s37, s37, {F4 - FL}")
    k("s_waitcnt vmcnt(0)")
    k("s_barrier")
    setflag(k, 16, "s37", "k2_f4done")
    if os.environ.get("FINE5"): k.stamp(7)
    from k56 import gen_k56
    gen_k56(k, RB, CB8, W3)
    k.label("k2_loader")
    k.srd(56, 8, 9, C1, 12288)
    k(f"s_lshl_b32 s10, s{W3}, 10")
    k("s_waitcnt vmcnt(0) lgkmcnt(0)")
    k("s_barrier")
    if not (os.environ.get("FINE1") or os.environ.get("FINE2")): k.stamp(4)
    def win(base, n):
        k(f"s_add_u32 m0, s10, {base}")
        for i in range(n):
            k.nop(1)
            k("buffer_load_dwordx4 v1, s[72:75], m0 offen sc1 lds")
            if i < n - 1: k("s_add_u32 m0, m0, 4096")
    k("s_barrier")
    win(143360, 5)
    k("s_barrier")
    win(40960, 15)
    if not (os.environ.get("FINE1") or os.environ.get("FINE2")): k.stamp(5)
    k(f"s_mul_i32 s11, s{CB16}, 384")
    k("s_and_b32 s36, s5, 1")
    k("s_mul_i32 s37, s36, 6144")
    k("s_add_u32 s11, s11, s37")
    k("s_lshl_b32 m0, s36, 10")
    k("s_barrier")
    k("buffer_load_dwordx4 v1, s[56:59], s11 offen sc1 lds")
    k("s_waitcnt vmcnt(0)")
    if not (os.environ.get("FINE1") or os.environ.get("FINE2")): k.stamp(6)
    k("s_barrier")
    k("s_barrier")
    k("s_branch k5_loader")
    k.label("k2_end")
    k("s_endpgm")
    k.label("k2_blk5")
    k("s_lshl_b32 s37, s2, 2")
    k(f"s_add_u32 s37, s37, {FS - FL}")
    k("s_waitcnt vmcnt(0)")
    k("s_barrier")
    setflag(k, 16, "s37", "k2_fsdone", 172)
    k("s_cmp_ge_u32 s5, 4")
    k("s_cbranch_scc1 k2_loop")
    def wo_burst(first, n):
        k(f"s_lshl_b32 m0, s{W3}, 10")
        k(f"s_add_u32 m0, m0, {first}")
        for i in range(n):
            k.nop(1)
            k("buffer_load_dwordx4 v1, s[32:35], m0 offen sc1 lds")
            if i < n - 1: k("s_add_u32 m0, m0, 4096")
    wo_burst(0, 13)
    k("s_branch k2_loop")
    k.label("k2_blk6")
    k.srd(68, 8, 9, WINF, WINF_SZ)
    k("s_mul_i32 s53, s53, 7680")
    k("s_add_u32 s54, s53, 4096")
    for i in range(8 if PF_WIN else 0): k(f"buffer_load_dwordx4 v[172:175], v1, s[68:71], {'s53' if i < 4 else 's54'} offen offset:{(i&3)*1024} sc1")
    k("s_cmp_lt_u32 s5, 4")
    k("s_cbranch_scc1 k2_blk6a")
    wo_burst(53248, 12)
    k("s_branch k2_loop")
    k.label("k2_blk6a")
    k("v_bfe_u32 v176, v0, 4, 2")
    k("v_and_b32 v177, 15, v0")
    k(f"s_lshl_b32 s59, s{RB}, 2")
    k("s_add_u32 s59, s59, s5")
    k("v_mul_u32_u24 v178, 1280, v177")
    k("v_lshl_add_u32 v178, v176, 3, v178")
    k("s_mul_i32 s60, s59, 20480")
    k(f"s_mul_i32 s61, s{CB8}, 160")
    k("s_add_u32 s60, s60, s61")
    k("v_lshlrev_b32 v179, 4, v176")
    k(f"s_mul_i32 s38, s{CB8}, 320")
    k.srd(52, 44, 45, 0, ACT_SZ)
    k.srd(56, 8, 9, MOD + 5120, 2560)
    for j in range(5): k(f"buffer_load_dwordx2 {r(120+2*j,2)}, v178, s[52:55], s60 offen offset:{j*32}")
    for j in range(5): k(f"buffer_load_dwordx4 {r(132+4*j)}, v179, s[56:59], s38 offen offset:{j*64} sc1")
    k("s_cmp_lg_u32 s5, 0")
    k("s_cbranch_scc1 k2_loop")
    k(f"s_movk_i32 s37, {hex(FS - FL)}")
    k(f"buffer_load_dwordx4 v[168:171], v1, s[16:19], s37 offen sc1")
    k("s_branch k2_loop")
    k.label("k2_sideld")
    k("s_lshl_b32 s52, s2, 3")
    k("s_add_u32 s52, s52, s5")
    k("s_lshr_b32 s53, s2, 3")
    k("s_lshl_b32 s53, s53, 3")
    k("s_add_u32 s53, s53, s5")
    k.srd(56, 48, 49, 0, 640 * 3072)
    k.srd(64, 8, 9, MOD + 7680, 5120)
    k("s_mul_i32 s62, s52, 1639")
    k("s_lshr_b32 s62, s62, 16")
    k("s_mul_i32 s63, s62, 40")
    k("s_sub_u32 s63, s52, s63")
    k("s_mul_i32 s68, s63, 49152")
    k("s_lshl_b32 s69, s62, 6")
    k("s_add_u32 s68, s68, s69")
    k("s_cmp_lt_u32 s52, 1920")
    k("s_cselect_b32 s70, 0, 0x40000000")
    k("s_add_u32 s68, s68, s70")
    k("v_mul_u32_u24 v15, 24576, v3")
    k("v_lshl_add_u32 v15, v2, 1, v15")
    for j in range(8):
        k(f"buffer_load_ushort v{136+j}, v15, s[56:59], s68 offen")
        if j < 7: k("s_add_u32 s68, s68, 3072")
    k("s_lshl_b32 s68, s63, 6")
    k("v_lshlrev_b32 v15, 5, v3")
    k(f"buffer_load_dwordx4 {r(144)}, v15, s[64:67], s68 offen sc1")
    k(f"buffer_load_dwordx4 {r(148)}, v15, s[64:67], s68 offen offset:16 sc1")
    k(f"buffer_load_dwordx4 {r(152)}, v15, s[64:67], s68 offen offset:2560 sc1")
    k(f"buffer_load_dwordx4 {r(156)}, v15, s[64:67], s68 offen offset:2576 sc1")
    k("s_cmp_ge_u32 s62, 24")
    k("s_cselect_b32 s68, 24, 0")
    k("s_cselect_b32 s71, 0x310, 0")
    k("s_cselect_b32 s72, 0, 0x542")
    k("s_or_b32 s71, s71, s72")
    k("s_sub_u32 s62, s62, s68")
    k("s_mul_i32 s68, s62, 86")
    k("s_lshr_b32 s68, s68, 8")
    k("s_mul_i32 s69, s68, 3")
    k("s_sub_u32 s69, s62, s69")
    k("s_lshl_b32 s69, s69, 2")
    k("s_lshr_b32 s71, s71, s69")
    k("s_and_b32 s71, s71, 15")
    k("s_mul_i32 s62, s68, 6")
    k("s_add_u32 s62, s62, s71")
    k("s_mul_i32 s68, s62, 86")
    k("s_lshr_b32 s68, s68, 8")
    k("s_mul_i32 s69, s68, 3")
    k("s_sub_u32 s69, s62, s69")
    k("s_mul_i32 s68, s68, 40")
    k("s_add_u32 s68, s68, s63")
    k("s_mul_i32 s68, s68, 3")
    k("s_add_u32 s68, s68, s69")
    k("s_lshl_b32 s68, s68, 10")
    k("s_add_u32 s63, s68, s70")
    k("s_lshl_b32 s62, s62, 7")
    k("s_add_u32 s62, s62, s70")
    k.srd(56, 46, 47, 0, 983040)
    k("s_mul_i32 s69, s52, 2731")
    k("s_lshr_b32 s69, s69, 16")
    k("s_mul_i32 s73, s69, 24")
    k("s_sub_u32 s68, s52, s73")
    k("s_cmp_lt_u32 s52, 960")
    k("s_cselect_b32 s70, 0, 0x40000000")
    k("s_mul_i32 s73, s68, 40960")
    k("s_lshl_b32 s74, s69, 5")
    k("s_add_u32 s73, s73, s74")
    k("s_add_u32 s73, s73, s70")
    k("s_add_u32 s74, s73, 5120")
    k("v_bfe_u32 v15, v0, 4, 2")
    k("v_mul_u32_u24 v15, 10240, v15")
    k("v_and_b32 v160, 15, v0")
    k("v_lshl_add_u32 v15, v160, 1, v15")
    for j in range(8):
        k(f"buffer_load_ushort v{160+j}, v15, s[56:59], {'s73' if j < 4 else 's74'} offen offset:{(j&3)*1280}")
    k("s_mul_i32 s73, s69, 52")
    k("s_lshr_b32 s73, s73, 8")
    k("s_mul_i32 s74, s73, 5")
    k("s_sub_u32 s74, s69, s74")
    k("s_mul_i32 s73, s73, 24")
    k("s_add_u32 s73, s73, s68")
    k("s_mul_i32 s73, s73, 5")
    k("s_add_u32 s73, s73, s74")
    k("s_lshl_b32 s73, s73, 10")
    k("s_add_u32 s60, s73, s70")
    k.srd(56, 50, 51, 0, WSPF_SZ)
    k("s_lshl_b32 s54, s3, 3")
    k("s_lshr_b32 s55, s53, 5")
    k("s_add_u32 s54, s54, s55")
    k("s_and_b32 s55, s53, 31")
    k("s_lshl_b32 s68, s54, 17")
    k("s_lshl_b32 s69, s55, 7")
    k("s_add_u32 s68, s68, s69")
    k("s_lshr_b32 s61, s54, 1")
    k("s_lshl_b32 s61, s61, 18")
    k("s_lshl_b32 s69, s55, 13")
    k("s_add_u32 s61, s61, s69")
    k("s_and_b32 s69, s54, 1")
    k("s_lshl_b32 s69, s69, 10")
    k("s_add_u32 s61, s61, s69")
    k("v_lshlrev_b32 v15, 12, v2")
    k("v_lshl_add_u32 v15, v3, 4, v15")
    for q in range(4):
        k(f"buffer_load_dwordx4 {r(120+4*q)}, v15, s[56:59], s68 offen offset:{q*32}")
    k("s_branch k2_cont")
    k.label("k2_side")
    k.srd(64, 8, 9, WSPF, WSPF_SZ)
    k.srd(68, 8, 9, WINF, WINF_SZ)
    k.srd(72, 8, 9, C1, 12288)
    k.srd(56, 8, 9, WOUTF, WOUTF_SZ)
    k("s_add_u32 s54, s61, 4096")
    k("s_waitcnt vmcnt(0)")
    for j in range(4):
        k(f"v_lshl_or_b32 v{160+j}, v{161+2*j}, 16, v{160+2*j}")
    k(f"buffer_store_dwordx4 {r(160)}, v1, s[56:59], s60 offen {SIDE_SC}")
    for j in range(8): k(f"v_lshlrev_b32 v{136+j}, 16, v{136+j}")
    k("v_mul_f32 v165, v136, v144")
    for j in range(1, 8): k(f"v_fmac_f32 v165, v{136+j}, v{144+j}")
    for j in range(8): k(f"v_mul_f32 v{136+j}, v{136+j}, v{152+j}")
    for j in range(4): k(f"v_cvt_pk_bf16_f32 v{144+j}, v{136+2*j}, v{137+2*j}")
    k(f"buffer_store_dwordx4 {r(144)}, v1, s[68:71], s63 offen {SIDE_SC}")
    for j in range(4):
        k(f"v_lshlrev_b32 v{136+2*j}, 16, v{144+j}")
        k(f"v_and_b32 v{137+2*j}, 0xffff0000, v{144+j}")
    for a, b in ((136, 137), (138, 139), (140, 141), (142, 143), (136, 138), (140, 142)):
        k(f"v_add_f32 v{a}, v{a}, v{b}")
    k("v_add_f32 v164, v136, v140")
    k("v_mul_u32_u24 v166, 6144, v3")
    k("v_lshl_add_u32 v166, v2, 2, v166")
    k("v_permlane32_swap_b32 v164, v165")
    k("v_add_f32 v164, v164, v165")
    k("buffer_atomic_add_f32 v164, v166, s[72:75], s62 offen")
    for q in range(4 if not os.environ.get("NOWSP") else 0):
        k(f"buffer_store_dwordx4 {r(120+4*q)}, v1, s[64:67], {'s61' if q < 2 else 's54'} offen offset:{(q&1)*2048} {SIDE_SC}")
    k("s_branch k2_cont")
    k.label("k2_slow")
    T = S1
    k(f"v_subrev_u32 v{AK2}, 143360, v{AK2}")
    k(f"v_subrev_u32 v{AV}, 143360, v{AV}")
    k(f"v_mov_b32 v{T}, 0xff800000")
    k("s_mov_b32 s42, 0")
    def ldK():
        k(f"buffer_load_dwordx4 {r(KF1[0])}, v1, s[20:23], s42 offen sc1")
        k(f"buffer_load_dwordx2 {r(KF2[0],2)}, v{AK2}, s[20:23], s42 offen sc1")
    k.label("k2_slow1")
    ldK()
    k("s_waitcnt vmcnt(0)")
    k(f"v_mfma_f32_32x32x16_bf16 {r(S0,16)}, {r(KF1[0])}, {r(QA)}, 0")
    k(f"v_mfma_f32_32x32x16_bf16 {r(S0,16)}, {r(KF2[0])}, {r(QB)}, {r(S0,16)}")
    k.nop(12)
    for i in range(8): k(f"v_max3_f32 v{T}, v{T}, v{S0+2*i}, v{S0+2*i+1}")
    k("s_add_u32 s42, s42, 2560")
    k("s_cmp_lt_u32 s42, 163840")
    k("s_cbranch_scc1 k2_slow1")
    k(f"v_mov_b32 v{T+1}, v{T}")
    k("s_mov_b32 s42, 0")
    k.nop(1)
    k(f"v_permlane32_swap_b32 v{T}, v{T+1}")
    k(f"v_max_f32 v{T}, v{T}, v{T+1}")
    for i in range(16): k(f"v_sub_f32 v{CM+i}, 0, v{T}")
    for i in range(16): k(f"v_mov_b32 v{OO+i}, 0")
    k.label("k2_slow2")
    ldK()
    k("s_mov_b64 exec, s[40:41]")
    k(f"buffer_load_dwordx4 {r(VF[0])}, v{AV}, s[20:23], s42 offen sc1")
    k(f"buffer_load_dwordx4 {r(VF[0]+4)}, v{AV}, s[20:23], s42 offen offset:640 sc1")
    k("s_mov_b64 exec, -1")
    k("s_waitcnt vmcnt(0)")
    k(f"v_mfma_f32_32x32x16_bf16 {r(S0,16)}, {r(KF1[0])}, {r(QA)}, {r(CM,16)}")
    k(f"v_mfma_f32_32x32x16_bf16 {r(S0,16)}, {r(KF2[0])}, {r(QB)}, {r(S0,16)}")
    k.nop(12)
    for i in range(16): k(f"v_exp_f32 v{S0+i}, v{S0+i}")
    k.nop(1)
    for i in range(8): k(f"v_cvt_pk_bf16_f32 v{PP+i}, v{S0+2*i}, v{S0+2*i+1}")
    k.nop(2)
    k(f"v_mfma_f32_32x32x16_bf16 {r(OO,16)}, {r(VF[0])}, {r(PP)}, {r(OO,16)}")
    k(f"v_mfma_f32_32x32x16_bf16 {r(OO,16)}, {r(VF[0]+4)}, {r(PP+4)}, {r(OO,16)}")
    k("s_add_u32 s42, s42, 2560")
    k("s_cmp_lt_u32 s42, 163840")
    k("s_cbranch_scc1 k2_slow2")
    k.nop(12)
    k("s_branch k2_epi")
    return k
```

```python
from asmlib import Kern
from layout import *
from k0 import hexf
from k234 import poll, hint, setflag, x1_addr, gemm80_resident, resid, r
import os

SLOT = 20480; BLK = 5120
K56_LDS = 163840
A0 = 16; ZB = 64; Z1R = 96; BSP = 108
KIDX = int(os.environ.get('KIDX', '1'))
THR = int(os.environ.get('THR', '5'))
ROTW = int(os.environ.get("K5ROTW", "0"))

def gen_k56(k, RB, CB8, W3):
    k.label("k5_compute")
    k(f"s_mov_b32 s3, s{RB}")
    k(f"s_mov_b32 s4, s{CB8}")
    k("v_and_b32 v2, 31, v0")
    k("v_bfe_u32 v3, v0, 5, 1")
    k("s_and_b32 s6, s5, 1")
    k("s_lshl_b32 s34, s3, 1")
    k("s_add_u32 s34, s34, s6")
    k("s_lshr_b32 s33, s5, 1")
    k("s_mul_i32 s36, s34, 24")
    k("s_mul_i32 s37, s4, 3")
    k("s_add_u32 s36, s36, s37")
    k("s_lshl_b32 s36, s36, 1")
    k("s_add_u32 s36, s36, s33")
    k("s_lshl_b32 s36, s36, 10")
    k("s_add_u32 s37, s36, 4096")
    k("s_lshl_b32 s38, s34, 6")
    k("v_lshlrev_b32 v5, 1, v2")
    k(f"s_mul_i32 s39, s33, {2*BLK}")
    k("v_add_u32 v6, s39, v1")
    k(f"v_add_u32 v7, {2*SLOT}, v6")
    k("s_lshl_b32 s39, s6, 10")
    k("s_add_u32 s39, s39, 3072")
    k("v_add_u32 v8, s39, v6")
    k(f"v_add_u32 v9, {2*SLOT}, v8")
    for i in range(48): k(f"v_mov_b32 v{A0+i}, 0")
    k.srd(52, 8, 9, Z1, Z_SZ)
    k.srd(60, 44, 45, 0, 4096)
    def reads(s, q, par):
        sl = s & 3; o = (sl & 1) * SLOT + q * BLK; b = ZB + 16 * par
        for n in range(3): k(f"ds_read_b128 {r(b+4*n)}, {'v6' if sl < 2 else 'v7'} offset:{o + n*1024}")
        k(f"ds_read_b128 {r(b+12)}, {'v8' if sl < 2 else 'v9'} offset:{o}")
    k("s_barrier")
    k("s_barrier")
    if os.environ.get("FINE5"): k.stamp(2)
    reads(0, 0, 0)
    k(f"buffer_load_dwordx4 {r(Z1R)}, v1, s[52:55], s36 offen sc1")
    k(f"buffer_load_dwordx4 {r(Z1R+4)}, v1, s[52:55], s36 offen offset:2048 sc1")
    k(f"buffer_load_dwordx4 {r(Z1R+8)}, v1, s[52:55], s37 offen sc1")
    k(f"buffer_load_ushort v{BSP}, v5, s[60:63], s38 offen")
    k("v_bfe_u32 v204, v0, 4, 2")
    k("v_lshlrev_b32 v207, 4, v204")
    k("s_mul_i32 s41, s4, 320")
    k.srd(56, 8, 9, MOD + 12800, 2560)
    for j in range(5): k(f"buffer_load_dwordx4 {r(184+4*j)}, v207, s[56:59], s41 offen offset:{j*64} sc1")
    k("s_mov_b32 s43, 0")
    k.lines.append(".p2align 6")
    k.label("k5_loop")
    for s in range(4):
        for q in range(2):
            b = ZB + 16 * q
            k("s_waitcnt lgkmcnt(0)")
            if q == 1:
                if s == 3:
                    k("s_add_u32 s43, s43, 1")
                    k("s_cmp_eq_u32 s43, 8")
                    k("s_cbranch_scc1 k5_last")
                k("s_barrier")
            for n in range(3):
                k(f"v_mfma_f32_32x32x16_bf16 {r(A0+16*n,16)}, {r(b+4*n)}, {r(b+12)}, {r(A0+16*n,16)}")
                if n == 0:
                    if q == 1: reads(s + 1, 0, 0)
                    else: reads(s, 1, 1)
    k("s_branch k5_loop")
    k.label("k5_last")
    b = ZB + 16
    for n in range(3):
        k(f"v_mfma_f32_32x32x16_bf16 {r(A0+16*n,16)}, {r(b+4*n)}, {r(b+12)}, {r(A0+16*n,16)}")
    if os.environ.get('FINE5'): k.stamp(3)
    k("s_barrier")
    k("s_mul_i32 s36, s5, 6144")
    k("s_add_u32 s36, s36, 40960")
    k("v_add_u32 v10, s36, v1")
    k("s_xor_b32 s36, s5, 2")
    k("s_mul_i32 s36, s36, 6144")
    k("s_add_u32 s36, s36, 40960")
    k("v_add_u32 v11, s36, v1")
    k.srd(52, 8, 9, Y, Z_SZ)
    k("s_mul_i32 s7, s3, 98304")
    k("s_mul_i32 s37, s4, 12288")
    k("s_add_u32 s36, s7, s37")
    k("s_lshl_b32 s37, s6, 11")
    k("s_add_u32 s36, s36, s37")
    k("s_lshl_b32 s37, s33, 9")
    k("s_add_u32 s36, s36, s37")
    k("s_add_u32 s37, s36, 4096")
    k("s_add_u32 s38, s36, 8192")
    k("v_lshrrev_b32 v12, 4, v2")
    k("v_lshlrev_b32 v12, 10, v12")
    k("v_lshl_add_u32 v12, v3, 8, v12")
    k("v_and_b32 v13, 15, v0")
    k("v_lshl_add_u32 v12, v13, 4, v12")
    k("s_waitcnt vmcnt(0)")
    k(f"v_lshlrev_b32 v14, 16, v{BSP}")
    k("s_cmp_eq_u32 s33, 0")
    k("s_cbranch_scc0 k5_e1")
    for kh in range(2):
        if kh == 1: k.label("k5_e1")
        keep = 8 * kh; send = 8 * (1 - kh)
        for n in range(3):
            k(f"ds_write_b128 v10, {r(A0+16*n+send)} offset:{n*2048}")
            k(f"ds_write_b128 v10, {r(A0+16*n+send+4)} offset:{n*2048+1024}")
        U = ZB
        for i in range(12):
            k(f"v_lshlrev_b32 v{U+2*i}, 16, v{Z1R+i}")
            k(f"v_and_b32 v{U+2*i+1}, 0xffff0000, v{Z1R+i}")
        for n in range(3):
            for i in range(4):
                a = A0 + 16 * n + keep + 2 * i
                k(f"v_pk_add_f32 {r(a,2)}, {r(a,2)}, v[14:15] op_sel_hi:[1,0]")
        k("s_waitcnt lgkmcnt(0)")
        k("s_barrier")
        for n in range(3):
            k(f"ds_read_b128 {r(A0+16*n+send)}, v11 offset:{n*2048}")
            k(f"ds_read_b128 {r(A0+16*n+send+4)}, v11 offset:{n*2048+1024}")
        for n in range(3):
            k(f"s_waitcnt lgkmcnt({4-2*n})")
            for i in range(4):
                a = A0 + 16 * n + keep + 2 * i
                k(f"v_pk_add_f32 {r(a,2)}, {r(a,2)}, {r(A0+16*n+send+2*i,2)}")
            for i in range(4):
                a = A0 + 16 * n + keep + 2 * i
                k(f"v_pk_mul_f32 {r(a,2)}, {r(a,2)}, {r(U+8*n+2*i,2)}")
            P = Z1R + 4 * n
            for i in range(4):
                a = A0 + 16 * n + keep + 2 * i
                k(f"v_cvt_pk_bf16_f32 v{P+i}, v{a}, v{a+1}")
            k.nop(2)
            k(f"v_permlane32_swap_b32 v{P}, v{P+2}")
            k(f"v_permlane32_swap_b32 v{P+1}, v{P+3}")
            k(f"buffer_store_dwordx4 {r(P)}, v12, s[52:55], s{36+n} offen sc1")
        if kh == 0: k("s_branch k5_p6")
    k.label("k5_p6")
    ACT, A6, WB3, XR_, GB_R, AD = 16, 112, (132, 152, 212), 232, 184, 204
    WB = 132
    k("s_lshl_b32 s36, s3, 10")
    k(f"s_add_u32 s36, s36, {F5 - FL}")
    k("s_lshl_b32 s37, s4, 7")
    k("s_add_u32 s37, s37, s36")
    k("s_waitcnt vmcnt(0)")
    k("s_barrier")
    setflag(k, 16, "s37", "k5_f5done")
    if os.environ.get('FINE5'): k.stamp(4)
    k("v_bfe_u32 v3, v0, 4, 2")
    k("v_and_b32 v5, 15, v0")
    k("s_lshl_b32 s6, s3, 2")
    k("s_add_u32 s6, s6, s5")
    k("s_lshl_b32 s10, s5, 10")
    k("s_add_u32 s7, s7, s10")
    k.srd(60, 46, 47, 0, ACT_SZ)
    k("s_mul_i32 s39, s5, 2816")
    k("s_add_u32 s39, s39, 69632")
    k("v_mul_u32_u24 v6, 176, v5")
    k("v_lshl_add_u32 v6, v3, 3, v6")
    k(f"v_add_u32 v{AD}, s39, v6")
    for i in range(3):
        k("v_lshrrev_b32 v6, 4, v1")
        k(f"v_add_u32 v6, {64*i}, v6")
        k("v_mul_u32_u24 v7, 205, v6")
        k("v_lshrrev_b32 v7, 11, v7")
        k("v_mul_u32_u24 v2, 10, v7")
        k("v_sub_u32 v6, v6, v2")
        k("v_lshlrev_b32 v6, 4, v6")
        k("v_mul_u32_u24 v2, 176, v7")
        k(f"v_add3_u32 v{AD+1+i}, v2, v6, s39")
        k("v_mul_u32_u24 v2, 1280, v7")
        k(f"v_add_u32 v{AD+4+i}, v6, v2")
        if i == 2:
            k("v_lshrrev_b32 v7, 4, v7")
            k(f"v_lshl_add_u32 v{AD+4+i}, v7, 30, v{AD+4+i}")
    k("s_mul_i32 s40, s6, 20480")
    k("s_mul_i32 s41, s4, 160")
    k("s_add_u32 s40, s40, s41")
    def w6():
        poll(k, "k5_p5", 16, "s36", 8, 10, 11)
        if os.environ.get('FINE5'): k.stamp(5)
    gemm80_resident(k, 24, list(range(24)), ACT, A6, WB3, 52, 7, lambda ks: ks * 5120 + (40960 if ks >= 8 else 0), w6, 4)
    if os.environ.get('FINE5'): k.stamp(6)
    k.nop(4)
    resid(k, A6, XR_, GB_R, WB)
    for j in range(5): k(f"ds_write_b64 v{AD}, {r(XR_+2*j,2)} offset:{j*32}")
    k("s_waitcnt lgkmcnt(0)")
    for i in range(3): k(f"ds_read_b128 {r(WB+4*i)}, v{AD+1+i}")
    for i in range(3):
        k(f"s_waitcnt lgkmcnt({2-i})")
        k(f"buffer_store_dwordx4 {r(WB+4*i)}, v{AD+4+i}, s[60:63], s40 offen")
    k.endpgm(KIDX)
    k.label("k5_loader")
    k(f"s_mov_b32 s3, s{RB}")
    k(f"s_mov_b32 s4, s{CB8}")
    k(f"s_mov_b32 s5, s{W3}")
    k("s_mul_i32 s34, s4, 393216")
    k(f"s_add_u32 s34, s34, {Z2}")
    k("s_lshl_b32 s35, s3, 18")
    k(f"s_add_u32 s35, s35, {WSPF}")
    k(f"s_mul_i32 s11, s5, {BLK}")
    k("s_mul_i32 s33, s4, 122880")
    k(f"s_add_u32 s33, s33, {WOUTF}")
    k("s_lshl_b32 s10, s5, 10")
    k.srd(52, 8, 9, "s34", 393216)
    k.srd(56, 8, 9, "s35", 262144)
    k.srd(60, 8, 9, "s33", 122880)
    k("s_mul_i32 s37, s5, 3072")
    k("s_lshl_b32 s36, s5, 11")
    def iz(sl):
        k(f"s_add_u32 m0, s11, {sl*SLOT}")
        k.nop(1)
        for j in range(3): k(f"buffer_load_dwordx4 v1, s[52:55], s37 offen offset:{j*1024} sc1 lds")
        k("s_add_u32 s37, s37, 12288")
    def iw(sl):
        k(f"s_add_u32 m0, s11, {sl*SLOT+3072}")
        k.nop(1)
        for j in range(2): k(f"buffer_load_dwordx4 v1, s[56:59], s36 offen offset:{j*1024} sc1 lds")
        k("s_add_u32 s36, s36, 8192")
    def issue(sl): iz(sl); iw(sl)
    iw(0); iw(1); iw(2)
    k("s_add_u32 s44, s10, 40960")
    for i in range(20):
        k("s_add_u32 m0, s44, 40960")
        k.nop(1)
        k("buffer_load_dwordx4 v1, s[60:63], s44 offen sc1 lds")
        k("s_add_u32 s44, s44, 4096")
        if THR: k(f"s_waitcnt vmcnt({THR})")
    k("v_and_b32 v10, 1, v0")
    k("v_bfe_u32 v11, v0, 1, 4")
    k("v_lshlrev_b32 v10, 7, v10")
    k("v_lshl_add_u32 v10, v11, 11, v10")
    k("s_lshl_b32 s39, s4, 8")
    k(f"s_add_u32 s39, s39, {F4 - FL}")
    k("s_barrier")
    k("s_cmp_lg_u32 s5, 0")
    k("s_cbranch_scc1 k5_p4_ok")
    poll(k, "k5_p4", 16, "s39", 0, 10, 11)
    k("s_barrier")
    if os.environ.get('FINE5'): k.stamp(2)
    iz(0); iz(1); iz(2)
    for s in range(4):
        k(f"s_waitcnt vmcnt({(6, 8, 10, 10)[s]})")
        k("s_barrier")
        issue((s + 3) & 3)
    k("s_mov_b32 s42, 0")
    k.lines.append(".p2align 6")
    k.label("k5_lloop")
    for s in range(4):
        k("s_waitcnt vmcnt(10)")
        k("s_barrier")
        issue((s + 3) & 3)
    k("s_add_u32 s42, s42, 1")
    k("s_cmp_lt_u32 s42, 6")
    k("s_cbranch_scc1 k5_lloop")
    def low(base, n):
        k(f"s_add_u32 m0, s10, {base}")
        for i in range(n):
            k.nop(1)
            k("buffer_load_dwordx4 v1, s[60:63], m0 offen sc1 lds")
            if i < n - 1: k("s_add_u32 m0, m0, 4096")
    k("s_waitcnt vmcnt(10)")
    k("s_barrier")
    issue(3)
    k("s_waitcnt vmcnt(10)")
    k("s_barrier")
    low(0, 5)
    k("s_waitcnt vmcnt(10)")
    k("s_barrier")
    low(20480, 5)
    k("s_waitcnt vmcnt(10)")
    k("s_barrier")
    k("s_barrier")
    k("s_barrier")
    k("s_waitcnt vmcnt(0)")
    k("s_barrier")
    k.endpgm(KIDX)
```

```python
MOD = 0x0000
MOD_SZ = 15360
KMAX = 0x3C00
ZR = 0x4000; ZR_SZ = 0x74000
C1 = 0x4000; C2 = 0x5800
FS = 0x7000; F2 = 0x50000; F3 = 0x58000; F5 = 0x60000; F4 = 0x68000; F1 = 0x70000; FL = FS; FL_SZ = 0x71000
STP = 0x10000; STP_SZ = 0x40000
KV = 0xAC0000; KV_SZ = 163840
MODP = 0x98000
MODP_ST = 0x3C00
WQF = 0xA8000; WQF_SZ = 983040
WOF = 0x198000; WOF_SZ = 819200
WOUTF = 0x260000; WOUTF_SZ = 983040
WINF = 0x350000; WINF_SZ = 1966080
ACT_SZ = 2621440; Z_SZ = 3145728
XN = 0x540000; O = XN; Y = XN
Q = 0x840000; X1 = Q
import os as _os
if _os.environ.get('NOALIAS'):
    O = 0xCC0000; X1 = 0xF40000; Y = 0x11C0000
SP2 = 0x14C0000; SP2_SZ = 0x20000
Z1 = 0x1500000
Z2 = 0x1800000
WSPF = 0x1B00000; WSPF_SZ = 8388608
WS_END = 0x2300000
```

```python
import sys
from asmlib import check
from k0 import gen_k0, K0_GRID, K0_LDS
from k234 import gen_k234, K234_LDS

NAME = "adaLN_cond__grouped_kv_mqa__mixer_gmlp__prompt"
def build(out, upto=7):
    ref = open(f"cdna_kernels/{NAME}.s.ref").read().split("\n")
    head = [l for l in ref if l.startswith(";") and "@launch" not in l and "Override" not in l and "grid=ceil" not in l]
    ks = []
    ks.append((gen_k0("code_start", "code_end"), K0_GRID, 256, K0_LDS))
    ks.append((gen_k234(), 256, 512, K234_LDS))
    ks = ks[:upto]
    s = "\n".join(head) + "\n"
    for k, g, b, l in ks:
        s += f"; @launch kernel={k.name} grid=({g},1,1) block=({b},1,1) lds={l}\n"
    s += '.amdgcn_target "amdgcn-amd-amdhsa--gfx950"\n.text\n'
    bodies = []; kds = []
    nerr = 0
    for i, (k, g, b, l) in enumerate(ks):
        for e in check(k.lines, k.name):
            print("HAZARD", e); nerr += 1
        body, kd = k.text()
        if i == 1: body = ".p2align 8\ncode_start:\n" + body
        bodies.append(body); kds.append(kd)
    s += "".join(bodies) + ".p2align 8\ncode_end:\n    s_endpgm\n" + '.section .rodata,"a"\n' + "".join(kds)
    open(out, "w").write(s)
    print("wrote", out, len(s), "bytes; hazards:", nerr)

if __name__ == "__main__":
    import os
    build(sys.argv[1] if len(sys.argv) > 1 else f"cdna_kernels/{NAME}.s", int(os.environ.get("UPTO", "7")))
```

```python
from asmlib import Kern
from layout import *
from k0 import hexf, rowred
import os, math

K234_LDS = 163840
QA, QB, CM, S0, S1, OO, PP = 4, 8, 16, 32, 48, 64, 80
KF1 = (88, 92); KF2 = (96, 100); VF = (104, 112)
AK1, AK2, AV = 12, 13, 14
SIDE_SC = os.environ.get("SIDE_SC", "sc1")
Z_SC = os.environ.get("Z_SC", "sc1")
SPIN = 200000
F1SH = int(os.environ.get('F1SH', '5'))
PF7 = int(os.environ.get('PF7', '1'))
TOUCH = int(os.environ.get('TOUCH', '0'))
PF_WIN = int(os.environ.get('PF_WIN', '0'))
RETRY = 2000
PF_NEXT = int(os.environ.get('PF_NEXT', '0'))
GA_ = -2 * math.log2(math.e) * math.sqrt(2 / math.pi)
GB_ = GA_ * 0.044715
RB, CB8, W3, VV, RB128, CB16, FAST = 24, 25, 26, 27, 28, 29, 30
NOFAST = os.environ.get('NOFAST')

def prio(k, n):
    if not os.environ.get("NOPRIO"): k(f"s_setprio {n}")
def r(b, n=4): return f"v[{b}:{b+n-1}]"

def poll(k, name, srd, soff, nflag, vo, vf):
    if nflag:
        k(f"v_and_b32 v{vo}, {nflag-1}, v0")
        k(f"v_lshlrev_b32 v{vo}, 7, v{vo}")
    k("s_mov_b32 s38, 0")
    k(f"buffer_load_dword v{vf}, v{vo}, s[{srd}:{srd+3}], {soff} offen sc1")
    k("s_sleep 4")
    k.label(name)
    for h in range(2):
        k(f"buffer_load_dword v{vf+1-h}, v{vo}, s[{srd}:{srd+3}], {soff} offen sc1")
        if os.environ.get("PSLEEP"): k(f"s_sleep {os.environ['PSLEEP']}")
        k("s_waitcnt vmcnt(1)")
        k(f"v_cmp_ne_u32 vcc, 0, v{vf+h}")
        k("s_cmp_eq_u64 vcc, -1")
        k(f"s_cbranch_scc1 {name}_ok")
    k("s_add_u32 s38, s38, 1")
    k(f"s_cmp_lt_u32 s38, {SPIN}")
    k(f"s_cbranch_scc1 {name}")
    k.label(name + "_ok")

def stores(k, lines):
    a = k.newlabel("sl"); b = k.newlabel("sd")
    k(f"s_cmp_eq_u32 s{FAST}, 0")
    k(f"s_cbranch_scc1 {a}")
    for l in lines: k(l)
    k(f"s_branch {b}")
    k.label(a)
    for l in lines: k(l + " sc1")
    k.label(b)

def setflag(k, srd, soff, lab, v=10, local=False, val="1"):
    k("s_cmp_lg_u32 s5, 0")
    k(f"s_cbranch_scc1 {lab}")
    k(f"v_mov_b32 v{v}, {val}")
    k("s_mov_b64 exec, 1")
    if local: stores(k, [f"buffer_store_dword v{v}, off, s[{srd}:{srd+3}], {soff}"])
    else: k(f"buffer_store_dword v{v}, off, s[{srd}:{srd+3}], {soff} sc1")
    k("s_mov_b64 exec, -1")
    k.label(lab)

def hint(k, srd, soff, v=10):
    k(f"v_mov_b32 v{v}, 1")
    k("s_mov_b64 exec, 1")
    k(f"buffer_store_dword v{v}, off, s[{srd}:{srd+3}], {soff} sc1")
    k("s_mov_b64 exec, -1")

def chk(k, c, b, n=4):
    for i in range(0, n, 2): k(f"v_max3_u32 v{c}, v{c}, v{b+i}, v{b+i+1}")

def verify(k, c, again, cnt):
    k(f"v_cmp_eq_u32 vcc, -1, v{c}")
    k(f"s_add_u32 s{cnt}, s{cnt}, 1")
    k(f"s_cmp_lt_u32 s{cnt}, {RETRY}")
    k("s_cselect_b64 s[70:71], vcc, 0")
    k("s_cmp_lg_u64 s[70:71], 0")
    k(f"s_cbranch_scc1 {again}")

def gelu(k, X, T, n):
    for i in range(n): k(f"v_pk_mul_f32 {r(T+2*i,2)}, {r(X+2*i,2)}, {r(X+2*i,2)}")
    for i in range(n): k(f"v_pk_fma_f32 {r(T+2*i,2)}, {r(T+2*i,2)}, v[12:13], v[12:13] op_sel:[0,1,0] op_sel_hi:[1,1,0]")
    for i in range(n): k(f"v_pk_mul_f32 {r(T+2*i,2)}, {r(T+2*i,2)}, {r(X+2*i,2)}")
    for i in range(2 * n): k(f"v_exp_f32 v{T+i}, v{T+i}")
    for i in range(n): k(f"v_pk_add_f32 {r(T+2*i,2)}, {r(T+2*i,2)}, 1.0 op_sel_hi:[1,0]")
    for i in range(2 * n): k(f"v_rcp_f32 v{T+i}, v{T+i}")
    for i in range(n): k(f"v_pk_mul_f32 {r(X+2*i,2)}, {r(X+2*i,2)}, {r(T+2*i,2)}")

def x1_addr(k, rt, cb, s0, dst, tmp, kg=3, l16=5):
    k(f"s_lshr_b32 s{s0}, s{rt}, 3")
    k(f"s_mul_i32 s{s0}, s{s0}, 40")
    k(f"s_mul_i32 s{s0+1}, s{cb}, 5")
    k(f"s_add_u32 s{s0}, s{s0}, s{s0+1}")
    k(f"s_lshl_b32 s{s0}, s{s0}, 12")
    k(f"s_bfe_u32 s{s0+1}, s{rt}, 0x20001")
    k(f"s_lshl_b32 s{s0+1}, s{s0+1}, 10")
    k(f"s_add_u32 s{s0}, s{s0}, s{s0+1}")
    k(f"s_and_b32 s{s0+1}, s{rt}, 1")
    k(f"s_lshl_b32 s{s0+1}, s{s0+1}, 8")
    k(f"s_add_u32 s{s0}, s{s0}, s{s0+1}")
    for j in range(1, 5): k(f"s_add_u32 s{s0+j}, s{s0}, {j*4096}")
    k(f"v_lshrrev_b32 v{dst}, 1, v{kg}")
    k(f"v_lshlrev_b32 v{dst}, 9, v{dst}")
    k(f"v_lshl_add_u32 v{dst}, v{l16}, 4, v{dst}")
    k(f"v_and_b32 v{tmp}, 1, v{kg}")
    k(f"v_lshl_add_u32 v{dst}, v{tmp}, 3, v{dst}")

def gemm80_resident(k, NK, order, ACT, A0, WB, srd, soff, lds_addr, wait, cb, bars={}, AH=11):
    k("v_add_u32 v8, 0xf000, v1")
    k("v_add_u32 v9, 0x1e000, v1")
    def ld(i):
        return [f"s_add_u32 s38, s{soff}, {order[i]*4096}\nbuffer_load_dwordx4 {r(ACT+4*i)}, v1, s[{srd}:{srd+3}], s38 offen sc1"]
    def rd(i):
        ks = order[i]; b = WB[i % 3]
        ad = lds_addr(ks); n = ad // 0xf000
        return [f"ds_read_b128 {r(b+4*j)}, {('v1', 'v8', 'v9')[n]} offset:{ad + j*1024 - n*0xf000}" for j in range(5)]
    for l in rd(0) + rd(1): k(l)
    wait()
    for i in range(AH): k(ld(i)[0])
    for i in range(NK):
        b = WB[i % 3]
        if i in bars: k("s_barrier")
        k(f"s_waitcnt vmcnt({min(AH-1, NK-1-i)}) lgkmcnt({5 if i < NK-1 else 0})")
        if os.environ.get("FINE3") and i in (0, 5, 12): k.stamp({0: 2, 5: 3, 12: 4}[i])
        fill = (rd(i + 2) if i + 2 < NK else [""] * 5)
        for j in range(5):
            c = "0" if i == 0 else r(A0 + 4 * j)
            k(f"v_mfma_f32_16x16x32_bf16 {r(A0+4*j)}, {r(b+4*j)}, {r(ACT+4*i)}, {c}")
            k(fill[j])
        if i + AH < NK: k(ld(i + AH)[0])
    if os.environ.get("FINE3"): k.stamp(7 if NK == 24 else 6)

def resid(k, A0, X, G, T):
    for i in range(10):
        k(f"v_lshlrev_b32 v{T+2*i}, 16, v{X+i}")
        k(f"v_and_b32 v{T+2*i+1}, 0xffff0000, v{X+i}")
    for i in range(10): k(f"v_pk_fma_f32 {r(A0+2*i,2)}, {r(A0+2*i,2)}, {r(G+2*i,2)}, {r(T+2*i,2)}")
    for i in range(10): k(f"v_cvt_pk_bf16_f32 v{X+i}, v{A0+2*i}, v{A0+2*i+1}")

def gen_k234():
    k = Kern("k2_kernel", 244, 100)
    k("s_cmp_ge_u32 s2, 256")
    k("s_cbranch_scc1 k2_end")
    k.stamp(0); k.rstamp(1)
    k("s_load_dwordx2 s[8:9], s[0:1], 112")
    from g16 import gen_p1
    gen_p1(k)
    k.srd(16, 8, 9, FL, FL_SZ)
    k(f"s_lshl_b32 s37, s2, {F1SH}")
    k(f"s_add_u32 s37, s37, {F1 - FL}")
    k("v_lshrrev_b32 v1, 6, v0")
    k("s_barrier")
    k("v_readfirstlane_b32 s5, v1")
    k("s_getreg_b32 s43, hwreg(HW_REG_XCC_ID, 0, 4)")
    k("s_add_u32 s42, s43, 1")
    setflag(k, 16, "s37", "k2_f1done", val="s42")
    if os.environ.get("FINE2"): k.stamp(4)
    k("s_load_dwordx2 s[44:45], s[0:1], 0")
    k("s_load_dwordx4 s[48:51], s[0:1], 48")
    k("s_load_dwordx2 s[46:47], s[0:1], 72")
    k("s_and_b32 s3, s2, 7")
    k(f"s_lshl_b32 s{RB}, s3, 2")
    k("s_bfe_u32 s4, s2, 0x20003")
    k(f"s_add_u32 s{RB}, s{RB}, s4")
    k(f"s_lshr_b32 s{CB8}, s2, 5")
    k("v_and_b32 v1, 63, v0")
    k("v_and_b32 v2, 31, v0")
    k("v_bfe_u32 v3, v0, 5, 1")
    k("v_lshlrev_b32 v1, 4, v1")
    k(f"s_lshl_b32 s4, s{CB8}, 2")
    k(f"s_and_b32 s{W3}, s5, 3")
    k(f"s_add_u32 s4, s4, s{W3}")
    k(f"s_lshl_b32 s6, s{RB}, 1")
    k("s_lshr_b32 s43, s5, 2")
    k("s_add_u32 s6, s6, s43")
    k("v_lshlrev_b32 v15, 30, v3")
    k("v_lshl_add_u32 v15, v2, 3, v15")
    k("s_lshl_b32 s7, s4, 6")
    k("s_add_u32 s7, s7, s6")
    k("s_mul_i32 s7, s7, 1280")
    k("s_lshl_b32 s10, s5, 10")
    k("v_mov_b32 v120, v15")
    k.srd(20, 8, 9, KV, KV_SZ)
    k.srd(52, 8, 9, Q, ACT_SZ)
    k.srd(56, 8, 9, KMAX, 1024)
    k("s_mov_b32 s31, s7")
    prio(k, 3)
    k(f"s_bfe_u32 s{VV}, s2, 0x10003")
    k(f"s_lshr_b32 s{RB128}, s{RB}, 1")
    k(f"s_lshl_b32 s{CB16}, s{CB8}, 1")
    k(f"s_add_u32 s{CB16}, s{CB16}, s{VV}")
    k(f"v_mov_b32 v{AK1}, v1")
    k(f"v_lshlrev_b32 v{AK2}, 3, v2")
    k(f"v_add_u32 v{AK2}, 1024, v{AK2}")
    k(f"v_mul_u32_u24 v{AV}, 20, v3")
    k(f"v_add_u32 v{AV}, v{AV}, v2")
    k(f"v_lshlrev_b32 v{AV}, 4, v{AV}")
    k(f"v_add_u32 v{AV}, 1280, v{AV}")
    k("s_mov_b32 s40, 0x000fffff")
    k("s_mov_b32 s41, 0x000fffff")
    k("v_or_b32 v15, 4, v2")
    k("v_cmp_eq_u32 vcc, 28, v15")
    k("v_mov_b32 v15, 0x3f803f80")
    k("s_add_u32 s43, s43, 1")
    k(f"v_cndmask_b32 v{VF[0]}, 0, v15, vcc")
    for i in range(16): k(f"v_mov_b32 v{OO+i}, 0")
    for i in range(1, 16): k(f"v_mov_b32 v{VF[0]+i}, v{VF[0]}")
    for i in range(4, 8): k(f"v_mov_b32 v{PP+i}, 0")
    for b in (QB, KF2[0], KF2[1]):
        k(f"v_mov_b32 v{b+2}, 0"); k(f"v_mov_b32 v{b+3}, 0")
    k.srd(12, 8, 9, O, ACT_SZ)
    k(f"s_mul_i32 s7, s{CB8}, 102400")
    k(f"s_add_u32 s7, s7, {WOF}")
    k.srd(16 + 16, 8, 9, "s7", 102400)
    k("s_cmp_lg_u32 s5, 0")
    k("s_cbranch_scc1 k2_p1_ok")
    k(f"v_lshlrev_b32 v{S1}, {F1SH}, v0")
    k(f"s_mov_b32 s36, {F1 - FL}")
    k("s_mov_b32 s38, 0")
    k.label("k2_p1")
    for q in range(4):
        if (64 << F1SH) * q < 4096: k(f"buffer_load_dword v{S1+1+q}, v{S1}, s[16:19], s36 offen offset:{(64 << F1SH) * q} sc1")
        else:
            k(f"s_add_u32 s39, s36, {(64 << F1SH) * q}")
            k(f"buffer_load_dword v{S1+1+q}, v{S1}, s[16:19], s39 offen sc1")
    k("s_add_u32 s38, s38, 1")
    k("s_waitcnt vmcnt(0)")
    k(f"v_min3_u32 v{S1+5}, v{S1+1}, v{S1+2}, v{S1+3}")
    k(f"v_min_u32 v{S1+5}, v{S1+5}, v{S1+4}")
    k(f"v_cmp_ne_u32 vcc, 0, v{S1+5}")
    k("s_cmp_eq_u64 vcc, -1")
    k("s_cbranch_scc1 k2_p1_got")
    k(f"s_sleep {os.environ.get('F1SL', '2')}")
    k(f"s_cmp_lt_u32 s38, {SPIN}")
    k("s_cbranch_scc1 k2_p1")
    k.label("k2_p1_got")
    k(f"v_max3_u32 v{S1+6}, v{S1+1}, v{S1+2}, v{S1+3}")
    k(f"v_max_u32 v{S1+6}, v{S1+6}, v{S1+4}")
    k(f"v_xor_b32 v{S1+5}, s42, v{S1+5}")
    k(f"v_xor_b32 v{S1+6}, s42, v{S1+6}")
    k(f"v_or_b32 v{S1+5}, v{S1+5}, v{S1+6}")
    k(f"v_xor_b32 v{S1+6}, s2, v0")
    k(f"v_and_b32 v{S1+6}, 23, v{S1+6}")
    k(f"v_cmp_eq_u32 vcc, 0, v{S1+6}")
    k(f"v_cmp_ne_u32 s[36:37], 0, v{S1+5}")
    k(f"v_mov_b32 v{S1+6}, 163836")
    k("s_and_b64 vcc, vcc, s[36:37]")
    k("s_cselect_b32 s36, 0, " + ("0" if NOFAST else "1"))
    k(f"v_mov_b32 v{S1+5}, s36")
    k(f"ds_write_b32 v{S1+6}, v{S1+5}")
    k("s_waitcnt lgkmcnt(0)")
    k.label("k2_p1_ok")
    k("s_mov_b32 m0, s10")
    k("s_waitcnt vmcnt(0)")
    k("s_barrier")
    if os.environ.get("FINE2"): k.stamp(5)
    k("buffer_load_dwordx4 v1, s[20:23], m0 offen sc1 lds")
    k(f"v_mov_b32 v{S1+6}, 163836")
    k(f"ds_read_b32 v{S1+8}, v{S1+6}")
    k(f"buffer_load_dwordx4 {r(QA)}, v1, s[52:55], s31 offen sc1")
    k(f"buffer_load_dwordx2 {r(QB,2)}, v120, s[52:55], s31 offen offset:1024 sc1")
    k("s_add_u32 m0, m0, 0x2000")
    k(f"buffer_load_dwordx4 {r(S0)}, v1, s[56:59], 0 offen sc1")
    for i in range(3):
        k("buffer_load_dwordx4 v1, s[20:23], m0 offen sc1 lds")
        if i < 2:
            k("s_add_u32 m0, m0, 0x2000")
            k.nop(1)
    k("s_waitcnt vmcnt(3) lgkmcnt(0)")
    k(f"v_readfirstlane_b32 s{FAST}, v{S1+8}")
    k(f"v_max3_f32 v{S1}, v{S0}, v{S0+1}, v{S0+2}")
    k(f"v_max_f32 v{S1}, v{S1}, v{S0+3}")
    k(f"v_dot2_f32_bf16 v{S1+2}, v{QA}, v{QA}, 0")
    rowred(k, "v_max_f32", S1)
    for b in (QA + 1, QA + 2, QA + 3, QB, QB + 1):
        k(f"v_dot2_f32_bf16 v{S1+2}, v{b}, v{b}, v{S1+2}")
    k(f"v_mov_b32 v{S1+1}, v{S1}")
    k.nop(3)
    k(f"v_mov_b32 v{S1+3}, v{S1+2}")
    k(f"v_permlane16_swap_b32 v{S1}, v{S1+1}")
    k(f"v_max_f32 v{S1}, v{S1}, v{S1+1}")
    k(f"v_permlane32_swap_b32 v{S1+2}, v{S1+3}")
    k(f"v_mov_b32 v{S1+1}, v{S1}")
    k(f"v_add_f32 v{S1+2}, v{S1+2}, v{S1+3}")
    k.nop(1)
    k(f"v_permlane32_swap_b32 v{S1}, v{S1+1}")
    k(f"v_add_f32 v{S1}, v{S1}, v{S1+1}")
    k(f"v_mul_f32 v{S1}, v{S1}, v{S1+2}")
    k(f"v_sqrt_f32 v{S1}, v{S1}")
    k.nop(1)
    k(f"v_mov_b32 v{S1+1}, {hexf(-1.001)}")
    k(f"v_fmaak_f32 v{CM}, v{S1}, v{S1+1}, {hexf(60.0)}")
    for i in range(1, 16): k(f"v_mov_b32 v{CM+i}, v{CM}")
    def rdK(t, buf):
        k(f"ds_read_b128 {r(KF1[buf])}, v{AK1} offset:{t*2560}")
        k(f"ds_read_b64 {r(KF2[buf],2)}, v{AK2} offset:{t*2560}")
    def rdV(t, buf):
        k("s_mov_b64 exec, s[40:41]")
        k(f"ds_read_b128 {r(VF[buf])}, v{AV} offset:{t*2560}")
        k(f"ds_read_b128 {r(VF[buf]+4)}, v{AV} offset:{t*2560+640}")
        k("s_mov_b64 exec, -1")
    SB = (S0, S1)
    k("s_waitcnt vmcnt(0) lgkmcnt(0)")
    k("s_barrier")
    if not (os.environ.get("ITER") or os.environ.get("FINE1")): k.stamp(2)
    rdK(0, 0); rdK(1, 1); rdV(0, 0)
    k("s_waitcnt lgkmcnt(4)")
    k(f"v_mfma_f32_32x32x16_bf16 {r(S0,16)}, {r(KF1[0])}, {r(QA)}, {r(CM,16)}")
    k(f"v_mfma_f32_32x32x16_bf16 {r(S0,16)}, {r(KF2[0])}, {r(QB)}, {r(S0,16)}")
    k.nop(8)
    def body(dma, every=5, last=False, first=False):
        left = list(dma)
        body.n0 = len(k.lines)
        def ex(reg):
            if left and ex.n % every == 1:
                srd, pre, fl = left.pop(0)
                k(pre)
                k(f"v_exp_f32 v{reg}, v{reg}")
                if fl is None: k(f"buffer_load_dwordx4 v[172:175], v1, s[{srd}:{srd+3}], s53 offen sc1")
                else: k(f"buffer_load_dwordx4 v1, s[{srd}:{srd+3}], m0 offen {fl}lds")
            else:
                k(f"v_exp_f32 v{reg}, v{reg}")
            ex.n += 1
        ex.n = 0
        for t in range(8):
            cur = SB[t & 1]; nxt = SB[(t + 1) & 1]
            def E(lo):
                for i in range(lo, lo + 4): ex(cur + i)
                for i in range(lo // 2, lo // 2 + 2): k(f"v_cvt_pk_bf16_f32 v{PP+i}, v{cur+2*i}, v{cur+2*i+1}")
            fin = last and t == 7
            if (last or first) and t in (2, 4, 6): prio(k, 3 - t // 2)
            k("s_waitcnt lgkmcnt(0)")
            if not (last and t >= 6): rdK(t + 2, t & 1)
            else: k.nop(1)
            k(f"v_mfma_f32_32x32x16_bf16 {r(OO,16)}, {r(VF[(t+1)&1]+4)}, {r(PP+4)}, {r(OO,16)}")
            E(0)
            if not fin:
                k(f"v_mfma_f32_32x32x16_bf16 {r(nxt,16)}, {r(KF1[(t+1)&1])}, {r(QA)}, {r(CM,16)}")
                rdV(t + 1, (t + 1) & 1)
            E(4)
            if not fin: k(f"v_mfma_f32_32x32x16_bf16 {r(nxt,16)}, {r(KF2[(t+1)&1])}, {r(QB)}, {r(nxt,16)}")
            if t == 7 and not last:
                k(f"v_add_u32 v{AK1}, 20480, v{AK1}")
                k(f"v_add_u32 v{AK2}, 20480, v{AK2}")
                k(f"v_add_u32 v{AV}, 20480, v{AV}")
            E(8)
            k(f"v_mfma_f32_32x32x16_bf16 {r(OO,16)}, {r(VF[t&1])}, {r(PP)}, {r(OO,16)}")
            E(12)
        assert not left
        X = os.environ.get("XP", "")
        if X:
            new = []
            for l in k.lines[body.n0:]:
                if "nopv" in X and "v_mfma" in l and l.split()[1].startswith(f"v[{OO}:"): l = "    s_nop 0"
                if "noqk2" in X and "v_mfma" in l and f"{r(QB)}" in l: l = "    s_nop 0"
                if "nolds" in X and "ds_read" in l: l = "    s_nop 0"
                if "noexp" in X and "v_exp" in l: l = l.replace("v_exp_f32", "v_mov_b32")
                if "nocvt" in X and "v_cvt_pk" in l: l = "    s_nop 0"
                if "qk8" in X and "v_mfma" in l and f"{r(QB)}" in l:
                    l = l.replace("v_mfma_f32_32x32x16_bf16", "v_mfma_f32_32x32x8bf16_1k").replace(r(QB), r(QB, 2)).replace(r(KF2[0]), r(KF2[0], 2)).replace(r(KF2[1]), r(KF2[1], 2))
                new.append(l)
            k.lines[body.n0:] = new
        if last:
            k.nop(2)
            k(f"v_mfma_f32_32x32x16_bf16 {r(OO,16)}, {r(VF[1]+4)}, {r(PP+4)}, {r(OO,16)}")
    INC = "s_add_u32 m0, m0, 0x2000"
    body([(20, INC, 'sc1 ')] * 16, first=True)
    k("s_waitcnt vmcnt(0)")
    k("s_barrier")
    k("s_mov_b32 s42, 1")
    k("s_add_u32 s39, s43, 2")
    k("s_branch k2_disp")
    k.lines.append(".p2align 6")
    k.label("k2_loop")
    body([])
    k("s_add_u32 s42, s42, 1")
    k.label("k2_disp")
    if os.environ.get("ITER"):
        for i in range(1, 7):
            k(f"s_cmp_eq_u32 s42, {i}")
            k(f"s_cbranch_scc0 k2_it{i}")
            k.stamp(i + 1)
            k.label(f"k2_it{i}")
    if not os.environ.get("NOSIDE"):
        k("s_cmp_eq_u32 s42, s43")
        k("s_cbranch_scc1 k2_sideld")
        k("s_cmp_eq_u32 s42, s39")
        k("s_cbranch_scc1 k2_side")
    k.label("k2_cont")
    prio(k, 3)
    k("s_cmp_eq_u32 s42, 1")
    k("s_cbranch_scc1 k2_loop")
    k("s_cmp_eq_u32 s42, 5")
    k("s_cbranch_scc1 " + ("k2_loop" if os.environ.get("NOBLK") else "k2_blk5"))
    prio(k, 2)
    k("s_cmp_eq_u32 s42, 2")
    k("s_cbranch_scc1 k2_loop")
    k("s_cmp_eq_u32 s42, 6")
    k("s_cbranch_scc1 " + ("k2_loop" if os.environ.get("NOBLK") else "k2_blk6"))
    prio(k, 1)
    k("s_cmp_eq_u32 s42, 3")
    k("s_cbranch_scc1 k2_loop")
    prio(k, 0)
    k("s_cmp_eq_u32 s42, 4")
    k("s_cbranch_scc1 k2_loop")
    prio(k, 3)
    k("s_sub_u32 m0, s10, 0x2000")
    k(f"s_mul_i32 s7, s{CB16}, 122880")
    k(f"s_add_u32 s7, s7, {WINF - 40960}")
    k.srd(72, 8, 9, "s7", 163840)
    k.srd(68, 8, 9, WINF, WINF_SZ)
    k("s_lshr_b32 s53, s2, 3")
    k("s_lshl_b32 s53, s53, 3")
    k("s_add_u32 s53, s53, s5")
    k("s_mul_i32 s53, s53, 7680")
    k("s_sub_u32 s53, s53, 1024")
    k("s_cmp_lg_u32 s5, " + ("99" if os.environ.get("NOBLK") else "0"))
    k("s_cbranch_scc1 k2_fsok")
    k("s_mov_b32 s38, 0")
    k.label("k2_fschk")
    k("s_waitcnt vmcnt(0)")
    k("v_min3_u32 v168, v168, v169, v170")
    k("v_min_u32 v168, v168, v171")
    k("v_cmp_ne_u32 vcc, 0, v168")
    k("s_cmp_eq_u64 vcc, -1")
    k("s_cbranch_scc1 k2_fsok")
    k("s_sleep 1")
    k(f"buffer_load_dwordx4 v[168:171], v1, s[16:19], s37 offen sc1")
    k("s_add_u32 s38, s38, 1")
    k(f"s_cmp_lt_u32 s38, {SPIN}")
    k("s_cbranch_scc1 k2_fschk")
    k.label("k2_fsok")
    k("s_barrier")
    body([(72, 's_add_u32 m0, s10, 102400', 'sc1 ')] + [(72, INC, 'sc1 ')] * 4 + [(68, 's_add_u32 s53, s53, 1024', None)] * (8 if PF7 else 0), every=4 if PF7 else 7, last=True)
    if os.environ.get("ITER"):
        k.endpgm(1)
    if not os.environ.get("FINE1"): k.stamp(3)
    k(f"v_mov_b32 v15, {hexf(2.0**-100)}")
    k.nop(11)
    k(f"v_cmp_nge_f32 vcc, v{OO+12}, v15")
    k.nop(5)
    k("s_cbranch_vccnz k2_slow")
    k.label("k2_epi")
    k(f"v_rcp_f32 v{S0}, v{OO+12}")
    k(f"s_mul_i32 s7, s{RB}, 81920")
    k("s_and_b32 s10, s6, 1")
    k("s_lshl_b32 s10, s10, 11")
    k("s_add_u32 s10, s7, s10")
    k(f"v_lshrrev_b32 v{S0+3}, 4, v2")
    k(f"v_lshlrev_b32 v{S0+3}, 10, v{S0+3}")
    k(f"v_and_b32 v{S0+2}, 15, v2")
    k(f"v_lshl_add_u32 v{S0+3}, v{S0+2}, 4, v{S0+3}")
    k("s_mul_i32 s11, s4, 20")
    k(f"v_lshl_add_u32 v{S0+4}, v3, 2, s11")
    for i in range(6):
        k(f"v_pk_mul_f32 {r(OO+2*i,2)}, {r(OO+2*i,2)}, {r(S0,2)} op_sel_hi:[1,0]")
    for i in range(6):
        k(f"v_cvt_pk_bf16_f32 v{PP+i}, v{OO+2*i}, v{OO+2*i+1}")
    for i in range(3):
        c = S0 + 8 + 4 * i
        k(f"v_add_u32 v{c}, {8*i}, v{S0+4}")
        k(f"v_lshrrev_b32 v{c+1}, 5, v{c}")
        k(f"v_lshl_add_u32 v{c+1}, v{c+1}, 12, v{S0+3}")
        k(f"v_bfe_u32 v{c+2}, v{c}, 3, 2")
        k(f"v_lshl_add_u32 v{c+1}, v{c+2}, 8, v{c+1}")
        k(f"v_and_b32 v{c+2}, 4, v{c}")
        k(f"v_lshl_add_u32 v{c+1}, v{c+2}, 1, v{c+1}")
        if i == 2:
            k(f"v_lshl_add_u32 v{c+1}, v3, 30, v{c+1}")
    stores(k, [f"buffer_store_dwordx2 {r(PP+2*i,2)}, v{S0+9+4*i}, s[12:15], s10 offen" for i in range(3)])
    k(f"s_lshl_b32 s36, s{RB}, 10")
    k(f"s_add_u32 s36, s36, {F2 - FL}")
    k(f"s_lshl_b32 s37, s{CB8}, 7")
    k("s_add_u32 s37, s37, s36")
    k("s_load_dwordx2 s[44:45], s[0:1], 64")
    k("s_load_dwordx2 s[46:47], s[0:1], 96")
    k("s_cmp_ge_u32 s5, 4")
    k("s_cbranch_scc1 k2_loader")
    XR_, GA_R, ACT, A0, WB = 120, 132, 16, 96, (152, 172, 192)
    k("s_waitcnt vmcnt(0) lgkmcnt(0)")
    k("s_barrier")
    setflag(k, 16, "s37", "k2_f2done", local=True)
    if not (os.environ.get("FINE1") or os.environ.get("FINE2")): k.stamp(4)
    k("v_bfe_u32 v3, v0, 4, 2")
    k("v_and_b32 v5, 15, v0")
    k(f"s_lshl_b32 s6, s{RB}, 2")
    k("s_add_u32 s6, s6, s5")
    x1_addr(k, 6, CB8, 60, 6, 7)
    k("s_lshl_b32 s10, s5, 10")
    k("s_add_u32 s7, s7, s10")
    k.srd(52, 8, 9, X1, ACT_SZ)
    k.srd(56, 8, 9, SP2, SP2_SZ)
    def w3():
        poll(k, "k2_p2", 16, "s36", 8, 10, 11)
        if not (os.environ.get("FINE1") or os.environ.get("FINE2")): k.stamp(5)
    gemm80_resident(k, 20, list(range(8, 20)) + list(range(8)), ACT, A0, WB, 12, 7, lambda ks: ks * 5120,
                    w3, CB8, bars={9: 1, 12: 1})
    if os.environ.get("FINE"): k.stamp(2)
    k.nop(5)
    resid(k, A0, XR_, GA_R, WB[0])
    k("v_and_b32 v7, 1, v3")
    k("v_mul_u32_u24 v7, 4088, v7")
    k("v_add_u32 v7, v7, v6")
    for i in range(10):
        k(f"v_lshlrev_b32 v{A0+2*i}, 16, v{XR_+i}")
        k(f"v_and_b32 v{A0+2*i+1}, 0xffff0000, v{XR_+i}")
    for i in range(10): k(f"v_mov_b32 v{232+i}, v{XR_+i}")
    for p in range(2):
        k(f"v_permlane16_swap_b32 v{XR_+4*p}, v{XR_+4*p+2}")
        k(f"v_permlane16_swap_b32 v{XR_+4*p+1}, v{XR_+4*p+3}")
    stores(k, [f"buffer_store_dwordx4 {r(XR_+4*p)}, v7, s[52:55], s{60+2*p} offen" for p in range(2)] +
              [f"buffer_store_dwordx2 {r(XR_+8,2)}, v6, s[52:55], s64 offen"])
    k(f"v_pk_add_f32 v[10:11], {r(A0,2)}, {r(A0+2,2)}")
    k(f"v_pk_mul_f32 v[12:13], {r(A0,2)}, {r(A0,2)}")
    for i in range(1, 10):
        if i > 1: k(f"v_pk_add_f32 v[10:11], v[10:11], {r(A0+2*i,2)}")
        k(f"v_pk_fma_f32 v[12:13], {r(A0+2*i,2)}, {r(A0+2*i,2)}, v[12:13]")
    k("v_add_f32 v10, v10, v11")
    k("v_add_f32 v12, v12, v13")
    k(f"s_lshl_b32 s36, s{RB}, 3")
    k(f"s_add_u32 s36, s36, s{CB8}")
    k("v_lshlrev_b32 v7, 3, v5")
    k("v_permlane16_swap_b32 v10, v12")
    k("v_add_f32 v10, v10, v12")
    k("v_mov_b32 v12, v10")
    k("v_and_b32 v8, 1, v3")
    k("v_lshl_add_u32 v7, v8, 2, v7")
    k("v_permlane32_swap_b32 v10, v12")
    k("v_add_f32 v10, v10, v12")
    k("v_lshrrev_b32 v8, 1, v3")
    k("v_lshl_add_u32 v7, v8, 30, v7")
    k("s_lshl_b32 s36, s36, 9")
    k("s_lshl_b32 s37, s5, 7")
    k("s_add_u32 s36, s36, s37")
    stores(k, ["buffer_store_dword v10, v7, s[56:59], s36 offen"])
    k(f"s_lshl_b32 s36, s{RB128}, 11")
    k(f"s_add_u32 s36, s36, {F3 - FL}")
    k(f"s_lshl_b32 s37, s{CB16}, 7")
    k("s_add_u32 s37, s37, s36")
    if os.environ.get("FINE"): k.stamp(3)
    k("s_waitcnt vmcnt(0)")
    k("s_barrier")
    setflag(k, 16, "s37", "k2_f3done", 11, local=True)
    if os.environ.get("FINE"): k.stamp(4)
    ACT, A0, WB, ST = 16, 80, 128, 152
    NR = 16; AH = 12
    k("v_bfe_u32 v3, v0, 5, 1")
    k(f"s_lshl_b32 s6, s{RB128}, 2")
    k("s_add_u32 s6, s6, s5")
    k(f"s_mul_i32 s7, s{RB128}, 163840")
    k("s_add_u32 s7, s7, s10")
    k("s_lshl_b32 s11, s6, 11")
    k("s_and_b32 s37, s5, 1")
    k("s_mul_i32 s37, s37, 1792")
    k("s_sub_u32 s11, s11, s37")
    k("v_lshlrev_b32 v4, 3, v2")
    k("v_lshl_add_u32 v6, v3, 11, v4")
    k("v_add_u32 v7, 40960, v1")
    k("v_add_u32 v14, 102400, v1")
    k(f"v_mov_b32 v12, {hexf(GA_)}")
    k(f"v_mov_b32 v13, {hexf(GB_)}")
    order = list(range(20, 40)) + list(range(20))
    def ld(i):
        k(f"s_add_u32 s38, s7, {order[i]*4096}")
        k(f"buffer_load_dwordx4 {r(ACT+4*(i%NR))}, v1, s[52:55], s38 offen sc1")
    def rd(i):
        ks = order[i]; b = WB + 12 * (i & 1)
        a, base = ("v7", 0) if ks < 20 else ("v14", 61440)
        for j in range(3): k(f"ds_read_b128 {r(b+4*j)}, {a} offset:{ks*3072 + j*1024 - base}")
    rd(0)
    k(f"s_mul_i32 s37, s{RB128}, 163840")
    k(f"s_mul_i32 s39, s{CB16}, 10240")
    k("s_add_u32 s37, s37, s39")
    k("s_mul_i32 s39, s5, 2560")
    k("s_add_u32 s37, s37, s39")
    poll(k, "k2_p3", 16, "s36", 16, 10, 164)
    if not os.environ.get("FINE1") and not os.environ.get("FINE3"): k.stamp(6)
    for i in range(4): k(f"buffer_load_dwordx2 {r(ST+2*i,2)}, v6, s[56:59], s11 offen offset:{i*512} sc1")
    ld(0); ld(1)
    if TOUCH:
        for i in range(3): k(f"buffer_load_dwordx4 {r(160)}, v1, s[52:55], s37 offen offset:{min(i*1024, 1536)} sc1")
    for i in range(2, AH): ld(i)
    k(f"s_cmp_eq_u32 s{VV}, 0")
    k("s_cbranch_scc0 k2_p4B")
    LC1, LC2, LTAB = 0, 1024, 2048
    def rowtab(S, n, bias_s, bias_q):
        k(f"v_mov_b32 v{S+2}, v{S}")
        k(f"v_mov_b32 v{S+3}, v{S+1}")
        k("s_lshl_b32 s36, s5, 8")
        k(f"s_add_u32 s36, s36, {LTAB}")
        k(f"v_permlane32_swap_b32 v{S}, v{S+2}")
        k(f"v_permlane32_swap_b32 v{S+1}, v{S+3}")
        k(f"v_pk_add_f32 {r(S,2)}, {r(S,2)}, {r(S+2,2)}")
        k("v_lshl_add_u32 v10, v2, 2, s36")
        k(f"v_mov_b32 v{S+2}, {hexf(1.0/n)}")
        k(f"v_fmaak_f32 v8, v{S}, v{S+2}, {hexf(-bias_s/n)}")
        k(f"v_fmaak_f32 v9, v{S+1}, v{S+2}, {hexf(1e-5 - bias_q/n)}")
        k("v_fma_f32 v9, -v8, v8, v9")
        k("v_rsq_f32 v11, v9")
        k.nop(1)
        k("v_mul_f32 v9, v8, v11")
        k("v_sub_f32 v9, 0, v9")
        k("v_mov_b32 v8, v11")
        k("ds_write_b32 v10, v8")
        k("ds_write_b32 v10, v9 offset:128")
    for var in range(2):
        if var == 1: k.label("k2_p4B")
        types = ("z2", "z2", "z1") if var == 0 else ("z2", "z1", "z1")
        for i in range(40):
            b = WB + 12 * (i & 1); a = ACT + 4 * (i % NR)
            if i == 12: k("s_barrier")
            k(f"s_waitcnt vmcnt({min(AH-1, 39 - i)}) lgkmcnt(0)")
            if os.environ.get("FINE4") and i in (0, 6, 13, 26): k.stamp({0: 2, 6: 3, 13: 4, 26: 5}[i])
            for j in range(3):
                c = "0" if i == 0 else r(A0 + 16 * j, 16)
                x, y = (r(a), r(b + 4 * j)) if types[j] == "z2" else (r(b + 4 * j), r(a))
                k(f"v_mfma_f32_32x32x16_bf16 {r(A0+16*j,16)}, {x}, {y}, {c}")
                if j == 0 and i < 39: rd(i + 1)
                if j == 1 and i + AH < 40: ld(i + AH)
            if i == 21:
                k(f"v_pk_add_f32 {r(ST,2)}, {r(ST,2)}, {r(ST+2,2)}")
                k(f"v_pk_add_f32 {r(ST+4,2)}, {r(ST+4,2)}, {r(ST+6,2)}")
                k(f"v_pk_add_f32 {r(ST,2)}, {r(ST,2)}, {r(ST+4,2)}")
                rowtab(ST, 640, 0.0, 0.0)
                k("s_waitcnt lgkmcnt(0)")
        k("s_barrier")
        if not os.environ.get("FINE1") and not os.environ.get("FINE5"): k.stamp(7)
        RR, NN, CC, SS, QQ, T, CV = 16, 32, 48, 128, 144, 56, 160
        nz2 = types.count("z2")
        k("v_lshl_add_u32 v10, v3, 4, s36")
        k("v_lshlrev_b32 v11, 2, v2")
        def rd_tab():
            for a in range(4):
                k(f"ds_read_b128 {r(RR+4*a)}, v10 offset:{a*32}")
                k(f"ds_read_b128 {r(NN+4*a)}, v10 offset:{128 + a*32}")
        rd_tab()
        for n in range(nz2):
            k(f"ds_read_b32 v{CC+2*n}, v11 offset:{LC1 + n*128}")
            k(f"ds_read_b32 v{CC+2*n+1}, v11 offset:{LC2 + n*128}")
        k.srd(60, 8, 9, STP, STP_SZ)
        k.srd(64, 8, 9, Z1, Z_SZ)
        k.srd(68, 8, 9, Z2, Z_SZ)
        k("v_lshlrev_b32 v15, 4, v3")
        def rd_c(n):
            for a in range(4):
                k(f"ds_read_b128 {r(CV+4*a)}, v15 offset:{LC1 + n*128 + a*32}")
                k(f"ds_read_b128 {r(CV+16+4*a)}, v15 offset:{LC2 + n*128 + a*32}")
        k("s_waitcnt lgkmcnt(0)")
        rd_c(nz2)
        for n in range(nz2):
            X = A0 + 16 * n; c = r(CC + 2 * n, 2)
            for i in range(8): k(f"v_pk_fma_f32 {r(T+2*i,2)}, {r(NN+2*i,2)}, {c}, {c} op_sel:[0,0,1] op_sel_hi:[1,0,1]")
            for i in range(8): k(f"v_pk_fma_f32 {r(X+2*i,2)}, {r(X+2*i,2)}, {r(RR+2*i,2)}, {r(T+2*i,2)}")
            gelu(k, X, T, 8)
            for i in range(8):
                if n == 0: k(f"v_pk_mul_f32 {r(QQ+2*i,2)}, {r(X+2*i,2)}, {r(X+2*i,2)}")
                else: k(f"v_pk_fma_f32 {r(QQ+2*i,2)}, {r(X+2*i,2)}, {r(X+2*i,2)}, {r(QQ+2*i,2)}")
        for i in range(8):
            if nz2 == 2: k(f"v_pk_add_f32 {r(SS+2*i,2)}, {r(A0+2*i,2)}, {r(A0+16+2*i,2)}")
            else: k(f"v_pk_mul_f32 {r(SS+2*i,2)}, {r(A0+2*i,2)}, 1.0 op_sel_hi:[1,0]")
        k("v_and_b32 v4, 3, v0")
        k("v_bfe_u32 v5, v0, 2, 2")
        for i in range(16): k(f"v_permlane16_swap_b32 v{SS+i}, v{QQ+i}")
        for i in range(16): k(f"v_add_f32 v{SS+i}, v{SS+i}, v{QQ+i}")
        for j in range(8): k(f"v_add_f32_dpp v{SS+j}, v{SS+j}, v{SS+j} row_ror:8 row_mask:0xf bank_mask:0x3")
        for j in range(8): k(f"v_add_f32_dpp v{SS+j}, v{SS+8+j}, v{SS+8+j} row_ror:8 row_mask:0xf bank_mask:0xc")
        for j in range(4): k(f"v_add_f32_dpp v{SS+j}, v{SS+j}, v{SS+j} row_half_mirror row_mask:0xf bank_mask:0x5")
        for j in range(4): k(f"v_add_f32_dpp v{SS+j}, v{SS+4+j}, v{SS+4+j} row_half_mirror row_mask:0xf bank_mask:0xa")
        for j in range(4): k(f"v_add_f32_dpp v{SS+j}, v{SS+j}, v{SS+j} quad_perm:[2,3,0,1] row_mask:0xf bank_mask:0xf")
        for j in range(4): k(f"v_add_f32_dpp v{SS+j}, v{SS+j}, v{SS+j} quad_perm:[1,0,3,2] row_mask:0xf bank_mask:0xf")
        k("v_lshl_add_u32 v4, v5, 3, v4")
        k("v_lshl_add_u32 v4, v3, 2, v4")
        k("v_lshlrev_b32 v4, 3, v4")
        k("v_bfe_u32 v5, v0, 4, 1")
        k("v_lshl_add_u32 v4, v5, 2, v4")
        k("v_cvt_f32_u32 v5, v5")
        k(f"v_fmaak_f32 v5, {hexf(-15.0)}, v5, {hexf(16.0)}" if False else f"v_mul_f32 v5, {hexf(-15.0)}, v5")
        k(f"v_add_f32 v5, {hexf(16.0)}, v5")
        for j in range(1, 4):
            m = hex(0x11111111 << j)
            k(f"s_mov_b32 s40, {m}")
            k(f"s_mov_b32 s41, {m}")
            k(f"v_cndmask_b32 v{SS}, v{SS}, v{SS+j}, s[40:41]")
        k(f"s_lshl_b32 s37, s{RB128}, 14")
        k("s_lshl_b32 s38, s5, 8")
        k("s_add_u32 s37, s37, s38")
        k(f"s_lshl_b32 s38, s{CB16}, 10")
        k("s_add_u32 s38, s38, s37")
        k(f"v_add_f32 v{SS}, v{SS}, v5")
        stores(k, [f"buffer_store_dword v{SS}, v4, s[60:63], s38 offen"])
        k("s_mul_i32 s39, s6, 24")
        k(f"s_mul_i32 s38, s{CB8}, 3")
        k("s_add_u32 s39, s39, s38")
        k(f"s_add_u32 s39, s39, {var}")
        k("s_lshl_b32 s39, s39, 11")
        for n in range(nz2, 3):
            X = A0 + 16 * n
            k("s_waitcnt lgkmcnt(0)")
            for i in range(8):
                k(f"v_pk_fma_f32 {r(T+2*i,2)}, v[8:9], {r(CV+2*i,2)}, {r(CV+16+2*i,2)} op_sel:[1,0,0] op_sel_hi:[1,1,1]")
            if n < 2: rd_c(n + 1)
            for i in range(8):
                k(f"v_pk_fma_f32 {r(X+2*i,2)}, {r(X+2*i,2)}, v[8:9], {r(T+2*i,2)} op_sel_hi:[1,0,1]")
            gelu(k, X, T, 8)
            P = SS + 8 * (n - nz2)
            for i in range(8): k(f"v_cvt_pk_bf16_f32 v{P+i}, v{X+2*i}, v{X+2*i+1}")
            if n < 2:
                for ap in range(2):
                    k(f"buffer_store_dwordx4 {r(P+4*ap)}, v1, s[64:67], s39 offen offset:{(n-nz2)*2048 + ap*1024} {Z_SC}")
        G = CV
        k("v_lshlrev_b32 v4, 3, v2")
        k("v_lshl_add_u32 v4, v3, 13, v4")
        k("s_add_u32 s38, s37, 4096")
        k("s_mov_b32 s42, 0")
        lab = f"k2_st{var}"
        k.label(lab)
        for i in range(8):
            k(f"buffer_load_dwordx2 {r(G+2*i,2)}, v4, s[60:63], {'s37' if i < 4 else 's38'} offen offset:{(i&3)*1024} sc1")
        k("s_cmp_lg_u32 s42, 0")
        k(f"s_cbranch_scc1 {lab}_w0")
        for ap in range(2):
            k(f"buffer_store_dwordx4 {r(P+4*ap)}, v1, s[64:67], s39 offen offset:{(2-nz2)*2048 + ap*1024} {Z_SC}")
        k("s_waitcnt vmcnt(2)")
        k(f"s_branch {lab}_w1")
        k.label(lab + "_w0")
        k("s_waitcnt vmcnt(0)")
        k.label(lab + "_w1")
        k("s_add_u32 s42, s42, 1")
        k(f"v_min3_u32 v5, v{G}, v{G+1}, v{G+2}")
        for i in range(6): k(f"v_min3_u32 v5, v5, v{G+3+2*i}, v{G+4+2*i}")
        k(f"v_min_u32 v5, v5, v{G+15}")
        k("v_cmp_ne_u32 vcc, 0, v5")
        k("s_cmp_eq_u64 vcc, -1")
        k(f"s_cbranch_scc1 {lab}_ok")
        k("s_sleep 1")
        k(f"s_cmp_lt_u32 s42, {SPIN}")
        k(f"s_cbranch_scc1 {lab}")
        k.label(lab + "_ok")
        for a, b_ in ((0, 2), (4, 6), (8, 10), (12, 14), (0, 4), (8, 12), (0, 8)):
            k(f"v_pk_add_f32 {r(G+a,2)}, {r(G+a,2)}, {r(G+b_,2)}")
        rowtab(G, 768, 256.0, 16.0)
        k("v_lshl_add_u32 v10, v3, 4, s36")
        k(f"s_lshl_b32 s37, s{CB8}, 7")
        k("s_lshl_b32 s38, s6, 1")
        k("s_add_u32 s37, s37, s38")
        k("s_mul_i32 s37, s37, 3072")
        k(f"s_add_u32 s37, s37, {2048*var}")
        k("s_add_u32 s38, s37, 3072")
        k("s_waitcnt lgkmcnt(0)")
        rd_tab()
        k("s_waitcnt lgkmcnt(0)")
        for n in range(nz2):
            X = A0 + 16 * n; P = T + 8 * n
            for i in range(8): k(f"v_pk_fma_f32 {r(X+2*i,2)}, {r(X+2*i,2)}, {r(RR+2*i,2)}, {r(NN+2*i,2)}")
            for i in range(8): k(f"v_cvt_pk_bf16_f32 v{P+i}, v{X+2*i}, v{X+2*i+1}")
            k.nop(1)
            for h in range(2):
                k(f"v_permlane32_swap_b32 v{P+4*h}, v{P+4*h+2}")
                k(f"v_permlane32_swap_b32 v{P+4*h+1}, v{P+4*h+3}")
                k(f"buffer_store_dwordx4 {r(P+4*h)}, v1, s[68:71], {'s37' if h == 0 else 's38'} offen offset:{n*1024} {Z_SC}")
        if var == 0: k("s_branch k2_zdone")
    k.label("k2_zdone")
    k(f"s_lshl_b32 s37, s{RB128}, 4")
    k(f"s_add_u32 s37, s37, s{CB16}")
    k("s_lshl_b32 s37, s37, 7")
    k(f"s_add_u32 s37, s37, {F4 - FL}")
    k("s_waitcnt vmcnt(0)")
    k("s_barrier")
    setflag(k, 16, "s37", "k2_f4done")
    if os.environ.get("FINE5"): k.stamp(7)
    from k56 import gen_k56
    gen_k56(k, RB, CB8, W3)
    k.label("k2_loader")
    k.srd(56, 8, 9, C1, 12288)
    k(f"s_lshl_b32 s10, s{W3}, 10")
    k("s_waitcnt vmcnt(0) lgkmcnt(0)")
    k("s_barrier")
    if not (os.environ.get("FINE1") or os.environ.get("FINE2")): k.stamp(4)
    def win(base, n):
        k(f"s_add_u32 m0, s10, {base}")
        for i in range(n):
            k.nop(1)
            k("buffer_load_dwordx4 v1, s[72:75], m0 offen sc1 lds")
            if i < n - 1: k("s_add_u32 m0, m0, 4096")
    k("s_barrier")
    win(143360, 5)
    k("s_barrier")
    win(40960, 15)
    if not (os.environ.get("FINE1") or os.environ.get("FINE2")): k.stamp(5)
    k(f"s_mul_i32 s11, s{CB16}, 384")
    k("s_and_b32 s36, s5, 1")
    k("s_mul_i32 s37, s36, 6144")
    k("s_add_u32 s11, s11, s37")
    k("s_lshl_b32 m0, s36, 10")
    k("s_barrier")
    k("buffer_load_dwordx4 v1, s[56:59], s11 offen sc1 lds")
    k("s_waitcnt vmcnt(0)")
    if not (os.environ.get("FINE1") or os.environ.get("FINE2")): k.stamp(6)
    k("s_barrier")
    k("s_barrier")
    k("s_branch k5_loader")
    k.label("k2_end")
    k("s_endpgm")
    k.label("k2_blk5")
    k("s_lshl_b32 s37, s2, 2")
    k(f"s_add_u32 s37, s37, {FS - FL}")
    k("s_waitcnt vmcnt(0)")
    k("s_barrier")
    setflag(k, 16, "s37", "k2_fsdone", 172)
    k("s_cmp_ge_u32 s5, 4")
    k("s_cbranch_scc1 k2_blk5b")
    def wo_burst(first, n):
        k(f"s_lshl_b32 m0, s{W3}, 10")
        k(f"s_add_u32 m0, m0, {first}")
        for i in range(n):
            k.nop(1)
            k("buffer_load_dwordx4 v1, s[32:35], m0 offen sc1 lds")
            if i < n - 1: k("s_add_u32 m0, m0, 4096")
    wo_burst(0, 13)
    k("s_branch k2_loop")
    k.label("k2_blk5b")
    k.srd(68, 8, 9, 0, WS_END)
    k("v_lshrrev_b32 v176, 4, v1")
    k(f"s_mul_i32 s54, s{CB8}, 10")
    k("v_min_u32 v177, 19, v176")
    k("v_lshrrev_b32 v178, 1, v177")
    k("v_add_u32 v178, s54, v178")
    k("v_and_b32 v177, 1, v177")
    k("v_lshlrev_b32 v177, 7, v177")
    k("v_and_b32 v179, 3, v178")
    k("v_lshl_add_u32 v177, v179, 8, v177")
    k("v_lshrrev_b32 v178, 2, v178")
    k("v_lshl_add_u32 v177, v178, 12, v177")
    k(f"s_mul_i32 s54, s{RB}, 81920")
    k(f"s_lshl_b32 s55, s{W3}, 10")
    k("s_add_u32 s54, s54, s55")
    k(f"s_add_u32 s54, s54, {O}")
    k("buffer_load_dword v172, v177, s[68:71], s54 offen sc1")
    k(f"s_mul_i32 s54, s{W3}, 20")
    k("v_min_u32 v178, 19, v176")
    k("v_add_u32 v178, s54, v178")
    k("v_and_b32 v179, 15, v178")
    k("v_lshlrev_b32 v179, 7, v179")
    k("v_lshrrev_b32 v178, 4, v178")
    k("v_lshl_add_u32 v178, v178, 12, v179")
    k(f"s_mul_i32 s54, s{RB128}, 40")
    k(f"s_mul_i32 s55, s{CB8}, 5")
    k("s_add_u32 s54, s54, s55")
    k("s_lshl_b32 s54, s54, 1")
    k(f"s_add_u32 s54, s54, s{VV}")
    k("s_lshl_b32 s54, s54, 11")
    k(f"s_add_u32 s54, s54, {X1}")
    k("buffer_load_dword v173, v178, s[68:71], s54 offen sc1")
    k(f"s_lshl_b32 s54, s{RB}, 3")
    k(f"s_add_u32 s54, s54, s{CB8}")
    k("s_lshl_b32 s54, s54, 2")
    k(f"s_add_u32 s54, s54, s{W3}")
    k("s_lshl_b32 s54, s54, 7")
    k(f"s_add_u32 s54, s54, {SP2}")
    k("buffer_load_dword v174, off, s[68:71], s54 sc1")
    k(f"s_lshl_b32 s54, s{RB128}, 4")
    k(f"s_add_u32 s54, s54, s{CB16}")
    k("s_lshl_b32 s54, s54, 2")
    k(f"s_add_u32 s54, s54, s{W3}")
    k("s_lshl_b32 s54, s54, 8")
    k(f"s_add_u32 s54, s54, {STP}")
    k("buffer_load_dword v175, off, s[68:71], s54 sc1")
    k("buffer_load_dword v175, off, s[68:71], s54 offset:128 sc1")
    k("s_branch k2_loop")
    k.label("k2_blk6")
    k.srd(68, 8, 9, WINF, WINF_SZ)
    k("s_mul_i32 s53, s53, 7680")
    k("s_add_u32 s54, s53, 4096")
    for i in range(8 if PF_WIN else 0): k(f"buffer_load_dwordx4 v[172:175], v1, s[68:71], {'s53' if i < 4 else 's54'} offen offset:{(i&3)*1024} sc1")
    k("s_cmp_lt_u32 s5, 4")
    k("s_cbranch_scc1 k2_blk6a")
    wo_burst(53248, 12)
    k("s_branch k2_loop")
    k.label("k2_blk6a")
    k("v_bfe_u32 v176, v0, 4, 2")
    k("v_and_b32 v177, 15, v0")
    k(f"s_lshl_b32 s59, s{RB}, 2")
    k("s_add_u32 s59, s59, s5")
    k("v_mul_u32_u24 v178, 1280, v177")
    k("v_lshl_add_u32 v178, v176, 3, v178")
    k("s_mul_i32 s60, s59, 20480")
    k(f"s_mul_i32 s61, s{CB8}, 160")
    k("s_add_u32 s60, s60, s61")
    k("v_lshlrev_b32 v179, 4, v176")
    k(f"s_mul_i32 s38, s{CB8}, 320")
    k.srd(52, 44, 45, 0, ACT_SZ)
    k.srd(56, 8, 9, MOD + 5120, 2560)
    for j in range(5): k(f"buffer_load_dwordx2 {r(120+2*j,2)}, v178, s[52:55], s60 offen offset:{j*32}")
    for j in range(5): k(f"buffer_load_dwordx4 {r(132+4*j)}, v179, s[56:59], s38 offen offset:{j*64} sc1")
    k("s_cmp_lg_u32 s5, 0")
    k("s_cbranch_scc1 k2_loop")
    k(f"s_movk_i32 s37, {hex(FS - FL)}")
    k(f"buffer_load_dwordx4 v[168:171], v1, s[16:19], s37 offen sc1")
    k("s_branch k2_loop")
    k.label("k2_sideld")
    k("s_lshl_b32 s52, s2, 3")
    k("s_add_u32 s52, s52, s5")
    k("s_lshr_b32 s53, s2, 3")
    k("s_lshl_b32 s53, s53, 3")
    k("s_add_u32 s53, s53, s5")
    k.srd(56, 48, 49, 0, 640 * 3072)
    k.srd(64, 8, 9, MOD + 7680, 5120)
    k("s_mul_i32 s62, s52, 1639")
    k("s_lshr_b32 s62, s62, 16")
    k("s_mul_i32 s63, s62, 40")
    k("s_sub_u32 s63, s52, s63")
    k("s_mul_i32 s68, s63, 49152")
    k("s_lshl_b32 s69, s62, 6")
    k("s_add_u32 s68, s68, s69")
    k("s_cmp_lt_u32 s52, 1920")
    k("s_cselect_b32 s70, 0, 0x40000000")
    k("s_add_u32 s68, s68, s70")
    k("v_mul_u32_u24 v15, 24576, v3")
    k("v_lshl_add_u32 v15, v2, 1, v15")
    for j in range(8):
        k(f"buffer_load_ushort v{136+j}, v15, s[56:59], s68 offen")
        if j < 7: k("s_add_u32 s68, s68, 3072")
    k("s_lshl_b32 s68, s63, 6")
    k("v_lshlrev_b32 v15, 5, v3")
    k(f"buffer_load_dwordx4 {r(144)}, v15, s[64:67], s68 offen sc1")
    k(f"buffer_load_dwordx4 {r(148)}, v15, s[64:67], s68 offen offset:16 sc1")
    k(f"buffer_load_dwordx4 {r(152)}, v15, s[64:67], s68 offen offset:2560 sc1")
    k(f"buffer_load_dwordx4 {r(156)}, v15, s[64:67], s68 offen offset:2576 sc1")
    k("s_cmp_ge_u32 s62, 24")
    k("s_cselect_b32 s68, 24, 0")
    k("s_cselect_b32 s71, 0x310, 0")
    k("s_cselect_b32 s72, 0, 0x542")
    k("s_or_b32 s71, s71, s72")
    k("s_sub_u32 s62, s62, s68")
    k("s_mul_i32 s68, s62, 86")
    k("s_lshr_b32 s68, s68, 8")
    k("s_mul_i32 s69, s68, 3")
    k("s_sub_u32 s69, s62, s69")
    k("s_lshl_b32 s69, s69, 2")
    k("s_lshr_b32 s71, s71, s69")
    k("s_and_b32 s71, s71, 15")
    k("s_mul_i32 s62, s68, 6")
    k("s_add_u32 s62, s62, s71")
    k("s_mul_i32 s68, s62, 86")
    k("s_lshr_b32 s68, s68, 8")
    k("s_mul_i32 s69, s68, 3")
    k("s_sub_u32 s69, s62, s69")
    k("s_mul_i32 s68, s68, 40")
    k("s_add_u32 s68, s68, s63")
    k("s_mul_i32 s68, s68, 3")
    k("s_add_u32 s68, s68, s69")
    k("s_lshl_b32 s68, s68, 10")
    k("s_add_u32 s63, s68, s70")
    k("s_lshl_b32 s62, s62, 7")
    k("s_add_u32 s62, s62, s70")
    k.srd(56, 46, 47, 0, 983040)
    k("s_mul_i32 s69, s52, 2731")
    k("s_lshr_b32 s69, s69, 16")
    k("s_mul_i32 s73, s69, 24")
    k("s_sub_u32 s68, s52, s73")
    k("s_cmp_lt_u32 s52, 960")
    k("s_cselect_b32 s70, 0, 0x40000000")
    k("s_mul_i32 s73, s68, 40960")
    k("s_lshl_b32 s74, s69, 5")
    k("s_add_u32 s73, s73, s74")
    k("s_add_u32 s73, s73, s70")
    k("s_add_u32 s74, s73, 5120")
    k("v_bfe_u32 v15, v0, 4, 2")
    k("v_mul_u32_u24 v15, 10240, v15")
    k("v_and_b32 v160, 15, v0")
    k("v_lshl_add_u32 v15, v160, 1, v15")
    for j in range(8):
        k(f"buffer_load_ushort v{160+j}, v15, s[56:59], {'s73' if j < 4 else 's74'} offen offset:{(j&3)*1280}")
    k("s_mul_i32 s73, s69, 52")
    k("s_lshr_b32 s73, s73, 8")
    k("s_mul_i32 s74, s73, 5")
    k("s_sub_u32 s74, s69, s74")
    k("s_mul_i32 s73, s73, 24")
    k("s_add_u32 s73, s73, s68")
    k("s_mul_i32 s73, s73, 5")
    k("s_add_u32 s73, s73, s74")
    k("s_lshl_b32 s73, s73, 10")
    k("s_add_u32 s60, s73, s70")
    k.srd(56, 50, 51, 0, WSPF_SZ)
    k("s_lshl_b32 s54, s3, 3")
    k("s_lshr_b32 s55, s53, 5")
    k("s_add_u32 s54, s54, s55")
    k("s_and_b32 s55, s53, 31")
    k("s_lshl_b32 s68, s54, 17")
    k("s_lshl_b32 s69, s55, 7")
    k("s_add_u32 s68, s68, s69")
    k("s_lshr_b32 s61, s54, 1")
    k("s_lshl_b32 s61, s61, 18")
    k("s_lshl_b32 s69, s55, 13")
    k("s_add_u32 s61, s61, s69")
    k("s_and_b32 s69, s54, 1")
    k("s_lshl_b32 s69, s69, 10")
    k("s_add_u32 s61, s61, s69")
    k("v_lshlrev_b32 v15, 12, v2")
    k("v_lshl_add_u32 v15, v3, 4, v15")
    for q in range(4):
        k(f"buffer_load_dwordx4 {r(120+4*q)}, v15, s[56:59], s68 offen offset:{q*32}")
    k("s_branch k2_cont")
    k.label("k2_side")
    k.srd(64, 8, 9, WSPF, WSPF_SZ)
    k.srd(68, 8, 9, WINF, WINF_SZ)
    k.srd(72, 8, 9, C1, 12288)
    k.srd(56, 8, 9, WOUTF, WOUTF_SZ)
    k("s_add_u32 s54, s61, 4096")
    k("s_waitcnt vmcnt(0)")
    for j in range(4):
        k(f"v_lshl_or_b32 v{160+j}, v{161+2*j}, 16, v{160+2*j}")
    k(f"buffer_store_dwordx4 {r(160)}, v1, s[56:59], s60 offen {SIDE_SC}")
    for j in range(8): k(f"v_lshlrev_b32 v{136+j}, 16, v{136+j}")
    k("v_mul_f32 v165, v136, v144")
    for j in range(1, 8): k(f"v_fmac_f32 v165, v{136+j}, v{144+j}")
    for j in range(8): k(f"v_mul_f32 v{136+j}, v{136+j}, v{152+j}")
    for j in range(4): k(f"v_cvt_pk_bf16_f32 v{144+j}, v{136+2*j}, v{137+2*j}")
    k(f"buffer_store_dwordx4 {r(144)}, v1, s[68:71], s63 offen {SIDE_SC}")
    for j in range(4):
        k(f"v_lshlrev_b32 v{136+2*j}, 16, v{144+j}")
        k(f"v_and_b32 v{137+2*j}, 0xffff0000, v{144+j}")
    for a, b in ((136, 137), (138, 139), (140, 141), (142, 143), (136, 138), (140, 142)):
        k(f"v_add_f32 v{a}, v{a}, v{b}")
    k("v_add_f32 v164, v136, v140")
    k("v_mul_u32_u24 v166, 6144, v3")
    k("v_lshl_add_u32 v166, v2, 2, v166")
    k("v_permlane32_swap_b32 v164, v165")
    k("v_add_f32 v164, v164, v165")
    k("buffer_atomic_add_f32 v164, v166, s[72:75], s62 offen")
    for q in range(4 if not os.environ.get("NOWSP") else 0):
        k(f"buffer_store_dwordx4 {r(120+4*q)}, v1, s[64:67], {'s61' if q < 2 else 's54'} offen offset:{(q&1)*2048} {SIDE_SC}")
    k("s_branch k2_cont")
    k.label("k2_slow")
    T = S1
    k(f"v_subrev_u32 v{AK2}, 143360, v{AK2}")
    k(f"v_subrev_u32 v{AV}, 143360, v{AV}")
    k(f"v_mov_b32 v{T}, 0xff800000")
    k("s_mov_b32 s42, 0")
    def ldK():
        k(f"buffer_load_dwordx4 {r(KF1[0])}, v1, s[20:23], s42 offen sc1")
        k(f"buffer_load_dwordx2 {r(KF2[0],2)}, v{AK2}, s[20:23], s42 offen sc1")
    k.label("k2_slow1")
    ldK()
    k("s_waitcnt vmcnt(0)")
    k(f"v_mfma_f32_32x32x16_bf16 {r(S0,16)}, {r(KF1[0])}, {r(QA)}, 0")
    k(f"v_mfma_f32_32x32x16_bf16 {r(S0,16)}, {r(KF2[0])}, {r(QB)}, {r(S0,16)}")
    k.nop(12)
    for i in range(8): k(f"v_max3_f32 v{T}, v{T}, v{S0+2*i}, v{S0+2*i+1}")
    k("s_add_u32 s42, s42, 2560")
    k("s_cmp_lt_u32 s42, 163840")
    k("s_cbranch_scc1 k2_slow1")
    k(f"v_mov_b32 v{T+1}, v{T}")
    k("s_mov_b32 s42, 0")
    k.nop(1)
    k(f"v_permlane32_swap_b32 v{T}, v{T+1}")
    k(f"v_max_f32 v{T}, v{T}, v{T+1}")
    for i in range(16): k(f"v_sub_f32 v{CM+i}, 0, v{T}")
    for i in range(16): k(f"v_mov_b32 v{OO+i}, 0")
    k.label("k2_slow2")
    ldK()
    k("s_mov_b64 exec, s[40:41]")
    k(f"buffer_load_dwordx4 {r(VF[0])}, v{AV}, s[20:23], s42 offen sc1")
    k(f"buffer_load_dwordx4 {r(VF[0]+4)}, v{AV}, s[20:23], s42 offen offset:640 sc1")
    k("s_mov_b64 exec, -1")
    k("s_waitcnt vmcnt(0)")
    k(f"v_mfma_f32_32x32x16_bf16 {r(S0,16)}, {r(KF1[0])}, {r(QA)}, {r(CM,16)}")
    k(f"v_mfma_f32_32x32x16_bf16 {r(S0,16)}, {r(KF2[0])}, {r(QB)}, {r(S0,16)}")
    k.nop(12)
    for i in range(16): k(f"v_exp_f32 v{S0+i}, v{S0+i}")
    k.nop(1)
    for i in range(8): k(f"v_cvt_pk_bf16_f32 v{PP+i}, v{S0+2*i}, v{S0+2*i+1}")
    k.nop(2)
    k(f"v_mfma_f32_32x32x16_bf16 {r(OO,16)}, {r(VF[0])}, {r(PP)}, {r(OO,16)}")
    k(f"v_mfma_f32_32x32x16_bf16 {r(OO,16)}, {r(VF[0]+4)}, {r(PP+4)}, {r(OO,16)}")
    k("s_add_u32 s42, s42, 2560")
    k("s_cmp_lt_u32 s42, 163840")
    k("s_cbranch_scc1 k2_slow2")
    k.nop(12)
    k("s_branch k2_epi")
    return k
```

```python
from asmlib import Kern
from layout import *
from k0 import hexf
from k234 import poll, poll_missing, hint, stores, setflag, x1_addr, gemm80_resident, resid, r
import os

SLOT = 20480; BLK = 5120
K56_LDS = 163840
A0 = 16; ZB = 64; Z1R = 96; BSP = 108
KIDX = int(os.environ.get('KIDX', '1'))
THR = int(os.environ.get('THR', '5'))
ROTW = int(os.environ.get("K5ROTW", "0"))

def gen_k56(k, RB, CB8, W3):
    k.label("k5_compute")
    k(f"s_mov_b32 s3, s{RB}")
    k(f"s_mov_b32 s4, s{CB8}")
    k("v_and_b32 v2, 31, v0")
    k("v_bfe_u32 v3, v0, 5, 1")
    k("s_and_b32 s6, s5, 1")
    k("s_lshl_b32 s34, s3, 1")
    k("s_add_u32 s34, s34, s6")
    k("s_lshr_b32 s33, s5, 1")
    k("s_mul_i32 s36, s34, 24")
    k("s_mul_i32 s37, s4, 3")
    k("s_add_u32 s36, s36, s37")
    k("s_lshl_b32 s36, s36, 1")
    k("s_add_u32 s36, s36, s33")
    k("s_lshl_b32 s36, s36, 10")
    k("s_add_u32 s37, s36, 4096")
    k("s_lshl_b32 s38, s34, 6")
    k("v_lshlrev_b32 v5, 1, v2")
    k(f"s_mul_i32 s39, s33, {2*BLK}")
    k("v_add_u32 v6, s39, v1")
    k(f"v_add_u32 v7, {2*SLOT}, v6")
    k("s_lshl_b32 s39, s6, 10")
    k("s_add_u32 s39, s39, 3072")
    k("v_add_u32 v8, s39, v6")
    k(f"v_add_u32 v9, {2*SLOT}, v8")
    for i in range(48): k(f"v_mov_b32 v{A0+i}, 0")
    k.srd(52, 8, 9, Z1, Z_SZ)
    k.srd(60, 44, 45, 0, 4096)
    def reads(s, q, par):
        sl = s & 3; o = (sl & 1) * SLOT + q * BLK; b = ZB + 16 * par
        for n in range(3): k(f"ds_read_b128 {r(b+4*n)}, {'v6' if sl < 2 else 'v7'} offset:{o + n*1024}")
        k(f"ds_read_b128 {r(b+12)}, {'v8' if sl < 2 else 'v9'} offset:{o}")
    k("s_barrier")
    k("s_barrier")
    if os.environ.get("FINE5"): k.stamp(2)
    reads(0, 0, 0)
    k(f"buffer_load_dwordx4 {r(Z1R)}, v1, s[52:55], s36 offen sc1")
    k(f"buffer_load_dwordx4 {r(Z1R+4)}, v1, s[52:55], s36 offen offset:2048 sc1")
    k(f"buffer_load_dwordx4 {r(Z1R+8)}, v1, s[52:55], s37 offen sc1")
    k(f"buffer_load_ushort v{BSP}, v5, s[60:63], s38 offen")
    k("v_bfe_u32 v204, v0, 4, 2")
    k("v_lshlrev_b32 v207, 4, v204")
    k("s_mul_i32 s41, s4, 320")
    k.srd(56, 8, 9, MOD + 12800, 2560)
    for j in range(5): k(f"buffer_load_dwordx4 {r(184+4*j)}, v207, s[56:59], s41 offen offset:{j*64} sc1")
    k("s_mov_b32 s43, 0")
    k.lines.append(".p2align 6")
    k.label("k5_loop")
    for s in range(4):
        for q in range(2):
            b = ZB + 16 * q
            k("s_waitcnt lgkmcnt(0)")
            if q == 1:
                if s == 3:
                    k("s_add_u32 s43, s43, 1")
                    k("s_cmp_eq_u32 s43, 8")
                    k("s_cbranch_scc1 k5_last")
                k("s_barrier")
            for n in range(3):
                k(f"v_mfma_f32_32x32x16_bf16 {r(A0+16*n,16)}, {r(b+4*n)}, {r(b+12)}, {r(A0+16*n,16)}")
                if n == 0:
                    if q == 1: reads(s + 1, 0, 0)
                    else: reads(s, 1, 1)
    k("s_branch k5_loop")
    k.label("k5_last")
    b = ZB + 16
    for n in range(3):
        k(f"v_mfma_f32_32x32x16_bf16 {r(A0+16*n,16)}, {r(b+4*n)}, {r(b+12)}, {r(A0+16*n,16)}")
    if os.environ.get('FINE5'): k.stamp(3)
    k("s_barrier")
    k("s_mul_i32 s36, s5, 6144")
    k("s_add_u32 s36, s36, 40960")
    k("v_add_u32 v10, s36, v1")
    k("s_xor_b32 s36, s5, 2")
    k("s_mul_i32 s36, s36, 6144")
    k("s_add_u32 s36, s36, 40960")
    k("v_add_u32 v11, s36, v1")
    k.srd(52, 8, 9, Y, Z_SZ)
    k("s_mul_i32 s7, s3, 98304")
    k("s_mul_i32 s37, s4, 12288")
    k("s_add_u32 s36, s7, s37")
    k("s_lshl_b32 s37, s6, 11")
    k("s_add_u32 s36, s36, s37")
    k("s_lshl_b32 s37, s33, 9")
    k("s_add_u32 s36, s36, s37")
    k("s_add_u32 s37, s36, 4096")
    k("s_add_u32 s38, s36, 8192")
    k("v_lshrrev_b32 v12, 4, v2")
    k("v_lshlrev_b32 v12, 10, v12")
    k("v_lshl_add_u32 v12, v3, 8, v12")
    k("v_and_b32 v13, 15, v0")
    k("v_lshl_add_u32 v12, v13, 4, v12")
    k("s_waitcnt vmcnt(0)")
    k(f"v_lshlrev_b32 v14, 16, v{BSP}")
    k("s_cmp_eq_u32 s33, 0")
    k("s_cbranch_scc0 k5_e1")
    for kh in range(2):
        if kh == 1: k.label("k5_e1")
        keep = 8 * kh; send = 8 * (1 - kh)
        for n in range(3):
            k(f"ds_write_b128 v10, {r(A0+16*n+send)} offset:{n*2048}")
            k(f"ds_write_b128 v10, {r(A0+16*n+send+4)} offset:{n*2048+1024}")
        U = ZB
        for i in range(12):
            k(f"v_lshlrev_b32 v{U+2*i}, 16, v{Z1R+i}")
            k(f"v_and_b32 v{U+2*i+1}, 0xffff0000, v{Z1R+i}")
        for n in range(3):
            for i in range(4):
                a = A0 + 16 * n + keep + 2 * i
                k(f"v_pk_add_f32 {r(a,2)}, {r(a,2)}, v[14:15] op_sel_hi:[1,0]")
        k("s_waitcnt lgkmcnt(0)")
        k("s_barrier")
        for n in range(3):
            k(f"ds_read_b128 {r(A0+16*n+send)}, v11 offset:{n*2048}")
            k(f"ds_read_b128 {r(A0+16*n+send+4)}, v11 offset:{n*2048+1024}")
        for n in range(3):
            k(f"s_waitcnt lgkmcnt({4-2*n})")
            for i in range(4):
                a = A0 + 16 * n + keep + 2 * i
                k(f"v_pk_add_f32 {r(a,2)}, {r(a,2)}, {r(A0+16*n+send+2*i,2)}")
            for i in range(4):
                a = A0 + 16 * n + keep + 2 * i
                k(f"v_pk_mul_f32 {r(a,2)}, {r(a,2)}, {r(U+8*n+2*i,2)}")
            P = Z1R + 4 * n
            for i in range(4):
                a = A0 + 16 * n + keep + 2 * i
                k(f"v_cvt_pk_bf16_f32 v{P+i}, v{a}, v{a+1}")
            k.nop(2)
            k(f"v_permlane32_swap_b32 v{P}, v{P+2}")
            k(f"v_permlane32_swap_b32 v{P+1}, v{P+3}")
            stores(k, [f"buffer_store_dwordx4 {r(P)}, v12, s[52:55], s{36+n} offen"])
        if kh == 0: k("s_branch k5_p6")
    k.label("k5_p6")
    ACT, A6, WB3, XR_, GB_R, AD = 16, 112, (132, 152, 212), 232, 184, 204
    WB = 132
    k("s_lshl_b32 s36, s3, 10")
    k(f"s_add_u32 s36, s36, {F5 - FL}")
    k("s_lshl_b32 s37, s4, 7")
    k("s_add_u32 s37, s37, s36")
    k("s_waitcnt vmcnt(0)")
    k("s_barrier")
    setflag(k, 16, "s37", "k5_f5done", local=True)
    if os.environ.get('FINE5'): k.stamp(4)
    k("v_bfe_u32 v3, v0, 4, 2")
    k("v_and_b32 v5, 15, v0")
    k("s_lshl_b32 s6, s3, 2")
    k("s_add_u32 s6, s6, s5")
    k("s_lshl_b32 s10, s5, 10")
    k("s_add_u32 s7, s7, s10")
    k.srd(60, 46, 47, 0, ACT_SZ)
    k("s_mul_i32 s39, s5, 2816")
    k("s_add_u32 s39, s39, 69632")
    k("v_mul_u32_u24 v6, 176, v5")
    k("v_lshl_add_u32 v6, v3, 3, v6")
    k(f"v_add_u32 v{AD}, s39, v6")
    for i in range(3):
        k("v_lshrrev_b32 v6, 4, v1")
        k(f"v_add_u32 v6, {64*i}, v6")
        k("v_mul_u32_u24 v7, 205, v6")
        k("v_lshrrev_b32 v7, 11, v7")
        k("v_mul_u32_u24 v2, 10, v7")
        k("v_sub_u32 v6, v6, v2")
        k("v_lshlrev_b32 v6, 4, v6")
        k("v_mul_u32_u24 v2, 176, v7")
        k(f"v_add3_u32 v{AD+1+i}, v2, v6, s39")
        k("v_mul_u32_u24 v2, 1280, v7")
        k(f"v_add_u32 v{AD+4+i}, v6, v2")
        if i == 2:
            k("v_lshrrev_b32 v7, 4, v7")
            k(f"v_lshl_add_u32 v{AD+4+i}, v7, 30, v{AD+4+i}")
    k("s_mul_i32 s40, s6, 20480")
    k("s_mul_i32 s41, s4, 160")
    k("s_add_u32 s40, s40, s41")
    def w6():
        poll(k, "k5_p5", 16, "s36", 8, 10, 11)
        if os.environ.get('FINE5'): k.stamp(5)
    gemm80_resident(k, 24, list(range(24)), ACT, A6, WB3, 52, 7, lambda ks: ks * 5120 + (40960 if ks >= 8 else 0), w6, 4)
    if os.environ.get('FINE5'): k.stamp(6)
    k.nop(4)
    resid(k, A6, XR_, GB_R, WB)
    for j in range(5): k(f"ds_write_b64 v{AD}, {r(XR_+2*j,2)} offset:{j*32}")
    k("s_waitcnt lgkmcnt(0)")
    for i in range(3): k(f"ds_read_b128 {r(WB+4*i)}, v{AD+1+i}")
    for i in range(3):
        k(f"s_waitcnt lgkmcnt({2-i})")
        k(f"buffer_store_dwordx4 {r(WB+4*i)}, v{AD+4+i}, s[60:63], s40 offen")
    k.endpgm(KIDX)
    k.label("k5_loader")
    k(f"s_mov_b32 s3, s{RB}")
    k(f"s_mov_b32 s4, s{CB8}")
    k(f"s_mov_b32 s5, s{W3}")
    k("s_mul_i32 s34, s4, 393216")
    k(f"s_add_u32 s34, s34, {Z2}")
    k("s_lshl_b32 s35, s3, 18")
    k(f"s_add_u32 s35, s35, {WSPF}")
    k(f"s_mul_i32 s11, s5, {BLK}")
    k("s_mul_i32 s33, s4, 122880")
    k(f"s_add_u32 s33, s33, {WOUTF}")
    k("s_lshl_b32 s10, s5, 10")
    k.srd(52, 8, 9, "s34", 393216)
    k.srd(56, 8, 9, "s35", 262144)
    k.srd(60, 8, 9, "s33", 122880)
    k("s_mul_i32 s37, s5, 3072")
    k("s_lshl_b32 s36, s5, 11")
    def iz(sl):
        k(f"s_add_u32 m0, s11, {sl*SLOT}")
        k.nop(1)
        for j in range(3): k(f"buffer_load_dwordx4 v1, s[52:55], s37 offen offset:{j*1024} sc1 lds")
        k("s_add_u32 s37, s37, 12288")
    def iw(sl):
        k(f"s_add_u32 m0, s11, {sl*SLOT+3072}")
        k.nop(1)
        for j in range(2): k(f"buffer_load_dwordx4 v1, s[56:59], s36 offen offset:{j*1024} sc1 lds")
        k("s_add_u32 s36, s36, 8192")
    def issue(sl): iz(sl); iw(sl)
    iw(0); iw(1); iw(2)
    k("s_add_u32 s44, s10, 40960")
    for i in range(20):
        k("s_add_u32 m0, s44, 40960")
        k.nop(1)
        k("buffer_load_dwordx4 v1, s[60:63], s44 offen sc1 lds")
        k("s_add_u32 s44, s44, 4096")
        if THR: k(f"s_waitcnt vmcnt({THR})")
    k("v_and_b32 v10, 1, v0")
    k("v_bfe_u32 v11, v0, 1, 4")
    k("v_lshlrev_b32 v10, 7, v10")
    k("v_lshl_add_u32 v10, v11, 11, v10")
    k("s_lshl_b32 s39, s4, 8")
    k(f"s_add_u32 s39, s39, {F4 - FL}")
    k("s_barrier")
    k("s_cmp_lg_u32 s5, 0")
    k("s_cbranch_scc1 k5_p4_ok")
    poll_missing(k, "k5_p4", 16, ["s39"], 10, 11)
    k("s_barrier")
    if os.environ.get('FINE5'): k.stamp(2)
    iz(0); iz(1); iz(2)
    for s in range(4):
        k(f"s_waitcnt vmcnt({(6, 8, 10, 10)[s]})")
        k("s_barrier")
        issue((s + 3) & 3)
    k("s_mov_b32 s42, 0")
    k.lines.append(".p2align 6")
    k.label("k5_lloop")
    for s in range(4):
        k("s_waitcnt vmcnt(10)")
        k("s_barrier")
        issue((s + 3) & 3)
    k("s_add_u32 s42, s42, 1")
    k("s_cmp_lt_u32 s42, 6")
    k("s_cbranch_scc1 k5_lloop")
    def low(base, n):
        k(f"s_add_u32 m0, s10, {base}")
        for i in range(n):
            k.nop(1)
            k("buffer_load_dwordx4 v1, s[60:63], m0 offen sc1 lds")
            if i < n - 1: k("s_add_u32 m0, m0, 4096")
    k("s_waitcnt vmcnt(10)")
    k("s_barrier")
    issue(3)
    k.srd(64, 8, 9, Y, Z_SZ)
    k("s_mul_i32 s38, s3, 98304")
    k("s_mul_i32 s39, s4, 12288")
    k("s_add_u32 s38, s38, s39")
    k("s_mul_i32 s39, s5, 3072")
    k("s_add_u32 s38, s38, s39")
    k("v_lshrrev_b32 v10, 4, v1")
    k("v_min_u32 v10, 23, v10")
    k("v_lshlrev_b32 v10, 7, v10")
    k("buffer_load_dword v11, v10, s[64:67], s38 offen sc1")
    k("s_waitcnt vmcnt(10)")
    k("s_barrier")
    low(0, 5)
    k("s_waitcnt vmcnt(10)")
    k("s_barrier")
    low(20480, 5)
    k("s_waitcnt vmcnt(10)")
    k("s_barrier")
    k("s_barrier")
    k("s_barrier")
    k("s_waitcnt vmcnt(0)")
    k("s_barrier")
    k.endpgm(KIDX)
```

```python
MOD = 0x0000
MOD_SZ = 15360
KMAX = 0x3C00
ZR = 0x4000; ZR_SZ = 0x74000
C1 = 0x4000; C2 = 0x5800
FS = 0x7000; F2 = 0x50000; F3 = 0x58000; F5 = 0x60000; F4 = 0x68000; F1 = 0x70000; FL = FS; FL_SZ = 0x71000
STP = 0x10000; STP_SZ = 0x40000
KV = 0xAC0000; KV_SZ = 163840
MODP = 0x98000
MODP_ST = 0x3C00
WQF = 0xA8000; WQF_SZ = 983040
WOF = 0x198000; WOF_SZ = 819200
WOUTF = 0x260000; WOUTF_SZ = 983040
WINF = 0x350000; WINF_SZ = 1966080
ACT_SZ = 2621440; Z_SZ = 3145728
XN = 0x540000
Q = 0x840000
O = 0xCC0000; X1 = 0xF40000; Y = 0x11C0000
SP2 = 0x14C0000; SP2_SZ = 0x20000
Z1 = 0x1500000
Z2 = 0x1800000
WSPF = 0x1B00000; WSPF_SZ = 8388608
WS_END = 0x2300000
```

```python
from asmlib import Kern
from layout import *
from k0 import hexf, xsum16_32, rowred
import math, os

QSCALE = math.log2(math.e) / math.sqrt(20.0)
def r(b, n=4): return f"v[{b}:{b+n-1}]"
A0 = 16
FB = 40
EP = 100

def st1(k, i):
    if os.environ.get('FINE1'): k.stamp(i)

def ids(k):
    k("v_lshrrev_b32 v1, 6, v0")
    k("s_and_b32 s3, s2, 7")
    k("v_readfirstlane_b32 s5, v1")
    k("s_lshl_b32 s3, s3, 2")
    k("s_bfe_u32 s4, s2, 0x20003")
    k("s_add_u32 s3, s3, s4")
    k("s_lshr_b32 s4, s2, 5")
    k("v_and_b32 v1, 63, v0")
    k("v_lshlrev_b32 v1, 4, v1")
    k("s_lshr_b32 s33, s5, 2")
    k("s_and_b32 s5, s5, 3")
    k("s_lshl_b32 s6, s3, 2")
    k("s_add_u32 s6, s6, s5")

NW6 = 6; BLK = (4 + NW6) * 1024; SLOT = 4 * BLK; LT1 = 3 * SLOT
K1A = int(os.environ.get('K1A', '0'))
WO_IN_K1 = int(os.environ.get("WO_IN_K1", "1"))

def loader(k):
    k("s_load_dwordx2 s[40:41], s[0:1], 32")
    k("s_mul_i32 s7, s3, 20")
    k("s_add_u32 s7, s7, s5")
    k("s_lshl_b32 s7, s7, 12")
    k(f"s_mul_i32 s11, s5, {BLK}")
    k("s_mul_i32 s34, s5, 1280")
    k(f"s_add_u32 s35, s34, {LT1}")
    k("v_bfe_u32 v2, v0, 4, 2")
    k("v_lshl_add_u32 v3, v2, 6, s35")
    k("v_add_u32 v4, s11, v1")
    k("v_add_u32 v6, 0x10000, v4")
    k("v_lshrrev_b32 v5, 2, v1")
    k("v_add_u32 v9, s35, v1")
    k("v_add_u32 v10, s35, v5")
    k("s_waitcnt lgkmcnt(0)")
    st1(k, 5)
    k.srd(20, 8, 9, XN, ACT_SZ)
    k.srd(12, 8, 9, MODP, 4 * MODP_ST)
    k.srd(52, 8, 9, XID, 1024)
    def issue(g):
        for j in range(4): k(f"buffer_load_dwordx4 {r(16+16*g+4*j)}, v1, s[20:23], s7 offen offset:{j*1024}")
        k("s_add_u32 s7, s7, 16384")
    for q in range(4):
        k(f"buffer_load_dwordx4 {r(96+4*q)}, v1, s[12:15], s34 offen")
        k(f"buffer_load_dword v{112+q}, v5, s[12:15], s34 offen offset:1024")
        if q < 3: k(f"s_add_u32 s34, s34, {MODP_ST}")
    issue(0)
    k("s_getreg_b32 s43, hwreg(HW_REG_XCC_ID, 0, 4)")
    k("s_add_u32 s43, s43, 1")
    k("s_lshl_b32 s42, s2, 2")
    k("v_mov_b32 v11, s43")
    k("v_lshlrev_b32 v12, 20, v0")
    k("v_xor_b32 v12, 0x10000000, v12")
    k("buffer_store_dword v11, v12, s[52:55], s42 offen sc1")
    if WO_IN_K1:
        k("s_lshl_b32 s36, s2, 2")
        k("s_add_u32 s36, s36, s5")
        k("s_mul_i32 s37, s36, 3277")
        k("s_lshr_b32 s37, s37, 16")
        k("s_mul_i32 s38, s37, 20")
        k("s_sub_u32 s38, s36, s38")
        k("s_cmp_lt_u32 s36, 800")
        k("s_cselect_b32 s39, 0, 0x40000000")
        k("s_mul_i32 s42, s38, 40960")
        k("s_lshl_b32 s43, s37, 5")
        k("s_add_u32 s42, s42, s43")
        k("s_add_u32 s42, s42, s39")
        k("s_add_u32 s43, s42, 5120")
        k("v_mul_u32_u24 v7, 10240, v2")
        k("v_and_b32 v8, 15, v0")
        k("v_lshl_add_u32 v7, v8, 1, v7")
        k.srd(24, 40, 41, 0, 819200)
        k.srd(28, 8, 9, WOF, WOF_SZ)
        k("s_mul_i32 s36, s37, 52")
        k("s_lshr_b32 s36, s36, 8")
        k("s_mul_i32 s44, s36, 5")
        k("s_sub_u32 s44, s37, s44")
        k("s_mul_i32 s36, s36, 20")
        k("s_add_u32 s36, s36, s38")
        k("s_mul_i32 s36, s36, 5")
        k("s_add_u32 s36, s36, s44")
        k("s_lshl_b32 s36, s36, 10")
        k("s_add_u32 s36, s36, s39")
    st1(k, 2)
    CO = 96; T = 112
    for g in range(5):
        younger = 4 if g < 4 else 0
        if g == 0 and not K1A: younger = 1
        if WO_IN_K1 and g >= 3: younger += 8
        if g == 0:
            k("v_bfe_u32 v116, v0, 1, 1")
            k("v_bfe_u32 v117, v0, 3, 1")
            k("v_cvt_f32_u32 v116, v116")
            k("v_cvt_f32_u32 v117, v117")
            k("v_sub_f32 v116, 1.0, v116")
            k("v_sub_f32 v117, 1.0, v117")
            k("s_waitcnt vmcnt(5)")
            for h in range(2):
                k(f"v_pk_add_f32 {r(96+2*h,2)}, {r(96+2*h,2)}, {r(100+2*h,2)}")
                k(f"v_pk_add_f32 {r(104+2*h,2)}, {r(104+2*h,2)}, {r(108+2*h,2)}")
            k("v_add_f32 v112, v112, v113")
            k("v_add_f32 v114, v114, v115")
            for h in range(2): k(f"v_pk_add_f32 {r(96+2*h,2)}, {r(96+2*h,2)}, {r(104+2*h,2)}")
            k("v_add_f32 v100, v112, v114")
            for rnd in range(2):
                for i in range(5): k(f"v_cvt_pk_bf16_f32 v{96+i}, v{96+i}, v{96+i}")
                for i in range(5): k(f"v_and_b32 v{96+i}, 0xffff0000, v{96+i}")
                if rnd == 0:
                    for i in range(5): k(f"v_add_f32 v{96+i}, v{96+i}, v{116 if i < 4 else 117}")
            k(f"ds_write_b128 v9, {r(96)}")
            k("ds_write_b32 v10, v100 offset:1024")
            st1(k, 6)
            if K1A: issue(1)
            k("s_waitcnt lgkmcnt(0)")
        for j in range(4): k(f"ds_read_b128 {r(CO+4*j)}, v3 offset:{g*256 + j*16}")
        k(f"s_waitcnt vmcnt({younger}) lgkmcnt(0)")
        a = 16 + 16 * g
        for f in range(4):
            for j in range(4):
                k(f"v_lshlrev_b32 v{T+2*j}, 16, v{a+4*f+j}")
                k(f"v_and_b32 v{T+2*j+1}, 0xffff0000, v{a+4*f+j}")
            for j in range(4):
                k(f"v_pk_fma_f32 {r(T+2*j,2)}, {r(T+2*j,2)}, {r(CO+2*j,2)}, {r(CO+8+2*j,2)}")
            for j in range(4):
                k(f"v_cvt_pk_bf16_f32 v{a+4*f+j}, v{T+2*j}, v{T+2*j+1}")
            o = (g % 3) * SLOT + f * 1024
            k(f"ds_write_b128 {'v4' if o < 65536 else 'v6'}, {r(a+4*f)} offset:{o & 65535}")
        if g == 0 and not K1A: issue(1)
        if g + 2 < 5: issue(g + 2)
        if WO_IN_K1 and g == 2:
            for j in range(8):
                k(f"buffer_load_ushort v{120+j}, v7, s[24:27], {'s42' if j < 4 else 's43'} offen offset:{(j&3)*1280}")
        if g == 4:
            k("s_lshl_b32 s46, s2, 2")
            k("s_add_u32 s46, s46, s5")
            k("s_sub_u32 s47, s46, 20")
            k("s_cmp_lt_u32 s47, 10")
            k("s_cselect_b32 s45, 1.0, 0")
            k("s_cmp_lt_u32 s46, 40")
            k("s_cselect_b32 s47, 0, 0x40000000")
            k("s_lshl_b32 s46, s46, 8")
            k("s_add_u32 s46, s46, 5120")
            k("s_add_u32 s46, s46, s47")
            k.srd(48, 8, 9, MOD, MOD_SZ)
            k("s_mov_b32 s47, s46")
            for q in range(4):
                k(f"buffer_load_dword v{96+q}, v5, s[12:15], s47 offen")
                if q < 3: k(f"s_add_u32 s47, s47, {MODP_ST}")
        k("s_waitcnt lgkmcnt(0)")
        k("s_barrier")
        if g == 0: st1(k, 3)
        if g == 4: st1(k, 4)
    k("s_waitcnt vmcnt(0)")
    k("v_add_f32 v96, v96, v97")
    k("v_add_f32 v98, v98, v99")
    k("v_add_f32 v96, v96, v98")
    k("v_cvt_pk_bf16_f32 v96, v96, v96")
    k("v_and_b32 v96, 0xffff0000, v96")
    k("v_add_f32 v96, s45, v96")
    k("v_cvt_pk_bf16_f32 v96, v96, v96")
    k("v_and_b32 v96, 0xffff0000, v96")
    k("buffer_store_dword v96, v5, s[48:51], s46 offen sc1")
    if WO_IN_K1:
        for j in range(4): k(f"v_lshl_or_b32 v{120+j}, v{121+2*j}, 16, v{120+2*j}")
        k(f"buffer_store_dwordx4 {r(120)}, v1, s[28:31], s36 offen sc1")

def compute(k):
    NK = 20; NW = NW6
    k("s_mul_i32 s10, s4, 20")
    k("s_add_u32 s10, s10, s5")
    k(f"s_mul_i32 s10, s10, {NW*1024}")
    k(f"s_mul_i32 s11, s5, {BLK}")
    k("s_add_u32 s11, s11, 4096")
    k("s_waitcnt lgkmcnt(0)")
    k.srd(16, 8, 9, WQF, WQF_SZ)
    def dma(g):
        sl = (g % 3) * SLOT
        out = [f"s_add_u32 m0, s11, {sl}\ns_add_u32 s36, s10, 4096\nbuffer_load_dwordx4 v1, s[16:19], s10 offen lds"]
        for j in range(1, 4): out.append(f"buffer_load_dwordx4 v1, s[16:19], s10 offen offset:{j*1024} lds")
        out.append(f"s_add_u32 m0, s11, {sl+4096}\ns_add_u32 s10, s10, {4*NW*1024}\nbuffer_load_dwordx4 v1, s[16:19], s36 offen lds")
        out.append("buffer_load_dwordx4 v1, s[16:19], s36 offen offset:1024 lds")
        return out
    for l in dma(0): k(l)
    return dma

def compute_main(k, dma):
    NK = 20; NW = NW6
    for l in dma(1): k(l)
    k("s_lshl_b32 s7, s5, 10")
    for s in range(3):
        k(f"v_add_u32 v{8+s}, {s*SLOT+4096}, v1")
        k(f"s_add_u32 s37, s7, {s*SLOT}")
        k(f"v_add_u32 v{12+s}, s37, v1")
    def rd(ks):
        b = FB + (1 + NW) * 4 * (ks & 1); s = (ks // 4) % 3; o = (ks % 4) * BLK
        return [f"ds_read_b128 {r(b)}, v{12+s} offset:{o}"] + [f"ds_read_b128 {r(b+4+4*j)}, v{8+s} offset:{o + j*1024}" for j in range(NW)]
    k("s_waitcnt vmcnt(6)")
    k("s_barrier")
    st1(k, 3)
    for l in rd(0): k(l)
    pend = []
    for ks in range(NK):
        b = FB + (1 + NW) * 4 * (ks & 1); g = ks // 4
        k("s_waitcnt lgkmcnt(0)")
        if ks % 4 == 3 and ks < NK - 1:
            assert not pend
            k(f"s_waitcnt vmcnt({6 if g + 2 < 5 else 0})")
            k("s_barrier")
            if ks in (3, 7, NK - 5): st1(k, {3: 4, 7: 5}.get(ks, 6))
        if ks % 4 == 0 and g + 2 < 5: pend = dma(g + 2)
        fill = rd(ks + 1) if ks < NK - 1 else []
        for j in range(NW):
            c = "0" if ks == 0 else r(A0 + 4 * j)
            k(f"v_mfma_f32_16x16x32_bf16 {r(A0+4*j)}, {r(b+4+4*j)}, {r(b)}, {c}")
            if fill: k(fill.pop(0))
            if j == 0 and fill: k(fill.pop(0))
            if j in (2, 5) and pend: k(pend.pop(0))
        k(f"v_mfma_f32_16x16x32_bf16 {r(96)}, {r(b)}, {r(b+24)}, {'0' if ks == 0 else r(96)}")
    st1(k, 7)

def x1_addr(k, dst, tmp):
    k("s_lshr_b32 s36, s6, 3")
    k("s_mul_i32 s36, s36, 40")
    k("s_mul_i32 s37, s4, 5")
    k("s_add_u32 s36, s36, s37")
    k("s_lshl_b32 s36, s36, 12")
    k("s_and_b32 s37, s6, 7")
    k("s_lshl_b32 s37, s37, 8")
    k("s_and_b32 s38, s37, 0x100")
    k("s_and_b32 s37, s37, 0x600")
    k("s_lshl_b32 s37, s37, 1")
    k("s_add_u32 s36, s36, s37")
    k("s_add_u32 s36, s36, s38")
    for j in range(1, 5): k(f"s_add_u32 s{36+j}, s36, {j*4096}")
    k(f"v_lshrrev_b32 v{dst}, 1, v3")
    k(f"v_lshlrev_b32 v{dst}, 9, v{dst}")
    k(f"v_lshl_add_u32 v{dst}, v5, 4, v{dst}")
    k(f"v_and_b32 v{tmp}, 1, v3")
    k(f"v_lshl_add_u32 v{dst}, v{tmp}, 3, v{dst}")

def resid_loads(k, xoff, goff):
    k("v_bfe_u32 v3, v0, 4, 2")
    k("v_and_b32 v5, 15, v0")
    x1_addr(k, 6, 7)
    k("v_lshlrev_b32 v7, 4, v3")
    k("s_mul_i32 s41, s4, 320")
    k("s_waitcnt lgkmcnt(0)")
    k.srd(12, 8, 9, xoff, ACT_SZ)
    k.srd(24, 8, 9, MOD + goff, 2560)
    for j in range(5): k(f"buffer_load_dwordx2 {r(EP+2*j,2)}, v6, s[12:15], s{36+j} offen")
    for j in range(5): k(f"buffer_load_dwordx4 {r(EP+12+4*j)}, v7, s[24:27], s41 offen offset:{j*64}")

def resid(k):
    for j in range(5):
        for h in range(2):
            x = EP + 2 * j + h; t = FB + 4 * j + 2 * h
            k(f"v_lshlrev_b32 v{t}, 16, v{x}")
            k(f"v_and_b32 v{t+1}, 0xffff0000, v{x}")
    for j in range(5):
        for h in range(2):
            a = A0 + 4 * j + 2 * h; g = EP + 12 + 4 * j + 2 * h; t = FB + 4 * j + 2 * h
            k(f"v_pk_fma_f32 {r(a,2)}, {r(a,2)}, {r(g,2)}, {r(t,2)}")
    for j in range(5):
        for h in range(2):
            a = A0 + 4 * j + 2 * h
            k(f"v_cvt_pk_bf16_f32 v{EP+2*j+h}, v{a}, v{a+1}")

K1_LDS = LT1 + 5120

def gen_p1(k):
    ids(k)
    k("s_cmp_eq_u32 s33, 0")
    k("s_cbranch_scc0 k1_loader")
    dma = compute(k)
    k("v_bfe_u32 v3, v0, 4, 2")
    k("v_and_b32 v5, 15, v0")
    k("s_and_b32 s36, s6, 1")
    k("s_lshl_b32 s36, s36, 4")
    k("v_add_u32 v6, s36, v5")
    k("s_lshr_b32 s40, s5, 1")
    k("s_mul_i32 s40, s40, 1280")
    for j in range(5):
        o = EP + j
        k(f"v_add_u32 v7, {4*j}, v3")
        k("v_mul_u32_u24 v2, 52, v7")
        k("v_lshrrev_b32 v2, 8, v2")
        k("v_mul_u32_u24 v4, 5, v2")
        k("v_sub_u32 v7, v7, v4")
        k(f"v_mul_u32_u24 v{o}, 2560, v2")
        k("v_lshrrev_b32 v4, 1, v7")
        k(f"v_lshl_add_u32 v{o}, v4, 9, v{o}")
        k("v_and_b32 v4, 1, v7")
        k(f"v_lshl_add_u32 v{o}, v4, 3, v{o}")
        k("v_lshrrev_b32 v4, 2, v7")
        k("v_sub_u32 v4, 4, v4")
        k("v_lshlrev_b32 v4, v4, v6")
        k(f"v_add3_u32 v{o}, v{o}, v4, s40")
    k.srd(28, 8, 9, KV, KV_SZ)
    k.srd(12, 8, 9, KMAX, 1024)
    compute_main(k, dma)
    k.nop(6)
    k("s_cmp_ge_u32 s4, 4")
    k("s_cbranch_scc1 k1_fin")
    P = FB + 12
    k(f"v_cvt_pk_bf16_f32 v{P}, v{A0+20}, v{A0+21}")
    k(f"v_cvt_pk_bf16_f32 v{P+1}, v{A0+22}, v{A0+23}")
    k("s_lshr_b32 s36, s6, 1")
    k("s_mul_i32 s36, s36, 2560")
    k("s_and_b32 s37, s6, 1")
    k("v_mov_b32 v11, 0x40000000")
    k("s_bitcmp1_b32 s4, 0")
    k("s_cbranch_scc1 k1_V")
    k("s_cmp_eq_u32 s4, 0")
    k("s_cbranch_scc0 k1_K2")
    k("v_lshrrev_b32 v10, 1, v3")
    k("v_lshlrev_b32 v10, 9, v10")
    k("v_lshl_add_u32 v10, v6, 4, v10")
    k("v_and_b32 v12, 1, v3")
    k("v_lshl_add_u32 v10, v12, 3, v10")
    k("s_branch k1_Kst")
    k.label("k1_K2")
    k("v_cmp_eq_u32 vcc, 0, v3")
    k("v_lshlrev_b32 v10, 3, v6")
    k("v_add_u32 v10, 1024, v10")
    k("v_cndmask_b32 v10, v11, v10, vcc")
    k.label("k1_Kst")
    k(f"buffer_store_dwordx2 {r(P,2)}, v10, s[28:31], s36 offen sc1")
    k(f"v_lshlrev_b32 v12, 16, v{P}")
    k(f"v_and_b32 v13, 0xffff0000, v{P}")
    k(f"v_lshlrev_b32 v14, 16, v{P+1}")
    k(f"v_and_b32 v15, 0xffff0000, v{P+1}")
    k("v_mul_f32 v12, v12, v12")
    k("v_fmac_f32 v12, v13, v13")
    k("v_fmac_f32 v12, v14, v14")
    k("v_fmac_f32 v12, v15, v15")
    xsum16_32(k, 12, 13)
    rowred(k, "v_max_f32", 12)
    k("s_lshl_b32 s36, s4, 8")
    k("s_lshl_b32 s37, s6, 2")
    k("s_add_u32 s36, s36, s37")
    k("v_cmp_eq_u32 vcc, 0, v1")
    k("v_mov_b32 v14, 0")
    k.nop(1)
    k("v_cndmask_b32 v14, v11, v14, vcc")
    k("buffer_store_dword v12, v14, s[12:15], s36 offen sc1")
    k("s_branch k1_fin")
    k.label("k1_V")
    k(f"v_cvt_pk_bf16_f32 v{P}, v96, v97")
    k(f"v_cvt_pk_bf16_f32 v{P+1}, v98, v99")
    k("s_mul_i32 s37, s37, 640")
    k("s_add_u32 s36, s36, s37")
    k("s_add_u32 s36, s36, 1280")
    k("s_cmp_eq_u32 s4, 3")
    k("s_cselect_b32 s37, 256, 0")
    k("s_cselect_b32 s38, 4, 16")
    k("s_add_u32 s36, s36, s37")
    k("v_and_b32 v9, 1, v3")
    k("v_mul_u32_u24 v9, 320, v9")
    k("v_lshl_add_u32 v9, v5, 4, v9")
    k("v_cmp_gt_u32 vcc, s38, v5")
    k("v_lshrrev_b32 v10, 1, v3")
    k("v_lshl_add_u32 v9, v10, 3, v9")
    k("v_cndmask_b32 v9, v11, v9, vcc")
    k(f"buffer_store_dwordx2 {r(P,2)}, v9, s[28:31], s36 offen sc1")
    k.label("k1_fin")
    k(f"v_mov_b32 v8, {hexf(QSCALE)}")
    for j in range(5):
        a = A0 + 4 * j
        k(f"v_pk_mul_f32 {r(a,2)}, {r(a,2)}, v[8:9] op_sel_hi:[1,0]")
        k(f"v_pk_mul_f32 {r(a+2,2)}, {r(a+2,2)}, v[8:9] op_sel_hi:[1,0]")
        k(f"v_cvt_pk_bf16_f32 v{FB+2*j}, v{a}, v{a+1}")
        k(f"v_cvt_pk_bf16_f32 v{FB+2*j+1}, v{a+2}, v{a+3}")
        k(f"ds_write_b64 v{EP+j}, {r(FB+2*j,2)}")
    k("s_waitcnt vmcnt(0) lgkmcnt(0)")
    k("s_branch k1_done")
    k.label("k1_loader")
    loader(k)
    k("s_waitcnt vmcnt(0)")
    k.label("k1_done")
```

```python
from asmlib import Kern
from layout import *
from k0 import hexf, rowred
import os, math

K234_LDS = 163840
QA, QB, CM, S0, S1, OO, PP = 4, 8, 16, 32, 48, 64, 80
KF1 = (88, 92); KF2 = (96, 100); VF = (104, 112)
AK1, AK2, AV = 12, 13, 14
SIDE_SC = os.environ.get("SIDE_SC", "sc1")
Z_SC = os.environ.get("Z_SC", "sc1")
SPIN = 200000
NC1 = int(os.environ.get('NC1', '8'))
F1SH = int(os.environ.get('F1SH', '5'))
PF7 = int(os.environ.get('PF7', '1'))
TOUCH = int(os.environ.get('TOUCH', '0'))
PF_WIN = int(os.environ.get('PF_WIN', '0'))
RETRY = 2000
PF_NEXT = int(os.environ.get('PF_NEXT', '0'))
GA_ = -2 * math.log2(math.e) * math.sqrt(2 / math.pi)
GB_ = GA_ * 0.044715
RB, CB8, W3, VV, RB128, CB16, FAST = 24, 25, 26, 27, 28, 29, 30
NOFAST = os.environ.get('NOFAST')

def prio(k, n):
    if not os.environ.get("NOPRIO"): k(f"s_setprio {n}")
def r(b, n=4): return f"v[{b}:{b+n-1}]"

def poll(k, name, srd, soff, nflag, vo, vf, want=None):
    if nflag:
        k(f"v_and_b32 v{vo}, {nflag-1}, v0")
        k(f"v_lshlrev_b32 v{vo}, 7, v{vo}")
    k("s_mov_b32 s38, 0")
    k(f"buffer_load_dword v{vf}, v{vo}, s[{srd}:{srd+3}], {soff} offen sc1")
    k("s_sleep 4")
    k.label(name)
    for h in range(2):
        k(f"buffer_load_dword v{vf+1-h}, v{vo}, s[{srd}:{srd+3}], {soff} offen sc1")
        if os.environ.get("PSLEEP"): k(f"s_sleep {os.environ['PSLEEP']}")
        k("s_waitcnt vmcnt(1)")
        k(f"v_cmp_ne_u32 vcc, 0, v{vf+h}" if want is None else f"v_cmp_eq_u32 vcc, {want}, v{vf+h}")
        k("s_cmp_eq_u64 vcc, -1")
        k(f"s_cbranch_scc1 {name}_ok")
    k("s_add_u32 s38, s38, 1")
    k(f"s_cmp_lt_u32 s38, {SPIN}")
    k(f"s_cbranch_scc1 {name}")
    k.label(name + "_ok")

def poll_missing(k, name, srd, soffs, vo, vf, sleep=1):
    n = len(soffs)
    for q in range(n): k(f"v_mov_b32 v{vf+q}, 0")
    k("s_mov_b32 s38, 0")
    k("s_mov_b64 s[70:71], 0")
    k.label(name)
    for q in range(n):
        k(f"v_cmp_eq_u32 vcc, 0, v{vf+q}")
        k("s_or_b64 s[70:71], s[70:71], vcc")
        k("s_cmp_eq_u64 vcc, 0")
        k(f"s_cbranch_scc1 {name}_s{q}")
        k("s_mov_b64 exec, vcc")
        k(f"buffer_load_dword v{vf+q}, v{vo}, s[{srd}:{srd+3}], {soffs[q]} offen sc1")
        k("s_mov_b64 exec, -1")
        k.label(f"{name}_s{q}")
    k("s_cmp_eq_u64 s[70:71], 0")
    k(f"s_cbranch_scc1 {name}_ok")
    k("s_mov_b64 s[70:71], 0")
    k("s_add_u32 s38, s38, 1")
    if sleep: k(f"s_sleep {sleep}")
    k("s_waitcnt vmcnt(0)")
    k(f"s_cmp_lt_u32 s38, {SPIN}")
    k(f"s_cbranch_scc1 {name}")
    k.label(name + "_ok")

def stores(k, lines):
    a = k.newlabel("sl"); b = k.newlabel("sd")
    k(f"s_cmp_eq_u32 s{FAST}, 0")
    k(f"s_cbranch_scc1 {a}")
    for l in lines: k(l)
    k(f"s_branch {b}")
    k.label(a)
    for l in lines: k(l + " sc1")
    k.label(b)

def setflag(k, srd, soff, lab, v=10, local=False, val="1", count=False):
    k("s_cmp_lg_u32 s5, 0")
    k(f"s_cbranch_scc1 {lab}")
    k(f"v_mov_b32 v{v}, {val}")
    k("s_mov_b64 exec, 1")
    if count: k(f"buffer_atomic_add v{v}, off, s[{srd}:{srd+3}], {soff}")
    elif local: stores(k, [f"buffer_store_dword v{v}, off, s[{srd}:{srd+3}], {soff}"])
    else: k(f"buffer_store_dword v{v}, off, s[{srd}:{srd+3}], {soff} sc1")
    k("s_mov_b64 exec, -1")
    k.label(lab)

def hint(k, srd, soff, v=10):
    k(f"v_mov_b32 v{v}, 1")
    k("s_mov_b64 exec, 1")
    k(f"buffer_store_dword v{v}, off, s[{srd}:{srd+3}], {soff} sc1")
    k("s_mov_b64 exec, -1")

def chk(k, c, b, n=4):
    for i in range(0, n, 2): k(f"v_max3_u32 v{c}, v{c}, v{b+i}, v{b+i+1}")

def verify(k, c, again, cnt):
    k(f"v_cmp_eq_u32 vcc, -1, v{c}")
    k(f"s_add_u32 s{cnt}, s{cnt}, 1")
    k(f"s_cmp_lt_u32 s{cnt}, {RETRY}")
    k("s_cselect_b64 s[70:71], vcc, 0")
    k("s_cmp_lg_u64 s[70:71], 0")
    k(f"s_cbranch_scc1 {again}")

def gelu(k, X, T, n):
    for i in range(n): k(f"v_pk_mul_f32 {r(T+2*i,2)}, {r(X+2*i,2)}, {r(X+2*i,2)}")
    for i in range(n): k(f"v_pk_fma_f32 {r(T+2*i,2)}, {r(T+2*i,2)}, v[12:13], v[12:13] op_sel:[0,1,0] op_sel_hi:[1,1,0]")
    for i in range(n): k(f"v_pk_mul_f32 {r(T+2*i,2)}, {r(T+2*i,2)}, {r(X+2*i,2)}")
    for i in range(2 * n): k(f"v_exp_f32 v{T+i}, v{T+i}")
    for i in range(n): k(f"v_pk_add_f32 {r(T+2*i,2)}, {r(T+2*i,2)}, 1.0 op_sel_hi:[1,0]")
    for i in range(2 * n): k(f"v_rcp_f32 v{T+i}, v{T+i}")
    for i in range(n): k(f"v_pk_mul_f32 {r(X+2*i,2)}, {r(X+2*i,2)}, {r(T+2*i,2)}")

def x1_addr(k, rt, cb, s0, dst, tmp, kg=3, l16=5):
    k(f"s_lshr_b32 s{s0}, s{rt}, 3")
    k(f"s_mul_i32 s{s0}, s{s0}, 40")
    k(f"s_mul_i32 s{s0+1}, s{cb}, 5")
    k(f"s_add_u32 s{s0}, s{s0}, s{s0+1}")
    k(f"s_lshl_b32 s{s0}, s{s0}, 12")
    k(f"s_bfe_u32 s{s0+1}, s{rt}, 0x20001")
    k(f"s_lshl_b32 s{s0+1}, s{s0+1}, 10")
    k(f"s_add_u32 s{s0}, s{s0}, s{s0+1}")
    k(f"s_and_b32 s{s0+1}, s{rt}, 1")
    k(f"s_lshl_b32 s{s0+1}, s{s0+1}, 8")
    k(f"s_add_u32 s{s0}, s{s0}, s{s0+1}")
    for j in range(1, 5): k(f"s_add_u32 s{s0+j}, s{s0}, {j*4096}")
    k(f"v_lshrrev_b32 v{dst}, 1, v{kg}")
    k(f"v_lshlrev_b32 v{dst}, 9, v{dst}")
    k(f"v_lshl_add_u32 v{dst}, v{l16}, 4, v{dst}")
    k(f"v_and_b32 v{tmp}, 1, v{kg}")
    k(f"v_lshl_add_u32 v{dst}, v{tmp}, 3, v{dst}")

def gemm80_resident(k, NK, order, ACT, A0, WB, srd, soff, lds_addr, wait, cb, bars={}, AH=11):
    k("v_add_u32 v8, 0xf000, v1")
    k("v_add_u32 v9, 0x1e000, v1")
    def ld(i):
        return [f"s_add_u32 s38, s{soff}, {order[i]*4096}\nbuffer_load_dwordx4 {r(ACT+4*i)}, v1, s[{srd}:{srd+3}], s38 offen sc1"]
    def rd(i):
        ks = order[i]; b = WB[i % 3]
        ad = lds_addr(ks); n = ad // 0xf000
        return [f"ds_read_b128 {r(b+4*j)}, {('v1', 'v8', 'v9')[n]} offset:{ad + j*1024 - n*0xf000}" for j in range(5)]
    for l in rd(0) + rd(1): k(l)
    wait()
    for i in range(AH): k(ld(i)[0])
    for i in range(NK):
        b = WB[i % 3]
        if i in bars: k("s_barrier")
        k(f"s_waitcnt vmcnt({min(AH-1, NK-1-i)}) lgkmcnt({5 if i < NK-1 else 0})")
        if os.environ.get("FINE3") and i in (0, 5, 12): k.stamp({0: 2, 5: 3, 12: 4}[i])
        fill = (rd(i + 2) if i + 2 < NK else [""] * 5)
        for j in range(5):
            c = "0" if i == 0 else r(A0 + 4 * j)
            k(f"v_mfma_f32_16x16x32_bf16 {r(A0+4*j)}, {r(b+4*j)}, {r(ACT+4*i)}, {c}")
            k(fill[j])
        if i + AH < NK: k(ld(i + AH)[0])
    if os.environ.get("FINE3"): k.stamp(7 if NK == 24 else 6)

def resid(k, A0, X, G, T):
    for i in range(10):
        k(f"v_lshlrev_b32 v{T+2*i}, 16, v{X+i}")
        k(f"v_and_b32 v{T+2*i+1}, 0xffff0000, v{X+i}")
    for i in range(10): k(f"v_pk_fma_f32 {r(A0+2*i,2)}, {r(A0+2*i,2)}, {r(G+2*i,2)}, {r(T+2*i,2)}")
    for i in range(10): k(f"v_cvt_pk_bf16_f32 v{X+i}, v{A0+2*i}, v{A0+2*i+1}")

def gen_k234():
    k = Kern("k2_kernel", 244, 100)
    k("s_cmp_ge_u32 s2, 256")
    k("s_cbranch_scc1 k2_end")
    k.stamp(0); k.rstamp(1)
    k("s_load_dwordx2 s[8:9], s[0:1], 112")
    from g16 import gen_p1
    gen_p1(k)
    k.srd(16, 8, 9, FL, FL_SZ)
    k("s_lshl_b32 s37, s2, 7")
    k(f"s_add_u32 s37, s37, {F1 - FL}")
    k("v_lshrrev_b32 v1, 6, v0")
    k("s_barrier")
    k("v_readfirstlane_b32 s5, v1")
    k("s_getreg_b32 s43, hwreg(HW_REG_XCC_ID, 0, 4)")
    k("s_add_u32 s42, s43, 1")
    setflag(k, 16, "s37", "k2_f1done")
    if os.environ.get("FINE2"): k.stamp(4)
    k("s_load_dwordx2 s[44:45], s[0:1], 0")
    k("s_load_dwordx4 s[48:51], s[0:1], 48")
    k("s_load_dwordx2 s[46:47], s[0:1], 72")
    k("s_and_b32 s3, s2, 7")
    k(f"s_lshl_b32 s{RB}, s3, 2")
    k("s_bfe_u32 s4, s2, 0x20003")
    k(f"s_add_u32 s{RB}, s{RB}, s4")
    k(f"s_lshr_b32 s{CB8}, s2, 5")
    k("v_and_b32 v1, 63, v0")
    k("v_and_b32 v2, 31, v0")
    k("v_bfe_u32 v3, v0, 5, 1")
    k("v_lshlrev_b32 v1, 4, v1")
    k(f"s_lshl_b32 s4, s{CB8}, 2")
    k(f"s_and_b32 s{W3}, s5, 3")
    k(f"s_add_u32 s4, s4, s{W3}")
    k(f"s_lshl_b32 s6, s{RB}, 1")
    k("s_lshr_b32 s43, s5, 2")
    k("s_add_u32 s6, s6, s43")
    k(f"s_mul_i32 s7, s{W3}, 2560")
    k("s_mul_i32 s10, s43, 1280")
    k("s_add_u32 s7, s7, s10")
    k("v_add_u32 v15, s7, v1")
    k(f"ds_read_b128 {r(QA)}, v15")
    k("v_lshl_add_u32 v15, v2, 3, s7")
    k(f"v_mov_b32 v{QB}, 0")
    k(f"v_mov_b32 v{QB+1}, 0")
    k("s_mov_b32 exec_hi, 0")
    k(f"ds_read_b64 {r(QB,2)}, v15 offset:1024")
    k("s_mov_b64 exec, -1")
    k("s_lshl_b32 s10, s5, 10")
    k.srd(20, 8, 9, KV, KV_SZ)
    k.srd(56, 8, 9, KMAX, 1024)
    prio(k, 3)
    k(f"s_bfe_u32 s{VV}, s2, 0x10003")
    k(f"s_lshr_b32 s{RB128}, s{RB}, 1")
    k(f"s_lshl_b32 s{CB16}, s{CB8}, 1")
    k(f"s_add_u32 s{CB16}, s{CB16}, s{VV}")
    k(f"v_mov_b32 v{AK1}, v1")
    k(f"v_lshlrev_b32 v{AK2}, 3, v2")
    k(f"v_add_u32 v{AK2}, 1024, v{AK2}")
    k(f"v_mul_u32_u24 v{AV}, 20, v3")
    k(f"v_add_u32 v{AV}, v{AV}, v2")
    k(f"v_lshlrev_b32 v{AV}, 4, v{AV}")
    k(f"v_add_u32 v{AV}, 1280, v{AV}")
    k("s_mov_b32 s40, 0x000fffff")
    k("s_mov_b32 s41, 0x000fffff")
    k("v_or_b32 v15, 4, v2")
    k("v_cmp_eq_u32 vcc, 28, v15")
    k("v_mov_b32 v15, 0x3f803f80")
    k("s_add_u32 s43, s43, 1")
    k(f"v_cndmask_b32 v{VF[0]}, 0, v15, vcc")
    for i in range(16): k(f"v_mov_b32 v{OO+i}, 0")
    for i in range(1, 16): k(f"v_mov_b32 v{VF[0]+i}, v{VF[0]}")
    for i in range(4, 8): k(f"v_mov_b32 v{PP+i}, 0")
    for b in (QB, KF2[0], KF2[1]):
        k(f"v_mov_b32 v{b+2}, 0"); k(f"v_mov_b32 v{b+3}, 0")
    k.srd(12, 8, 9, O, ACT_SZ)
    k(f"s_mul_i32 s7, s{CB8}, 102400")
    k(f"s_add_u32 s7, s7, {WOF}")
    k.srd(16 + 16, 8, 9, "s7", 102400)
    k("s_cmp_lg_u32 s5, 0")
    k("s_cbranch_scc1 k2_p1_ok")
    k(f"v_lshlrev_b32 v{S1}, 7, v0")
    for q in range(4): k(f"s_mov_b32 s{60+q}, {F1 - FL + q * 8192}")
    poll_missing(k, "k2_p1", 16, ["s60", "s61", "s62", "s63"], S1, S1 + 1, int(os.environ.get('F1SL', '1')))
    k("s_mov_b32 m0, s10")
    k("s_waitcnt lgkmcnt(0)")
    k("s_barrier")
    if os.environ.get("FINE2"): k.stamp(5)
    k("buffer_load_dwordx4 v1, s[20:23], m0 offen sc1 lds")
    k(f"s_mov_b32 s36, {XID - FL}")
    k(f"buffer_load_dwordx4 {r(S1+8)}, v1, s[16:19], s36 offen sc1")
    k("s_add_u32 m0, m0, 0x2000")
    k(f"buffer_load_dwordx4 {r(S0)}, v1, s[56:59], 0 offen sc1")
    for i in range(3):
        k("buffer_load_dwordx4 v1, s[20:23], m0 offen sc1 lds")
        if i < 2:
            k("s_add_u32 m0, m0, 0x2000")
            k.nop(1)
    k("s_waitcnt vmcnt(3)")
    k("s_and_b32 s36, s2, 3")
    for q in range(1, 4):
        k(f"s_cmp_eq_u32 s36, {q}")
        k("s_cselect_b64 vcc, -1, 0")
        k(f"v_cndmask_b32 v{S1+8}, v{S1+8}, v{S1+8+q}, vcc")
    k("s_lshr_b32 s36, s2, 2")
    k(f"v_xor_b32 v{S1+12}, s36, v0")
    k(f"v_and_b32 v{S1+12}, 5, v{S1+12}")
    k(f"v_cmp_eq_u32 vcc, 0, v{S1+12}")
    k(f"v_cmp_ne_u32 s[36:37], s42, v{S1+8}")
    k.nop(1)
    k("s_and_b64 vcc, vcc, s[36:37]")
    k(f"s_cselect_b32 s{FAST}, 0, " + ("0" if NOFAST else "1"))
    k(f"v_max3_f32 v{S1}, v{S0}, v{S0+1}, v{S0+2}")
    k(f"v_max_f32 v{S1}, v{S1}, v{S0+3}")
    k(f"v_dot2_f32_bf16 v{S1+2}, v{QA}, v{QA}, 0")
    rowred(k, "v_max_f32", S1)
    for b in (QA + 1, QA + 2, QA + 3, QB, QB + 1):
        k(f"v_dot2_f32_bf16 v{S1+2}, v{b}, v{b}, v{S1+2}")
    k(f"v_mov_b32 v{S1+1}, v{S1}")
    k.nop(3)
    k(f"v_mov_b32 v{S1+3}, v{S1+2}")
    k(f"v_permlane16_swap_b32 v{S1}, v{S1+1}")
    k(f"v_max_f32 v{S1}, v{S1}, v{S1+1}")
    k(f"v_permlane32_swap_b32 v{S1+2}, v{S1+3}")
    k(f"v_mov_b32 v{S1+1}, v{S1}")
    k(f"v_add_f32 v{S1+2}, v{S1+2}, v{S1+3}")
    k.nop(1)
    k(f"v_permlane32_swap_b32 v{S1}, v{S1+1}")
    k(f"v_add_f32 v{S1}, v{S1}, v{S1+1}")
    k(f"v_mul_f32 v{S1}, v{S1}, v{S1+2}")
    k(f"v_sqrt_f32 v{S1}, v{S1}")
    k.nop(1)
    k(f"v_mov_b32 v{S1+1}, {hexf(-1.001)}")
    k(f"v_fmaak_f32 v{CM}, v{S1}, v{S1+1}, {hexf(60.0)}")
    for i in range(1, 16): k(f"v_mov_b32 v{CM+i}, v{CM}")
    def rdK(t, buf):
        k(f"ds_read_b128 {r(KF1[buf])}, v{AK1} offset:{t*2560}")
        k(f"ds_read_b64 {r(KF2[buf],2)}, v{AK2} offset:{t*2560}")
    def rdV(t, buf):
        k("s_mov_b64 exec, s[40:41]")
        k(f"ds_read_b128 {r(VF[buf])}, v{AV} offset:{t*2560}")
        k(f"ds_read_b128 {r(VF[buf]+4)}, v{AV} offset:{t*2560+640}")
        k("s_mov_b64 exec, -1")
    SB = (S0, S1)
    k("s_waitcnt vmcnt(0) lgkmcnt(0)")
    k("s_barrier")
    if not (os.environ.get("ITER") or os.environ.get("FINE1")): k.stamp(2)
    rdK(0, 0); rdK(1, 1); rdV(0, 0)
    k("s_waitcnt lgkmcnt(4)")
    k(f"v_mfma_f32_32x32x16_bf16 {r(S0,16)}, {r(KF1[0])}, {r(QA)}, {r(CM,16)}")
    k(f"v_mfma_f32_32x32x16_bf16 {r(S0,16)}, {r(KF2[0])}, {r(QB)}, {r(S0,16)}")
    k.nop(8)
    def body(dma, every=5, last=False, first=False):
        left = list(dma)
        body.n0 = len(k.lines)
        def ex(reg):
            if left and ex.n % every == 1:
                srd, pre, fl = left.pop(0)
                k(pre)
                k(f"v_exp_f32 v{reg}, v{reg}")
                if fl is None: k(f"buffer_load_dwordx4 v[172:175], v1, s[{srd}:{srd+3}], s53 offen sc1")
                else: k(f"buffer_load_dwordx4 v1, s[{srd}:{srd+3}], m0 offen {fl}lds")
            else:
                k(f"v_exp_f32 v{reg}, v{reg}")
            ex.n += 1
        ex.n = 0
        for t in range(8):
            cur = SB[t & 1]; nxt = SB[(t + 1) & 1]
            def E(lo):
                for i in range(lo, lo + 4): ex(cur + i)
                for i in range(lo // 2, lo // 2 + 2): k(f"v_cvt_pk_bf16_f32 v{PP+i}, v{cur+2*i}, v{cur+2*i+1}")
            fin = last and t == 7
            if (last or first) and t in (2, 4, 6): prio(k, 3 - t // 2)
            k("s_waitcnt lgkmcnt(0)")
            if not (last and t >= 6): rdK(t + 2, t & 1)
            else: k.nop(1)
            k(f"v_mfma_f32_32x32x16_bf16 {r(OO,16)}, {r(VF[(t+1)&1]+4)}, {r(PP+4)}, {r(OO,16)}")
            E(0)
            if not fin:
                k(f"v_mfma_f32_32x32x16_bf16 {r(nxt,16)}, {r(KF1[(t+1)&1])}, {r(QA)}, {r(CM,16)}")
                rdV(t + 1, (t + 1) & 1)
            E(4)
            if not fin: k(f"v_mfma_f32_32x32x16_bf16 {r(nxt,16)}, {r(KF2[(t+1)&1])}, {r(QB)}, {r(nxt,16)}")
            if t == 7 and not last:
                k(f"v_add_u32 v{AK1}, 20480, v{AK1}")
                k(f"v_add_u32 v{AK2}, 20480, v{AK2}")
                k(f"v_add_u32 v{AV}, 20480, v{AV}")
            E(8)
            k(f"v_mfma_f32_32x32x16_bf16 {r(OO,16)}, {r(VF[t&1])}, {r(PP)}, {r(OO,16)}")
            E(12)
        assert not left
        X = os.environ.get("XP", "")
        if X:
            new = []
            for l in k.lines[body.n0:]:
                if "nopv" in X and "v_mfma" in l and l.split()[1].startswith(f"v[{OO}:"): l = "    s_nop 0"
                if "noqk2" in X and "v_mfma" in l and f"{r(QB)}" in l: l = "    s_nop 0"
                if "nolds" in X and "ds_read" in l: l = "    s_nop 0"
                if "noexp" in X and "v_exp" in l: l = l.replace("v_exp_f32", "v_mov_b32")
                if "nocvt" in X and "v_cvt_pk" in l: l = "    s_nop 0"
                if "qk8" in X and "v_mfma" in l and f"{r(QB)}" in l:
                    l = l.replace("v_mfma_f32_32x32x16_bf16", "v_mfma_f32_32x32x8bf16_1k").replace(r(QB), r(QB, 2)).replace(r(KF2[0]), r(KF2[0], 2)).replace(r(KF2[1]), r(KF2[1], 2))
                new.append(l)
            k.lines[body.n0:] = new
        if last:
            k.nop(2)
            k(f"v_mfma_f32_32x32x16_bf16 {r(OO,16)}, {r(VF[1]+4)}, {r(PP+4)}, {r(OO,16)}")
    INC = "s_add_u32 m0, m0, 0x2000"
    body([(20, INC, 'sc1 ')] * 16, first=True)
    k("s_waitcnt vmcnt(0)")
    k("s_barrier")
    k("s_mov_b32 s42, 1")
    k("s_add_u32 s39, s43, 2")
    k("s_branch k2_disp")
    k.lines.append(".p2align 6")
    k.label("k2_loop")
    body([])
    k("s_add_u32 s42, s42, 1")
    k.label("k2_disp")
    if os.environ.get("ITER"):
        for i in range(1, 7):
            k(f"s_cmp_eq_u32 s42, {i}")
            k(f"s_cbranch_scc0 k2_it{i}")
            k.stamp(i + 1)
            k.label(f"k2_it{i}")
    if not os.environ.get("NOSIDE"):
        k("s_cmp_eq_u32 s42, s43")
        k("s_cbranch_scc1 k2_sideld")
        k("s_cmp_eq_u32 s42, s39")
        k("s_cbranch_scc1 k2_side")
    k.label("k2_cont")
    prio(k, 3)
    k("s_cmp_eq_u32 s42, 1")
    k("s_cbranch_scc1 k2_loop")
    k("s_cmp_eq_u32 s42, 5")
    k("s_cbranch_scc1 " + ("k2_loop" if os.environ.get("NOBLK") else "k2_blk5"))
    prio(k, 2)
    k("s_cmp_eq_u32 s42, 2")
    k("s_cbranch_scc1 k2_loop")
    k("s_cmp_eq_u32 s42, 6")
    k("s_cbranch_scc1 " + ("k2_loop" if os.environ.get("NOBLK") else "k2_blk6"))
    prio(k, 1)
    k("s_cmp_eq_u32 s42, 3")
    k("s_cbranch_scc1 k2_loop")
    prio(k, 0)
    k("s_cmp_eq_u32 s42, 4")
    k("s_cbranch_scc1 k2_loop")
    prio(k, 3)
    k("s_sub_u32 m0, s10, 0x2000")
    k(f"s_mul_i32 s7, s{CB16}, 122880")
    k(f"s_add_u32 s7, s7, {WINF - 40960}")
    k.srd(72, 8, 9, "s7", 163840)
    k.srd(68, 8, 9, WINF, WINF_SZ)
    k("s_lshr_b32 s53, s2, 3")
    k("s_lshl_b32 s53, s53, 3")
    k("s_add_u32 s53, s53, s5")
    k("s_mul_i32 s53, s53, 7680")
    k("s_sub_u32 s53, s53, 1024")
    k("s_cmp_lg_u32 s5, " + ("99" if os.environ.get("NOBLK") else "0"))
    k("s_cbranch_scc1 k2_fsok")
    k("s_mov_b32 s38, 0")
    k.label("k2_fschk")
    k("s_waitcnt vmcnt(0)")
    k("v_min3_u32 v168, v168, v169, v170")
    k("v_min_u32 v168, v168, v171")
    k("v_cmp_ne_u32 vcc, 0, v168")
    k("s_cmp_eq_u64 vcc, -1")
    k("s_cbranch_scc1 k2_fsok")
    k("s_sleep 1")
    k(f"buffer_load_dwordx4 v[168:171], v1, s[16:19], s37 offen sc1")
    k("s_add_u32 s38, s38, 1")
    k(f"s_cmp_lt_u32 s38, {SPIN}")
    k("s_cbranch_scc1 k2_fschk")
    k.label("k2_fsok")
    k("s_barrier")
    body([(72, 's_add_u32 m0, s10, 102400', 'sc1 ')] + [(72, INC, 'sc1 ')] * 4 + [(68, 's_add_u32 s53, s53, 1024', None)] * (8 if PF7 else 0), every=4 if PF7 else 7, last=True)
    if os.environ.get("ITER"):
        k.endpgm(1)
    if not os.environ.get("FINE1"): k.stamp(3)
    k(f"v_mov_b32 v15, {hexf(2.0**-100)}")
    k.nop(11)
    k(f"v_cmp_nge_f32 vcc, v{OO+12}, v15")
    k.nop(5)
    k("s_cbranch_vccnz k2_slow")
    k.label("k2_epi")
    k(f"v_rcp_f32 v{S0}, v{OO+12}")
    k(f"s_mul_i32 s7, s{RB}, 81920")
    k("s_and_b32 s10, s6, 1")
    k("s_lshl_b32 s10, s10, 11")
    k("s_add_u32 s10, s7, s10")
    k(f"v_lshrrev_b32 v{S0+3}, 4, v2")
    k(f"v_lshlrev_b32 v{S0+3}, 10, v{S0+3}")
    k(f"v_and_b32 v{S0+2}, 15, v2")
    k(f"v_lshl_add_u32 v{S0+3}, v{S0+2}, 4, v{S0+3}")
    k("s_mul_i32 s11, s4, 20")
    k(f"v_lshl_add_u32 v{S0+4}, v3, 2, s11")
    for i in range(6):
        k(f"v_pk_mul_f32 {r(OO+2*i,2)}, {r(OO+2*i,2)}, {r(S0,2)} op_sel_hi:[1,0]")
    for i in range(6):
        k(f"v_cvt_pk_bf16_f32 v{PP+i}, v{OO+2*i}, v{OO+2*i+1}")
    for i in range(3):
        c = S0 + 8 + 4 * i
        k(f"v_add_u32 v{c}, {8*i}, v{S0+4}")
        k(f"v_lshrrev_b32 v{c+1}, 5, v{c}")
        k(f"v_lshl_add_u32 v{c+1}, v{c+1}, 12, v{S0+3}")
        k(f"v_bfe_u32 v{c+2}, v{c}, 3, 2")
        k(f"v_lshl_add_u32 v{c+1}, v{c+2}, 8, v{c+1}")
        k(f"v_and_b32 v{c+2}, 4, v{c}")
        k(f"v_lshl_add_u32 v{c+1}, v{c+2}, 1, v{c+1}")
        if i == 2:
            k(f"v_lshl_add_u32 v{c+1}, v3, 30, v{c+1}")
    stores(k, [f"buffer_store_dwordx2 {r(PP+2*i,2)}, v{S0+9+4*i}, s[12:15], s10 offen" for i in range(3)])
    k(f"s_lshl_b32 s36, s{RB}, 10")
    k(f"s_add_u32 s36, s36, {F2 - FL}")
    k(f"s_lshl_b32 s37, s{CB8}, 7")
    k("s_add_u32 s37, s37, s36")
    k("s_load_dwordx2 s[44:45], s[0:1], 64")
    k("s_load_dwordx2 s[46:47], s[0:1], 96")
    k("s_cmp_ge_u32 s5, 4")
    k("s_cbranch_scc1 k2_loader")
    XR_, GA_R, ACT, A0, WB = 120, 132, 16, 96, (152, 172, 192)
    k("s_waitcnt vmcnt(0) lgkmcnt(0)")
    k("s_barrier")
    setflag(k, 16, "s37", "k2_f2done", local=True)
    if not (os.environ.get("FINE1") or os.environ.get("FINE2")): k.stamp(4)
    k("v_bfe_u32 v3, v0, 4, 2")
    k("v_and_b32 v5, 15, v0")
    k(f"s_lshl_b32 s6, s{RB}, 2")
    k("s_add_u32 s6, s6, s5")
    x1_addr(k, 6, CB8, 60, 6, 7)
    k("s_lshl_b32 s10, s5, 10")
    k("s_add_u32 s7, s7, s10")
    k.srd(52, 8, 9, X1, ACT_SZ)
    k.srd(56, 8, 9, SP2, SP2_SZ)
    def w3():
        poll(k, "k2_p2", 16, "s36", 8, 10, 11)
        if not (os.environ.get("FINE1") or os.environ.get("FINE2")): k.stamp(5)
    gemm80_resident(k, 20, list(range(8, 20)) + list(range(8)), ACT, A0, WB, 12, 7, lambda ks: ks * 5120,
                    w3, CB8, bars={9: 1, 12: 1})
    if os.environ.get("FINE"): k.stamp(2)
    k.nop(5)
    resid(k, A0, XR_, GA_R, WB[0])
    k("v_and_b32 v7, 1, v3")
    k("v_mul_u32_u24 v7, 4088, v7")
    k("v_add_u32 v7, v7, v6")
    for i in range(10):
        k(f"v_lshlrev_b32 v{A0+2*i}, 16, v{XR_+i}")
        k(f"v_and_b32 v{A0+2*i+1}, 0xffff0000, v{XR_+i}")
    for i in range(10): k(f"v_mov_b32 v{232+i}, v{XR_+i}")
    for p in range(2):
        k(f"v_permlane16_swap_b32 v{XR_+4*p}, v{XR_+4*p+2}")
        k(f"v_permlane16_swap_b32 v{XR_+4*p+1}, v{XR_+4*p+3}")
    stores(k, [f"buffer_store_dwordx4 {r(XR_+4*p)}, v7, s[52:55], s{60+2*p} offen" for p in range(2)] +
              [f"buffer_store_dwordx2 {r(XR_+8,2)}, v6, s[52:55], s64 offen"])
    k(f"v_pk_add_f32 v[10:11], {r(A0,2)}, {r(A0+2,2)}")
    k(f"v_pk_mul_f32 v[12:13], {r(A0,2)}, {r(A0,2)}")
    for i in range(1, 10):
        if i > 1: k(f"v_pk_add_f32 v[10:11], v[10:11], {r(A0+2*i,2)}")
        k(f"v_pk_fma_f32 v[12:13], {r(A0+2*i,2)}, {r(A0+2*i,2)}, v[12:13]")
    k("v_add_f32 v10, v10, v11")
    k("v_add_f32 v12, v12, v13")
    k(f"s_lshl_b32 s36, s{RB}, 3")
    k(f"s_add_u32 s36, s36, s{CB8}")
    k("v_lshlrev_b32 v7, 3, v5")
    k("v_permlane16_swap_b32 v10, v12")
    k("v_add_f32 v10, v10, v12")
    k("v_mov_b32 v12, v10")
    k("v_and_b32 v8, 1, v3")
    k("v_lshl_add_u32 v7, v8, 2, v7")
    k("v_permlane32_swap_b32 v10, v12")
    k("v_add_f32 v10, v10, v12")
    k("v_lshrrev_b32 v8, 1, v3")
    k("v_lshl_add_u32 v7, v8, 30, v7")
    k("s_lshl_b32 s36, s36, 9")
    k("s_lshl_b32 s37, s5, 7")
    k("s_add_u32 s36, s36, s37")
    stores(k, ["buffer_store_dword v10, v7, s[56:59], s36 offen"])
    k(f"s_lshl_b32 s36, s{RB128}, 11")
    k(f"s_add_u32 s36, s36, {F3 - FL}")
    k(f"s_lshl_b32 s37, s{CB16}, 7")
    k("s_add_u32 s37, s37, s36")
    if os.environ.get("FINE"): k.stamp(3)
    k("s_waitcnt vmcnt(0)")
    k("s_barrier")
    setflag(k, 16, "s37", "k2_f3done", 11, local=True)
    if os.environ.get("FINE"): k.stamp(4)
    ACT, A0, WB, ST = 16, 80, 128, 152
    NR = 16; AH = 12
    k("v_bfe_u32 v3, v0, 5, 1")
    k(f"s_lshl_b32 s6, s{RB128}, 2")
    k("s_add_u32 s6, s6, s5")
    k(f"s_mul_i32 s7, s{RB128}, 163840")
    k("s_add_u32 s7, s7, s10")
    k("s_lshl_b32 s11, s6, 11")
    k("s_and_b32 s37, s5, 1")
    k("s_mul_i32 s37, s37, 1792")
    k("s_sub_u32 s11, s11, s37")
    k("v_lshlrev_b32 v4, 3, v2")
    k("v_lshl_add_u32 v6, v3, 11, v4")
    k("v_add_u32 v7, 40960, v1")
    k("v_add_u32 v14, 102400, v1")
    k(f"v_mov_b32 v12, {hexf(GA_)}")
    k(f"v_mov_b32 v13, {hexf(GB_)}")
    order = list(range(20, 40)) + list(range(20))
    def ld(i):
        k(f"s_add_u32 s38, s7, {order[i]*4096}")
        k(f"buffer_load_dwordx4 {r(ACT+4*(i%NR))}, v1, s[52:55], s38 offen sc1")
    def rd(i):
        ks = order[i]; b = WB + 12 * (i & 1)
        a, base = ("v7", 0) if ks < 20 else ("v14", 61440)
        for j in range(3): k(f"ds_read_b128 {r(b+4*j)}, {a} offset:{ks*3072 + j*1024 - base}")
    rd(0)
    k(f"s_mul_i32 s37, s{RB128}, 163840")
    k(f"s_mul_i32 s39, s{CB16}, 10240")
    k("s_add_u32 s37, s37, s39")
    k("s_mul_i32 s39, s5, 2560")
    k("s_add_u32 s37, s37, s39")
    poll(k, "k2_p3", 16, "s36", 16, 10, 164)
    if not os.environ.get("FINE1") and not os.environ.get("FINE3"): k.stamp(6)
    for i in range(4): k(f"buffer_load_dwordx2 {r(ST+2*i,2)}, v6, s[56:59], s11 offen offset:{i*512} sc1")
    ld(0); ld(1)
    if TOUCH:
        for i in range(3): k(f"buffer_load_dwordx4 {r(160)}, v1, s[52:55], s37 offen offset:{min(i*1024, 1536)} sc1")
    for i in range(2, AH): ld(i)
    k(f"s_cmp_eq_u32 s{VV}, 0")
    k("s_cbranch_scc0 k2_p4B")
    LC1, LC2, LTAB = 0, 1024, 2048
    def rowtab(S, n, bias_s, bias_q):
        k(f"v_mov_b32 v{S+2}, v{S}")
        k(f"v_mov_b32 v{S+3}, v{S+1}")
        k("s_lshl_b32 s36, s5, 8")
        k(f"s_add_u32 s36, s36, {LTAB}")
        k(f"v_permlane32_swap_b32 v{S}, v{S+2}")
        k(f"v_permlane32_swap_b32 v{S+1}, v{S+3}")
        k(f"v_pk_add_f32 {r(S,2)}, {r(S,2)}, {r(S+2,2)}")
        k("v_lshl_add_u32 v10, v2, 2, s36")
        k(f"v_mov_b32 v{S+2}, {hexf(1.0/n)}")
        k(f"v_fmaak_f32 v8, v{S}, v{S+2}, {hexf(-bias_s/n)}")
        k(f"v_fmaak_f32 v9, v{S+1}, v{S+2}, {hexf(1e-5 - bias_q/n)}")
        k("v_fma_f32 v9, -v8, v8, v9")
        k("v_rsq_f32 v11, v9")
        k.nop(1)
        k("v_mul_f32 v9, v8, v11")
        k("v_sub_f32 v9, 0, v9")
        k("v_mov_b32 v8, v11")
        k("ds_write_b32 v10, v8")
        k("ds_write_b32 v10, v9 offset:128")
    for var in range(2):
        if var == 1: k.label("k2_p4B")
        types = ("z2", "z2", "z1") if var == 0 else ("z2", "z1", "z1")
        for i in range(40):
            b = WB + 12 * (i & 1); a = ACT + 4 * (i % NR)
            if i == 12: k("s_barrier")
            k(f"s_waitcnt vmcnt({min(AH-1, 39 - i)}) lgkmcnt(0)")
            if os.environ.get("FINE4") and i in (0, 6, 13, 26): k.stamp({0: 2, 6: 3, 13: 4, 26: 5}[i])
            for j in range(3):
                c = "0" if i == 0 else r(A0 + 16 * j, 16)
                x, y = (r(a), r(b + 4 * j)) if types[j] == "z2" else (r(b + 4 * j), r(a))
                k(f"v_mfma_f32_32x32x16_bf16 {r(A0+16*j,16)}, {x}, {y}, {c}")
                if j == 0 and i < 39: rd(i + 1)
                if j == 1 and i + AH < 40: ld(i + AH)
            if i == 21:
                k(f"v_pk_add_f32 {r(ST,2)}, {r(ST,2)}, {r(ST+2,2)}")
                k(f"v_pk_add_f32 {r(ST+4,2)}, {r(ST+4,2)}, {r(ST+6,2)}")
                k(f"v_pk_add_f32 {r(ST,2)}, {r(ST,2)}, {r(ST+4,2)}")
                rowtab(ST, 640, 0.0, 0.0)
                k("s_waitcnt lgkmcnt(0)")
        k("s_barrier")
        if not os.environ.get("FINE1") and not os.environ.get("FINE5"): k.stamp(7)
        RR, NN, CC, SS, QQ, T, CV = 16, 32, 48, 128, 144, 56, 160
        nz2 = types.count("z2")
        k("v_lshl_add_u32 v10, v3, 4, s36")
        k("v_lshlrev_b32 v11, 2, v2")
        def rd_tab():
            for a in range(4):
                k(f"ds_read_b128 {r(RR+4*a)}, v10 offset:{a*32}")
                k(f"ds_read_b128 {r(NN+4*a)}, v10 offset:{128 + a*32}")
        rd_tab()
        for n in range(nz2):
            k(f"ds_read_b32 v{CC+2*n}, v11 offset:{LC1 + n*128}")
            k(f"ds_read_b32 v{CC+2*n+1}, v11 offset:{LC2 + n*128}")
        k.srd(60, 8, 9, STP, STP_SZ)
        k.srd(64, 8, 9, Z1, Z_SZ)
        k.srd(68, 8, 9, Z2, Z_SZ)
        k("v_lshlrev_b32 v15, 4, v3")
        def rd_c(n):
            for a in range(4):
                k(f"ds_read_b128 {r(CV+4*a)}, v15 offset:{LC1 + n*128 + a*32}")
                k(f"ds_read_b128 {r(CV+16+4*a)}, v15 offset:{LC2 + n*128 + a*32}")
        k("s_waitcnt lgkmcnt(0)")
        rd_c(nz2)
        for n in range(nz2):
            X = A0 + 16 * n; c = r(CC + 2 * n, 2)
            for i in range(8): k(f"v_pk_fma_f32 {r(T+2*i,2)}, {r(NN+2*i,2)}, {c}, {c} op_sel:[0,0,1] op_sel_hi:[1,0,1]")
            for i in range(8): k(f"v_pk_fma_f32 {r(X+2*i,2)}, {r(X+2*i,2)}, {r(RR+2*i,2)}, {r(T+2*i,2)}")
            gelu(k, X, T, 8)
            for i in range(8):
                if n == 0: k(f"v_pk_mul_f32 {r(QQ+2*i,2)}, {r(X+2*i,2)}, {r(X+2*i,2)}")
                else: k(f"v_pk_fma_f32 {r(QQ+2*i,2)}, {r(X+2*i,2)}, {r(X+2*i,2)}, {r(QQ+2*i,2)}")
        for i in range(8):
            if nz2 == 2: k(f"v_pk_add_f32 {r(SS+2*i,2)}, {r(A0+2*i,2)}, {r(A0+16+2*i,2)}")
            else: k(f"v_pk_mul_f32 {r(SS+2*i,2)}, {r(A0+2*i,2)}, 1.0 op_sel_hi:[1,0]")
        k("v_and_b32 v4, 3, v0")
        k("v_bfe_u32 v5, v0, 2, 2")
        for i in range(16): k(f"v_permlane16_swap_b32 v{SS+i}, v{QQ+i}")
        for i in range(16): k(f"v_add_f32 v{SS+i}, v{SS+i}, v{QQ+i}")
        for j in range(8): k(f"v_add_f32_dpp v{SS+j}, v{SS+j}, v{SS+j} row_ror:8 row_mask:0xf bank_mask:0x3")
        for j in range(8): k(f"v_add_f32_dpp v{SS+j}, v{SS+8+j}, v{SS+8+j} row_ror:8 row_mask:0xf bank_mask:0xc")
        for j in range(4): k(f"v_add_f32_dpp v{SS+j}, v{SS+j}, v{SS+j} row_half_mirror row_mask:0xf bank_mask:0x5")
        for j in range(4): k(f"v_add_f32_dpp v{SS+j}, v{SS+4+j}, v{SS+4+j} row_half_mirror row_mask:0xf bank_mask:0xa")
        for j in range(4): k(f"v_add_f32_dpp v{SS+j}, v{SS+j}, v{SS+j} quad_perm:[2,3,0,1] row_mask:0xf bank_mask:0xf")
        for j in range(4): k(f"v_add_f32_dpp v{SS+j}, v{SS+j}, v{SS+j} quad_perm:[1,0,3,2] row_mask:0xf bank_mask:0xf")
        k("v_lshl_add_u32 v4, v5, 3, v4")
        k("v_lshl_add_u32 v4, v3, 2, v4")
        k("v_lshlrev_b32 v4, 3, v4")
        k("v_bfe_u32 v5, v0, 4, 1")
        k("v_lshl_add_u32 v4, v5, 2, v4")
        k("v_cvt_f32_u32 v5, v5")
        k(f"v_fmaak_f32 v5, {hexf(-15.0)}, v5, {hexf(16.0)}" if False else f"v_mul_f32 v5, {hexf(-15.0)}, v5")
        k(f"v_add_f32 v5, {hexf(16.0)}, v5")
        for j in range(1, 4):
            m = hex(0x11111111 << j)
            k(f"s_mov_b32 s40, {m}")
            k(f"s_mov_b32 s41, {m}")
            k(f"v_cndmask_b32 v{SS}, v{SS}, v{SS+j}, s[40:41]")
        k(f"s_lshl_b32 s37, s{RB128}, 14")
        k("s_lshl_b32 s38, s5, 8")
        k("s_add_u32 s37, s37, s38")
        k(f"s_lshl_b32 s38, s{CB16}, 10")
        k("s_add_u32 s38, s38, s37")
        k(f"v_add_f32 v{SS}, v{SS}, v5")
        stores(k, [f"buffer_store_dword v{SS}, v4, s[60:63], s38 offen"])
        k("s_mul_i32 s39, s6, 24")
        k(f"s_mul_i32 s38, s{CB8}, 3")
        k("s_add_u32 s39, s39, s38")
        k(f"s_add_u32 s39, s39, {var}")
        k("s_lshl_b32 s39, s39, 11")
        for n in range(nz2, 3):
            X = A0 + 16 * n
            k("s_waitcnt lgkmcnt(0)")
            for i in range(8):
                k(f"v_pk_fma_f32 {r(T+2*i,2)}, v[8:9], {r(CV+2*i,2)}, {r(CV+16+2*i,2)} op_sel:[1,0,0] op_sel_hi:[1,1,1]")
            if n < 2: rd_c(n + 1)
            for i in range(8):
                k(f"v_pk_fma_f32 {r(X+2*i,2)}, {r(X+2*i,2)}, v[8:9], {r(T+2*i,2)} op_sel_hi:[1,0,1]")
            gelu(k, X, T, 8)
            P = SS + 8 * (n - nz2)
            for i in range(8): k(f"v_cvt_pk_bf16_f32 v{P+i}, v{X+2*i}, v{X+2*i+1}")
            if n < 2:
                for ap in range(2):
                    k(f"buffer_store_dwordx4 {r(P+4*ap)}, v1, s[64:67], s39 offen offset:{(n-nz2)*2048 + ap*1024} {Z_SC}")
        G = CV
        k("v_lshlrev_b32 v4, 3, v2")
        k("v_lshl_add_u32 v4, v3, 13, v4")
        k("s_add_u32 s38, s37, 4096")
        k("s_mov_b32 s42, 0")
        lab = f"k2_st{var}"
        k.label(lab)
        for i in range(8):
            k(f"buffer_load_dwordx2 {r(G+2*i,2)}, v4, s[60:63], {'s37' if i < 4 else 's38'} offen offset:{(i&3)*1024} sc1")
        k("s_cmp_lg_u32 s42, 0")
        k(f"s_cbranch_scc1 {lab}_w0")
        for ap in range(2):
            k(f"buffer_store_dwordx4 {r(P+4*ap)}, v1, s[64:67], s39 offen offset:{(2-nz2)*2048 + ap*1024} {Z_SC}")
        k("s_waitcnt vmcnt(2)")
        k(f"s_branch {lab}_w1")
        k.label(lab + "_w0")
        k("s_waitcnt vmcnt(0)")
        k.label(lab + "_w1")
        k("s_add_u32 s42, s42, 1")
        k(f"v_min3_u32 v5, v{G}, v{G+1}, v{G+2}")
        for i in range(6): k(f"v_min3_u32 v5, v5, v{G+3+2*i}, v{G+4+2*i}")
        k(f"v_min_u32 v5, v5, v{G+15}")
        k("v_cmp_ne_u32 vcc, 0, v5")
        k("s_cmp_eq_u64 vcc, -1")
        k(f"s_cbranch_scc1 {lab}_ok")
        k("s_sleep 1")
        k(f"s_cmp_lt_u32 s42, {SPIN}")
        k(f"s_cbranch_scc1 {lab}")
        k.label(lab + "_ok")
        for a, b_ in ((0, 2), (4, 6), (8, 10), (12, 14), (0, 4), (8, 12), (0, 8)):
            k(f"v_pk_add_f32 {r(G+a,2)}, {r(G+a,2)}, {r(G+b_,2)}")
        rowtab(G, 768, 256.0, 16.0)
        k("v_lshl_add_u32 v10, v3, 4, s36")
        k(f"s_lshl_b32 s37, s{CB8}, 7")
        k("s_lshl_b32 s38, s6, 1")
        k("s_add_u32 s37, s37, s38")
        k("s_mul_i32 s37, s37, 3072")
        k(f"s_add_u32 s37, s37, {2048*var}")
        k("s_add_u32 s38, s37, 3072")
        k("s_waitcnt lgkmcnt(0)")
        rd_tab()
        k("s_waitcnt lgkmcnt(0)")
        for n in range(nz2):
            X = A0 + 16 * n; P = T + 8 * n
            for i in range(8): k(f"v_pk_fma_f32 {r(X+2*i,2)}, {r(X+2*i,2)}, {r(RR+2*i,2)}, {r(NN+2*i,2)}")
            for i in range(8): k(f"v_cvt_pk_bf16_f32 v{P+i}, v{X+2*i}, v{X+2*i+1}")
            k.nop(1)
            for h in range(2):
                k(f"v_permlane32_swap_b32 v{P+4*h}, v{P+4*h+2}")
                k(f"v_permlane32_swap_b32 v{P+4*h+1}, v{P+4*h+3}")
                k(f"buffer_store_dwordx4 {r(P+4*h)}, v1, s[68:71], {'s37' if h == 0 else 's38'} offen offset:{n*1024} {Z_SC}")
        if var == 0: k("s_branch k2_zdone")
    k.label("k2_zdone")
    k(f"s_lshl_b32 s37, s{RB128}, 4")
    k(f"s_add_u32 s37, s37, s{CB16}")
    k("s_lshl_b32 s37, s37, 7")
    k(f"s_add_u32 s37, s37, {F4 - FL}")
    k("s_waitcnt vmcnt(0)")
    k("s_barrier")
    setflag(k, 16, "s37", "k2_f4done")
    if os.environ.get("FINE5"): k.stamp(7)
    from k56 import gen_k56
    gen_k56(k, RB, CB8, W3)
    k.label("k2_loader")
    k.srd(56, 8, 9, C1, 12288)
    k(f"s_lshl_b32 s10, s{W3}, 10")
    k("s_waitcnt vmcnt(0) lgkmcnt(0)")
    k("s_barrier")
    if not (os.environ.get("FINE1") or os.environ.get("FINE2")): k.stamp(4)
    def win(base, n):
        k(f"s_add_u32 m0, s10, {base}")
        for i in range(n):
            k.nop(1)
            k("buffer_load_dwordx4 v1, s[72:75], m0 offen sc1 lds")
            if i < n - 1: k("s_add_u32 m0, m0, 4096")
    k("s_barrier")
    win(143360, 5)
    k("s_barrier")
    win(40960, 15)
    if not (os.environ.get("FINE1") or os.environ.get("FINE2")): k.stamp(5)
    k(f"s_mul_i32 s11, s{CB16}, 384")
    k("s_and_b32 s36, s5, 1")
    k("s_mul_i32 s37, s36, 6144")
    k("s_add_u32 s11, s11, s37")
    k("s_lshl_b32 m0, s36, 10")
    k("s_barrier")
    k("buffer_load_dwordx4 v1, s[56:59], s11 offen sc1 lds")
    k("s_waitcnt vmcnt(0)")
    if not (os.environ.get("FINE1") or os.environ.get("FINE2")): k.stamp(6)
    k("s_barrier")
    k("s_barrier")
    k("s_branch k5_loader")
    k.label("k2_end")
    k("s_endpgm")
    k.label("k2_blk5")
    k("s_lshl_b32 s37, s2, 2")
    k(f"s_add_u32 s37, s37, {FS - FL}")
    k("s_waitcnt vmcnt(0)")
    k("s_barrier")
    setflag(k, 16, "s37", "k2_fsdone", 172)
    k("s_cmp_ge_u32 s5, 4")
    k("s_cbranch_scc1 k2_blk5b")
    def wo_burst(first, n):
        k(f"s_lshl_b32 m0, s{W3}, 10")
        k(f"s_add_u32 m0, m0, {first}")
        for i in range(n):
            k.nop(1)
            k("buffer_load_dwordx4 v1, s[32:35], m0 offen sc1 lds")
            if i < n - 1: k("s_add_u32 m0, m0, 4096")
    wo_burst(0, 13)
    k("s_branch k2_loop")
    k.label("k2_blk5b")
    k.srd(68, 8, 9, 0, WS_END)
    k("v_lshrrev_b32 v176, 4, v1")
    k(f"s_mul_i32 s54, s{CB8}, 10")
    k("v_min_u32 v177, 19, v176")
    k("v_lshrrev_b32 v178, 1, v177")
    k("v_add_u32 v178, s54, v178")
    k("v_and_b32 v177, 1, v177")
    k("v_lshlrev_b32 v177, 7, v177")
    k("v_and_b32 v179, 3, v178")
    k("v_lshl_add_u32 v177, v179, 8, v177")
    k("v_lshrrev_b32 v178, 2, v178")
    k("v_lshl_add_u32 v177, v178, 12, v177")
    k(f"s_mul_i32 s54, s{RB}, 81920")
    k(f"s_lshl_b32 s55, s{W3}, 10")
    k("s_add_u32 s54, s54, s55")
    k(f"s_add_u32 s54, s54, {O}")
    k("buffer_load_dword v172, v177, s[68:71], s54 offen sc1")
    k(f"s_mul_i32 s54, s{W3}, 20")
    k("v_min_u32 v178, 19, v176")
    k("v_add_u32 v178, s54, v178")
    k("v_and_b32 v179, 15, v178")
    k("v_lshlrev_b32 v179, 7, v179")
    k("v_lshrrev_b32 v178, 4, v178")
    k("v_lshl_add_u32 v178, v178, 12, v179")
    k(f"s_mul_i32 s54, s{RB128}, 40")
    k(f"s_mul_i32 s55, s{CB8}, 5")
    k("s_add_u32 s54, s54, s55")
    k("s_lshl_b32 s54, s54, 1")
    k(f"s_add_u32 s54, s54, s{VV}")
    k("s_lshl_b32 s54, s54, 11")
    k(f"s_add_u32 s54, s54, {X1}")
    k("buffer_load_dword v173, v178, s[68:71], s54 offen sc1")
    k(f"s_lshl_b32 s54, s{RB}, 3")
    k(f"s_add_u32 s54, s54, s{CB8}")
    k("s_lshl_b32 s54, s54, 2")
    k(f"s_add_u32 s54, s54, s{W3}")
    k("s_lshl_b32 s54, s54, 7")
    k(f"s_add_u32 s54, s54, {SP2}")
    k("buffer_load_dword v174, off, s[68:71], s54 sc1")
    k(f"s_lshl_b32 s54, s{RB128}, 4")
    k(f"s_add_u32 s54, s54, s{CB16}")
    k("s_lshl_b32 s54, s54, 2")
    k(f"s_add_u32 s54, s54, s{W3}")
    k("s_lshl_b32 s54, s54, 8")
    k(f"s_add_u32 s54, s54, {STP}")
    k("buffer_load_dword v175, off, s[68:71], s54 sc1")
    k("buffer_load_dword v175, off, s[68:71], s54 offset:128 sc1")
    k("s_branch k2_loop")
    k.label("k2_blk6")
    k.srd(68, 8, 9, WINF, WINF_SZ)
    k("s_mul_i32 s53, s53, 7680")
    k("s_add_u32 s54, s53, 4096")
    for i in range(8 if PF_WIN else 0): k(f"buffer_load_dwordx4 v[172:175], v1, s[68:71], {'s53' if i < 4 else 's54'} offen offset:{(i&3)*1024} sc1")
    k("s_cmp_lt_u32 s5, 4")
    k("s_cbranch_scc1 k2_blk6a")
    wo_burst(53248, 12)
    k("s_branch k2_loop")
    k.label("k2_blk6a")
    k("v_bfe_u32 v176, v0, 4, 2")
    k("v_and_b32 v177, 15, v0")
    k(f"s_lshl_b32 s59, s{RB}, 2")
    k("s_add_u32 s59, s59, s5")
    k("v_mul_u32_u24 v178, 1280, v177")
    k("v_lshl_add_u32 v178, v176, 3, v178")
    k("s_mul_i32 s60, s59, 20480")
    k(f"s_mul_i32 s61, s{CB8}, 160")
    k("s_add_u32 s60, s60, s61")
    k("v_lshlrev_b32 v179, 4, v176")
    k(f"s_mul_i32 s38, s{CB8}, 320")
    k.srd(52, 44, 45, 0, ACT_SZ)
    k.srd(56, 8, 9, MOD + 5120, 2560)
    for j in range(5): k(f"buffer_load_dwordx2 {r(120+2*j,2)}, v178, s[52:55], s60 offen offset:{j*32}")
    for j in range(5): k(f"buffer_load_dwordx4 {r(132+4*j)}, v179, s[56:59], s38 offen offset:{j*64} sc1")
    k("s_cmp_lg_u32 s5, 0")
    k("s_cbranch_scc1 k2_loop")
    k(f"s_movk_i32 s37, {hex(FS - FL)}")
    k(f"buffer_load_dwordx4 v[168:171], v1, s[16:19], s37 offen sc1")
    k("s_branch k2_loop")
    k.label("k2_sideld")
    k("s_lshl_b32 s52, s2, 3")
    k("s_add_u32 s52, s52, s5")
    k("s_lshr_b32 s53, s2, 3")
    k("s_lshl_b32 s53, s53, 3")
    k("s_add_u32 s53, s53, s5")
    k.srd(56, 48, 49, 0, 640 * 3072)
    k.srd(64, 8, 9, MOD + 7680, 5120)
    k("s_mul_i32 s62, s52, 1639")
    k("s_lshr_b32 s62, s62, 16")
    k("s_mul_i32 s63, s62, 40")
    k("s_sub_u32 s63, s52, s63")
    k("s_mul_i32 s68, s63, 49152")
    k("s_lshl_b32 s69, s62, 6")
    k("s_add_u32 s68, s68, s69")
    k("s_cmp_lt_u32 s52, 1920")
    k("s_cselect_b32 s70, 0, 0x40000000")
    k("s_add_u32 s68, s68, s70")
    k("v_mul_u32_u24 v15, 24576, v3")
    k("v_lshl_add_u32 v15, v2, 1, v15")
    for j in range(8):
        k(f"buffer_load_ushort v{136+j}, v15, s[56:59], s68 offen")
        if j < 7: k("s_add_u32 s68, s68, 3072")
    k("s_lshl_b32 s68, s63, 6")
    k("v_lshlrev_b32 v15, 5, v3")
    k(f"buffer_load_dwordx4 {r(144)}, v15, s[64:67], s68 offen sc1")
    k(f"buffer_load_dwordx4 {r(148)}, v15, s[64:67], s68 offen offset:16 sc1")
    k(f"buffer_load_dwordx4 {r(152)}, v15, s[64:67], s68 offen offset:2560 sc1")
    k(f"buffer_load_dwordx4 {r(156)}, v15, s[64:67], s68 offen offset:2576 sc1")
    k("s_cmp_ge_u32 s62, 24")
    k("s_cselect_b32 s68, 24, 0")
    k("s_cselect_b32 s71, 0x310, 0")
    k("s_cselect_b32 s72, 0, 0x542")
    k("s_or_b32 s71, s71, s72")
    k("s_sub_u32 s62, s62, s68")
    k("s_mul_i32 s68, s62, 86")
    k("s_lshr_b32 s68, s68, 8")
    k("s_mul_i32 s69, s68, 3")
    k("s_sub_u32 s69, s62, s69")
    k("s_lshl_b32 s69, s69, 2")
    k("s_lshr_b32 s71, s71, s69")
    k("s_and_b32 s71, s71, 15")
    k("s_mul_i32 s62, s68, 6")
    k("s_add_u32 s62, s62, s71")
    k("s_mul_i32 s68, s62, 86")
    k("s_lshr_b32 s68, s68, 8")
    k("s_mul_i32 s69, s68, 3")
    k("s_sub_u32 s69, s62, s69")
    k("s_mul_i32 s68, s68, 40")
    k("s_add_u32 s68, s68, s63")
    k("s_mul_i32 s68, s68, 3")
    k("s_add_u32 s68, s68, s69")
    k("s_lshl_b32 s68, s68, 10")
    k("s_add_u32 s63, s68, s70")
    k("s_lshl_b32 s62, s62, 7")
    k("s_add_u32 s62, s62, s70")
    k.srd(56, 46, 47, 0, 983040)
    k("s_mul_i32 s69, s52, 2731")
    k("s_lshr_b32 s69, s69, 16")
    k("s_mul_i32 s73, s69, 24")
    k("s_sub_u32 s68, s52, s73")
    k("s_cmp_lt_u32 s52, 960")
    k("s_cselect_b32 s70, 0, 0x40000000")
    k("s_mul_i32 s73, s68, 40960")
    k("s_lshl_b32 s74, s69, 5")
    k("s_add_u32 s73, s73, s74")
    k("s_add_u32 s73, s73, s70")
    k("s_add_u32 s74, s73, 5120")
    k("v_bfe_u32 v15, v0, 4, 2")
    k("v_mul_u32_u24 v15, 10240, v15")
    k("v_and_b32 v160, 15, v0")
    k("v_lshl_add_u32 v15, v160, 1, v15")
    for j in range(8):
        k(f"buffer_load_ushort v{160+j}, v15, s[56:59], {'s73' if j < 4 else 's74'} offen offset:{(j&3)*1280}")
    k("s_mul_i32 s73, s69, 52")
    k("s_lshr_b32 s73, s73, 8")
    k("s_mul_i32 s74, s73, 5")
    k("s_sub_u32 s74, s69, s74")
    k("s_mul_i32 s73, s73, 24")
    k("s_add_u32 s73, s73, s68")
    k("s_mul_i32 s73, s73, 5")
    k("s_add_u32 s73, s73, s74")
    k("s_lshl_b32 s73, s73, 10")
    k("s_add_u32 s60, s73, s70")
    k.srd(56, 50, 51, 0, WSPF_SZ)
    k("s_lshl_b32 s54, s3, 3")
    k("s_lshr_b32 s55, s53, 5")
    k("s_add_u32 s54, s54, s55")
    k("s_and_b32 s55, s53, 31")
    k("s_lshl_b32 s68, s54, 17")
    k("s_lshl_b32 s69, s55, 7")
    k("s_add_u32 s68, s68, s69")
    k("s_lshr_b32 s61, s54, 1")
    k("s_lshl_b32 s61, s61, 18")
    k("s_lshl_b32 s69, s55, 13")
    k("s_add_u32 s61, s61, s69")
    k("s_and_b32 s69, s54, 1")
    k("s_lshl_b32 s69, s69, 10")
    k("s_add_u32 s61, s61, s69")
    k("v_lshlrev_b32 v15, 12, v2")
    k("v_lshl_add_u32 v15, v3, 4, v15")
    for q in range(4):
        k(f"buffer_load_dwordx4 {r(120+4*q)}, v15, s[56:59], s68 offen offset:{q*32}")
    k("s_branch k2_cont")
    k.label("k2_side")
    k.srd(64, 8, 9, WSPF, WSPF_SZ)
    k.srd(68, 8, 9, WINF, WINF_SZ)
    k.srd(72, 8, 9, C1, 12288)
    k.srd(56, 8, 9, WOUTF, WOUTF_SZ)
    k("s_add_u32 s54, s61, 4096")
    k("s_waitcnt vmcnt(0)")
    for j in range(4):
        k(f"v_lshl_or_b32 v{160+j}, v{161+2*j}, 16, v{160+2*j}")
    k(f"buffer_store_dwordx4 {r(160)}, v1, s[56:59], s60 offen {SIDE_SC}")
    for j in range(8): k(f"v_lshlrev_b32 v{136+j}, 16, v{136+j}")
    k("v_mul_f32 v165, v136, v144")
    for j in range(1, 8): k(f"v_fmac_f32 v165, v{136+j}, v{144+j}")
    for j in range(8): k(f"v_mul_f32 v{136+j}, v{136+j}, v{152+j}")
    for j in range(4): k(f"v_cvt_pk_bf16_f32 v{144+j}, v{136+2*j}, v{137+2*j}")
    k(f"buffer_store_dwordx4 {r(144)}, v1, s[68:71], s63 offen {SIDE_SC}")
    for j in range(4):
        k(f"v_lshlrev_b32 v{136+2*j}, 16, v{144+j}")
        k(f"v_and_b32 v{137+2*j}, 0xffff0000, v{144+j}")
    for a, b in ((136, 137), (138, 139), (140, 141), (142, 143), (136, 138), (140, 142)):
        k(f"v_add_f32 v{a}, v{a}, v{b}")
    k("v_add_f32 v164, v136, v140")
    k("v_mul_u32_u24 v166, 6144, v3")
    k("v_lshl_add_u32 v166, v2, 2, v166")
    k("v_permlane32_swap_b32 v164, v165")
    k("v_add_f32 v164, v164, v165")
    k("buffer_atomic_add_f32 v164, v166, s[72:75], s62 offen")
    for q in range(4 if not os.environ.get("NOWSP") else 0):
        k(f"buffer_store_dwordx4 {r(120+4*q)}, v1, s[64:67], {'s61' if q < 2 else 's54'} offen offset:{(q&1)*2048} {SIDE_SC}")
    k("s_branch k2_cont")
    k.label("k2_slow")
    T = S1
    k(f"v_subrev_u32 v{AK2}, 143360, v{AK2}")
    k(f"v_subrev_u32 v{AV}, 143360, v{AV}")
    k(f"v_mov_b32 v{T}, 0xff800000")
    k("s_mov_b32 s42, 0")
    def ldK():
        k(f"buffer_load_dwordx4 {r(KF1[0])}, v1, s[20:23], s42 offen sc1")
        k(f"buffer_load_dwordx2 {r(KF2[0],2)}, v{AK2}, s[20:23], s42 offen sc1")
    k.label("k2_slow1")
    ldK()
    k("s_waitcnt vmcnt(0)")
    k(f"v_mfma_f32_32x32x16_bf16 {r(S0,16)}, {r(KF1[0])}, {r(QA)}, 0")
    k(f"v_mfma_f32_32x32x16_bf16 {r(S0,16)}, {r(KF2[0])}, {r(QB)}, {r(S0,16)}")
    k.nop(12)
    for i in range(8): k(f"v_max3_f32 v{T}, v{T}, v{S0+2*i}, v{S0+2*i+1}")
    k("s_add_u32 s42, s42, 2560")
    k("s_cmp_lt_u32 s42, 163840")
    k("s_cbranch_scc1 k2_slow1")
    k(f"v_mov_b32 v{T+1}, v{T}")
    k("s_mov_b32 s42, 0")
    k.nop(1)
    k(f"v_permlane32_swap_b32 v{T}, v{T+1}")
    k(f"v_max_f32 v{T}, v{T}, v{T+1}")
    for i in range(16): k(f"v_sub_f32 v{CM+i}, 0, v{T}")
    for i in range(16): k(f"v_mov_b32 v{OO+i}, 0")
    k.label("k2_slow2")
    ldK()
    k("s_mov_b64 exec, s[40:41]")
    k(f"buffer_load_dwordx4 {r(VF[0])}, v{AV}, s[20:23], s42 offen sc1")
    k(f"buffer_load_dwordx4 {r(VF[0]+4)}, v{AV}, s[20:23], s42 offen offset:640 sc1")
    k("s_mov_b64 exec, -1")
    k("s_waitcnt vmcnt(0)")
    k(f"v_mfma_f32_32x32x16_bf16 {r(S0,16)}, {r(KF1[0])}, {r(QA)}, {r(CM,16)}")
    k(f"v_mfma_f32_32x32x16_bf16 {r(S0,16)}, {r(KF2[0])}, {r(QB)}, {r(S0,16)}")
    k.nop(12)
    for i in range(16): k(f"v_exp_f32 v{S0+i}, v{S0+i}")
    k.nop(1)
    for i in range(8): k(f"v_cvt_pk_bf16_f32 v{PP+i}, v{S0+2*i}, v{S0+2*i+1}")
    k.nop(2)
    k(f"v_mfma_f32_32x32x16_bf16 {r(OO,16)}, {r(VF[0])}, {r(PP)}, {r(OO,16)}")
    k(f"v_mfma_f32_32x32x16_bf16 {r(OO,16)}, {r(VF[0]+4)}, {r(PP+4)}, {r(OO,16)}")
    k("s_add_u32 s42, s42, 2560")
    k("s_cmp_lt_u32 s42, 163840")
    k("s_cbranch_scc1 k2_slow2")
    k.nop(12)
    k("s_branch k2_epi")
    return k
```

```python
MOD = 0x0000
MOD_SZ = 15360
KMAX = 0x7400
ZR = 0x4000; ZR_SZ = 0x9C000
C1 = 0x4000; C2 = 0x5800
FS = 0x7000; F2 = 0x50000; F3 = 0x58000; F5 = 0x60000; F4 = 0x68000; F1 = 0x70000; XID = 0xB09000; FL = FS; FL_SZ = 0x71000
STP = 0x10000; STP_SZ = 0x40000
KV = 0x78000; KV_SZ = 163840
MODP = 0xAC0000
MODP_ST = 0x3C00
F0 = 0xB00000; EPOCH = 0xB08000
WQF = 0xA8000; WQF_SZ = 983040
WOF = 0x198000; WOF_SZ = 819200
WOUTF = 0x260000; WOUTF_SZ = 983040
WINF = 0x350000; WINF_SZ = 1966080
ACT_SZ = 2621440; Z_SZ = 3145728
XN = 0x540000
Q = 0x840000
O = 0xCC0000; X1 = 0xF40000; Y = 0x11C0000
SP2 = 0x14C0000; SP2_SZ = 0x20000
Z1 = 0x1500000
Z2 = 0x1800000
WSPF = 0x1B00000; WSPF_SZ = 8388608
WS_END = 0x2300000
```

```python
from asmlib import Kern
from layout import *
from k0 import hexf, rowred
import os, math

K234_LDS = 163840
QA, QB, CM, S0, S1, OO, PP = 4, 8, 16, 32, 48, 64, 80
KF1 = (88, 92); KF2 = (96, 100); VF = (104, 112)
AK1, AK2, AV = 12, 13, 14
SIDE_SC = os.environ.get("SIDE_SC", "sc1")
Z_SC = os.environ.get("Z_SC", "sc1")
SPIN = 200000
TZ = int(os.environ.get('TZ', '0'))
NC1 = int(os.environ.get('NC1', '8'))
F1SH = int(os.environ.get('F1SH', '5'))
PF7 = int(os.environ.get('PF7', '1'))
TOUCH = int(os.environ.get('TOUCH', '0'))
PF_WIN = int(os.environ.get('PF_WIN', '0'))
RETRY = 2000
PF_NEXT = int(os.environ.get('PF_NEXT', '0'))
GA_ = -2 * math.log2(math.e) * math.sqrt(2 / math.pi)
GB_ = GA_ * 0.044715
RB, CB8, W3, VV, RB128, CB16, FAST = 24, 25, 26, 27, 28, 29, 30
NOFAST = os.environ.get('NOFAST')

def prio(k, n):
    if not os.environ.get("NOPRIO"): k(f"s_setprio {n}")
def r(b, n=4): return f"v[{b}:{b+n-1}]"

def poll(k, name, srd, soff, nflag, vo, vf, want=None):
    if nflag:
        k(f"v_and_b32 v{vo}, {nflag-1}, v0")
        k(f"v_lshlrev_b32 v{vo}, 7, v{vo}")
    k("s_mov_b32 s38, 0")
    k(f"buffer_load_dword v{vf}, v{vo}, s[{srd}:{srd+3}], {soff} offen sc1")
    k("s_sleep 4")
    k.label(name)
    for h in range(2):
        k(f"buffer_load_dword v{vf+1-h}, v{vo}, s[{srd}:{srd+3}], {soff} offen sc1")
        if os.environ.get("PSLEEP"): k(f"s_sleep {os.environ['PSLEEP']}")
        k("s_waitcnt vmcnt(1)")
        k(f"v_cmp_ne_u32 vcc, 0, v{vf+h}" if want is None else f"v_cmp_eq_u32 vcc, {want}, v{vf+h}")
        k("s_cmp_eq_u64 vcc, -1")
        k(f"s_cbranch_scc1 {name}_ok")
    k("s_add_u32 s38, s38, 1")
    k(f"s_cmp_lt_u32 s38, {SPIN}")
    k(f"s_cbranch_scc1 {name}")
    k.label(name + "_ok")

def poll_missing(k, name, srd, soffs, vo, vf, sleep=1):
    n = len(soffs)
    for q in range(n): k(f"v_mov_b32 v{vf+q}, 0")
    k("s_mov_b32 s38, 0")
    k("s_mov_b64 s[70:71], 0")
    k.label(name)
    for q in range(n):
        k(f"v_cmp_eq_u32 vcc, 0, v{vf+q}")
        k("s_or_b64 s[70:71], s[70:71], vcc")
        k("s_cmp_eq_u64 vcc, 0")
        k(f"s_cbranch_scc1 {name}_s{q}")
        k("s_mov_b64 exec, vcc")
        k(f"buffer_load_dword v{vf+q}, v{vo}, s[{srd}:{srd+3}], {soffs[q]} offen sc1")
        k("s_mov_b64 exec, -1")
        k.label(f"{name}_s{q}")
    k("s_cmp_eq_u64 s[70:71], 0")
    k(f"s_cbranch_scc1 {name}_ok")
    k("s_mov_b64 s[70:71], 0")
    k("s_add_u32 s38, s38, 1")
    if sleep: k(f"s_sleep {sleep}")
    k("s_waitcnt vmcnt(0)")
    k(f"s_cmp_lt_u32 s38, {SPIN}")
    k(f"s_cbranch_scc1 {name}")
    k.label(name + "_ok")

def stores(k, lines):
    a = k.newlabel("sl"); b = k.newlabel("sd")
    k(f"s_cmp_eq_u32 s{FAST}, 0")
    k(f"s_cbranch_scc1 {a}")
    for l in lines: k(l)
    k(f"s_branch {b}")
    k.label(a)
    for l in lines: k(l + " sc1")
    k.label(b)

def setflag(k, srd, soff, lab, v=10, local=False, val="1", count=False):
    k("s_cmp_lg_u32 s5, 0")
    k(f"s_cbranch_scc1 {lab}")
    k(f"v_mov_b32 v{v}, {val}")
    k("s_mov_b64 exec, 1")
    if count: k(f"buffer_atomic_add v{v}, off, s[{srd}:{srd+3}], {soff}")
    elif local: stores(k, [f"buffer_store_dword v{v}, off, s[{srd}:{srd+3}], {soff}"])
    else: k(f"buffer_store_dword v{v}, off, s[{srd}:{srd+3}], {soff} sc1")
    k("s_mov_b64 exec, -1")
    k.label(lab)

def hint(k, srd, soff, v=10):
    k(f"v_mov_b32 v{v}, 1")
    k("s_mov_b64 exec, 1")
    k(f"buffer_store_dword v{v}, off, s[{srd}:{srd+3}], {soff} sc1")
    k("s_mov_b64 exec, -1")

def chk(k, c, b, n=4):
    for i in range(0, n, 2): k(f"v_max3_u32 v{c}, v{c}, v{b+i}, v{b+i+1}")

def verify(k, c, again, cnt):
    k(f"v_cmp_eq_u32 vcc, -1, v{c}")
    k(f"s_add_u32 s{cnt}, s{cnt}, 1")
    k(f"s_cmp_lt_u32 s{cnt}, {RETRY}")
    k("s_cselect_b64 s[70:71], vcc, 0")
    k("s_cmp_lg_u64 s[70:71], 0")
    k(f"s_cbranch_scc1 {again}")

def gelu(k, X, T, n):
    for i in range(n): k(f"v_pk_mul_f32 {r(T+2*i,2)}, {r(X+2*i,2)}, {r(X+2*i,2)}")
    for i in range(n): k(f"v_pk_fma_f32 {r(T+2*i,2)}, {r(T+2*i,2)}, v[12:13], v[12:13] op_sel:[0,1,0] op_sel_hi:[1,1,0]")
    for i in range(n): k(f"v_pk_mul_f32 {r(T+2*i,2)}, {r(T+2*i,2)}, {r(X+2*i,2)}")
    for i in range(2 * n): k(f"v_exp_f32 v{T+i}, v{T+i}")
    for i in range(n): k(f"v_pk_add_f32 {r(T+2*i,2)}, {r(T+2*i,2)}, 1.0 op_sel_hi:[1,0]")
    for i in range(2 * n): k(f"v_rcp_f32 v{T+i}, v{T+i}")
    for i in range(n): k(f"v_pk_mul_f32 {r(X+2*i,2)}, {r(X+2*i,2)}, {r(T+2*i,2)}")

def x1_addr(k, rt, cb, s0, dst, tmp, kg=3, l16=5):
    k(f"s_lshr_b32 s{s0}, s{rt}, 3")
    k(f"s_mul_i32 s{s0}, s{s0}, 40")
    k(f"s_mul_i32 s{s0+1}, s{cb}, 5")
    k(f"s_add_u32 s{s0}, s{s0}, s{s0+1}")
    k(f"s_lshl_b32 s{s0}, s{s0}, 12")
    k(f"s_bfe_u32 s{s0+1}, s{rt}, 0x20001")
    k(f"s_lshl_b32 s{s0+1}, s{s0+1}, 10")
    k(f"s_add_u32 s{s0}, s{s0}, s{s0+1}")
    k(f"s_and_b32 s{s0+1}, s{rt}, 1")
    k(f"s_lshl_b32 s{s0+1}, s{s0+1}, 8")
    k(f"s_add_u32 s{s0}, s{s0}, s{s0+1}")
    for j in range(1, 5): k(f"s_add_u32 s{s0+j}, s{s0}, {j*4096}")
    k(f"v_lshrrev_b32 v{dst}, 1, v{kg}")
    k(f"v_lshlrev_b32 v{dst}, 9, v{dst}")
    k(f"v_lshl_add_u32 v{dst}, v{l16}, 4, v{dst}")
    k(f"v_and_b32 v{tmp}, 1, v{kg}")
    k(f"v_lshl_add_u32 v{dst}, v{tmp}, 3, v{dst}")

def gemm80_resident(k, NK, order, ACT, A0, WB, srd, soff, lds_addr, wait, cb, bars={}, AH=11):
    k("v_add_u32 v8, 0xf000, v1")
    k("v_add_u32 v9, 0x1e000, v1")
    def ld(i):
        return [f"s_add_u32 s38, s{soff}, {order[i]*4096}\nbuffer_load_dwordx4 {r(ACT+4*i)}, v1, s[{srd}:{srd+3}], s38 offen sc1"]
    def rd(i):
        ks = order[i]; b = WB[i % 3]
        ad = lds_addr(ks); n = ad // 0xf000
        return [f"ds_read_b128 {r(b+4*j)}, {('v1', 'v8', 'v9')[n]} offset:{ad + j*1024 - n*0xf000}" for j in range(5)]
    for l in rd(0) + rd(1): k(l)
    wait()
    for i in range(AH): k(ld(i)[0])
    for i in range(NK):
        b = WB[i % 3]
        if i in bars: k("s_barrier")
        k(f"s_waitcnt vmcnt({min(AH-1, NK-1-i)}) lgkmcnt({5 if i < NK-1 else 0})")
        if os.environ.get("FINE3") and i in (0, 5, 12): k.stamp({0: 2, 5: 3, 12: 4}[i])
        fill = (rd(i + 2) if i + 2 < NK else [""] * 5)
        for j in range(5):
            c = "0" if i == 0 else r(A0 + 4 * j)
            k(f"v_mfma_f32_16x16x32_bf16 {r(A0+4*j)}, {r(b+4*j)}, {r(ACT+4*i)}, {c}")
            k(fill[j])
        if i + AH < NK: k(ld(i + AH)[0])
    if os.environ.get("FINE3"): k.stamp(7 if NK == 24 else 6)

def resid(k, A0, X, G, T):
    for i in range(10):
        k(f"v_lshlrev_b32 v{T+2*i}, 16, v{X+i}")
        k(f"v_and_b32 v{T+2*i+1}, 0xffff0000, v{X+i}")
    for i in range(10): k(f"v_pk_fma_f32 {r(A0+2*i,2)}, {r(A0+2*i,2)}, {r(G+2*i,2)}, {r(T+2*i,2)}")
    for i in range(10): k(f"v_cvt_pk_bf16_f32 v{X+i}, v{A0+2*i}, v{A0+2*i+1}")

def gen_k234():
    k = Kern("k2_kernel", 244, 100)
    k("s_cmp_ge_u32 s2, 256")
    k("s_cbranch_scc1 k2_end")
    k.stamp(0); k.rstamp(1)
    k("s_load_dwordx2 s[8:9], s[0:1], 112")
    from g16 import gen_p1
    gen_p1(k)
    k.srd(16, 8, 9, FL, FL_SZ)
    k("s_lshl_b32 s37, s2, 7")
    k(f"s_add_u32 s37, s37, {F1 - FL}")
    k("v_lshrrev_b32 v1, 6, v0")
    k("s_barrier")
    k("v_readfirstlane_b32 s5, v1")
    k("s_getreg_b32 s43, hwreg(HW_REG_XCC_ID, 0, 4)")
    k("s_add_u32 s42, s43, 1")
    setflag(k, 16, "s37", "k2_f1done")
    if os.environ.get("FINE2"): k.stamp(4)
    k("s_load_dwordx2 s[44:45], s[0:1], 0")
    k("s_load_dwordx4 s[48:51], s[0:1], 48")
    k("s_load_dwordx2 s[46:47], s[0:1], 72")
    k("s_and_b32 s3, s2, 7")
    k(f"s_lshl_b32 s{RB}, s3, 2")
    k("s_bfe_u32 s4, s2, 0x20003")
    k(f"s_add_u32 s{RB}, s{RB}, s4")
    k(f"s_lshr_b32 s{CB8}, s2, 5")
    k("v_and_b32 v1, 63, v0")
    k("v_and_b32 v2, 31, v0")
    k("v_bfe_u32 v3, v0, 5, 1")
    k("v_lshlrev_b32 v1, 4, v1")
    k(f"s_lshl_b32 s4, s{CB8}, 2")
    k(f"s_and_b32 s{W3}, s5, 3")
    k(f"s_add_u32 s4, s4, s{W3}")
    k(f"s_lshl_b32 s6, s{RB}, 1")
    k("s_lshr_b32 s43, s5, 2")
    k("s_add_u32 s6, s6, s43")
    k(f"s_mul_i32 s7, s{W3}, 2560")
    k("s_mul_i32 s10, s43, 1280")
    k("s_add_u32 s7, s7, s10")
    k("v_add_u32 v15, s7, v1")
    k(f"ds_read_b128 {r(QA)}, v15")
    k("v_lshl_add_u32 v15, v2, 3, s7")
    k(f"v_mov_b32 v{QB}, 0")
    k(f"v_mov_b32 v{QB+1}, 0")
    k("s_mov_b32 exec_hi, 0")
    k(f"ds_read_b64 {r(QB,2)}, v15 offset:1024")
    k("s_mov_b64 exec, -1")
    k("s_lshl_b32 s10, s5, 10")
    k.srd(20, 8, 9, KV, KV_SZ)
    k.srd(56, 8, 9, KMAX, 1024)
    prio(k, 3)
    k(f"s_bfe_u32 s{VV}, s2, 0x10003")
    k(f"s_lshr_b32 s{RB128}, s{RB}, 1")
    k(f"s_lshl_b32 s{CB16}, s{CB8}, 1")
    k(f"s_add_u32 s{CB16}, s{CB16}, s{VV}")
    k(f"v_mov_b32 v{AK1}, v1")
    k(f"v_lshlrev_b32 v{AK2}, 3, v2")
    k(f"v_add_u32 v{AK2}, 1024, v{AK2}")
    k(f"v_mul_u32_u24 v{AV}, 20, v3")
    k(f"v_add_u32 v{AV}, v{AV}, v2")
    k(f"v_lshlrev_b32 v{AV}, 4, v{AV}")
    k(f"v_add_u32 v{AV}, 1280, v{AV}")
    k("s_mov_b32 s40, 0x000fffff")
    k("s_mov_b32 s41, 0x000fffff")
    k("v_or_b32 v15, 4, v2")
    k("v_cmp_eq_u32 vcc, 28, v15")
    k("v_mov_b32 v15, 0x3f803f80")
    k("s_add_u32 s43, s43, 1")
    k(f"v_cndmask_b32 v{VF[0]}, 0, v15, vcc")
    for i in range(16): k(f"v_mov_b32 v{OO+i}, 0")
    for i in range(1, 16): k(f"v_mov_b32 v{VF[0]+i}, v{VF[0]}")
    for i in range(4, 8): k(f"v_mov_b32 v{PP+i}, 0")
    for b in (QB, KF2[0], KF2[1]):
        k(f"v_mov_b32 v{b+2}, 0"); k(f"v_mov_b32 v{b+3}, 0")
    k.srd(12, 8, 9, O, ACT_SZ)
    k(f"s_mul_i32 s7, s{CB8}, 102400")
    k(f"s_add_u32 s7, s7, {WOF}")
    k.srd(16 + 16, 8, 9, "s7", 102400)
    k("s_cmp_lg_u32 s5, 0")
    k("s_cbranch_scc1 k2_p1_ok")
    k(f"v_lshlrev_b32 v{S1}, 7, v0")
    for q in range(4): k(f"s_mov_b32 s{60+q}, {F1 - FL + q * 8192}")
    poll_missing(k, "k2_p1", 16, ["s60", "s61", "s62", "s63"], S1, S1 + 1, int(os.environ.get('F1SL', '1')))
    k("s_mov_b32 m0, s10")
    k("s_waitcnt lgkmcnt(0)")
    k("s_barrier")
    if os.environ.get("FINE2"): k.stamp(5)
    k("buffer_load_dwordx4 v1, s[20:23], m0 offen sc1 lds")
    k(f"s_mov_b32 s36, {XID - FL}")
    k(f"buffer_load_dwordx4 {r(S1+8)}, v1, s[16:19], s36 offen sc1")
    k("s_add_u32 m0, m0, 0x2000")
    k(f"buffer_load_dwordx4 {r(S0)}, v1, s[56:59], 0 offen sc1")
    for i in range(3):
        k("buffer_load_dwordx4 v1, s[20:23], m0 offen sc1 lds")
        if i < 2:
            k("s_add_u32 m0, m0, 0x2000")
            k.nop(1)
    k("s_waitcnt vmcnt(3)")
    k("s_and_b32 s36, s2, 3")
    for q in range(1, 4):
        k(f"s_cmp_eq_u32 s36, {q}")
        k("s_cselect_b64 vcc, -1, 0")
        k(f"v_cndmask_b32 v{S1+8}, v{S1+8}, v{S1+8+q}, vcc")
    k("s_lshr_b32 s36, s2, 2")
    k(f"v_xor_b32 v{S1+12}, s36, v0")
    k(f"v_and_b32 v{S1+12}, 5, v{S1+12}")
    k(f"v_cmp_eq_u32 vcc, 0, v{S1+12}")
    k(f"v_cmp_ne_u32 s[36:37], s42, v{S1+8}")
    k.nop(1)
    k("s_and_b64 vcc, vcc, s[36:37]")
    k(f"s_cselect_b32 s{FAST}, 0, " + ("0" if NOFAST else "1"))
    k(f"v_max3_f32 v{S1}, v{S0}, v{S0+1}, v{S0+2}")
    k(f"v_max_f32 v{S1}, v{S1}, v{S0+3}")
    k(f"v_dot2_f32_bf16 v{S1+2}, v{QA}, v{QA}, 0")
    rowred(k, "v_max_f32", S1)
    for b in (QA + 1, QA + 2, QA + 3, QB, QB + 1):
        k(f"v_dot2_f32_bf16 v{S1+2}, v{b}, v{b}, v{S1+2}")
    k(f"v_mov_b32 v{S1+1}, v{S1}")
    k.nop(3)
    k(f"v_mov_b32 v{S1+3}, v{S1+2}")
    k(f"v_permlane16_swap_b32 v{S1}, v{S1+1}")
    k(f"v_max_f32 v{S1}, v{S1}, v{S1+1}")
    k(f"v_permlane32_swap_b32 v{S1+2}, v{S1+3}")
    k(f"v_mov_b32 v{S1+1}, v{S1}")
    k(f"v_add_f32 v{S1+2}, v{S1+2}, v{S1+3}")
    k.nop(1)
    k(f"v_permlane32_swap_b32 v{S1}, v{S1+1}")
    k(f"v_add_f32 v{S1}, v{S1}, v{S1+1}")
    k(f"v_mul_f32 v{S1}, v{S1}, v{S1+2}")
    k(f"v_sqrt_f32 v{S1}, v{S1}")
    k.nop(1)
    k(f"v_mov_b32 v{S1+1}, {hexf(-1.001)}")
    k(f"v_fmaak_f32 v{CM}, v{S1}, v{S1+1}, {hexf(60.0)}")
    for i in range(1, 16): k(f"v_mov_b32 v{CM+i}, v{CM}")
    def rdK(t, buf):
        k(f"ds_read_b128 {r(KF1[buf])}, v{AK1} offset:{t*2560}")
        k(f"ds_read_b64 {r(KF2[buf],2)}, v{AK2} offset:{t*2560}")
    def rdV(t, buf):
        k("s_mov_b64 exec, s[40:41]")
        k(f"ds_read_b128 {r(VF[buf])}, v{AV} offset:{t*2560}")
        k(f"ds_read_b128 {r(VF[buf]+4)}, v{AV} offset:{t*2560+640}")
        k("s_mov_b64 exec, -1")
    SB = (S0, S1)
    k("s_waitcnt vmcnt(0) lgkmcnt(0)")
    k("s_barrier")
    if not (os.environ.get("ITER") or os.environ.get("FINE1")): k.stamp(2)
    rdK(0, 0); rdK(1, 1); rdV(0, 0)
    k("s_waitcnt lgkmcnt(4)")
    k(f"v_mfma_f32_32x32x16_bf16 {r(S0,16)}, {r(KF1[0])}, {r(QA)}, {r(CM,16)}")
    k(f"v_mfma_f32_32x32x16_bf16 {r(S0,16)}, {r(KF2[0])}, {r(QB)}, {r(S0,16)}")
    k.nop(8)
    def body(dma, every=5, last=False, first=False):
        left = list(dma)
        body.n0 = len(k.lines)
        def ex(reg):
            if left and ex.n % every == 1:
                srd, pre, fl = left.pop(0)
                k(pre)
                k(f"v_exp_f32 v{reg}, v{reg}")
                if fl is None: k(f"buffer_load_dwordx4 v[172:175], v1, s[{srd}:{srd+3}], s53 offen sc1")
                else: k(f"buffer_load_dwordx4 v1, s[{srd}:{srd+3}], m0 offen {fl}lds")
            else:
                k(f"v_exp_f32 v{reg}, v{reg}")
            ex.n += 1
        ex.n = 0
        for t in range(8):
            cur = SB[t & 1]; nxt = SB[(t + 1) & 1]
            def E(lo):
                for i in range(lo, lo + 4): ex(cur + i)
                for i in range(lo // 2, lo // 2 + 2): k(f"v_cvt_pk_bf16_f32 v{PP+i}, v{cur+2*i}, v{cur+2*i+1}")
            fin = last and t == 7
            if (last or first) and t in (2, 4, 6): prio(k, 3 - t // 2)
            k("s_waitcnt lgkmcnt(0)")
            if not (last and t >= 6): rdK(t + 2, t & 1)
            else: k.nop(1)
            k(f"v_mfma_f32_32x32x16_bf16 {r(OO,16)}, {r(VF[(t+1)&1]+4)}, {r(PP+4)}, {r(OO,16)}")
            E(0)
            if not fin:
                k(f"v_mfma_f32_32x32x16_bf16 {r(nxt,16)}, {r(KF1[(t+1)&1])}, {r(QA)}, {r(CM,16)}")
                rdV(t + 1, (t + 1) & 1)
            E(4)
            if not fin: k(f"v_mfma_f32_32x32x16_bf16 {r(nxt,16)}, {r(KF2[(t+1)&1])}, {r(QB)}, {r(nxt,16)}")
            if t == 7 and not last:
                k(f"v_add_u32 v{AK1}, 20480, v{AK1}")
                k(f"v_add_u32 v{AK2}, 20480, v{AK2}")
                k(f"v_add_u32 v{AV}, 20480, v{AV}")
            E(8)
            k(f"v_mfma_f32_32x32x16_bf16 {r(OO,16)}, {r(VF[t&1])}, {r(PP)}, {r(OO,16)}")
            E(12)
        assert not left
        X = os.environ.get("XP", "")
        if X:
            new = []
            for l in k.lines[body.n0:]:
                if "nopv" in X and "v_mfma" in l and l.split()[1].startswith(f"v[{OO}:"): l = "    s_nop 0"
                if "noqk2" in X and "v_mfma" in l and f"{r(QB)}" in l: l = "    s_nop 0"
                if "nolds" in X and "ds_read" in l: l = "    s_nop 0"
                if "noexp" in X and "v_exp" in l: l = l.replace("v_exp_f32", "v_mov_b32")
                if "nocvt" in X and "v_cvt_pk" in l: l = "    s_nop 0"
                if "qk8" in X and "v_mfma" in l and f"{r(QB)}" in l:
                    l = l.replace("v_mfma_f32_32x32x16_bf16", "v_mfma_f32_32x32x8bf16_1k").replace(r(QB), r(QB, 2)).replace(r(KF2[0]), r(KF2[0], 2)).replace(r(KF2[1]), r(KF2[1], 2))
                new.append(l)
            k.lines[body.n0:] = new
        if last:
            k.nop(2)
            k(f"v_mfma_f32_32x32x16_bf16 {r(OO,16)}, {r(VF[1]+4)}, {r(PP+4)}, {r(OO,16)}")
    INC = "s_add_u32 m0, m0, 0x2000"
    body([(20, INC, 'sc1 ')] * 16, first=True)
    k("s_waitcnt vmcnt(0)")
    k("s_barrier")
    k("s_mov_b32 s42, 1")
    k("s_add_u32 s39, s43, 2")
    k("s_branch k2_disp")
    k.lines.append(".p2align 6")
    k.label("k2_loop")
    body([])
    k("s_add_u32 s42, s42, 1")
    k.label("k2_disp")
    if os.environ.get("ITER"):
        for i in range(1, 7):
            k(f"s_cmp_eq_u32 s42, {i}")
            k(f"s_cbranch_scc0 k2_it{i}")
            k.stamp(i + 1)
            k.label(f"k2_it{i}")
    if not os.environ.get("NOSIDE"):
        k("s_cmp_eq_u32 s42, s43")
        k("s_cbranch_scc1 k2_sideld")
        k("s_cmp_eq_u32 s42, s39")
        k("s_cbranch_scc1 k2_side")
    k.label("k2_cont")
    prio(k, 3)
    k("s_cmp_eq_u32 s42, 1")
    k("s_cbranch_scc1 k2_loop")
    k("s_cmp_eq_u32 s42, 5")
    k("s_cbranch_scc1 " + ("k2_loop" if os.environ.get("NOBLK") else "k2_blk5"))
    prio(k, 2)
    k("s_cmp_eq_u32 s42, 2")
    k("s_cbranch_scc1 k2_loop")
    k("s_cmp_eq_u32 s42, 6")
    k("s_cbranch_scc1 " + ("k2_loop" if os.environ.get("NOBLK") else "k2_blk6"))
    prio(k, 1)
    k("s_cmp_eq_u32 s42, 3")
    k("s_cbranch_scc1 k2_loop")
    prio(k, 0)
    k("s_cmp_eq_u32 s42, 4")
    k("s_cbranch_scc1 k2_loop")
    prio(k, 3)
    k("s_sub_u32 m0, s10, 0x2000")
    k(f"s_mul_i32 s7, s{CB16}, 122880")
    k(f"s_add_u32 s7, s7, {WINF - 40960}")
    k.srd(72, 8, 9, "s7", 163840)
    k.srd(68, 8, 9, WINF, WINF_SZ)
    k("s_lshr_b32 s53, s2, 3")
    k("s_lshl_b32 s53, s53, 3")
    k("s_add_u32 s53, s53, s5")
    k("s_mul_i32 s53, s53, 7680")
    k("s_sub_u32 s53, s53, 1024")
    k("s_cmp_lg_u32 s5, " + ("99" if os.environ.get("NOBLK") else "0"))
    k("s_cbranch_scc1 k2_fsok")
    k("s_mov_b32 s38, 0")
    k.label("k2_fschk")
    k("s_waitcnt vmcnt(0)")
    k("v_min3_u32 v168, v168, v169, v170")
    k("v_min_u32 v168, v168, v171")
    k("v_cmp_ne_u32 vcc, 0, v168")
    k("s_cmp_eq_u64 vcc, -1")
    k("s_cbranch_scc1 k2_fsok")
    k("s_sleep 1")
    k(f"buffer_load_dwordx4 v[168:171], v1, s[16:19], s37 offen sc1")
    k("s_add_u32 s38, s38, 1")
    k(f"s_cmp_lt_u32 s38, {SPIN}")
    k("s_cbranch_scc1 k2_fschk")
    k.label("k2_fsok")
    k("s_barrier")
    body([(72, 's_add_u32 m0, s10, 102400', 'sc1 ')] + [(72, INC, 'sc1 ')] * 4 + [(68, 's_add_u32 s53, s53, 1024', None)] * (8 if PF7 else 0), every=4 if PF7 else 7, last=True)
    if os.environ.get("ITER"):
        k.endpgm(1)
    if not os.environ.get("FINE1"): k.stamp(3)
    k(f"v_mov_b32 v15, {hexf(2.0**-100)}")
    k.nop(11)
    k(f"v_cmp_nge_f32 vcc, v{OO+12}, v15")
    k.nop(5)
    k("s_cbranch_vccnz k2_slow")
    k.label("k2_epi")
    k(f"v_rcp_f32 v{S0}, v{OO+12}")
    k(f"s_mul_i32 s7, s{RB}, 81920")
    k("s_and_b32 s10, s6, 1")
    k("s_lshl_b32 s10, s10, 11")
    k("s_add_u32 s10, s7, s10")
    k(f"v_lshrrev_b32 v{S0+3}, 4, v2")
    k(f"v_lshlrev_b32 v{S0+3}, 10, v{S0+3}")
    k(f"v_and_b32 v{S0+2}, 15, v2")
    k(f"v_lshl_add_u32 v{S0+3}, v{S0+2}, 4, v{S0+3}")
    k("s_mul_i32 s11, s4, 20")
    k(f"v_lshl_add_u32 v{S0+4}, v3, 2, s11")
    for i in range(6):
        k(f"v_pk_mul_f32 {r(OO+2*i,2)}, {r(OO+2*i,2)}, {r(S0,2)} op_sel_hi:[1,0]")
    for i in range(6):
        k(f"v_cvt_pk_bf16_f32 v{PP+i}, v{OO+2*i}, v{OO+2*i+1}")
    for i in range(3):
        c = S0 + 8 + 4 * i
        k(f"v_add_u32 v{c}, {8*i}, v{S0+4}")
        k(f"v_lshrrev_b32 v{c+1}, 5, v{c}")
        k(f"v_lshl_add_u32 v{c+1}, v{c+1}, 12, v{S0+3}")
        k(f"v_bfe_u32 v{c+2}, v{c}, 3, 2")
        k(f"v_lshl_add_u32 v{c+1}, v{c+2}, 8, v{c+1}")
        k(f"v_and_b32 v{c+2}, 4, v{c}")
        k(f"v_lshl_add_u32 v{c+1}, v{c+2}, 1, v{c+1}")
        if i == 2:
            k(f"v_lshl_add_u32 v{c+1}, v3, 30, v{c+1}")
    stores(k, [f"buffer_store_dwordx2 {r(PP+2*i,2)}, v{S0+9+4*i}, s[12:15], s10 offen" for i in range(3)])
    k(f"s_lshl_b32 s36, s{RB}, 10")
    k(f"s_add_u32 s36, s36, {F2 - FL}")
    k(f"s_lshl_b32 s37, s{CB8}, 7")
    k("s_add_u32 s37, s37, s36")
    k("s_load_dwordx2 s[44:45], s[0:1], 64")
    k("s_load_dwordx2 s[46:47], s[0:1], 96")
    k("s_cmp_ge_u32 s5, 4")
    k("s_cbranch_scc1 k2_loader")
    XR_, GA_R, ACT, A0, WB = 120, 132, 16, 96, (152, 172, 192)
    k("s_waitcnt vmcnt(0) lgkmcnt(0)")
    k("s_barrier")
    setflag(k, 16, "s37", "k2_f2done", local=True)
    if not (os.environ.get("FINE1") or os.environ.get("FINE2")): k.stamp(4)
    k("v_bfe_u32 v3, v0, 4, 2")
    k("v_and_b32 v5, 15, v0")
    k(f"s_lshl_b32 s6, s{RB}, 2")
    k("s_add_u32 s6, s6, s5")
    x1_addr(k, 6, CB8, 60, 6, 7)
    k("s_lshl_b32 s10, s5, 10")
    k("s_add_u32 s7, s7, s10")
    k.srd(52, 8, 9, X1, ACT_SZ)
    k.srd(56, 8, 9, SP2, SP2_SZ)
    def w3():
        poll(k, "k2_p2", 16, "s36", 8, 10, 11)
        if not (os.environ.get("FINE1") or os.environ.get("FINE2")): k.stamp(5)
    gemm80_resident(k, 20, list(range(8, 20)) + list(range(8)), ACT, A0, WB, 12, 7, lambda ks: ks * 5120,
                    w3, CB8, bars={9: 1, 12: 1})
    if os.environ.get("FINE"): k.stamp(2)
    k.nop(5)
    resid(k, A0, XR_, GA_R, WB[0])
    k("v_and_b32 v7, 1, v3")
    k("v_mul_u32_u24 v7, 4088, v7")
    k("v_add_u32 v7, v7, v6")
    for i in range(10):
        k(f"v_lshlrev_b32 v{A0+2*i}, 16, v{XR_+i}")
        k(f"v_and_b32 v{A0+2*i+1}, 0xffff0000, v{XR_+i}")
    for i in range(10): k(f"v_mov_b32 v{232+i}, v{XR_+i}")
    for p in range(2):
        k(f"v_permlane16_swap_b32 v{XR_+4*p}, v{XR_+4*p+2}")
        k(f"v_permlane16_swap_b32 v{XR_+4*p+1}, v{XR_+4*p+3}")
    stores(k, [f"buffer_store_dwordx4 {r(XR_+4*p)}, v7, s[52:55], s{60+2*p} offen" for p in range(2)] +
              [f"buffer_store_dwordx2 {r(XR_+8,2)}, v6, s[52:55], s64 offen"])
    k(f"v_pk_add_f32 v[10:11], {r(A0,2)}, {r(A0+2,2)}")
    k(f"v_pk_mul_f32 v[12:13], {r(A0,2)}, {r(A0,2)}")
    for i in range(1, 10):
        if i > 1: k(f"v_pk_add_f32 v[10:11], v[10:11], {r(A0+2*i,2)}")
        k(f"v_pk_fma_f32 v[12:13], {r(A0+2*i,2)}, {r(A0+2*i,2)}, v[12:13]")
    k("v_add_f32 v10, v10, v11")
    k("v_add_f32 v12, v12, v13")
    k(f"s_lshl_b32 s36, s{RB}, 3")
    k(f"s_add_u32 s36, s36, s{CB8}")
    k("v_lshlrev_b32 v7, 3, v5")
    k("v_permlane16_swap_b32 v10, v12")
    k("v_add_f32 v10, v10, v12")
    k("v_mov_b32 v12, v10")
    k("v_and_b32 v8, 1, v3")
    k("v_lshl_add_u32 v7, v8, 2, v7")
    k("v_permlane32_swap_b32 v10, v12")
    k("v_add_f32 v10, v10, v12")
    k("v_lshrrev_b32 v8, 1, v3")
    k("v_lshl_add_u32 v7, v8, 30, v7")
    k("s_lshl_b32 s36, s36, 9")
    k("s_lshl_b32 s37, s5, 7")
    k("s_add_u32 s36, s36, s37")
    stores(k, ["buffer_store_dword v10, v7, s[56:59], s36 offen"])
    k(f"s_lshl_b32 s36, s{RB128}, 11")
    k(f"s_add_u32 s36, s36, {F3 - FL}")
    k(f"s_lshl_b32 s37, s{CB16}, 7")
    k("s_add_u32 s37, s37, s36")
    if os.environ.get("FINE"): k.stamp(3)
    k("s_waitcnt vmcnt(0)")
    k("s_barrier")
    setflag(k, 16, "s37", "k2_f3done", 11, local=True)
    if os.environ.get("FINE"): k.stamp(4)
    ACT, A0, WB, ST = 16, 80, 128, 152
    NR = 16; AH = 12
    k("v_bfe_u32 v3, v0, 5, 1")
    k(f"s_lshl_b32 s6, s{RB128}, 2")
    k("s_add_u32 s6, s6, s5")
    k(f"s_mul_i32 s7, s{RB128}, 163840")
    k("s_add_u32 s7, s7, s10")
    k("s_lshl_b32 s11, s6, 11")
    k("s_and_b32 s37, s5, 1")
    k("s_mul_i32 s37, s37, 1792")
    k("s_sub_u32 s11, s11, s37")
    k("v_lshlrev_b32 v4, 3, v2")
    k("v_lshl_add_u32 v6, v3, 11, v4")
    k("v_add_u32 v7, 40960, v1")
    k("v_add_u32 v14, 102400, v1")
    k(f"v_mov_b32 v12, {hexf(GA_)}")
    k(f"v_mov_b32 v13, {hexf(GB_)}")
    order = list(range(20, 40)) + list(range(20))
    def ld(i):
        k(f"s_add_u32 s38, s7, {order[i]*4096}")
        k(f"buffer_load_dwordx4 {r(ACT+4*(i%NR))}, v1, s[52:55], s38 offen sc1")
    def rd(i):
        ks = order[i]; b = WB + 12 * (i & 1)
        a, base = ("v7", 0) if ks < 20 else ("v14", 61440)
        for j in range(3): k(f"ds_read_b128 {r(b+4*j)}, {a} offset:{ks*3072 + j*1024 - base}")
    rd(0)
    k(f"s_mul_i32 s37, s{RB128}, 163840")
    k(f"s_mul_i32 s39, s{CB16}, 10240")
    k("s_add_u32 s37, s37, s39")
    k("s_mul_i32 s39, s5, 2560")
    k("s_add_u32 s37, s37, s39")
    poll(k, "k2_p3", 16, "s36", 16, 10, 164)
    if not os.environ.get("FINE1") and not os.environ.get("FINE3"): k.stamp(6)
    for i in range(4): k(f"buffer_load_dwordx2 {r(ST+2*i,2)}, v6, s[56:59], s11 offen offset:{i*512} sc1")
    ld(0); ld(1)
    if TOUCH:
        for i in range(3): k(f"buffer_load_dwordx4 {r(160)}, v1, s[52:55], s37 offen offset:{min(i*1024, 1536)} sc1")
    for i in range(2, AH): ld(i)
    k(f"s_cmp_eq_u32 s{VV}, 0")
    k("s_cbranch_scc0 k2_p4B")
    LC1, LC2, LTAB = 0, 1024, 2048
    def rowtab(S, n, bias_s, bias_q):
        k(f"v_mov_b32 v{S+2}, v{S}")
        k(f"v_mov_b32 v{S+3}, v{S+1}")
        k("s_lshl_b32 s36, s5, 8")
        k(f"s_add_u32 s36, s36, {LTAB}")
        k(f"v_permlane32_swap_b32 v{S}, v{S+2}")
        k(f"v_permlane32_swap_b32 v{S+1}, v{S+3}")
        k(f"v_pk_add_f32 {r(S,2)}, {r(S,2)}, {r(S+2,2)}")
        k("v_lshl_add_u32 v10, v2, 2, s36")
        k(f"v_mov_b32 v{S+2}, {hexf(1.0/n)}")
        k(f"v_fmaak_f32 v8, v{S}, v{S+2}, {hexf(-bias_s/n)}")
        k(f"v_fmaak_f32 v9, v{S+1}, v{S+2}, {hexf(1e-5 - bias_q/n)}")
        k("v_fma_f32 v9, -v8, v8, v9")
        k("v_rsq_f32 v11, v9")
        k.nop(1)
        k("v_mul_f32 v9, v8, v11")
        k("v_sub_f32 v9, 0, v9")
        k("v_mov_b32 v8, v11")
        k("ds_write_b32 v10, v8")
        k("ds_write_b32 v10, v9 offset:128")
    for var in range(2):
        if var == 1: k.label("k2_p4B")
        types = ("z2", "z2", "z1") if var == 0 else ("z2", "z1", "z1")
        for i in range(40):
            b = WB + 12 * (i & 1); a = ACT + 4 * (i % NR)
            if i == 12: k("s_barrier")
            k(f"s_waitcnt vmcnt({min(AH-1, 39 - i)}) lgkmcnt(0)")
            if os.environ.get("FINE4") and i in (0, 6, 13, 26): k.stamp({0: 2, 6: 3, 13: 4, 26: 5}[i])
            for j in range(3):
                c = "0" if i == 0 else r(A0 + 16 * j, 16)
                x, y = (r(a), r(b + 4 * j)) if types[j] == "z2" else (r(b + 4 * j), r(a))
                k(f"v_mfma_f32_32x32x16_bf16 {r(A0+16*j,16)}, {x}, {y}, {c}")
                if j == 0 and i < 39: rd(i + 1)
                if j == 1 and i + AH < 40: ld(i + AH)
            if i == 21:
                k(f"v_pk_add_f32 {r(ST,2)}, {r(ST,2)}, {r(ST+2,2)}")
                k(f"v_pk_add_f32 {r(ST+4,2)}, {r(ST+4,2)}, {r(ST+6,2)}")
                k(f"v_pk_add_f32 {r(ST,2)}, {r(ST,2)}, {r(ST+4,2)}")
                rowtab(ST, 640, 0.0, 0.0)
                k("s_waitcnt lgkmcnt(0)")
        k("s_barrier")
        if not os.environ.get("FINE1") and not os.environ.get("FINE5"): k.stamp(7)
        RR, NN, CC, SS, QQ, T, CV = 16, 32, 48, 128, 144, 56, 160
        nz2 = types.count("z2")
        k("v_lshl_add_u32 v10, v3, 4, s36")
        k("v_lshlrev_b32 v11, 2, v2")
        def rd_tab():
            for a in range(4):
                k(f"ds_read_b128 {r(RR+4*a)}, v10 offset:{a*32}")
                k(f"ds_read_b128 {r(NN+4*a)}, v10 offset:{128 + a*32}")
        rd_tab()
        for n in range(nz2):
            k(f"ds_read_b32 v{CC+2*n}, v11 offset:{LC1 + n*128}")
            k(f"ds_read_b32 v{CC+2*n+1}, v11 offset:{LC2 + n*128}")
        k.srd(60, 8, 9, STP, STP_SZ)
        k.srd(64, 8, 9, Z1, Z_SZ)
        k.srd(68, 8, 9, Z2, Z_SZ)
        k("v_lshlrev_b32 v15, 4, v3")
        def rd_c(n):
            for a in range(4):
                k(f"ds_read_b128 {r(CV+4*a)}, v15 offset:{LC1 + n*128 + a*32}")
                k(f"ds_read_b128 {r(CV+16+4*a)}, v15 offset:{LC2 + n*128 + a*32}")
        k("s_waitcnt lgkmcnt(0)")
        rd_c(nz2)
        for n in range(nz2):
            X = A0 + 16 * n; c = r(CC + 2 * n, 2)
            for i in range(8): k(f"v_pk_fma_f32 {r(T+2*i,2)}, {r(NN+2*i,2)}, {c}, {c} op_sel:[0,0,1] op_sel_hi:[1,0,1]")
            for i in range(8): k(f"v_pk_fma_f32 {r(X+2*i,2)}, {r(X+2*i,2)}, {r(RR+2*i,2)}, {r(T+2*i,2)}")
            gelu(k, X, T, 8)
            for i in range(8):
                if n == 0: k(f"v_pk_mul_f32 {r(QQ+2*i,2)}, {r(X+2*i,2)}, {r(X+2*i,2)}")
                else: k(f"v_pk_fma_f32 {r(QQ+2*i,2)}, {r(X+2*i,2)}, {r(X+2*i,2)}, {r(QQ+2*i,2)}")
        for i in range(8):
            if nz2 == 2: k(f"v_pk_add_f32 {r(SS+2*i,2)}, {r(A0+2*i,2)}, {r(A0+16+2*i,2)}")
            else: k(f"v_pk_mul_f32 {r(SS+2*i,2)}, {r(A0+2*i,2)}, 1.0 op_sel_hi:[1,0]")
        k("v_and_b32 v4, 3, v0")
        k("v_bfe_u32 v5, v0, 2, 2")
        for i in range(16): k(f"v_permlane16_swap_b32 v{SS+i}, v{QQ+i}")
        for i in range(16): k(f"v_add_f32 v{SS+i}, v{SS+i}, v{QQ+i}")
        for j in range(8): k(f"v_add_f32_dpp v{SS+j}, v{SS+j}, v{SS+j} row_ror:8 row_mask:0xf bank_mask:0x3")
        for j in range(8): k(f"v_add_f32_dpp v{SS+j}, v{SS+8+j}, v{SS+8+j} row_ror:8 row_mask:0xf bank_mask:0xc")
        for j in range(4): k(f"v_add_f32_dpp v{SS+j}, v{SS+j}, v{SS+j} row_half_mirror row_mask:0xf bank_mask:0x5")
        for j in range(4): k(f"v_add_f32_dpp v{SS+j}, v{SS+4+j}, v{SS+4+j} row_half_mirror row_mask:0xf bank_mask:0xa")
        for j in range(4): k(f"v_add_f32_dpp v{SS+j}, v{SS+j}, v{SS+j} quad_perm:[2,3,0,1] row_mask:0xf bank_mask:0xf")
        for j in range(4): k(f"v_add_f32_dpp v{SS+j}, v{SS+j}, v{SS+j} quad_perm:[1,0,3,2] row_mask:0xf bank_mask:0xf")
        k("v_lshl_add_u32 v4, v5, 3, v4")
        k("v_lshl_add_u32 v4, v3, 2, v4")
        k("v_lshlrev_b32 v4, 3, v4")
        k("v_bfe_u32 v5, v0, 4, 1")
        k("v_lshl_add_u32 v4, v5, 2, v4")
        k("v_cvt_f32_u32 v5, v5")
        k(f"v_fmaak_f32 v5, {hexf(-15.0)}, v5, {hexf(16.0)}" if False else f"v_mul_f32 v5, {hexf(-15.0)}, v5")
        k(f"v_add_f32 v5, {hexf(16.0)}, v5")
        for j in range(1, 4):
            m = hex(0x11111111 << j)
            k(f"s_mov_b32 s40, {m}")
            k(f"s_mov_b32 s41, {m}")
            k(f"v_cndmask_b32 v{SS}, v{SS}, v{SS+j}, s[40:41]")
        k(f"s_lshl_b32 s37, s{RB128}, 14")
        k("s_lshl_b32 s38, s5, 8")
        k("s_add_u32 s37, s37, s38")
        k(f"s_lshl_b32 s38, s{CB16}, 10")
        k("s_add_u32 s38, s38, s37")
        k(f"v_add_f32 v{SS}, v{SS}, v5")
        stores(k, [f"buffer_store_dword v{SS}, v4, s[60:63], s38 offen"])
        k("s_mul_i32 s39, s6, 24")
        k(f"s_mul_i32 s38, s{CB8}, 3")
        k("s_add_u32 s39, s39, s38")
        k(f"s_add_u32 s39, s39, {var}")
        k("s_lshl_b32 s39, s39, 11")
        for n in range(nz2, 3):
            X = A0 + 16 * n
            k("s_waitcnt lgkmcnt(0)")
            for i in range(8):
                k(f"v_pk_fma_f32 {r(T+2*i,2)}, v[8:9], {r(CV+2*i,2)}, {r(CV+16+2*i,2)} op_sel:[1,0,0] op_sel_hi:[1,1,1]")
            if n < 2: rd_c(n + 1)
            for i in range(8):
                k(f"v_pk_fma_f32 {r(X+2*i,2)}, {r(X+2*i,2)}, v[8:9], {r(T+2*i,2)} op_sel_hi:[1,0,1]")
            gelu(k, X, T, 8)
            P = SS + 8 * (n - nz2)
            for i in range(8): k(f"v_cvt_pk_bf16_f32 v{P+i}, v{X+2*i}, v{X+2*i+1}")
            if n < 2:
                for ap in range(2):
                    k(f"buffer_store_dwordx4 {r(P+4*ap)}, v1, s[64:67], s39 offen offset:{(n-nz2)*2048 + ap*1024} {Z_SC}")
        G = CV
        k("v_lshlrev_b32 v4, 3, v2")
        k("v_lshl_add_u32 v4, v3, 13, v4")
        k("s_add_u32 s38, s37, 4096")
        k("s_mov_b32 s42, 0")
        lab = f"k2_st{var}"
        k.label(lab)
        for i in range(8):
            k(f"buffer_load_dwordx2 {r(G+2*i,2)}, v4, s[60:63], {'s37' if i < 4 else 's38'} offen offset:{(i&3)*1024} sc1")
        k("s_cmp_lg_u32 s42, 0")
        k(f"s_cbranch_scc1 {lab}_w0")
        for ap in range(2):
            k(f"buffer_store_dwordx4 {r(P+4*ap)}, v1, s[64:67], s39 offen offset:{(2-nz2)*2048 + ap*1024} {Z_SC}")
        k("s_waitcnt vmcnt(2)")
        k(f"s_branch {lab}_w1")
        k.label(lab + "_w0")
        k("s_waitcnt vmcnt(0)")
        k.label(lab + "_w1")
        k("s_add_u32 s42, s42, 1")
        k(f"v_min3_u32 v5, v{G}, v{G+1}, v{G+2}")
        for i in range(6): k(f"v_min3_u32 v5, v5, v{G+3+2*i}, v{G+4+2*i}")
        k(f"v_min_u32 v5, v5, v{G+15}")
        k("v_cmp_ne_u32 vcc, 0, v5")
        k("s_cmp_eq_u64 vcc, -1")
        k(f"s_cbranch_scc1 {lab}_ok")
        k("s_sleep 1")
        k(f"s_cmp_lt_u32 s42, {SPIN}")
        k(f"s_cbranch_scc1 {lab}")
        k.label(lab + "_ok")
        for a, b_ in ((0, 2), (4, 6), (8, 10), (12, 14), (0, 4), (8, 12), (0, 8)):
            k(f"v_pk_add_f32 {r(G+a,2)}, {r(G+a,2)}, {r(G+b_,2)}")
        rowtab(G, 768, 256.0, 16.0)
        k("v_lshl_add_u32 v10, v3, 4, s36")
        k(f"s_lshl_b32 s37, s{CB8}, 7")
        k("s_lshl_b32 s38, s6, 1")
        k("s_add_u32 s37, s37, s38")
        k("s_mul_i32 s37, s37, 3072")
        k(f"s_add_u32 s37, s37, {2048*var}")
        k("s_add_u32 s38, s37, 3072")
        k("s_waitcnt lgkmcnt(0)")
        rd_tab()
        k("s_waitcnt lgkmcnt(0)")
        for n in range(nz2):
            X = A0 + 16 * n; P = T + 8 * n
            for i in range(8): k(f"v_pk_fma_f32 {r(X+2*i,2)}, {r(X+2*i,2)}, {r(RR+2*i,2)}, {r(NN+2*i,2)}")
            for i in range(8): k(f"v_cvt_pk_bf16_f32 v{P+i}, v{X+2*i}, v{X+2*i+1}")
            k.nop(1)
            for h in range(2):
                k(f"v_permlane32_swap_b32 v{P+4*h}, v{P+4*h+2}")
                k(f"v_permlane32_swap_b32 v{P+4*h+1}, v{P+4*h+3}")
                k(f"buffer_store_dwordx4 {r(P+4*h)}, v1, s[68:71], {'s37' if h == 0 else 's38'} offen offset:{n*1024} {Z_SC}")
        if var == 0: k("s_branch k2_zdone")
    k.label("k2_zdone")
    k(f"s_lshl_b32 s37, s{RB128}, 4")
    k(f"s_add_u32 s37, s37, s{CB16}")
    k("s_lshl_b32 s37, s37, 7")
    k(f"s_add_u32 s37, s37, {F4 - FL}")
    k("s_waitcnt vmcnt(0)")
    k("s_barrier")
    setflag(k, 16, "s37", "k2_f4done")
    if os.environ.get("FINE5"): k.stamp(7)
    from k56 import gen_k56
    gen_k56(k, RB, CB8, W3)
    k.label("k2_loader")
    k.srd(56, 8, 9, C1, 12288)
    k(f"s_lshl_b32 s10, s{W3}, 10")
    k("s_waitcnt vmcnt(0) lgkmcnt(0)")
    k("s_barrier")
    if not (os.environ.get("FINE1") or os.environ.get("FINE2")): k.stamp(4)
    def win(base, n):
        k(f"s_add_u32 m0, s10, {base}")
        for i in range(n):
            k.nop(1)
            k("buffer_load_dwordx4 v1, s[72:75], m0 offen sc1 lds")
            if i < n - 1: k("s_add_u32 m0, m0, 4096")
    k("s_barrier")
    win(143360, 5)
    k("s_barrier")
    win(40960, 15)
    if not (os.environ.get("FINE1") or os.environ.get("FINE2")): k.stamp(5)
    k(f"s_mul_i32 s11, s{CB16}, 384")
    k("s_and_b32 s36, s5, 1")
    k("s_mul_i32 s37, s36, 6144")
    k("s_add_u32 s11, s11, s37")
    k("s_lshl_b32 m0, s36, 10")
    k("s_barrier")
    k("buffer_load_dwordx4 v1, s[56:59], s11 offen sc1 lds")
    k("s_waitcnt vmcnt(0)")
    if not (os.environ.get("FINE1") or os.environ.get("FINE2")): k.stamp(6)
    k("s_barrier")
    k("s_barrier")
    k("s_branch k5_loader")
    k.label("k2_end")
    k("s_endpgm")
    k.label("k2_blk5")
    k("s_lshl_b32 s37, s2, 2")
    k(f"s_add_u32 s37, s37, {FS - FL}")
    k("s_waitcnt vmcnt(0)")
    k("s_barrier")
    setflag(k, 16, "s37", "k2_fsdone", 172)
    k("s_cmp_ge_u32 s5, 4")
    k("s_cbranch_scc1 k2_blk5b")
    def wo_burst(first, n):
        k(f"s_lshl_b32 m0, s{W3}, 10")
        k(f"s_add_u32 m0, m0, {first}")
        for i in range(n):
            k.nop(1)
            k("buffer_load_dwordx4 v1, s[32:35], m0 offen sc1 lds")
            if i < n - 1: k("s_add_u32 m0, m0, 4096")
    wo_burst(0, 13)
    k("s_branch k2_loop")
    k.label("k2_blk5b")
    k.srd(68, 8, 9, 0, WS_END)
    k("v_lshrrev_b32 v176, 4, v1")
    k(f"s_mul_i32 s54, s{CB8}, 10")
    k("v_min_u32 v177, 19, v176")
    k("v_lshrrev_b32 v178, 1, v177")
    k("v_add_u32 v178, s54, v178")
    k("v_and_b32 v177, 1, v177")
    k("v_lshlrev_b32 v177, 7, v177")
    k("v_and_b32 v179, 3, v178")
    k("v_lshl_add_u32 v177, v179, 8, v177")
    k("v_lshrrev_b32 v178, 2, v178")
    k("v_lshl_add_u32 v177, v178, 12, v177")
    k(f"s_mul_i32 s54, s{RB}, 81920")
    k(f"s_lshl_b32 s55, s{W3}, 10")
    k("s_add_u32 s54, s54, s55")
    k(f"s_add_u32 s54, s54, {O}")
    k("buffer_load_dword v172, v177, s[68:71], s54 offen sc1")
    k(f"s_mul_i32 s54, s{W3}, 20")
    k("v_min_u32 v178, 19, v176")
    k("v_add_u32 v178, s54, v178")
    k("v_and_b32 v179, 15, v178")
    k("v_lshlrev_b32 v179, 7, v179")
    k("v_lshrrev_b32 v178, 4, v178")
    k("v_lshl_add_u32 v178, v178, 12, v179")
    k(f"s_mul_i32 s54, s{RB128}, 40")
    k(f"s_mul_i32 s55, s{CB8}, 5")
    k("s_add_u32 s54, s54, s55")
    k("s_lshl_b32 s54, s54, 1")
    k(f"s_add_u32 s54, s54, s{VV}")
    k("s_lshl_b32 s54, s54, 11")
    k(f"s_add_u32 s54, s54, {X1}")
    k("buffer_load_dword v173, v178, s[68:71], s54 offen sc1")
    k(f"s_lshl_b32 s54, s{RB}, 3")
    k(f"s_add_u32 s54, s54, s{CB8}")
    k("s_lshl_b32 s54, s54, 2")
    k(f"s_add_u32 s54, s54, s{W3}")
    k("s_lshl_b32 s54, s54, 7")
    k(f"s_add_u32 s54, s54, {SP2}")
    k("buffer_load_dword v174, off, s[68:71], s54 sc1")
    k(f"s_lshl_b32 s54, s{RB128}, 4")
    k(f"s_add_u32 s54, s54, s{CB16}")
    k("s_lshl_b32 s54, s54, 2")
    k(f"s_add_u32 s54, s54, s{W3}")
    k("s_lshl_b32 s54, s54, 8")
    k(f"s_add_u32 s54, s54, {STP}")
    k("buffer_load_dword v175, off, s[68:71], s54 sc1")
    k("buffer_load_dword v175, off, s[68:71], s54 offset:128 sc1")
    if TZ:
        k(f"s_lshl_b32 s54, s{RB128}, 2")
        k(f"s_add_u32 s54, s54, s{W3}")
        k("s_mul_i32 s55, s54, 24")
        k(f"s_mul_i32 s60, s{CB8}, 3")
        k("s_add_u32 s55, s55, s60")
        k(f"s_add_u32 s55, s55, s{VV}")
        k("s_lshl_b32 s55, s55, 11")
        k(f"s_add_u32 s55, s55, {Z1}")
        k(f"s_lshl_b32 s60, s{VV}, 4")
        k("s_add_u32 s60, s60, 15")
        k("v_min_u32 v177, s60, v176")
        k("v_lshlrev_b32 v177, 7, v177")
        k("buffer_load_dword v172, v177, s[68:71], s55 offen sc1")
        k(f"s_lshl_b32 s55, s{CB8}, 7")
        k("s_lshl_b32 s54, s54, 1")
        k("s_add_u32 s55, s55, s54")
        k("s_mul_i32 s55, s55, 3072")
        k(f"s_lshl_b32 s60, s{VV}, 11")
        k("s_add_u32 s55, s55, s60")
        k(f"s_add_u32 s55, s55, {Z2}")
        k(f"s_lshl_b32 s60, s{VV}, 3")
        k("s_sub_u32 s60, 15, s60")
        k("v_and_b32 v177, 15, v176")
        k("v_min_u32 v177, s60, v177")
        k("v_lshlrev_b32 v177, 7, v177")
        k("v_bfe_u32 v178, v176, 4, 1")
        k("v_mul_u32_u24 v178, 3072, v178")
        k("v_add_u32 v177, v177, v178")
        k("buffer_load_dword v173, v177, s[68:71], s55 offen sc1")
    k("s_branch k2_loop")
    k.label("k2_blk6")
    k.srd(68, 8, 9, WINF, WINF_SZ)
    k("s_mul_i32 s53, s53, 7680")
    k("s_add_u32 s54, s53, 4096")
    for i in range(8 if PF_WIN else 0): k(f"buffer_load_dwordx4 v[172:175], v1, s[68:71], {'s53' if i < 4 else 's54'} offen offset:{(i&3)*1024} sc1")
    k("s_cmp_lt_u32 s5, 4")
    k("s_cbranch_scc1 k2_blk6a")
    wo_burst(53248, 12)
    k("s_branch k2_loop")
    k.label("k2_blk6a")
    k("v_bfe_u32 v176, v0, 4, 2")
    k("v_and_b32 v177, 15, v0")
    k(f"s_lshl_b32 s59, s{RB}, 2")
    k("s_add_u32 s59, s59, s5")
    k("v_mul_u32_u24 v178, 1280, v177")
    k("v_lshl_add_u32 v178, v176, 3, v178")
    k("s_mul_i32 s60, s59, 20480")
    k(f"s_mul_i32 s61, s{CB8}, 160")
    k("s_add_u32 s60, s60, s61")
    k("v_lshlrev_b32 v179, 4, v176")
    k(f"s_mul_i32 s38, s{CB8}, 320")
    k.srd(52, 44, 45, 0, ACT_SZ)
    k.srd(56, 8, 9, MOD + 5120, 2560)
    for j in range(5): k(f"buffer_load_dwordx2 {r(120+2*j,2)}, v178, s[52:55], s60 offen offset:{j*32}")
    for j in range(5): k(f"buffer_load_dwordx4 {r(132+4*j)}, v179, s[56:59], s38 offen offset:{j*64} sc1")
    k("s_cmp_lg_u32 s5, 0")
    k("s_cbranch_scc1 k2_loop")
    k(f"s_movk_i32 s37, {hex(FS - FL)}")
    k(f"buffer_load_dwordx4 v[168:171], v1, s[16:19], s37 offen sc1")
    k("s_branch k2_loop")
    k.label("k2_sideld")
    k("s_lshl_b32 s52, s2, 3")
    k("s_add_u32 s52, s52, s5")
    k("s_lshr_b32 s53, s2, 3")
    k("s_lshl_b32 s53, s53, 3")
    k("s_add_u32 s53, s53, s5")
    k.srd(56, 48, 49, 0, 640 * 3072)
    k.srd(64, 8, 9, MOD + 7680, 5120)
    k("s_mul_i32 s62, s52, 1639")
    k("s_lshr_b32 s62, s62, 16")
    k("s_mul_i32 s63, s62, 40")
    k("s_sub_u32 s63, s52, s63")
    k("s_mul_i32 s68, s63, 49152")
    k("s_lshl_b32 s69, s62, 6")
    k("s_add_u32 s68, s68, s69")
    k("s_cmp_lt_u32 s52, 1920")
    k("s_cselect_b32 s70, 0, 0x40000000")
    k("s_add_u32 s68, s68, s70")
    k("v_mul_u32_u24 v15, 24576, v3")
    k("v_lshl_add_u32 v15, v2, 1, v15")
    for j in range(8):
        k(f"buffer_load_ushort v{136+j}, v15, s[56:59], s68 offen")
        if j < 7: k("s_add_u32 s68, s68, 3072")
    k("s_lshl_b32 s68, s63, 6")
    k("v_lshlrev_b32 v15, 5, v3")
    k(f"buffer_load_dwordx4 {r(144)}, v15, s[64:67], s68 offen sc1")
    k(f"buffer_load_dwordx4 {r(148)}, v15, s[64:67], s68 offen offset:16 sc1")
    k(f"buffer_load_dwordx4 {r(152)}, v15, s[64:67], s68 offen offset:2560 sc1")
    k(f"buffer_load_dwordx4 {r(156)}, v15, s[64:67], s68 offen offset:2576 sc1")
    k("s_cmp_ge_u32 s62, 24")
    k("s_cselect_b32 s68, 24, 0")
    k("s_cselect_b32 s71, 0x310, 0")
    k("s_cselect_b32 s72, 0, 0x542")
    k("s_or_b32 s71, s71, s72")
    k("s_sub_u32 s62, s62, s68")
    k("s_mul_i32 s68, s62, 86")
    k("s_lshr_b32 s68, s68, 8")
    k("s_mul_i32 s69, s68, 3")
    k("s_sub_u32 s69, s62, s69")
    k("s_lshl_b32 s69, s69, 2")
    k("s_lshr_b32 s71, s71, s69")
    k("s_and_b32 s71, s71, 15")
    k("s_mul_i32 s62, s68, 6")
    k("s_add_u32 s62, s62, s71")
    k("s_mul_i32 s68, s62, 86")
    k("s_lshr_b32 s68, s68, 8")
    k("s_mul_i32 s69, s68, 3")
    k("s_sub_u32 s69, s62, s69")
    k("s_mul_i32 s68, s68, 40")
    k("s_add_u32 s68, s68, s63")
    k("s_mul_i32 s68, s68, 3")
    k("s_add_u32 s68, s68, s69")
    k("s_lshl_b32 s68, s68, 10")
    k("s_add_u32 s63, s68, s70")
    k("s_lshl_b32 s62, s62, 7")
    k("s_add_u32 s62, s62, s70")
    k.srd(56, 46, 47, 0, 983040)
    k("s_mul_i32 s69, s52, 2731")
    k("s_lshr_b32 s69, s69, 16")
    k("s_mul_i32 s73, s69, 24")
    k("s_sub_u32 s68, s52, s73")
    k("s_cmp_lt_u32 s52, 960")
    k("s_cselect_b32 s70, 0, 0x40000000")
    k("s_mul_i32 s73, s68, 40960")
    k("s_lshl_b32 s74, s69, 5")
    k("s_add_u32 s73, s73, s74")
    k("s_add_u32 s73, s73, s70")
    k("s_add_u32 s74, s73, 5120")
    k("v_bfe_u32 v15, v0, 4, 2")
    k("v_mul_u32_u24 v15, 10240, v15")
    k("v_and_b32 v160, 15, v0")
    k("v_lshl_add_u32 v15, v160, 1, v15")
    for j in range(8):
        k(f"buffer_load_ushort v{160+j}, v15, s[56:59], {'s73' if j < 4 else 's74'} offen offset:{(j&3)*1280}")
    k("s_mul_i32 s73, s69, 52")
    k("s_lshr_b32 s73, s73, 8")
    k("s_mul_i32 s74, s73, 5")
    k("s_sub_u32 s74, s69, s74")
    k("s_mul_i32 s73, s73, 24")
    k("s_add_u32 s73, s73, s68")
    k("s_mul_i32 s73, s73, 5")
    k("s_add_u32 s73, s73, s74")
    k("s_lshl_b32 s73, s73, 10")
    k("s_add_u32 s60, s73, s70")
    k.srd(56, 50, 51, 0, WSPF_SZ)
    k("s_lshl_b32 s54, s3, 3")
    k("s_lshr_b32 s55, s53, 5")
    k("s_add_u32 s54, s54, s55")
    k("s_and_b32 s55, s53, 31")
    k("s_lshl_b32 s68, s54, 17")
    k("s_lshl_b32 s69, s55, 7")
    k("s_add_u32 s68, s68, s69")
    k("s_lshr_b32 s61, s54, 1")
    k("s_lshl_b32 s61, s61, 18")
    k("s_lshl_b32 s69, s55, 13")
    k("s_add_u32 s61, s61, s69")
    k("s_and_b32 s69, s54, 1")
    k("s_lshl_b32 s69, s69, 10")
    k("s_add_u32 s61, s61, s69")
    k("v_lshlrev_b32 v15, 12, v2")
    k("v_lshl_add_u32 v15, v3, 4, v15")
    for q in range(4):
        k(f"buffer_load_dwordx4 {r(120+4*q)}, v15, s[56:59], s68 offen offset:{q*32}")
    k("s_branch k2_cont")
    k.label("k2_side")
    k.srd(64, 8, 9, WSPF, WSPF_SZ)
    k.srd(68, 8, 9, WINF, WINF_SZ)
    k.srd(72, 8, 9, C1, 12288)
    k.srd(56, 8, 9, WOUTF, WOUTF_SZ)
    k("s_add_u32 s54, s61, 4096")
    k("s_waitcnt vmcnt(0)")
    for j in range(4):
        k(f"v_lshl_or_b32 v{160+j}, v{161+2*j}, 16, v{160+2*j}")
    k(f"buffer_store_dwordx4 {r(160)}, v1, s[56:59], s60 offen {SIDE_SC}")
    for j in range(8): k(f"v_lshlrev_b32 v{136+j}, 16, v{136+j}")
    k("v_mul_f32 v165, v136, v144")
    for j in range(1, 8): k(f"v_fmac_f32 v165, v{136+j}, v{144+j}")
    for j in range(8): k(f"v_mul_f32 v{136+j}, v{136+j}, v{152+j}")
    for j in range(4): k(f"v_cvt_pk_bf16_f32 v{144+j}, v{136+2*j}, v{137+2*j}")
    k(f"buffer_store_dwordx4 {r(144)}, v1, s[68:71], s63 offen {SIDE_SC}")
    for j in range(4):
        k(f"v_lshlrev_b32 v{136+2*j}, 16, v{144+j}")
        k(f"v_and_b32 v{137+2*j}, 0xffff0000, v{144+j}")
    for a, b in ((136, 137), (138, 139), (140, 141), (142, 143), (136, 138), (140, 142)):
        k(f"v_add_f32 v{a}, v{a}, v{b}")
    k("v_add_f32 v164, v136, v140")
    k("v_mul_u32_u24 v166, 6144, v3")
    k("v_lshl_add_u32 v166, v2, 2, v166")
    k("v_permlane32_swap_b32 v164, v165")
    k("v_add_f32 v164, v164, v165")
    k("buffer_atomic_add_f32 v164, v166, s[72:75], s62 offen")
    for q in range(4 if not os.environ.get("NOWSP") else 0):
        k(f"buffer_store_dwordx4 {r(120+4*q)}, v1, s[64:67], {'s61' if q < 2 else 's54'} offen offset:{(q&1)*2048} {SIDE_SC}")
    k("s_branch k2_cont")
    k.label("k2_slow")
    T = S1
    k(f"v_subrev_u32 v{AK2}, 143360, v{AK2}")
    k(f"v_subrev_u32 v{AV}, 143360, v{AV}")
    k(f"v_mov_b32 v{T}, 0xff800000")
    k("s_mov_b32 s42, 0")
    def ldK():
        k(f"buffer_load_dwordx4 {r(KF1[0])}, v1, s[20:23], s42 offen sc1")
        k(f"buffer_load_dwordx2 {r(KF2[0],2)}, v{AK2}, s[20:23], s42 offen sc1")
    k.label("k2_slow1")
    ldK()
    k("s_waitcnt vmcnt(0)")
    k(f"v_mfma_f32_32x32x16_bf16 {r(S0,16)}, {r(KF1[0])}, {r(QA)}, 0")
    k(f"v_mfma_f32_32x32x16_bf16 {r(S0,16)}, {r(KF2[0])}, {r(QB)}, {r(S0,16)}")
    k.nop(12)
    for i in range(8): k(f"v_max3_f32 v{T}, v{T}, v{S0+2*i}, v{S0+2*i+1}")
    k("s_add_u32 s42, s42, 2560")
    k("s_cmp_lt_u32 s42, 163840")
    k("s_cbranch_scc1 k2_slow1")
    k(f"v_mov_b32 v{T+1}, v{T}")
    k("s_mov_b32 s42, 0")
    k.nop(1)
    k(f"v_permlane32_swap_b32 v{T}, v{T+1}")
    k(f"v_max_f32 v{T}, v{T}, v{T+1}")
    for i in range(16): k(f"v_sub_f32 v{CM+i}, 0, v{T}")
    for i in range(16): k(f"v_mov_b32 v{OO+i}, 0")
    k.label("k2_slow2")
    ldK()
    k("s_mov_b64 exec, s[40:41]")
    k(f"buffer_load_dwordx4 {r(VF[0])}, v{AV}, s[20:23], s42 offen sc1")
    k(f"buffer_load_dwordx4 {r(VF[0]+4)}, v{AV}, s[20:23], s42 offen offset:640 sc1")
    k("s_mov_b64 exec, -1")
    k("s_waitcnt vmcnt(0)")
    k(f"v_mfma_f32_32x32x16_bf16 {r(S0,16)}, {r(KF1[0])}, {r(QA)}, {r(CM,16)}")
    k(f"v_mfma_f32_32x32x16_bf16 {r(S0,16)}, {r(KF2[0])}, {r(QB)}, {r(S0,16)}")
    k.nop(12)
    for i in range(16): k(f"v_exp_f32 v{S0+i}, v{S0+i}")
    k.nop(1)
    for i in range(8): k(f"v_cvt_pk_bf16_f32 v{PP+i}, v{S0+2*i}, v{S0+2*i+1}")
    k.nop(2)
    k(f"v_mfma_f32_32x32x16_bf16 {r(OO,16)}, {r(VF[0])}, {r(PP)}, {r(OO,16)}")
    k(f"v_mfma_f32_32x32x16_bf16 {r(OO,16)}, {r(VF[0]+4)}, {r(PP+4)}, {r(OO,16)}")
    k("s_add_u32 s42, s42, 2560")
    k("s_cmp_lt_u32 s42, 163840")
    k("s_cbranch_scc1 k2_slow2")
    k.nop(12)
    k("s_branch k2_epi")
    return k
```

```python
from asmlib import Kern
from layout import *
from k0 import hexf
from k234 import poll, poll_missing, hint, stores, setflag, x1_addr, gemm80_resident, resid, r
import os

SLOT = 20480; BLK = 5120
K56_LDS = 163840
A0 = 16; ZB = 64; Z1R = 96; BSP = 108
KIDX = int(os.environ.get('KIDX', '1'))
THR = int(os.environ.get('THR', '5'))
TO = int(os.environ.get('TO', '0'))
ROTW = int(os.environ.get("K5ROTW", "0"))

def gen_k56(k, RB, CB8, W3):
    k.label("k5_compute")
    k(f"s_mov_b32 s3, s{RB}")
    k(f"s_mov_b32 s4, s{CB8}")
    k("v_and_b32 v2, 31, v0")
    k("v_bfe_u32 v3, v0, 5, 1")
    k("s_and_b32 s6, s5, 1")
    k("s_lshl_b32 s34, s3, 1")
    k("s_add_u32 s34, s34, s6")
    k("s_lshr_b32 s33, s5, 1")
    k("s_mul_i32 s36, s34, 24")
    k("s_mul_i32 s37, s4, 3")
    k("s_add_u32 s36, s36, s37")
    k("s_lshl_b32 s36, s36, 1")
    k("s_add_u32 s36, s36, s33")
    k("s_lshl_b32 s36, s36, 10")
    k("s_add_u32 s37, s36, 4096")
    k("s_lshl_b32 s38, s34, 6")
    k("v_lshlrev_b32 v5, 1, v2")
    k(f"s_mul_i32 s39, s33, {2*BLK}")
    k("v_add_u32 v6, s39, v1")
    k(f"v_add_u32 v7, {2*SLOT}, v6")
    k("s_lshl_b32 s39, s6, 10")
    k("s_add_u32 s39, s39, 3072")
    k("v_add_u32 v8, s39, v6")
    k(f"v_add_u32 v9, {2*SLOT}, v8")
    for i in range(48): k(f"v_mov_b32 v{A0+i}, 0")
    k.srd(52, 8, 9, Z1, Z_SZ)
    k.srd(60, 44, 45, 0, 4096)
    def reads(s, q, par):
        sl = s & 3; o = (sl & 1) * SLOT + q * BLK; b = ZB + 16 * par
        for n in range(3): k(f"ds_read_b128 {r(b+4*n)}, {'v6' if sl < 2 else 'v7'} offset:{o + n*1024}")
        k(f"ds_read_b128 {r(b+12)}, {'v8' if sl < 2 else 'v9'} offset:{o}")
    k("s_barrier")
    k("s_barrier")
    if os.environ.get("FINE5"): k.stamp(2)
    reads(0, 0, 0)
    k(f"buffer_load_dwordx4 {r(Z1R)}, v1, s[52:55], s36 offen sc1")
    k(f"buffer_load_dwordx4 {r(Z1R+4)}, v1, s[52:55], s36 offen offset:2048 sc1")
    k(f"buffer_load_dwordx4 {r(Z1R+8)}, v1, s[52:55], s37 offen sc1")
    k(f"buffer_load_ushort v{BSP}, v5, s[60:63], s38 offen")
    k("v_bfe_u32 v204, v0, 4, 2")
    k("v_lshlrev_b32 v207, 4, v204")
    k("s_mul_i32 s41, s4, 320")
    k.srd(56, 8, 9, MOD + 12800, 2560)
    for j in range(5): k(f"buffer_load_dwordx4 {r(184+4*j)}, v207, s[56:59], s41 offen offset:{j*64} sc1")
    k("s_mov_b32 s43, 0")
    k.lines.append(".p2align 6")
    k.label("k5_loop")
    for s in range(4):
        for q in range(2):
            b = ZB + 16 * q
            k("s_waitcnt lgkmcnt(0)")
            if q == 1:
                if s == 3:
                    k("s_add_u32 s43, s43, 1")
                    k("s_cmp_eq_u32 s43, 8")
                    k("s_cbranch_scc1 k5_last")
                k("s_barrier")
            for n in range(3):
                k(f"v_mfma_f32_32x32x16_bf16 {r(A0+16*n,16)}, {r(b+4*n)}, {r(b+12)}, {r(A0+16*n,16)}")
                if n == 0:
                    if q == 1: reads(s + 1, 0, 0)
                    else: reads(s, 1, 1)
    k("s_branch k5_loop")
    k.label("k5_last")
    b = ZB + 16
    for n in range(3):
        k(f"v_mfma_f32_32x32x16_bf16 {r(A0+16*n,16)}, {r(b+4*n)}, {r(b+12)}, {r(A0+16*n,16)}")
    if os.environ.get('FINE5'): k.stamp(3)
    k("s_barrier")
    k("s_mul_i32 s36, s5, 6144")
    k("s_add_u32 s36, s36, 40960")
    k("v_add_u32 v10, s36, v1")
    k("s_xor_b32 s36, s5, 2")
    k("s_mul_i32 s36, s36, 6144")
    k("s_add_u32 s36, s36, 40960")
    k("v_add_u32 v11, s36, v1")
    k.srd(52, 8, 9, Y, Z_SZ)
    k("s_mul_i32 s7, s3, 98304")
    k("s_mul_i32 s37, s4, 12288")
    k("s_add_u32 s36, s7, s37")
    k("s_lshl_b32 s37, s6, 11")
    k("s_add_u32 s36, s36, s37")
    k("s_lshl_b32 s37, s33, 9")
    k("s_add_u32 s36, s36, s37")
    k("s_add_u32 s37, s36, 4096")
    k("s_add_u32 s38, s36, 8192")
    k("v_lshrrev_b32 v12, 4, v2")
    k("v_lshlrev_b32 v12, 10, v12")
    k("v_lshl_add_u32 v12, v3, 8, v12")
    k("v_and_b32 v13, 15, v0")
    k("v_lshl_add_u32 v12, v13, 4, v12")
    k("s_waitcnt vmcnt(0)")
    k(f"v_lshlrev_b32 v14, 16, v{BSP}")
    k("s_cmp_eq_u32 s33, 0")
    k("s_cbranch_scc0 k5_e1")
    for kh in range(2):
        if kh == 1: k.label("k5_e1")
        keep = 8 * kh; send = 8 * (1 - kh)
        for n in range(3):
            k(f"ds_write_b128 v10, {r(A0+16*n+send)} offset:{n*2048}")
            k(f"ds_write_b128 v10, {r(A0+16*n+send+4)} offset:{n*2048+1024}")
        U = ZB
        for i in range(12):
            k(f"v_lshlrev_b32 v{U+2*i}, 16, v{Z1R+i}")
            k(f"v_and_b32 v{U+2*i+1}, 0xffff0000, v{Z1R+i}")
        for n in range(3):
            for i in range(4):
                a = A0 + 16 * n + keep + 2 * i
                k(f"v_pk_add_f32 {r(a,2)}, {r(a,2)}, v[14:15] op_sel_hi:[1,0]")
        k("s_waitcnt lgkmcnt(0)")
        k("s_barrier")
        for n in range(3):
            k(f"ds_read_b128 {r(A0+16*n+send)}, v11 offset:{n*2048}")
            k(f"ds_read_b128 {r(A0+16*n+send+4)}, v11 offset:{n*2048+1024}")
        for n in range(3):
            k(f"s_waitcnt lgkmcnt({4-2*n})")
            for i in range(4):
                a = A0 + 16 * n + keep + 2 * i
                k(f"v_pk_add_f32 {r(a,2)}, {r(a,2)}, {r(A0+16*n+send+2*i,2)}")
            for i in range(4):
                a = A0 + 16 * n + keep + 2 * i
                k(f"v_pk_mul_f32 {r(a,2)}, {r(a,2)}, {r(U+8*n+2*i,2)}")
            P = Z1R + 4 * n
            for i in range(4):
                a = A0 + 16 * n + keep + 2 * i
                k(f"v_cvt_pk_bf16_f32 v{P+i}, v{a}, v{a+1}")
            k.nop(2)
            k(f"v_permlane32_swap_b32 v{P}, v{P+2}")
            k(f"v_permlane32_swap_b32 v{P+1}, v{P+3}")
            stores(k, [f"buffer_store_dwordx4 {r(P)}, v12, s[52:55], s{36+n} offen"])
        if kh == 0: k("s_branch k5_p6")
    k.label("k5_p6")
    ACT, A6, WB3, XR_, GB_R, AD = 16, 112, (132, 152, 212), 232, 184, 204
    WB = 132
    k("s_lshl_b32 s36, s3, 10")
    k(f"s_add_u32 s36, s36, {F5 - FL}")
    k("s_lshl_b32 s37, s4, 7")
    k("s_add_u32 s37, s37, s36")
    k("s_waitcnt vmcnt(0)")
    k("s_barrier")
    setflag(k, 16, "s37", "k5_f5done", local=True)
    if os.environ.get('FINE5'): k.stamp(4)
    k("v_bfe_u32 v3, v0, 4, 2")
    k("v_and_b32 v5, 15, v0")
    k("s_lshl_b32 s6, s3, 2")
    k("s_add_u32 s6, s6, s5")
    k("s_lshl_b32 s10, s5, 10")
    k("s_add_u32 s7, s7, s10")
    k.srd(60, 46, 47, 0, ACT_SZ)
    k("s_mul_i32 s39, s5, 2816")
    k("s_add_u32 s39, s39, 69632")
    k("v_mul_u32_u24 v6, 176, v5")
    k("v_lshl_add_u32 v6, v3, 3, v6")
    k(f"v_add_u32 v{AD}, s39, v6")
    for i in range(3):
        k("v_lshrrev_b32 v6, 4, v1")
        k(f"v_add_u32 v6, {64*i}, v6")
        k("v_mul_u32_u24 v7, 205, v6")
        k("v_lshrrev_b32 v7, 11, v7")
        k("v_mul_u32_u24 v2, 10, v7")
        k("v_sub_u32 v6, v6, v2")
        k("v_lshlrev_b32 v6, 4, v6")
        k("v_mul_u32_u24 v2, 176, v7")
        k(f"v_add3_u32 v{AD+1+i}, v2, v6, s39")
        k("v_mul_u32_u24 v2, 1280, v7")
        k(f"v_add_u32 v{AD+4+i}, v6, v2")
        if i == 2:
            k("v_lshrrev_b32 v7, 4, v7")
            k(f"v_lshl_add_u32 v{AD+4+i}, v7, 30, v{AD+4+i}")
    k("s_mul_i32 s40, s6, 20480")
    k("s_mul_i32 s41, s4, 160")
    k("s_add_u32 s40, s40, s41")
    def w6():
        poll(k, "k5_p5", 16, "s36", 8, 10, 11)
        if os.environ.get('FINE5'): k.stamp(5)
    gemm80_resident(k, 24, list(range(24)), ACT, A6, WB3, 52, 7, lambda ks: ks * 5120 + (40960 if ks >= 8 else 0), w6, 4)
    if os.environ.get('FINE5'): k.stamp(6)
    k.nop(4)
    resid(k, A6, XR_, GB_R, WB)
    for j in range(5): k(f"ds_write_b64 v{AD}, {r(XR_+2*j,2)} offset:{j*32}")
    k("s_waitcnt lgkmcnt(0)")
    for i in range(3): k(f"ds_read_b128 {r(WB+4*i)}, v{AD+1+i}")
    for i in range(3):
        k(f"s_waitcnt lgkmcnt({2-i})")
        k(f"buffer_store_dwordx4 {r(WB+4*i)}, v{AD+4+i}, s[60:63], s40 offen")
    k.endpgm(KIDX)
    k.label("k5_loader")
    k(f"s_mov_b32 s3, s{RB}")
    k(f"s_mov_b32 s4, s{CB8}")
    k(f"s_mov_b32 s5, s{W3}")
    k("s_mul_i32 s34, s4, 393216")
    k(f"s_add_u32 s34, s34, {Z2}")
    k("s_lshl_b32 s35, s3, 18")
    k(f"s_add_u32 s35, s35, {WSPF}")
    k(f"s_mul_i32 s11, s5, {BLK}")
    k("s_mul_i32 s33, s4, 122880")
    k(f"s_add_u32 s33, s33, {WOUTF}")
    k("s_lshl_b32 s10, s5, 10")
    k.srd(52, 8, 9, "s34", 393216)
    k.srd(56, 8, 9, "s35", 262144)
    k.srd(60, 8, 9, "s33", 122880)
    k("s_mul_i32 s37, s5, 3072")
    k("s_lshl_b32 s36, s5, 11")
    def iz(sl):
        k(f"s_add_u32 m0, s11, {sl*SLOT}")
        k.nop(1)
        for j in range(3): k(f"buffer_load_dwordx4 v1, s[52:55], s37 offen offset:{j*1024} sc1 lds")
        k("s_add_u32 s37, s37, 12288")
    def iw(sl):
        k(f"s_add_u32 m0, s11, {sl*SLOT+3072}")
        k.nop(1)
        for j in range(2): k(f"buffer_load_dwordx4 v1, s[56:59], s36 offen offset:{j*1024} sc1 lds")
        k("s_add_u32 s36, s36, 8192")
    def issue(sl): iz(sl); iw(sl)
    iw(0); iw(1); iw(2)
    k("s_add_u32 s44, s10, 40960")
    for i in range(20):
        k("s_add_u32 m0, s44, 40960")
        k.nop(1)
        k("buffer_load_dwordx4 v1, s[60:63], s44 offen sc1 lds")
        k("s_add_u32 s44, s44, 4096")
        if THR: k(f"s_waitcnt vmcnt({THR})")
    k("v_and_b32 v10, 1, v0")
    k("v_bfe_u32 v11, v0, 1, 4")
    k("v_lshlrev_b32 v10, 7, v10")
    k("v_lshl_add_u32 v10, v11, 11, v10")
    k("s_lshl_b32 s39, s4, 8")
    k(f"s_add_u32 s39, s39, {F4 - FL}")
    k("s_barrier")
    k("s_cmp_lg_u32 s5, 0")
    k("s_cbranch_scc1 k5_p4_ok")
    poll_missing(k, "k5_p4", 16, ["s39"], 10, 11)
    k("s_barrier")
    if os.environ.get('FINE5'): k.stamp(2)
    iz(0); iz(1); iz(2)
    for s in range(4):
        k(f"s_waitcnt vmcnt({(6, 8, 10, 10)[s]})")
        k("s_barrier")
        issue((s + 3) & 3)
    k("s_mov_b32 s42, 0")
    k.lines.append(".p2align 6")
    k.label("k5_lloop")
    for s in range(4):
        k("s_waitcnt vmcnt(10)")
        k("s_barrier")
        issue((s + 3) & 3)
    k("s_add_u32 s42, s42, 1")
    k("s_cmp_lt_u32 s42, 6")
    k("s_cbranch_scc1 k5_lloop")
    def low(base, n):
        k(f"s_add_u32 m0, s10, {base}")
        for i in range(n):
            k.nop(1)
            k("buffer_load_dwordx4 v1, s[60:63], m0 offen sc1 lds")
            if i < n - 1: k("s_add_u32 m0, m0, 4096")
    k("s_waitcnt vmcnt(10)")
    k("s_barrier")
    issue(3)
    k.srd(64, 8, 9, Y, Z_SZ)
    k("s_mul_i32 s38, s3, 98304")
    k("s_mul_i32 s39, s4, 12288")
    k("s_add_u32 s38, s38, s39")
    k("s_mul_i32 s39, s5, 3072")
    k("s_add_u32 s38, s38, s39")
    k("v_lshrrev_b32 v10, 4, v1")
    k("v_min_u32 v10, 23, v10")
    k("v_lshlrev_b32 v10, 7, v10")
    k("buffer_load_dword v11, v10, s[64:67], s38 offen sc1")
    if TO:
        k.srd(64, 46, 47, 0, ACT_SZ)
        k("s_lshl_b32 s38, s3, 2")
        k("s_add_u32 s38, s38, s5")
        k("s_mul_i32 s38, s38, 20480")
        k("s_mul_i32 s39, s4, 160")
        k("s_add_u32 s38, s38, s39")
        k("v_bfe_u32 v10, v1, 6, 4")
        k("v_mul_u32_u24 v10, 1280, v10")
        k("v_bfe_u32 v12, v1, 4, 2")
        k("v_min_u32 v12, 2, v12")
        k("v_mul_u32_u24 v12, 78, v12")
        k("v_and_b32 v12, 0xfc, v12")
        k("v_add_u32 v10, v10, v12")
        k("buffer_load_dword v11, v10, s[64:67], s38 offen sc1")
    k("s_waitcnt vmcnt(10)")
    k("s_barrier")
    low(0, 5)
    k("s_waitcnt vmcnt(10)")
    k("s_barrier")
    low(20480, 5)
    k("s_waitcnt vmcnt(10)")
    k("s_barrier")
    k("s_barrier")
    k("s_barrier")
    k("s_waitcnt vmcnt(0)")
    k("s_barrier")
    k.endpgm(KIDX)
```

```python
from layout import *
from k0 import hexf, xsum16_32, rowred
import math, os

QSCALE = math.log2(math.e) / math.sqrt(20.0)
def r(b, n=4): return f"v[{b}:{b+n-1}]"
A0 = 16; FB = 40; EP = 100
LKV = 102400; LT1 = 122880; LACT = 128000; KGS = 272; RTS = 1088; KS = 4416; ASL = 4 * KS
TOK = 31
def st1(k, i):
    if os.environ.get('FINE1') and not os.environ.get('FINE1B'): k.stamp(i)

def gen_front(k, poll_missing, code_start, code_end):
    k("s_load_dwordx8 s[40:47], s[0:1], 0")
    k("s_load_dwordx4 s[48:51], s[0:1], 80")
    k("s_load_dwordx2 s[52:53], s[0:1], 32")
    k("v_lshrrev_b32 v1, 6, v0")
    k("s_and_b32 s3, s2, 7")
    k("v_readfirstlane_b32 s5, v1")
    k("s_lshl_b32 s3, s3, 2")
    k("s_bfe_u32 s4, s2, 0x20003")
    k("s_add_u32 s3, s3, s4")
    k("s_lshr_b32 s4, s2, 5")
    k("v_and_b32 v1, 63, v0")
    k("v_lshlrev_b32 v1, 4, v1")
    k("s_lshr_b32 s33, s5, 2")
    k("s_and_b32 s5, s5, 3")
    k("s_lshl_b32 s6, s3, 2")
    k("s_add_u32 s6, s6, s5")
    k("s_cmp_eq_u32 s33, 0")
    k("s_cbranch_scc0 f_loader")
    k("s_and_b32 s21, s2, 3")
    k("s_lshr_b32 s20, s2, 2")
    k("v_lshrrev_b32 v2, 3, v0")
    k("v_and_b32 v3, 7, v0")
    k("v_mul_u32_u24 v13, 7680, v2")
    k("v_lshl_add_u32 v13, v3, 4, v13")
    k("v_lshlrev_b32 v2, 1, v2")
    k(f"s_mul_i32 s60, s21, {160*7680}")
    k("s_lshl_b32 s23, s20, 7")
    k("s_add_u32 s60, s60, s23")
    k("s_cmp_lt_u32 s20, 60")
    k("s_cselect_b32 s35, 0, 0x40000000")
    k("s_add_u32 s60, s60, s35")
    k("s_mul_i32 s61, s21, 320")
    k("s_waitcnt lgkmcnt(0)")
    k.srd(16, 50, 51, 0, 640 * 7680)
    k.srd(64, 48, 49, 0, 1280)
    k("s_lshl_b32 s34, s2, 2")
    k("s_add_u32 s34, s34, s5")
    k("s_mul_i32 s37, s34, 3277")
    k("s_lshr_b32 s37, s37, 16")
    k("s_mul_i32 s38, s37, 20")
    k("s_sub_u32 s38, s34, s38")
    k("s_cmp_ge_u32 s37, 42")
    k("s_cselect_b32 s23, 32, 0")
    k("s_cselect_b32 s24, 4, 16")
    k("s_lshl_b32 s25, s37, 5")
    k("s_cmp_ge_u32 s37, 40")
    k("s_cselect_b32 s23, s23, s25")
    k("s_movk_i32 s22, 1280")
    k("s_cselect_b32 s22, 40, s22")
    k("s_mov_b32 s14, 819200")
    k("s_cselect_b32 s14, 25600, s14")
    k("s_cselect_b32 s12, s44, s42")
    k("s_cselect_b32 s13, s45, s43")
    k("s_and_b32 s25, s37, 41")
    k("s_cmp_eq_u32 s25, 41")
    k("s_cselect_b32 s12, s46, s12")
    k("s_cselect_b32 s13, s47, s13")
    k("s_cmp_lt_u32 s37, 44")
    k("s_cselect_b32 s14, s14, 0")
    k("s_cselect_b32 s39, 0, 0x40000000")
    k("s_mov_b32 s15, 0x20000")
    k("s_lshl_b32 s27, s22, 3")
    k("s_lshl_b32 s25, s38, 5")
    k("s_mul_i32 s25, s25, s22")
    k("s_add_u32 s25, s25, s23")
    k("v_and_b32 v6, 15, v0")
    k("v_bfe_u32 v5, v0, 4, 2")
    k("v_mul_u32_u24 v4, s27, v5")
    k("v_lshl_add_u32 v4, v6, 1, v4")
    k("v_cmp_gt_u32 vcc, s24, v6")
    k("v_mov_b32 v5, 0x40000000")
    k("s_mul_i32 s26, s37, 52")
    k("s_lshr_b32 s26, s26, 8")
    k("v_cndmask_b32 v4, v5, v4, vcc")
    for j in range(8):
        k(f"buffer_load_ushort v{120+j}, v4, s[12:15], s25 offen")
        if j < 7: k("s_add_u32 s25, s25, s22")
    for p in range(5):
        k(f"buffer_load_dwordx4 v[{20+4*p}:{23+4*p}], v13, s[16:19], s60 offen")
        if p < 4: k(f"s_add_u32 s60, s60, {32 * 7680}")
        k(f"buffer_load_ushort v{8+p}, v2, s[64:67], s61 offen offset:{p*64}")
    k("s_mul_i32 s27, s26, 5")
    k("s_sub_u32 s27, s37, s27")
    k("s_sub_u32 s25, s37, 40")
    k("s_cmp_ge_u32 s37, 40")
    k("s_cselect_b32 s26, s25, s26")
    k("s_cselect_b32 s27, 5, s27")
    k("s_mul_i32 s26, s26, 20")
    k("s_add_u32 s26, s26, s38")
    k("s_mul_i32 s26, s26, 6")
    k("s_add_u32 s26, s26, s27")
    k("s_lshl_b32 s26, s26, 10")
    k(f"s_add_u32 s26, s26, {WQF}")
    k("s_add_u32 s26, s26, s39")
    k.srd(28, 8, 9, 0, WS_END)
    k(f"s_mov_b32 s22, {EPOCH}")
    k("buffer_load_dword v14, off, s[28:31], s22 sc1")
    k.srd(12, 8, 9, ZR, ZR_SZ)
    k("s_lshl_b32 s22, s34, 10")
    for i in range(4): k(f"v_mov_b32 v{16+i}, 0")
    k("buffer_store_dwordx4 v[16:19], v1, s[12:15], s22 offen sc1")
    k("s_getpc_b64 s[56:57]")
    k.label("f_pc")
    k(f"s_add_u32 s56, s56, {code_start}-f_pc")
    k("s_addc_u32 s57, s57, -1")
    k(f"s_mov_b32 s58, {code_end}-{code_start}")
    k("s_mov_b32 s59, 0x20000")
    k("s_lshr_b32 s22, s2, 3")
    k("s_lshl_b32 s22, s22, 2")
    k("s_add_u32 s22, s22, s5")
    k("s_lshl_b32 s22, s22, 10")
    k("buffer_load_dwordx4 v[40:43], v1, s[56:59], s22 offen")
    k("v_lshlrev_b32 v5, 3, v3")
    k("v_bfe_u32 v6, v0, 5, 1")
    k("v_lshl_add_u32 v5, v6, 2, v5")
    k("v_bfe_u32 v6, v0, 4, 1")
    k("v_lshl_add_u32 v5, v6, 1, v5")
    k("v_bfe_u32 v6, v0, 3, 1")
    k("v_add_u32 v5, v5, v6")
    k("v_lshlrev_b32 v5, 2, v5")
    k("s_lshl_b32 s22, s5, 8")
    k(f"s_add_u32 s22, s22, {LACT}")
    k("v_add_u32 v5, s22, v5")
    k("v_lshrrev_b32 v7, 2, v1")
    k(f"s_mul_i32 s24, s21, {MODP_ST}")
    k(f"s_add_u32 s24, s24, {MODP}")
    k("s_add_u32 s24, s24, s35")
    k("s_cmp_lt_u32 s20, 20")
    k("s_cbranch_scc1 f_t1")
    k("s_lshl_b32 s22, s20, 8")
    k("v_add_u32 v19, s22, v7")
    k("s_branch f_st")
    k.label("f_t1")
    k("s_cmp_lt_u32 s20, 10")
    k("s_cselect_b32 s23, 2560, 0")
    k("s_cselect_b32 s22, 0, 10")
    k("s_sub_u32 s22, s20, s22")
    k("s_lshl_b32 s22, s22, 7")
    k("s_add_u32 s22, s22, s23")
    k("v_bfe_u32 v19, v0, 2, 1")
    k("v_mul_u32_u24 v19, 1280, v19")
    k("v_bfe_u32 v18, v0, 3, 3")
    k("v_lshl_add_u32 v19, v18, 4, v19")
    k("v_and_b32 v18, 3, v0")
    k("v_lshl_add_u32 v19, v18, 2, v19")
    k("v_add_u32 v19, s22, v19")
    k.label("f_st")
    k("s_waitcnt vmcnt(13)")
    for j in range(4): k(f"v_lshl_or_b32 v{120+j}, v{121+2*j}, 16, v{120+2*j}")
    k(f"buffer_store_dwordx4 {r(120)}, v1, s[28:31], s26 offen sc1")
    k("s_waitcnt vmcnt(4)")
    st1(k, 2)
    T = 60; A = 72
    for p in range(5): k(f"v_lshlrev_b32 v{8+p}, 16, v{8+p}")
    for p in range(5): k(f"v_mul_f32 v{T+p}, 0xbfb8aa3b, v{8+p}")
    for p in range(5): k(f"v_exp_f32 v{T+p}, v{T+p}")
    for p in range(5): k(f"v_add_f32 v{T+p}, 1.0, v{T+p}")
    for p in range(5): k(f"v_rcp_f32 v{T+p}, v{T+p}")
    for p in range(5): k(f"v_mul_f32 v{8+p}, v{8+p}, v{T+p}")
    for p in range(5): k(f"v_cvt_pk_bf16_f32 v{8+p}, v{8+p}, v{8+p}")
    for p in range(5): k(f"v_and_b32 v{8+p}, 0xffff0000, v{8+p}")
    for p in range(5):
        for j in range(4):
            k(f"v_lshlrev_b32 v{T+2*j}, 16, v{20+4*p+j}")
            k(f"v_and_b32 v{T+2*j+1}, 0xffff0000, v{20+4*p+j}")
        sp = f"v[{8+p-(p&1)}:{9+p-(p&1)}]"
        for j in range(4):
            if p == 0: k(f"v_pk_mul_f32 {r(A+2*j,2)}, {r(T+2*j,2)}, {sp} op_sel_hi:[1,0]")
            else:
                sel3 = "op_sel_hi:[1,0,1]" if p % 2 == 0 else "op_sel:[0,1,0] op_sel_hi:[1,1,1]"
                k(f"v_pk_fma_f32 {r(A+2*j,2)}, {r(T+2*j,2)}, {sp}, {r(A+2*j,2)} {sel3}")
    k.nop(1)
    for j in range(4): k(f"v_permlane32_swap_b32 v{A+j}, v{A+4+j}")
    for j in range(4): k(f"v_add_f32 v{A+j}, v{A+j}, v{A+4+j}")
    k.nop(1)
    for j in range(2): k(f"v_permlane16_swap_b32 v{A+j}, v{A+2+j}")
    for j in range(2): k(f"v_add_f32 v{A+j}, v{A+j}, v{A+2+j}")
    k.nop(2)
    k(f"v_add_f32_dpp v{A}, v{A}, v{A} row_ror:8 row_mask:0xf bank_mask:0x3")
    k.nop(2)
    k(f"v_add_f32_dpp v{A}, v{A+1}, v{A+1} row_ror:8 row_mask:0xf bank_mask:0xc")
    k(f"ds_write_b32 v5, v{A}")
    k(f"v_add_u32 v6, {LACT}, v7")
    k("s_lshl_b32 s22, s5, 2")
    k(f"s_add_u32 s22, s22, {LACT + 1024}")
    k("v_mov_b32 v15, s22")
    k("s_waitcnt vmcnt(3) lgkmcnt(0)")
    k("v_add_u32 v14, 1, v14")
    k("ds_write_b32 v15, v14")
    k("v_readfirstlane_b32 s54, v14")
    k("s_cmp_eq_u32 s5, 0")
    k("s_cbranch_scc1 f_pub")
    k("s_waitcnt vmcnt(0)")
    k("ds_write_b32 v15, v14 offset:16")
    k("s_branch f_nopub")
    k.label("f_pub")
    k("ds_write_b32 v15, v14 offset:16")
    k("v_and_b32 v15, 12, v7")
    k(f"v_add_u32 v15, {LACT + 1024}, v15")
    def join(name, off):
        k("s_mov_b32 s23, 0")
        k.label(name)
        k(f"ds_read_b32 v24, v15 offset:{off}")
        k("s_add_u32 s23, s23, 1")
        k("s_waitcnt lgkmcnt(0)")
        k("v_cmp_eq_u32 vcc, s54, v24")
        k("s_cmp_eq_u64 vcc, -1")
        k(f"s_cbranch_scc1 {name}_ok")
        k("s_cmp_lt_u32 s23, 0x400000")
        k(f"s_cbranch_scc1 {name}")
        k.label(name + "_ok")
    join("f_join", 0)
    for i in range(4): k(f"ds_read_b32 v{20+i}, v6 offset:{i*256}")
    k("s_getreg_b32 s22, hwreg(HW_REG_XCC_ID, 0, 4)")
    k("s_add_u32 s22, s22, 1")
    k("v_mov_b32 v26, s22")
    k("s_lshl_b32 s22, s2, 2")
    k(f"s_add_u32 s22, s22, {XID}")
    k("s_waitcnt lgkmcnt(0)")
    k("v_add_f32 v20, v20, v21")
    k("v_add_f32 v22, v22, v23")
    k("v_add_f32 v20, v20, v22")
    k("buffer_store_dword v20, v19, s[28:31], s24 offen sc1")
    k("buffer_store_dword v26, off, s[28:31], s22 sc1")
    k("s_lshl_b32 s22, s2, 7")
    k(f"s_add_u32 s22, s22, {F0}")
    join("f_join2", 16)
    k("s_waitcnt vmcnt(0)")
    k("s_mov_b64 exec, 1")
    k("buffer_store_dword v14, off, s[28:31], s22 sc1")
    k("s_mov_b64 exec, -1")
    st1(k, 3)
    k.label("f_nopub")
    k("v_bfe_u32 v3, v0, 4, 2")
    k("v_and_b32 v5, 15, v0")
    k("s_mul_i32 s37, s34, 3277")
    k("s_lshr_b32 s37, s37, 16")
    k("s_mul_i32 s38, s37, 20")
    k("s_sub_u32 s38, s34, s38")
    k("s_cmp_lt_u32 s34, 800")
    k("s_cselect_b32 s39, 0, 0x40000000")
    k("s_mul_i32 s22, s38, 40960")
    k("s_lshl_b32 s23, s37, 5")
    k("s_add_u32 s22, s22, s23")
    k("s_add_u32 s22, s22, s39")
    k("s_add_u32 s23, s22, 5120")
    k("v_mul_u32_u24 v6, 10240, v3")
    k("v_lshl_add_u32 v6, v5, 1, v6")
    k.srd(12, 52, 53, 0, 819200)
    for j in range(8):
        k(f"buffer_load_ushort v{120+j}, v6, s[12:15], {'s22' if j < 4 else 's23'} offen offset:{(j&3)*1280}")
    k("s_mul_i32 s36, s37, 52")
    k("s_lshr_b32 s36, s36, 8")
    k("s_mul_i32 s22, s36, 5")
    k("s_sub_u32 s22, s37, s22")
    k("s_mul_i32 s36, s36, 20")
    k("s_add_u32 s36, s36, s38")
    k("s_mul_i32 s36, s36, 5")
    k("s_add_u32 s36, s36, s22")
    k("s_lshl_b32 s36, s36, 10")
    k(f"s_add_u32 s36, s36, {WOF}")
    k("s_add_u32 s55, s36, s39")
    k("s_and_b32 s36, s6, 1")
    k("s_lshl_b32 s36, s36, 4")
    k("v_add_u32 v6, s36, v5")
    k("s_lshr_b32 s40, s5, 1")
    k("s_mul_i32 s40, s40, 1280")
    k(f"s_add_u32 s40, s40, {LACT + ASL}")
    for j in range(5):
        o = EP + j
        k(f"v_add_u32 v4, {4*j}, v3")
        k("v_mul_u32_u24 v2, 52, v4")
        k("v_lshrrev_b32 v2, 8, v2")
        k("v_mul_u32_u24 v8, 5, v2")
        k("v_sub_u32 v4, v4, v8")
        k(f"v_mul_u32_u24 v{o}, 2560, v2")
        k("v_lshrrev_b32 v8, 1, v4")
        k(f"v_lshl_add_u32 v{o}, v8, 9, v{o}")
        k("v_and_b32 v8, 1, v4")
        k(f"v_lshl_add_u32 v{o}, v8, 3, v{o}")
        k("v_lshrrev_b32 v8, 2, v4")
        k("v_sub_u32 v8, 4, v8")
        k("v_lshlrev_b32 v8, v8, v6")
        k(f"v_add3_u32 v{o}, v{o}, v8, s40")
    k("v_add_u32 v8, 61440, v1")
    k.srd(16, 8, 9, WQF, WQF_SZ)
    k("s_mul_i32 s10, s4, 20")
    k("s_add_u32 s10, s10, s5")
    k("s_mul_i32 s10, s10, 6144")
    k("s_mul_i32 s11, s5, 6144")
    k(f"v_mul_u32_u24 v14, {KGS}, v3")
    k("v_lshl_add_u32 v14, v5, 4, v14")
    k(f"s_mul_i32 s36, s5, {RTS}")
    k(f"s_add_u32 s36, s36, {LACT}")
    k("v_add_u32 v14, s36, v14")
    def dma(g):
        out = [f"s_add_u32 m0, s11, {g*24576}\ns_add_u32 s36, s10, 4096\nbuffer_load_dwordx4 v1, s[16:19], s10 offen sc1 lds"]
        for j in range(1, 4): out.append(f"buffer_load_dwordx4 v1, s[16:19], s10 offen offset:{j*1024} sc1 lds")
        out.append(f"s_add_u32 m0, s11, {g*24576+4096}\ns_add_u32 s10, s10, 24576\nbuffer_load_dwordx4 v1, s[16:19], s36 offen sc1 lds")
        out.append("buffer_load_dwordx4 v1, s[16:19], s36 offen offset:1024 sc1 lds")
        return out
    k("s_waitcnt vmcnt(0)")
    for j in range(4): k(f"v_lshl_or_b32 v{120+j}, v{121+2*j}, 16, v{120+2*j}")
    k(f"buffer_store_dwordx4 {r(120)}, v1, s[28:31], s55 offen sc1")
    k("s_barrier")
    st1(k, 4)
    for l in dma(0) + dma(1): k(l)
    k("s_sub_u32 s22, s34, 20")
    k("s_cmp_lt_u32 s22, 10")
    k("s_cselect_b32 s56, 1.0, 0")
    k("s_cmp_lt_u32 s34, 40")
    k("s_cselect_b32 s22, 0, 0x40000000")
    k("s_lshl_b32 s57, s34, 8")
    k("s_add_u32 s57, s57, 5120")
    k("s_add_u32 s57, s57, s22")
    k(f"s_add_u32 s22, s57, {MODP}")
    for q in range(4):
        k(f"buffer_load_dword v{108+q}, v7, s[28:31], s22 offen sc1")
        if q < 3: k(f"s_add_u32 s22, s22, {MODP_ST}")
    k("s_barrier")
    for l in dma(2): k(l)
    def rd(ks):
        b = FB + 28 * (ks & 1); hi = ks >= 10
        return [f"ds_read_b128 {r(b)}, v14 offset:{((ks // 4) & 1) * ASL + (ks % 4) * KS}"] + \
               [f"ds_read_b128 {r(b+4+4*j)}, {'v8' if hi else 'v1'} offset:{ks*6144 + j*1024 - 61440*hi}" for j in range(6)]
    k("s_waitcnt vmcnt(16)")
    k("s_barrier")
    st1(k, 5)
    for l in rd(0): k(l)
    pend = []
    for ks in range(20):
        b = FB + 28 * (ks & 1); g = ks // 4
        k("s_waitcnt lgkmcnt(0)")
        if ks % 4 == 3 and ks < 19:
            if os.environ.get("FINE1B") and g < 3: k.stamp(2 + 2 * g)
            k(f"s_waitcnt vmcnt({(12, 12, 6, 0)[g]})")
            k("s_barrier")
            if os.environ.get("FINE1B") and g < 3: k.stamp(3 + 2 * g)
        if ks % 4 == 0 and g + 3 < 5: pend = dma(g + 3)
        fill = rd(ks + 1) if ks < 19 else []
        for j in range(7):
            if j < 6: k(f"v_mfma_f32_16x16x32_bf16 {r(A0+4*j)}, {r(b+4+4*j)}, {r(b)}, {'0' if ks == 0 else r(A0+4*j)}")
            else: k(f"v_mfma_f32_16x16x32_bf16 {r(96)}, {r(b)}, {r(b+24)}, {'0' if ks == 0 else r(96)}")
            for _ in range(2):
                if fill: k(fill.pop(0))
            if j in (4, 6) and pend: k(pend.pop(0))
    st1(k, 6)
    k("v_add_f32 v108, v108, v109")
    k("v_add_f32 v110, v110, v111")
    k("v_add_f32 v108, v108, v110")
    k("v_cvt_pk_bf16_f32 v108, v108, v108")
    k("v_and_b32 v108, 0xffff0000, v108")
    k("v_add_f32 v108, s56, v108")
    k("v_cvt_pk_bf16_f32 v108, v108, v108")
    k("v_and_b32 v108, 0xffff0000, v108")
    k("s_cmp_ge_u32 s4, 4")
    k("s_cbranch_scc1 k1_fin")
    P = FB + 12
    k(f"v_cvt_pk_bf16_f32 v{P}, v{A0+20}, v{A0+21}")
    k(f"v_cvt_pk_bf16_f32 v{P+1}, v{A0+22}, v{A0+23}")
    k("s_lshr_b32 s36, s6, 1")
    k("s_mul_i32 s36, s36, 2560")
    k(f"s_add_u32 s36, s36, {KV}")
    k("s_and_b32 s37, s6, 1")
    k("v_mov_b32 v11, 0x40000000")
    k("s_bitcmp1_b32 s4, 0")
    k("s_cbranch_scc1 k1_V")
    k("s_cmp_eq_u32 s4, 0")
    k("s_cbranch_scc0 k1_K2")
    k("v_lshrrev_b32 v10, 1, v3")
    k("v_lshlrev_b32 v10, 9, v10")
    k("v_lshl_add_u32 v10, v6, 4, v10")
    k("v_and_b32 v12, 1, v3")
    k("v_lshl_add_u32 v10, v12, 3, v10")
    k("s_branch k1_Kst")
    k.label("k1_K2")
    k("v_cmp_eq_u32 vcc, 0, v3")
    k("v_lshlrev_b32 v10, 3, v6")
    k("v_add_u32 v10, 1024, v10")
    k("v_cndmask_b32 v10, v11, v10, vcc")
    k.label("k1_Kst")
    k(f"buffer_store_dwordx2 {r(P,2)}, v10, s[28:31], s36 offen sc1")
    k(f"v_lshlrev_b32 v12, 16, v{P}")
    k(f"v_and_b32 v13, 0xffff0000, v{P}")
    k(f"v_lshlrev_b32 v14, 16, v{P+1}")
    k(f"v_and_b32 v15, 0xffff0000, v{P+1}")
    k("v_mul_f32 v12, v12, v12")
    k("v_fmac_f32 v12, v13, v13")
    k("v_fmac_f32 v12, v14, v14")
    k("v_fmac_f32 v12, v15, v15")
    xsum16_32(k, 12, 13)
    rowred(k, "v_max_f32", 12)
    k("s_lshl_b32 s36, s4, 8")
    k("s_lshl_b32 s37, s6, 2")
    k("s_add_u32 s36, s36, s37")
    k(f"s_add_u32 s36, s36, {KMAX}")
    k("s_mov_b64 exec, 1")
    k("buffer_store_dword v12, off, s[28:31], s36 sc1")
    k("s_mov_b64 exec, -1")
    k("s_branch k1_fin")
    k.label("k1_V")
    k(f"v_cvt_pk_bf16_f32 v{P}, v96, v97")
    k(f"v_cvt_pk_bf16_f32 v{P+1}, v98, v99")
    k("s_mul_i32 s37, s37, 640")
    k("s_add_u32 s36, s36, s37")
    k("s_add_u32 s36, s36, 1280")
    k("s_cmp_eq_u32 s4, 3")
    k("s_cselect_b32 s37, 256, 0")
    k("s_cselect_b32 s38, 4, 16")
    k("s_add_u32 s36, s36, s37")
    k("v_and_b32 v9, 1, v3")
    k("v_mul_u32_u24 v9, 320, v9")
    k("v_lshl_add_u32 v9, v5, 4, v9")
    k("v_cmp_gt_u32 vcc, s38, v5")
    k("v_lshrrev_b32 v10, 1, v3")
    k("v_lshl_add_u32 v9, v10, 3, v9")
    k("v_cndmask_b32 v9, v11, v9, vcc")
    k(f"buffer_store_dwordx2 {r(P,2)}, v9, s[28:31], s36 offen sc1")
    k.label("k1_fin")
    k("buffer_store_dword v108, v7, s[28:31], s57 offen sc1")
    k(f"v_mov_b32 v8, {hexf(QSCALE)}")
    for j in range(5):
        a = A0 + 4 * j
        k(f"v_pk_mul_f32 {r(a,2)}, {r(a,2)}, v[8:9] op_sel_hi:[1,0]")
        k(f"v_pk_mul_f32 {r(a+2,2)}, {r(a+2,2)}, v[8:9] op_sel_hi:[1,0]")
        k(f"v_cvt_pk_bf16_f32 v{FB+2*j}, v{a}, v{a+1}")
        k(f"v_cvt_pk_bf16_f32 v{FB+2*j+1}, v{a+2}, v{a+3}")
        k(f"ds_write_b64 v{EP+j}, {r(FB+2*j,2)}")
    k(f"s_mov_b32 s{TOK}, s54")
    k("s_waitcnt vmcnt(0) lgkmcnt(0)")
    k("s_branch k1_done")
    k.label("f_loader")
    X = 16; F = 96
    k("v_bfe_u32 v2, v0, 4, 2")
    k("v_and_b32 v3, 15, v0")
    k("v_mul_u32_u24 v4, 1280, v2")
    k("v_lshl_add_u32 v4, v3, 4, v4")
    k("s_mul_i32 s7, s6, 20480")
    k("s_waitcnt lgkmcnt(0)")
    k.srd(20, 40, 41, 0, ACT_SZ)
    def ldx(i):
        for s in range(5): k(f"buffer_load_dwordx4 {r(X+20*i+4*s)}, v4, s[20:23], s7 offen offset:{s*256}")
        k("s_add_u32 s7, s7, 5120")
    ldx(0); ldx(1)
    k.srd(28, 8, 9, 0, WS_END)
    k("v_mov_b32 v5, 0x3f803f80")
    st1(k, 2)
    for i in range(4):
        R = X + 20 * i
        k(f"s_waitcnt vmcnt({(5, 5, 6, 0)[i]})")
        if i < 2: ldx(i + 2)
        if i == 1:
            k(f"s_mov_b32 s22, {EPOCH}")
            k("buffer_load_dword v14, off, s[28:31], s22 sc1")
        for h in range(2):
            k(f"v_dot2_f32_bf16 v{6+h}, v{R+h}, v5, 0")
            k(f"v_dot2_f32_bf16 v{8+h}, v{R+h}, v{R+h}, 0")
        for j in range(2, 20):
            k(f"v_dot2_f32_bf16 v{6+(j&1)}, v{R+j}, v5, v{6+(j&1)}")
            k(f"v_dot2_f32_bf16 v{8+(j&1)}, v{R+j}, v{R+j}, v{8+(j&1)}")
        for j in range(4):
            k(f"v_lshlrev_b32 v{F+2*j}, 16, v{R+j}")
            k(f"v_and_b32 v{F+2*j+1}, 0xffff0000, v{R+j}")
        k("v_add_f32 v6, v6, v7")
        k("v_add_f32 v8, v8, v9")
        n = 4
        for rot in (1, 2, 4, 8):
            for j in range(n, n + 4):
                if j == n + 1:
                    k(f"v_add_f32_dpp v6, v6, v6 row_ror:{rot} row_mask:0xf bank_mask:0xf")
                    k(f"v_add_f32_dpp v8, v8, v8 row_ror:{rot} row_mask:0xf bank_mask:0xf")
                k(f"v_lshlrev_b32 v{F+2*j}, 16, v{R+j}")
                k(f"v_and_b32 v{F+2*j+1}, 0xffff0000, v{R+j}")
            n += 4
        k(f"v_mul_f32 v6, {hexf(1.0/640)}, v6")
        k(f"v_mov_b32 v7, {hexf(1e-5)}")
        k(f"v_fmac_f32 v7, {hexf(1.0/640)}, v8")
        k("v_fma_f32 v7, -v6, v6, v7")
        k("v_rsq_f32 v8, v7")
        k.nop(1)
        k("v_mul_f32 v9, v6, v8")
        for j in range(20): k(f"v_pk_fma_f32 {r(F+2*j,2)}, {r(F+2*j,2)}, v[8:9], v[8:9] op_sel:[0,0,1] op_sel_hi:[1,0,1] neg_lo:[0,0,1] neg_hi:[0,0,1]")
        for j in range(20): k(f"v_cvt_pk_bf16_f32 v{R+j}, v{F+2*j}, v{F+2*j+1}")
    st1(k, 3)
    k("v_lshrrev_b32 v6, 2, v3")
    k(f"v_mul_u32_u24 v6, {KS}, v6")
    k("v_and_b32 v7, 3, v3")
    k(f"v_mul_u32_u24 v7, {KGS}, v7")
    k("v_lshl_add_u32 v7, v2, 4, v7")
    k(f"s_mul_i32 s36, s5, {RTS}")
    k(f"s_add_u32 s36, s36, {LACT}")
    k("v_add3_u32 v6, v6, v7, s36")
    k("v_lshlrev_b32 v10, 4, v3")
    k(f"v_add_u32 v10, {LT1}, v10")
    k("s_mul_i32 s34, s5, 1280")
    k(f"s_add_u32 s35, s34, {LT1}")
    k("v_add_u32 v11, s35, v1")
    k("v_lshrrev_b32 v5, 2, v1")
    k("v_add_u32 v12, s35, v5")
    k(f"s_add_u32 s34, s34, {MODP}")
    k("s_cmp_lt_u32 s5, 2")
    k("s_cselect_b32 s36, 1.0, 0")
    k("s_cmp_lg_u32 s5, 0")
    k("s_cbranch_scc1 f_p0_ok")
    k("v_readfirstlane_b32 s54, v14")
    k("v_lshlrev_b32 v96, 3, v1")
    k("s_add_u32 s54, s54, 1")
    for q in range(4): k(f"s_mov_b32 s{60+q}, {F0 + q * 8192}")
    poll_missing(k, "f_p0", 28, ["s60", "s61", "s62", "s63"], 96, 97, 1, tok="s54")
    k("s_setprio 3")
    k("s_barrier")
    st1(k, 4)
    for q in range(4):
        k(f"buffer_load_dwordx4 {r(96+4*q)}, v1, s[28:31], s34 offen sc1")
        k(f"buffer_load_dword v{112+q}, v5, s[28:31], s34 offen offset:1024 sc1")
        if q < 3: k(f"s_add_u32 s34, s34, {MODP_ST}")
    k("s_waitcnt vmcnt(0)")
    for h in range(2):
        k(f"v_pk_add_f32 {r(96+2*h,2)}, {r(96+2*h,2)}, {r(100+2*h,2)}")
        k(f"v_pk_add_f32 {r(104+2*h,2)}, {r(104+2*h,2)}, {r(108+2*h,2)}")
    k("v_add_f32 v112, v112, v113")
    k("v_add_f32 v114, v114, v115")
    for h in range(2): k(f"v_pk_add_f32 {r(96+2*h,2)}, {r(96+2*h,2)}, {r(104+2*h,2)}")
    k("v_add_f32 v100, v112, v114")
    for rnd in range(2):
        for i in range(5): k(f"v_cvt_pk_bf16_f32 v{96+i}, v{96+i}, v{96+i}")
        for i in range(5): k(f"v_and_b32 v{96+i}, 0xffff0000, v{96+i}")
        if rnd == 0:
            for i in range(5): k(f"v_add_f32 v{96+i}, s36, v{96+i}")
    k(f"ds_write_b128 v11, {r(96)}")
    k("ds_write_b32 v12, v100 offset:1024")
    k("s_waitcnt lgkmcnt(0)")
    k("s_barrier")
    st1(k, 5)
    CO = (96, 120); T = 112
    def coefs(s):
        for j in range(4): k(f"ds_read_b128 {r(CO[s&1]+4*j)}, v10 offset:{j*1280 + s*256}")
    coefs(0)
    for s in range(5):
        co = CO[s & 1]
        k("s_waitcnt lgkmcnt(0)")
        if s < 4: coefs(s + 1)
        for i in range(4):
            a = X + 20 * i + 4 * s
            for j in range(4):
                k(f"v_lshlrev_b32 v{T+2*j}, 16, v{a+j}")
                k(f"v_and_b32 v{T+2*j+1}, 0xffff0000, v{a+j}")
            for j in range(8): k(f"v_fma_f32 v{T+j}, v{T+j}, v{co+j}, v{co+8+j}")
            for j in range(4): k(f"v_cvt_pk_bf16_f32 v{a+j}, v{T+2*j}, v{T+2*j+1}")
            k(f"ds_write_b128 v6, {r(a)} offset:{(s&1)*ASL + i*64}")
        k("s_waitcnt lgkmcnt(0)")
        if os.environ.get("FINE1B") and 1 <= s < 4: k.stamp(2 * s)
        k("s_barrier")
        if os.environ.get("FINE1B") and 1 <= s < 4: k.stamp(2 * s + 1)
    st1(k, 6)
    k.label("k1_done")
```

```python
from asmlib import Kern
from layout import *
from k0 import hexf, rowred
import os, math

K234_LDS = 163840
QA, QB, CM, S0, S1, OO, PP = 4, 8, 16, 32, 48, 64, 80
KF1 = (88, 92); KF2 = (96, 100); VF = (104, 112)
AK1, AK2, AV = 12, 13, 14
SIDE_SC = os.environ.get("SIDE_SC", "sc1")
Z_SC = os.environ.get("Z_SC", "sc1")
SPIN = 200000
KNAME = "adaLN_cond__grouped_kv_mqa__mixer_gmlp__prompt_kernel"
TZ = int(os.environ.get('TZ', '0'))
NC1 = int(os.environ.get('NC1', '8'))
F1SH = int(os.environ.get('F1SH', '5'))
PF7 = int(os.environ.get('PF7', '1'))
TOUCH = int(os.environ.get('TOUCH', '0'))
PF_WIN = int(os.environ.get('PF_WIN', '0'))
RETRY = 2000
PF_NEXT = int(os.environ.get('PF_NEXT', '0'))
GA_ = -2 * math.log2(math.e) * math.sqrt(2 / math.pi)
GB_ = GA_ * 0.044715
RB, CB8, W3, VV, RB128, CB16, FAST = 24, 25, 26, 27, 28, 29, 30
NOFAST = os.environ.get('NOFAST')

def prio(k, n):
    if not os.environ.get("NOPRIO"): k(f"s_setprio {n}")
def r(b, n=4): return f"v[{b}:{b+n-1}]"

def poll(k, name, srd, soff, nflag, vo, vf, want=None):
    if nflag:
        k(f"v_and_b32 v{vo}, {nflag-1}, v0")
        k(f"v_lshlrev_b32 v{vo}, 7, v{vo}")
    k("s_mov_b32 s38, 0")
    k(f"buffer_load_dword v{vf}, v{vo}, s[{srd}:{srd+3}], {soff} offen sc1")
    k("s_sleep 4")
    k.label(name)
    for h in range(2):
        k(f"buffer_load_dword v{vf+1-h}, v{vo}, s[{srd}:{srd+3}], {soff} offen sc1")
        if os.environ.get("PSLEEP"): k(f"s_sleep {os.environ['PSLEEP']}")
        k("s_waitcnt vmcnt(1)")
        k(f"v_cmp_ne_u32 vcc, 0, v{vf+h}" if want is None else f"v_cmp_eq_u32 vcc, {want}, v{vf+h}")
        k("s_cmp_eq_u64 vcc, -1")
        k(f"s_cbranch_scc1 {name}_ok")
    k("s_add_u32 s38, s38, 1")
    k(f"s_cmp_lt_u32 s38, {SPIN}")
    k(f"s_cbranch_scc1 {name}")
    k.label(name + "_ok")

def poll_missing(k, name, srd, soffs, vo, vf, sleep=1, tok=None):
    n = len(soffs)
    for q in range(n): k(f"v_mov_b32 v{vf+q}, 0" if tok is None else f"v_not_b32 v{vf+q}, {tok}")
    k("s_mov_b32 s38, 0")
    k("s_mov_b64 s[70:71], 0")
    k.label(name)
    for q in range(n):
        k(f"v_cmp_eq_u32 vcc, 0, v{vf+q}" if tok is None else f"v_cmp_ne_u32 vcc, {tok}, v{vf+q}")
        k("s_or_b64 s[70:71], s[70:71], vcc")
        k("s_cmp_eq_u64 vcc, 0")
        k(f"s_cbranch_scc1 {name}_s{q}")
        k("s_mov_b64 exec, vcc")
        k(f"buffer_load_dword v{vf+q}, v{vo}, s[{srd}:{srd+3}], {soffs[q]} offen sc1")
        k("s_mov_b64 exec, -1")
        k.label(f"{name}_s{q}")
    k("s_cmp_eq_u64 s[70:71], 0")
    k(f"s_cbranch_scc1 {name}_ok")
    k("s_mov_b64 s[70:71], 0")
    k("s_add_u32 s38, s38, 1")
    if sleep: k(f"s_sleep {sleep}")
    k("s_waitcnt vmcnt(0)")
    k(f"s_cmp_lt_u32 s38, {SPIN}")
    k(f"s_cbranch_scc1 {name}")
    k.label(name + "_ok")

def stores(k, lines):
    a = k.newlabel("sl"); b = k.newlabel("sd")
    k(f"s_cmp_eq_u32 s{FAST}, 0")
    k(f"s_cbranch_scc1 {a}")
    for l in lines: k(l)
    k(f"s_branch {b}")
    k.label(a)
    for l in lines: k(l + " sc1")
    k.label(b)

def setflag(k, srd, soff, lab, v=10, local=False, val="1", count=False):
    k("s_cmp_lg_u32 s5, 0")
    k(f"s_cbranch_scc1 {lab}")
    k(f"v_mov_b32 v{v}, {val}")
    k("s_mov_b64 exec, 1")
    if count: k(f"buffer_atomic_add v{v}, off, s[{srd}:{srd+3}], {soff}")
    elif local: stores(k, [f"buffer_store_dword v{v}, off, s[{srd}:{srd+3}], {soff}"])
    else: k(f"buffer_store_dword v{v}, off, s[{srd}:{srd+3}], {soff} sc1")
    k("s_mov_b64 exec, -1")
    k.label(lab)

def hint(k, srd, soff, v=10):
    k(f"v_mov_b32 v{v}, 1")
    k("s_mov_b64 exec, 1")
    k(f"buffer_store_dword v{v}, off, s[{srd}:{srd+3}], {soff} sc1")
    k("s_mov_b64 exec, -1")

def chk(k, c, b, n=4):
    for i in range(0, n, 2): k(f"v_max3_u32 v{c}, v{c}, v{b+i}, v{b+i+1}")

def verify(k, c, again, cnt):
    k(f"v_cmp_eq_u32 vcc, -1, v{c}")
    k(f"s_add_u32 s{cnt}, s{cnt}, 1")
    k(f"s_cmp_lt_u32 s{cnt}, {RETRY}")
    k("s_cselect_b64 s[70:71], vcc, 0")
    k("s_cmp_lg_u64 s[70:71], 0")
    k(f"s_cbranch_scc1 {again}")

def gelu(k, X, T, n):
    for i in range(n): k(f"v_pk_mul_f32 {r(T+2*i,2)}, {r(X+2*i,2)}, {r(X+2*i,2)}")
    for i in range(n): k(f"v_pk_fma_f32 {r(T+2*i,2)}, {r(T+2*i,2)}, v[12:13], v[12:13] op_sel:[0,1,0] op_sel_hi:[1,1,0]")
    for i in range(n): k(f"v_pk_mul_f32 {r(T+2*i,2)}, {r(T+2*i,2)}, {r(X+2*i,2)}")
    for i in range(2 * n): k(f"v_exp_f32 v{T+i}, v{T+i}")
    for i in range(n): k(f"v_pk_add_f32 {r(T+2*i,2)}, {r(T+2*i,2)}, 1.0 op_sel_hi:[1,0]")
    for i in range(2 * n): k(f"v_rcp_f32 v{T+i}, v{T+i}")
    for i in range(n): k(f"v_pk_mul_f32 {r(X+2*i,2)}, {r(X+2*i,2)}, {r(T+2*i,2)}")

def x1_addr(k, rt, cb, s0, dst, tmp, kg=3, l16=5):
    k(f"s_lshr_b32 s{s0}, s{rt}, 3")
    k(f"s_mul_i32 s{s0}, s{s0}, 40")
    k(f"s_mul_i32 s{s0+1}, s{cb}, 5")
    k(f"s_add_u32 s{s0}, s{s0}, s{s0+1}")
    k(f"s_lshl_b32 s{s0}, s{s0}, 12")
    k(f"s_bfe_u32 s{s0+1}, s{rt}, 0x20001")
    k(f"s_lshl_b32 s{s0+1}, s{s0+1}, 10")
    k(f"s_add_u32 s{s0}, s{s0}, s{s0+1}")
    k(f"s_and_b32 s{s0+1}, s{rt}, 1")
    k(f"s_lshl_b32 s{s0+1}, s{s0+1}, 8")
    k(f"s_add_u32 s{s0}, s{s0}, s{s0+1}")
    for j in range(1, 5): k(f"s_add_u32 s{s0+j}, s{s0}, {j*4096}")
    k(f"v_lshrrev_b32 v{dst}, 1, v{kg}")
    k(f"v_lshlrev_b32 v{dst}, 9, v{dst}")
    k(f"v_lshl_add_u32 v{dst}, v{l16}, 4, v{dst}")
    k(f"v_and_b32 v{tmp}, 1, v{kg}")
    k(f"v_lshl_add_u32 v{dst}, v{tmp}, 3, v{dst}")

def gemm80_resident(k, NK, order, ACT, A0, WB, srd, soff, lds_addr, wait, cb, bars={}, AH=11):
    k("v_add_u32 v8, 0xf000, v1")
    k("v_add_u32 v9, 0x1e000, v1")
    def ld(i):
        return [f"s_add_u32 s38, s{soff}, {order[i]*4096}\nbuffer_load_dwordx4 {r(ACT+4*i)}, v1, s[{srd}:{srd+3}], s38 offen sc1"]
    def rd(i):
        ks = order[i]; b = WB[i % 3]
        ad = lds_addr(ks); n = ad // 0xf000
        return [f"ds_read_b128 {r(b+4*j)}, {('v1', 'v8', 'v9')[n]} offset:{ad + j*1024 - n*0xf000}" for j in range(5)]
    for l in rd(0) + rd(1): k(l)
    wait()
    for i in range(AH): k(ld(i)[0])
    for i in range(NK):
        b = WB[i % 3]
        if i in bars: k("s_barrier")
        k(f"s_waitcnt vmcnt({min(AH-1, NK-1-i)}) lgkmcnt({5 if i < NK-1 else 0})")
        if os.environ.get("FINE3") and i in (0, 5, 12): k.stamp({0: 2, 5: 3, 12: 4}[i])
        fill = (rd(i + 2) if i + 2 < NK else [""] * 5)
        for j in range(5):
            c = "0" if i == 0 else r(A0 + 4 * j)
            k(f"v_mfma_f32_16x16x32_bf16 {r(A0+4*j)}, {r(b+4*j)}, {r(ACT+4*i)}, {c}")
            k(fill[j])
        if i + AH < NK: k(ld(i + AH)[0])
    if os.environ.get("FINE3"): k.stamp(7 if NK == 24 else 6)

def resid(k, A0, X, G, T):
    for i in range(10):
        k(f"v_lshlrev_b32 v{T+2*i}, 16, v{X+i}")
        k(f"v_and_b32 v{T+2*i+1}, 0xffff0000, v{X+i}")
    for i in range(10): k(f"v_pk_fma_f32 {r(A0+2*i,2)}, {r(A0+2*i,2)}, {r(G+2*i,2)}, {r(T+2*i,2)}")
    for i in range(10): k(f"v_cvt_pk_bf16_f32 v{X+i}, v{A0+2*i}, v{A0+2*i+1}")

def gen_k234():
    k = Kern(KNAME, 244, 100)
    k("s_cmp_ge_u32 s2, 256")
    k("s_cbranch_scc1 k2_end")
    k.stamp(0); k.rstamp(1)
    k("s_load_dwordx2 s[8:9], s[0:1], 112")
    from front import gen_front, LACT, ASL
    gen_front(k, poll_missing, KNAME, "code_end")
    k.srd(16, 8, 9, FL, FL_SZ)
    k("s_lshl_b32 s37, s2, 7")
    k(f"s_add_u32 s37, s37, {F1 - FL}")
    k("v_lshrrev_b32 v1, 6, v0")
    k("s_barrier")
    k("v_readfirstlane_b32 s5, v1")
    k("s_getreg_b32 s43, hwreg(HW_REG_XCC_ID, 0, 4)")
    k("s_add_u32 s42, s43, 1")
    setflag(k, 16, "s37", "k2_f1done")
    if os.environ.get("FINE2"): k.stamp(4)
    k("s_load_dwordx2 s[44:45], s[0:1], 0")
    k("s_load_dwordx4 s[48:51], s[0:1], 48")
    k("s_load_dwordx2 s[46:47], s[0:1], 72")
    k("s_and_b32 s3, s2, 7")
    k(f"s_lshl_b32 s{RB}, s3, 2")
    k("s_bfe_u32 s4, s2, 0x20003")
    k(f"s_add_u32 s{RB}, s{RB}, s4")
    k(f"s_lshr_b32 s{CB8}, s2, 5")
    k("v_and_b32 v1, 63, v0")
    k("v_and_b32 v2, 31, v0")
    k("v_bfe_u32 v3, v0, 5, 1")
    k("v_lshlrev_b32 v1, 4, v1")
    k(f"s_lshl_b32 s4, s{CB8}, 2")
    k(f"s_and_b32 s{W3}, s5, 3")
    k(f"s_add_u32 s4, s4, s{W3}")
    k(f"s_lshl_b32 s6, s{RB}, 1")
    k("s_lshr_b32 s43, s5, 2")
    k("s_add_u32 s6, s6, s43")
    k(f"s_mul_i32 s7, s{W3}, 2560")
    k("s_mul_i32 s10, s43, 1280")
    k("s_add_u32 s7, s7, s10")
    k(f"s_add_u32 s7, s7, {LACT + ASL}")
    k("v_add_u32 v15, s7, v1")
    k(f"ds_read_b128 {r(QA)}, v15")
    k("v_lshl_add_u32 v15, v2, 3, s7")
    k(f"v_mov_b32 v{QB}, 0")
    k(f"v_mov_b32 v{QB+1}, 0")
    k("s_mov_b32 exec_hi, 0")
    k(f"ds_read_b64 {r(QB,2)}, v15 offset:1024")
    k("s_mov_b64 exec, -1")
    k("s_lshl_b32 s10, s5, 10")
    k.srd(20, 8, 9, KV, KV_SZ)
    k.srd(56, 8, 9, KMAX, 1024)
    prio(k, 3)
    k(f"s_bfe_u32 s{VV}, s2, 0x10003")
    k(f"s_lshr_b32 s{RB128}, s{RB}, 1")
    k(f"s_lshl_b32 s{CB16}, s{CB8}, 1")
    k(f"s_add_u32 s{CB16}, s{CB16}, s{VV}")
    k(f"v_mov_b32 v{AK1}, v1")
    k(f"v_lshlrev_b32 v{AK2}, 3, v2")
    k(f"v_add_u32 v{AK2}, 1024, v{AK2}")
    k(f"v_mul_u32_u24 v{AV}, 20, v3")
    k(f"v_add_u32 v{AV}, v{AV}, v2")
    k(f"v_lshlrev_b32 v{AV}, 4, v{AV}")
    k(f"v_add_u32 v{AV}, 1280, v{AV}")
    k("s_mov_b32 s40, 0x000fffff")
    k("s_mov_b32 s41, 0x000fffff")
    k("v_or_b32 v15, 4, v2")
    k("v_cmp_eq_u32 vcc, 28, v15")
    k("v_mov_b32 v15, 0x3f803f80")
    k("s_add_u32 s43, s43, 1")
    k(f"v_cndmask_b32 v{VF[0]}, 0, v15, vcc")
    for i in range(16): k(f"v_mov_b32 v{OO+i}, 0")
    for i in range(1, 16): k(f"v_mov_b32 v{VF[0]+i}, v{VF[0]}")
    for i in range(4, 8): k(f"v_mov_b32 v{PP+i}, 0")
    for b in (QB, KF2[0], KF2[1]):
        k(f"v_mov_b32 v{b+2}, 0"); k(f"v_mov_b32 v{b+3}, 0")
    k.srd(12, 8, 9, O, ACT_SZ)
    k(f"s_mul_i32 s7, s{CB8}, 102400")
    k(f"s_add_u32 s7, s7, {WOF}")
    k.srd(16 + 16, 8, 9, "s7", 102400)
    k("s_cmp_lg_u32 s5, 0")
    k("s_cbranch_scc1 k2_p1_ok")
    k(f"v_lshlrev_b32 v{S1}, 7, v0")
    for q in range(4): k(f"s_mov_b32 s{60+q}, {F1 - FL + q * 8192}")
    poll_missing(k, "k2_p1", 16, ["s60", "s61", "s62", "s63"], S1, S1 + 1, int(os.environ.get('F1SL', '1')))
    k("s_mov_b32 m0, s10")
    k("s_waitcnt lgkmcnt(0)")
    k("s_barrier")
    if os.environ.get("FINE2"): k.stamp(5)
    k("buffer_load_dwordx4 v1, s[20:23], m0 offen sc1 lds")
    k.srd(52, 8, 9, XID, 1024)
    k(f"buffer_load_dwordx4 {r(S1+8)}, v1, s[52:55], 0 offen sc1")
    k("s_add_u32 m0, m0, 0x2000")
    k(f"buffer_load_dwordx4 {r(S0)}, v1, s[56:59], 0 offen sc1")
    for i in range(3):
        k("buffer_load_dwordx4 v1, s[20:23], m0 offen sc1 lds")
        if i < 2:
            k("s_add_u32 m0, m0, 0x2000")
            k.nop(1)
    k("s_waitcnt vmcnt(3)")
    k("s_and_b32 s36, s2, 3")
    for q in range(1, 4):
        k(f"s_cmp_eq_u32 s36, {q}")
        k("s_cselect_b64 vcc, -1, 0")
        k(f"v_cndmask_b32 v{S1+8}, v{S1+8}, v{S1+8+q}, vcc")
    k("s_lshr_b32 s36, s2, 2")
    k(f"v_xor_b32 v{S1+12}, s36, v0")
    k(f"v_and_b32 v{S1+12}, 5, v{S1+12}")
    k(f"v_cmp_eq_u32 vcc, 0, v{S1+12}")
    k(f"v_cmp_ne_u32 s[36:37], s42, v{S1+8}")
    k.nop(1)
    k("s_and_b64 vcc, vcc, s[36:37]")
    k(f"s_cselect_b32 s{FAST}, 0, " + ("0" if NOFAST else "1"))
    k(f"v_max3_f32 v{S1}, v{S0}, v{S0+1}, v{S0+2}")
    k(f"v_max_f32 v{S1}, v{S1}, v{S0+3}")
    k(f"v_dot2_f32_bf16 v{S1+2}, v{QA}, v{QA}, 0")
    rowred(k, "v_max_f32", S1)
    for b in (QA + 1, QA + 2, QA + 3, QB, QB + 1):
        k(f"v_dot2_f32_bf16 v{S1+2}, v{b}, v{b}, v{S1+2}")
    k(f"v_mov_b32 v{S1+1}, v{S1}")
    k.nop(3)
    k(f"v_mov_b32 v{S1+3}, v{S1+2}")
    k(f"v_permlane16_swap_b32 v{S1}, v{S1+1}")
    k(f"v_max_f32 v{S1}, v{S1}, v{S1+1}")
    k(f"v_permlane32_swap_b32 v{S1+2}, v{S1+3}")
    k(f"v_mov_b32 v{S1+1}, v{S1}")
    k(f"v_add_f32 v{S1+2}, v{S1+2}, v{S1+3}")
    k.nop(1)
    k(f"v_permlane32_swap_b32 v{S1}, v{S1+1}")
    k(f"v_add_f32 v{S1}, v{S1}, v{S1+1}")
    k(f"v_mul_f32 v{S1}, v{S1}, v{S1+2}")
    k(f"v_sqrt_f32 v{S1}, v{S1}")
    k.nop(1)
    k(f"v_mov_b32 v{S1+1}, {hexf(-1.001)}")
    k(f"v_fmaak_f32 v{CM}, v{S1}, v{S1+1}, {hexf(60.0)}")
    for i in range(1, 16): k(f"v_mov_b32 v{CM+i}, v{CM}")
    def rdK(t, buf):
        k(f"ds_read_b128 {r(KF1[buf])}, v{AK1} offset:{t*2560}")
        k(f"ds_read_b64 {r(KF2[buf],2)}, v{AK2} offset:{t*2560}")
    def rdV(t, buf):
        k("s_mov_b64 exec, s[40:41]")
        k(f"ds_read_b128 {r(VF[buf])}, v{AV} offset:{t*2560}")
        k(f"ds_read_b128 {r(VF[buf]+4)}, v{AV} offset:{t*2560+640}")
        k("s_mov_b64 exec, -1")
    SB = (S0, S1)
    k("s_waitcnt vmcnt(0) lgkmcnt(0)")
    k("s_barrier")
    if not (os.environ.get("ITER") or os.environ.get("FINE1")): k.stamp(2)
    rdK(0, 0); rdK(1, 1); rdV(0, 0)
    k("s_waitcnt lgkmcnt(4)")
    k(f"v_mfma_f32_32x32x16_bf16 {r(S0,16)}, {r(KF1[0])}, {r(QA)}, {r(CM,16)}")
    k(f"v_mfma_f32_32x32x16_bf16 {r(S0,16)}, {r(KF2[0])}, {r(QB)}, {r(S0,16)}")
    k.nop(8)
    def body(dma, every=5, last=False, first=False):
        left = list(dma)
        body.n0 = len(k.lines)
        def ex(reg):
            if left and ex.n % every == 1:
                srd, pre, fl = left.pop(0)
                k(pre)
                k(f"v_exp_f32 v{reg}, v{reg}")
                if fl is None: k(f"buffer_load_dwordx4 v[172:175], v1, s[{srd}:{srd+3}], s53 offen sc1")
                else: k(f"buffer_load_dwordx4 v1, s[{srd}:{srd+3}], m0 offen {fl}lds")
            else:
                k(f"v_exp_f32 v{reg}, v{reg}")
            ex.n += 1
        ex.n = 0
        for t in range(8):
            cur = SB[t & 1]; nxt = SB[(t + 1) & 1]
            def E(lo):
                for i in range(lo, lo + 4): ex(cur + i)
                for i in range(lo // 2, lo // 2 + 2): k(f"v_cvt_pk_bf16_f32 v{PP+i}, v{cur+2*i}, v{cur+2*i+1}")
            fin = last and t == 7
            if (last or first) and t in (2, 4, 6): prio(k, 3 - t // 2)
            k("s_waitcnt lgkmcnt(0)")
            if not (last and t >= 6): rdK(t + 2, t & 1)
            else: k.nop(1)
            k(f"v_mfma_f32_32x32x16_bf16 {r(OO,16)}, {r(VF[(t+1)&1]+4)}, {r(PP+4)}, {r(OO,16)}")
            E(0)
            if not fin:
                k(f"v_mfma_f32_32x32x16_bf16 {r(nxt,16)}, {r(KF1[(t+1)&1])}, {r(QA)}, {r(CM,16)}")
                rdV(t + 1, (t + 1) & 1)
            E(4)
            if not fin: k(f"v_mfma_f32_32x32x16_bf16 {r(nxt,16)}, {r(KF2[(t+1)&1])}, {r(QB)}, {r(nxt,16)}")
            if t == 7 and not last:
                k(f"v_add_u32 v{AK1}, 20480, v{AK1}")
                k(f"v_add_u32 v{AK2}, 20480, v{AK2}")
                k(f"v_add_u32 v{AV}, 20480, v{AV}")
            E(8)
            k(f"v_mfma_f32_32x32x16_bf16 {r(OO,16)}, {r(VF[t&1])}, {r(PP)}, {r(OO,16)}")
            E(12)
        assert not left
        X = os.environ.get("XP", "")
        if X:
            new = []
            for l in k.lines[body.n0:]:
                if "nopv" in X and "v_mfma" in l and l.split()[1].startswith(f"v[{OO}:"): l = "    s_nop 0"
                if "noqk2" in X and "v_mfma" in l and f"{r(QB)}" in l: l = "    s_nop 0"
                if "nolds" in X and "ds_read" in l: l = "    s_nop 0"
                if "noexp" in X and "v_exp" in l: l = l.replace("v_exp_f32", "v_mov_b32")
                if "nocvt" in X and "v_cvt_pk" in l: l = "    s_nop 0"
                if "qk8" in X and "v_mfma" in l and f"{r(QB)}" in l:
                    l = l.replace("v_mfma_f32_32x32x16_bf16", "v_mfma_f32_32x32x8bf16_1k").replace(r(QB), r(QB, 2)).replace(r(KF2[0]), r(KF2[0], 2)).replace(r(KF2[1]), r(KF2[1], 2))
                new.append(l)
            k.lines[body.n0:] = new
        if last:
            k.nop(2)
            k(f"v_mfma_f32_32x32x16_bf16 {r(OO,16)}, {r(VF[1]+4)}, {r(PP+4)}, {r(OO,16)}")
    INC = "s_add_u32 m0, m0, 0x2000"
    body([(20, INC, 'sc1 ')] * 16, first=True)
    k("s_waitcnt vmcnt(0)")
    k("s_barrier")
    k("s_mov_b32 s42, 1")
    k("s_add_u32 s39, s43, 2")
    k("s_branch k2_disp")
    k.lines.append(".p2align 6")
    k.label("k2_loop")
    body([])
    k("s_add_u32 s42, s42, 1")
    k.label("k2_disp")
    if os.environ.get("ITER"):
        for i in range(1, 7):
            k(f"s_cmp_eq_u32 s42, {i}")
            k(f"s_cbranch_scc0 k2_it{i}")
            k.stamp(i + 1)
            k.label(f"k2_it{i}")
    if not os.environ.get("NOSIDE"):
        k("s_cmp_eq_u32 s42, s43")
        k("s_cbranch_scc1 k2_sideld")
        k("s_cmp_eq_u32 s42, s39")
        k("s_cbranch_scc1 k2_side")
    k.label("k2_cont")
    prio(k, 3)
    k("s_cmp_eq_u32 s42, 1")
    k("s_cbranch_scc1 k2_loop")
    k("s_cmp_eq_u32 s42, 5")
    k("s_cbranch_scc1 " + ("k2_loop" if os.environ.get("NOBLK") else "k2_blk5"))
    prio(k, 2)
    k("s_cmp_eq_u32 s42, 2")
    k("s_cbranch_scc1 k2_loop")
    k("s_cmp_eq_u32 s42, 6")
    k("s_cbranch_scc1 " + ("k2_loop" if os.environ.get("NOBLK") else "k2_blk6"))
    prio(k, 1)
    k("s_cmp_eq_u32 s42, 3")
    k("s_cbranch_scc1 k2_loop")
    prio(k, 0)
    k("s_cmp_eq_u32 s42, 4")
    k("s_cbranch_scc1 k2_loop")
    prio(k, 3)
    k("s_sub_u32 m0, s10, 0x2000")
    k(f"s_mul_i32 s7, s{CB16}, 122880")
    k(f"s_add_u32 s7, s7, {WINF - 40960}")
    k.srd(72, 8, 9, "s7", 163840)
    k.srd(68, 8, 9, WINF, WINF_SZ)
    k("s_lshr_b32 s53, s2, 3")
    k("s_lshl_b32 s53, s53, 3")
    k("s_add_u32 s53, s53, s5")
    k("s_mul_i32 s53, s53, 7680")
    k("s_sub_u32 s53, s53, 1024")
    k("s_cmp_lg_u32 s5, " + ("99" if os.environ.get("NOBLK") else "0"))
    k("s_cbranch_scc1 k2_fsok")
    k("s_mov_b32 s38, 0")
    k.label("k2_fschk")
    k("s_waitcnt vmcnt(0)")
    k("v_min3_u32 v168, v168, v169, v170")
    k("v_min_u32 v168, v168, v171")
    k("v_cmp_ne_u32 vcc, 0, v168")
    k("s_cmp_eq_u64 vcc, -1")
    k("s_cbranch_scc1 k2_fsok")
    k("s_sleep 1")
    k(f"buffer_load_dwordx4 v[168:171], v1, s[16:19], s37 offen sc1")
    k("s_add_u32 s38, s38, 1")
    k(f"s_cmp_lt_u32 s38, {SPIN}")
    k("s_cbranch_scc1 k2_fschk")
    k.label("k2_fsok")
    k("s_barrier")
    body([(72, 's_add_u32 m0, s10, 102400', 'sc1 ')] + [(72, INC, 'sc1 ')] * 4 + [(68, 's_add_u32 s53, s53, 1024', None)] * (8 if PF7 else 0), every=4 if PF7 else 7, last=True)
    if os.environ.get("ITER"):
        k.endpgm(0)
    if not os.environ.get("FINE1"): k.stamp(3)
    k(f"v_mov_b32 v15, {hexf(2.0**-100)}")
    k.nop(11)
    k(f"v_cmp_nge_f32 vcc, v{OO+12}, v15")
    k.nop(5)
    k("s_cbranch_vccnz k2_slow")
    k.label("k2_epi")
    k(f"v_rcp_f32 v{S0}, v{OO+12}")
    k(f"s_mul_i32 s7, s{RB}, 81920")
    k("s_and_b32 s10, s6, 1")
    k("s_lshl_b32 s10, s10, 11")
    k("s_add_u32 s10, s7, s10")
    k(f"v_lshrrev_b32 v{S0+3}, 4, v2")
    k(f"v_lshlrev_b32 v{S0+3}, 10, v{S0+3}")
    k(f"v_and_b32 v{S0+2}, 15, v2")
    k(f"v_lshl_add_u32 v{S0+3}, v{S0+2}, 4, v{S0+3}")
    k("s_mul_i32 s11, s4, 20")
    k(f"v_lshl_add_u32 v{S0+4}, v3, 2, s11")
    for i in range(6):
        k(f"v_pk_mul_f32 {r(OO+2*i,2)}, {r(OO+2*i,2)}, {r(S0,2)} op_sel_hi:[1,0]")
    for i in range(6):
        k(f"v_cvt_pk_bf16_f32 v{PP+i}, v{OO+2*i}, v{OO+2*i+1}")
    for i in range(3):
        c = S0 + 8 + 4 * i
        k(f"v_add_u32 v{c}, {8*i}, v{S0+4}")
        k(f"v_lshrrev_b32 v{c+1}, 5, v{c}")
        k(f"v_lshl_add_u32 v{c+1}, v{c+1}, 12, v{S0+3}")
        k(f"v_bfe_u32 v{c+2}, v{c}, 3, 2")
        k(f"v_lshl_add_u32 v{c+1}, v{c+2}, 8, v{c+1}")
        k(f"v_and_b32 v{c+2}, 4, v{c}")
        k(f"v_lshl_add_u32 v{c+1}, v{c+2}, 1, v{c+1}")
        if i == 2:
            k(f"v_lshl_add_u32 v{c+1}, v3, 30, v{c+1}")
    stores(k, [f"buffer_store_dwordx2 {r(PP+2*i,2)}, v{S0+9+4*i}, s[12:15], s10 offen" for i in range(3)])
    k(f"s_lshl_b32 s36, s{RB}, 10")
    k(f"s_add_u32 s36, s36, {F2 - FL}")
    k(f"s_lshl_b32 s37, s{CB8}, 7")
    k("s_add_u32 s37, s37, s36")
    k("s_load_dwordx2 s[44:45], s[0:1], 64")
    k("s_load_dwordx2 s[46:47], s[0:1], 96")
    k("s_cmp_ge_u32 s5, 4")
    k("s_cbranch_scc1 k2_loader")
    XR_, GA_R, ACT, A0, WB = 120, 132, 16, 96, (152, 172, 192)
    k("s_waitcnt vmcnt(0) lgkmcnt(0)")
    k("s_barrier")
    setflag(k, 16, "s37", "k2_f2done", local=True)
    if not (os.environ.get("FINE1") or os.environ.get("FINE2")): k.stamp(4)
    k("v_bfe_u32 v3, v0, 4, 2")
    k("v_and_b32 v5, 15, v0")
    k(f"s_lshl_b32 s6, s{RB}, 2")
    k("s_add_u32 s6, s6, s5")
    x1_addr(k, 6, CB8, 60, 6, 7)
    k("s_lshl_b32 s10, s5, 10")
    k("s_add_u32 s7, s7, s10")
    k.srd(52, 8, 9, X1, ACT_SZ)
    k.srd(56, 8, 9, SP2, SP2_SZ)
    def w3():
        poll(k, "k2_p2", 16, "s36", 8, 10, 11)
        if not (os.environ.get("FINE1") or os.environ.get("FINE2")): k.stamp(5)
    gemm80_resident(k, 20, list(range(8, 20)) + list(range(8)), ACT, A0, WB, 12, 7, lambda ks: ks * 5120,
                    w3, CB8, bars={9: 1, 12: 1})
    if os.environ.get("FINE"): k.stamp(2)
    k.nop(5)
    resid(k, A0, XR_, GA_R, WB[0])
    k("v_and_b32 v7, 1, v3")
    k("v_mul_u32_u24 v7, 4088, v7")
    k("v_add_u32 v7, v7, v6")
    for i in range(10):
        k(f"v_lshlrev_b32 v{A0+2*i}, 16, v{XR_+i}")
        k(f"v_and_b32 v{A0+2*i+1}, 0xffff0000, v{XR_+i}")
    for i in range(10): k(f"v_mov_b32 v{232+i}, v{XR_+i}")
    for p in range(2):
        k(f"v_permlane16_swap_b32 v{XR_+4*p}, v{XR_+4*p+2}")
        k(f"v_permlane16_swap_b32 v{XR_+4*p+1}, v{XR_+4*p+3}")
    stores(k, [f"buffer_store_dwordx4 {r(XR_+4*p)}, v7, s[52:55], s{60+2*p} offen" for p in range(2)] +
              [f"buffer_store_dwordx2 {r(XR_+8,2)}, v6, s[52:55], s64 offen"])
    k(f"v_pk_add_f32 v[10:11], {r(A0,2)}, {r(A0+2,2)}")
    k(f"v_pk_mul_f32 v[12:13], {r(A0,2)}, {r(A0,2)}")
    for i in range(1, 10):
        if i > 1: k(f"v_pk_add_f32 v[10:11], v[10:11], {r(A0+2*i,2)}")
        k(f"v_pk_fma_f32 v[12:13], {r(A0+2*i,2)}, {r(A0+2*i,2)}, v[12:13]")
    k("v_add_f32 v10, v10, v11")
    k("v_add_f32 v12, v12, v13")
    k(f"s_lshl_b32 s36, s{RB}, 3")
    k(f"s_add_u32 s36, s36, s{CB8}")
    k("v_lshlrev_b32 v7, 3, v5")
    k("v_permlane16_swap_b32 v10, v12")
    k("v_add_f32 v10, v10, v12")
    k("v_mov_b32 v12, v10")
    k("v_and_b32 v8, 1, v3")
    k("v_lshl_add_u32 v7, v8, 2, v7")
    k("v_permlane32_swap_b32 v10, v12")
    k("v_add_f32 v10, v10, v12")
    k("v_lshrrev_b32 v8, 1, v3")
    k("v_lshl_add_u32 v7, v8, 30, v7")
    k("s_lshl_b32 s36, s36, 9")
    k("s_lshl_b32 s37, s5, 7")
    k("s_add_u32 s36, s36, s37")
    stores(k, ["buffer_store_dword v10, v7, s[56:59], s36 offen"])
    k(f"s_lshl_b32 s36, s{RB128}, 11")
    k(f"s_add_u32 s36, s36, {F3 - FL}")
    k(f"s_lshl_b32 s37, s{CB16}, 7")
    k("s_add_u32 s37, s37, s36")
    if os.environ.get("FINE"): k.stamp(3)
    k("s_waitcnt vmcnt(0)")
    k("s_barrier")
    setflag(k, 16, "s37", "k2_f3done", 11, local=True)
    if os.environ.get("FINE"): k.stamp(4)
    ACT, A0, WB, ST = 16, 80, 128, 152
    NR = 16; AH = 12
    k("v_bfe_u32 v3, v0, 5, 1")
    k(f"s_lshl_b32 s6, s{RB128}, 2")
    k("s_add_u32 s6, s6, s5")
    k(f"s_mul_i32 s7, s{RB128}, 163840")
    k("s_add_u32 s7, s7, s10")
    k("s_lshl_b32 s11, s6, 11")
    k("s_and_b32 s37, s5, 1")
    k("s_mul_i32 s37, s37, 1792")
    k("s_sub_u32 s11, s11, s37")
    k("v_lshlrev_b32 v4, 3, v2")
    k("v_lshl_add_u32 v6, v3, 11, v4")
    k("v_add_u32 v7, 40960, v1")
    k("v_add_u32 v14, 102400, v1")
    k(f"v_mov_b32 v12, {hexf(GA_)}")
    k(f"v_mov_b32 v13, {hexf(GB_)}")
    order = list(range(20, 40)) + list(range(20))
    def ld(i):
        k(f"s_add_u32 s38, s7, {order[i]*4096}")
        k(f"buffer_load_dwordx4 {r(ACT+4*(i%NR))}, v1, s[52:55], s38 offen sc1")
    def rd(i):
        ks = order[i]; b = WB + 12 * (i & 1)
        a, base = ("v7", 0) if ks < 20 else ("v14", 61440)
        for j in range(3): k(f"ds_read_b128 {r(b+4*j)}, {a} offset:{ks*3072 + j*1024 - base}")
    rd(0)
    k(f"s_mul_i32 s37, s{RB128}, 163840")
    k(f"s_mul_i32 s39, s{CB16}, 10240")
    k("s_add_u32 s37, s37, s39")
    k("s_mul_i32 s39, s5, 2560")
    k("s_add_u32 s37, s37, s39")
    poll(k, "k2_p3", 16, "s36", 16, 10, 164)
    if not os.environ.get("FINE1") and not os.environ.get("FINE3"): k.stamp(6)
    for i in range(4): k(f"buffer_load_dwordx2 {r(ST+2*i,2)}, v6, s[56:59], s11 offen offset:{i*512} sc1")
    ld(0); ld(1)
    if TOUCH:
        for i in range(3): k(f"buffer_load_dwordx4 {r(160)}, v1, s[52:55], s37 offen offset:{min(i*1024, 1536)} sc1")
    for i in range(2, AH): ld(i)
    k(f"s_cmp_eq_u32 s{VV}, 0")
    k("s_cbranch_scc0 k2_p4B")
    LC1, LC2, LTAB = 0, 1024, 2048
    def rowtab(S, n, bias_s, bias_q):
        k(f"v_mov_b32 v{S+2}, v{S}")
        k(f"v_mov_b32 v{S+3}, v{S+1}")
        k("s_lshl_b32 s36, s5, 8")
        k(f"s_add_u32 s36, s36, {LTAB}")
        k(f"v_permlane32_swap_b32 v{S}, v{S+2}")
        k(f"v_permlane32_swap_b32 v{S+1}, v{S+3}")
        k(f"v_pk_add_f32 {r(S,2)}, {r(S,2)}, {r(S+2,2)}")
        k("v_lshl_add_u32 v10, v2, 2, s36")
        k(f"v_mov_b32 v{S+2}, {hexf(1.0/n)}")
        k(f"v_fmaak_f32 v8, v{S}, v{S+2}, {hexf(-bias_s/n)}")
        k(f"v_fmaak_f32 v9, v{S+1}, v{S+2}, {hexf(1e-5 - bias_q/n)}")
        k("v_fma_f32 v9, -v8, v8, v9")
        k("v_rsq_f32 v11, v9")
        k.nop(1)
        k("v_mul_f32 v9, v8, v11")
        k("v_sub_f32 v9, 0, v9")
        k("v_mov_b32 v8, v11")
        k("ds_write_b32 v10, v8")
        k("ds_write_b32 v10, v9 offset:128")
    for var in range(2):
        if var == 1: k.label("k2_p4B")
        types = ("z2", "z2", "z1") if var == 0 else ("z2", "z1", "z1")
        for i in range(40):
            b = WB + 12 * (i & 1); a = ACT + 4 * (i % NR)
            if i == 12: k("s_barrier")
            k(f"s_waitcnt vmcnt({min(AH-1, 39 - i)}) lgkmcnt(0)")
            if os.environ.get("FINE4") and i in (0, 6, 13, 26): k.stamp({0: 2, 6: 3, 13: 4, 26: 5}[i])
            for j in range(3):
                c = "0" if i == 0 else r(A0 + 16 * j, 16)
                x, y = (r(a), r(b + 4 * j)) if types[j] == "z2" else (r(b + 4 * j), r(a))
                k(f"v_mfma_f32_32x32x16_bf16 {r(A0+16*j,16)}, {x}, {y}, {c}")
                if j == 0 and i < 39: rd(i + 1)
                if j == 1 and i + AH < 40: ld(i + AH)
            if i == 21:
                k(f"v_pk_add_f32 {r(ST,2)}, {r(ST,2)}, {r(ST+2,2)}")
                k(f"v_pk_add_f32 {r(ST+4,2)}, {r(ST+4,2)}, {r(ST+6,2)}")
                k(f"v_pk_add_f32 {r(ST,2)}, {r(ST,2)}, {r(ST+4,2)}")
                rowtab(ST, 640, 0.0, 0.0)
                k("s_waitcnt lgkmcnt(0)")
        k("s_barrier")
        if not os.environ.get("FINE1") and not os.environ.get("FINE5"): k.stamp(7)
        RR, NN, CC, SS, QQ, T, CV = 16, 32, 48, 128, 144, 56, 160
        nz2 = types.count("z2")
        k("v_lshl_add_u32 v10, v3, 4, s36")
        k("v_lshlrev_b32 v11, 2, v2")
        def rd_tab():
            for a in range(4):
                k(f"ds_read_b128 {r(RR+4*a)}, v10 offset:{a*32}")
                k(f"ds_read_b128 {r(NN+4*a)}, v10 offset:{128 + a*32}")
        rd_tab()
        for n in range(nz2):
            k(f"ds_read_b32 v{CC+2*n}, v11 offset:{LC1 + n*128}")
            k(f"ds_read_b32 v{CC+2*n+1}, v11 offset:{LC2 + n*128}")
        k.srd(60, 8, 9, STP, STP_SZ)
        k.srd(64, 8, 9, Z1, Z_SZ)
        k.srd(68, 8, 9, Z2, Z_SZ)
        k("v_lshlrev_b32 v15, 4, v3")
        def rd_c(n):
            for a in range(4):
                k(f"ds_read_b128 {r(CV+4*a)}, v15 offset:{LC1 + n*128 + a*32}")
                k(f"ds_read_b128 {r(CV+16+4*a)}, v15 offset:{LC2 + n*128 + a*32}")
        k("s_waitcnt lgkmcnt(0)")
        rd_c(nz2)
        for n in range(nz2):
            X = A0 + 16 * n; c = r(CC + 2 * n, 2)
            for i in range(8): k(f"v_pk_fma_f32 {r(T+2*i,2)}, {r(NN+2*i,2)}, {c}, {c} op_sel:[0,0,1] op_sel_hi:[1,0,1]")
            for i in range(8): k(f"v_pk_fma_f32 {r(X+2*i,2)}, {r(X+2*i,2)}, {r(RR+2*i,2)}, {r(T+2*i,2)}")
            gelu(k, X, T, 8)
            for i in range(8):
                if n == 0: k(f"v_pk_mul_f32 {r(QQ+2*i,2)}, {r(X+2*i,2)}, {r(X+2*i,2)}")
                else: k(f"v_pk_fma_f32 {r(QQ+2*i,2)}, {r(X+2*i,2)}, {r(X+2*i,2)}, {r(QQ+2*i,2)}")
        for i in range(8):
            if nz2 == 2: k(f"v_pk_add_f32 {r(SS+2*i,2)}, {r(A0+2*i,2)}, {r(A0+16+2*i,2)}")
            else: k(f"v_pk_mul_f32 {r(SS+2*i,2)}, {r(A0+2*i,2)}, 1.0 op_sel_hi:[1,0]")
        k("v_and_b32 v4, 3, v0")
        k("v_bfe_u32 v5, v0, 2, 2")
        for i in range(16): k(f"v_permlane16_swap_b32 v{SS+i}, v{QQ+i}")
        for i in range(16): k(f"v_add_f32 v{SS+i}, v{SS+i}, v{QQ+i}")
        for j in range(8): k(f"v_add_f32_dpp v{SS+j}, v{SS+j}, v{SS+j} row_ror:8 row_mask:0xf bank_mask:0x3")
        for j in range(8): k(f"v_add_f32_dpp v{SS+j}, v{SS+8+j}, v{SS+8+j} row_ror:8 row_mask:0xf bank_mask:0xc")
        for j in range(4): k(f"v_add_f32_dpp v{SS+j}, v{SS+j}, v{SS+j} row_half_mirror row_mask:0xf bank_mask:0x5")
        for j in range(4): k(f"v_add_f32_dpp v{SS+j}, v{SS+4+j}, v{SS+4+j} row_half_mirror row_mask:0xf bank_mask:0xa")
        for j in range(4): k(f"v_add_f32_dpp v{SS+j}, v{SS+j}, v{SS+j} quad_perm:[2,3,0,1] row_mask:0xf bank_mask:0xf")
        for j in range(4): k(f"v_add_f32_dpp v{SS+j}, v{SS+j}, v{SS+j} quad_perm:[1,0,3,2] row_mask:0xf bank_mask:0xf")
        k("v_lshl_add_u32 v4, v5, 3, v4")
        k("v_lshl_add_u32 v4, v3, 2, v4")
        k("v_lshlrev_b32 v4, 3, v4")
        k("v_bfe_u32 v5, v0, 4, 1")
        k("v_lshl_add_u32 v4, v5, 2, v4")
        k("v_cvt_f32_u32 v5, v5")
        k(f"v_fmaak_f32 v5, {hexf(-15.0)}, v5, {hexf(16.0)}" if False else f"v_mul_f32 v5, {hexf(-15.0)}, v5")
        k(f"v_add_f32 v5, {hexf(16.0)}, v5")
        for j in range(1, 4):
            m = hex(0x11111111 << j)
            k(f"s_mov_b32 s40, {m}")
            k(f"s_mov_b32 s41, {m}")
            k(f"v_cndmask_b32 v{SS}, v{SS}, v{SS+j}, s[40:41]")
        k(f"s_lshl_b32 s37, s{RB128}, 14")
        k("s_lshl_b32 s38, s5, 8")
        k("s_add_u32 s37, s37, s38")
        k(f"s_lshl_b32 s38, s{CB16}, 10")
        k("s_add_u32 s38, s38, s37")
        k(f"v_add_f32 v{SS}, v{SS}, v5")
        stores(k, [f"buffer_store_dword v{SS}, v4, s[60:63], s38 offen"])
        k("s_mul_i32 s39, s6, 24")
        k(f"s_mul_i32 s38, s{CB8}, 3")
        k("s_add_u32 s39, s39, s38")
        k(f"s_add_u32 s39, s39, {var}")
        k("s_lshl_b32 s39, s39, 11")
        for n in range(nz2, 3):
            X = A0 + 16 * n
            k("s_waitcnt lgkmcnt(0)")
            for i in range(8):
                k(f"v_pk_fma_f32 {r(T+2*i,2)}, v[8:9], {r(CV+2*i,2)}, {r(CV+16+2*i,2)} op_sel:[1,0,0] op_sel_hi:[1,1,1]")
            if n < 2: rd_c(n + 1)
            for i in range(8):
                k(f"v_pk_fma_f32 {r(X+2*i,2)}, {r(X+2*i,2)}, v[8:9], {r(T+2*i,2)} op_sel_hi:[1,0,1]")
            gelu(k, X, T, 8)
            P = SS + 8 * (n - nz2)
            for i in range(8): k(f"v_cvt_pk_bf16_f32 v{P+i}, v{X+2*i}, v{X+2*i+1}")
            if n < 2:
                for ap in range(2):
                    k(f"buffer_store_dwordx4 {r(P+4*ap)}, v1, s[64:67], s39 offen offset:{(n-nz2)*2048 + ap*1024} {Z_SC}")
        G = CV
        k("v_lshlrev_b32 v4, 3, v2")
        k("v_lshl_add_u32 v4, v3, 13, v4")
        k("s_add_u32 s38, s37, 4096")
        k("s_mov_b32 s42, 0")
        lab = f"k2_st{var}"
        k.label(lab)
        for i in range(8):
            k(f"buffer_load_dwordx2 {r(G+2*i,2)}, v4, s[60:63], {'s37' if i < 4 else 's38'} offen offset:{(i&3)*1024} sc1")
        k("s_cmp_lg_u32 s42, 0")
        k(f"s_cbranch_scc1 {lab}_w0")
        for ap in range(2):
            k(f"buffer_store_dwordx4 {r(P+4*ap)}, v1, s[64:67], s39 offen offset:{(2-nz2)*2048 + ap*1024} {Z_SC}")
        k("s_waitcnt vmcnt(2)")
        k(f"s_branch {lab}_w1")
        k.label(lab + "_w0")
        k("s_waitcnt vmcnt(0)")
        k.label(lab + "_w1")
        k("s_add_u32 s42, s42, 1")
        k(f"v_min3_u32 v5, v{G}, v{G+1}, v{G+2}")
        for i in range(6): k(f"v_min3_u32 v5, v5, v{G+3+2*i}, v{G+4+2*i}")
        k(f"v_min_u32 v5, v5, v{G+15}")
        k("v_cmp_ne_u32 vcc, 0, v5")
        k("s_cmp_eq_u64 vcc, -1")
        k(f"s_cbranch_scc1 {lab}_ok")
        k("s_sleep 1")
        k(f"s_cmp_lt_u32 s42, {SPIN}")
        k(f"s_cbranch_scc1 {lab}")
        k.label(lab + "_ok")
        for a, b_ in ((0, 2), (4, 6), (8, 10), (12, 14), (0, 4), (8, 12), (0, 8)):
            k(f"v_pk_add_f32 {r(G+a,2)}, {r(G+a,2)}, {r(G+b_,2)}")
        rowtab(G, 768, 256.0, 16.0)
        k("v_lshl_add_u32 v10, v3, 4, s36")
        k(f"s_lshl_b32 s37, s{CB8}, 7")
        k("s_lshl_b32 s38, s6, 1")
        k("s_add_u32 s37, s37, s38")
        k("s_mul_i32 s37, s37, 3072")
        k(f"s_add_u32 s37, s37, {2048*var}")
        k("s_add_u32 s38, s37, 3072")
        k("s_waitcnt lgkmcnt(0)")
        rd_tab()
        k("s_waitcnt lgkmcnt(0)")
        for n in range(nz2):
            X = A0 + 16 * n; P = T + 8 * n
            for i in range(8): k(f"v_pk_fma_f32 {r(X+2*i,2)}, {r(X+2*i,2)}, {r(RR+2*i,2)}, {r(NN+2*i,2)}")
            for i in range(8): k(f"v_cvt_pk_bf16_f32 v{P+i}, v{X+2*i}, v{X+2*i+1}")
            k.nop(1)
            for h in range(2):
                k(f"v_permlane32_swap_b32 v{P+4*h}, v{P+4*h+2}")
                k(f"v_permlane32_swap_b32 v{P+4*h+1}, v{P+4*h+3}")
                k(f"buffer_store_dwordx4 {r(P+4*h)}, v1, s[68:71], {'s37' if h == 0 else 's38'} offen offset:{n*1024} {Z_SC}")
        if var == 0: k("s_branch k2_zdone")
    k.label("k2_zdone")
    k(f"s_lshl_b32 s37, s{RB128}, 4")
    k(f"s_add_u32 s37, s37, s{CB16}")
    k("s_lshl_b32 s37, s37, 7")
    k(f"s_add_u32 s37, s37, {F4 - FL}")
    k("s_waitcnt vmcnt(0)")
    k("s_barrier")
    setflag(k, 16, "s37", "k2_f4done")
    if os.environ.get("FINE5"): k.stamp(7)
    from k56 import gen_k56
    gen_k56(k, RB, CB8, W3)
    k.label("k2_loader")
    k.srd(56, 8, 9, C1, 12288)
    k(f"s_lshl_b32 s10, s{W3}, 10")
    k("s_waitcnt vmcnt(0) lgkmcnt(0)")
    k("s_barrier")
    if not (os.environ.get("FINE1") or os.environ.get("FINE2")): k.stamp(4)
    def win(base, n):
        k(f"s_add_u32 m0, s10, {base}")
        for i in range(n):
            k.nop(1)
            k("buffer_load_dwordx4 v1, s[72:75], m0 offen sc1 lds")
            if i < n - 1: k("s_add_u32 m0, m0, 4096")
    k("s_barrier")
    win(143360, 5)
    k("s_barrier")
    win(40960, 15)
    if not (os.environ.get("FINE1") or os.environ.get("FINE2")): k.stamp(5)
    k(f"s_mul_i32 s11, s{CB16}, 384")
    k("s_and_b32 s36, s5, 1")
    k("s_mul_i32 s37, s36, 6144")
    k("s_add_u32 s11, s11, s37")
    k("s_lshl_b32 m0, s36, 10")
    k("s_barrier")
    k("buffer_load_dwordx4 v1, s[56:59], s11 offen sc1 lds")
    k("s_waitcnt vmcnt(0)")
    if not (os.environ.get("FINE1") or os.environ.get("FINE2")): k.stamp(6)
    k("s_barrier")
    k("s_barrier")
    k("s_branch k5_loader")
    k.label("k2_end")
    k("s_endpgm")
    k.label("k2_blk5")
    k("s_lshl_b32 s37, s2, 2")
    k(f"s_add_u32 s37, s37, {FS - FL}")
    k("s_waitcnt vmcnt(0)")
    k("s_barrier")
    setflag(k, 16, "s37", "k2_fsdone", 172)
    k("s_cmp_ge_u32 s5, 4")
    k("s_cbranch_scc1 k2_blk5b")
    def wo_burst(first, n):
        k(f"s_lshl_b32 m0, s{W3}, 10")
        k(f"s_add_u32 m0, m0, {first}")
        for i in range(n):
            k.nop(1)
            k("buffer_load_dwordx4 v1, s[32:35], m0 offen sc1 lds")
            if i < n - 1: k("s_add_u32 m0, m0, 4096")
    wo_burst(0, 13)
    k("s_branch k2_loop")
    k.label("k2_blk5b")
    k.srd(68, 8, 9, 0, WS_END)
    k("v_lshrrev_b32 v176, 4, v1")
    k(f"s_mul_i32 s54, s{CB8}, 10")
    k("v_min_u32 v177, 19, v176")
    k("v_lshrrev_b32 v178, 1, v177")
    k("v_add_u32 v178, s54, v178")
    k("v_and_b32 v177, 1, v177")
    k("v_lshlrev_b32 v177, 7, v177")
    k("v_and_b32 v179, 3, v178")
    k("v_lshl_add_u32 v177, v179, 8, v177")
    k("v_lshrrev_b32 v178, 2, v178")
    k("v_lshl_add_u32 v177, v178, 12, v177")
    k(f"s_mul_i32 s54, s{RB}, 81920")
    k(f"s_lshl_b32 s55, s{W3}, 10")
    k("s_add_u32 s54, s54, s55")
    k(f"s_add_u32 s54, s54, {O}")
    k("buffer_load_dword v172, v177, s[68:71], s54 offen sc1")
    k(f"s_mul_i32 s54, s{W3}, 20")
    k("v_min_u32 v178, 19, v176")
    k("v_add_u32 v178, s54, v178")
    k("v_and_b32 v179, 15, v178")
    k("v_lshlrev_b32 v179, 7, v179")
    k("v_lshrrev_b32 v178, 4, v178")
    k("v_lshl_add_u32 v178, v178, 12, v179")
    k(f"s_mul_i32 s54, s{RB128}, 40")
    k(f"s_mul_i32 s55, s{CB8}, 5")
    k("s_add_u32 s54, s54, s55")
    k("s_lshl_b32 s54, s54, 1")
    k(f"s_add_u32 s54, s54, s{VV}")
    k("s_lshl_b32 s54, s54, 11")
    k(f"s_add_u32 s54, s54, {X1}")
    k("buffer_load_dword v173, v178, s[68:71], s54 offen sc1")
    k(f"s_lshl_b32 s54, s{RB}, 3")
    k(f"s_add_u32 s54, s54, s{CB8}")
    k("s_lshl_b32 s54, s54, 2")
    k(f"s_add_u32 s54, s54, s{W3}")
    k("s_lshl_b32 s54, s54, 7")
    k(f"s_add_u32 s54, s54, {SP2}")
    k("buffer_load_dword v174, off, s[68:71], s54 sc1")
    k(f"s_lshl_b32 s54, s{RB128}, 4")
    k(f"s_add_u32 s54, s54, s{CB16}")
    k("s_lshl_b32 s54, s54, 2")
    k(f"s_add_u32 s54, s54, s{W3}")
    k("s_lshl_b32 s54, s54, 8")
    k(f"s_add_u32 s54, s54, {STP}")
    k("buffer_load_dword v175, off, s[68:71], s54 sc1")
    k("buffer_load_dword v175, off, s[68:71], s54 offset:128 sc1")
    if TZ:
        k(f"s_lshl_b32 s54, s{RB128}, 2")
        k(f"s_add_u32 s54, s54, s{W3}")
        k("s_mul_i32 s55, s54, 24")
        k(f"s_mul_i32 s60, s{CB8}, 3")
        k("s_add_u32 s55, s55, s60")
        k(f"s_add_u32 s55, s55, s{VV}")
        k("s_lshl_b32 s55, s55, 11")
        k(f"s_add_u32 s55, s55, {Z1}")
        k(f"s_lshl_b32 s60, s{VV}, 4")
        k("s_add_u32 s60, s60, 15")
        k("v_min_u32 v177, s60, v176")
        k("v_lshlrev_b32 v177, 7, v177")
        k("buffer_load_dword v172, v177, s[68:71], s55 offen sc1")
        k(f"s_lshl_b32 s55, s{CB8}, 7")
        k("s_lshl_b32 s54, s54, 1")
        k("s_add_u32 s55, s55, s54")
        k("s_mul_i32 s55, s55, 3072")
        k(f"s_lshl_b32 s60, s{VV}, 11")
        k("s_add_u32 s55, s55, s60")
        k(f"s_add_u32 s55, s55, {Z2}")
        k(f"s_lshl_b32 s60, s{VV}, 3")
        k("s_sub_u32 s60, 15, s60")
        k("v_and_b32 v177, 15, v176")
        k("v_min_u32 v177, s60, v177")
        k("v_lshlrev_b32 v177, 7, v177")
        k("v_bfe_u32 v178, v176, 4, 1")
        k("v_mul_u32_u24 v178, 3072, v178")
        k("v_add_u32 v177, v177, v178")
        k("buffer_load_dword v173, v177, s[68:71], s55 offen sc1")
    k("s_branch k2_loop")
    k.label("k2_blk6")
    k.srd(68, 8, 9, WINF, WINF_SZ)
    k("s_mul_i32 s53, s53, 7680")
    k("s_add_u32 s54, s53, 4096")
    for i in range(8 if PF_WIN else 0): k(f"buffer_load_dwordx4 v[172:175], v1, s[68:71], {'s53' if i < 4 else 's54'} offen offset:{(i&3)*1024} sc1")
    k("s_cmp_lt_u32 s5, 4")
    k("s_cbranch_scc1 k2_blk6a")
    wo_burst(53248, 12)
    k("s_branch k2_loop")
    k.label("k2_blk6a")
    k("v_bfe_u32 v176, v0, 4, 2")
    k("v_and_b32 v177, 15, v0")
    k(f"s_lshl_b32 s59, s{RB}, 2")
    k("s_add_u32 s59, s59, s5")
    k("v_mul_u32_u24 v178, 1280, v177")
    k("v_lshl_add_u32 v178, v176, 3, v178")
    k("s_mul_i32 s60, s59, 20480")
    k(f"s_mul_i32 s61, s{CB8}, 160")
    k("s_add_u32 s60, s60, s61")
    k("v_lshlrev_b32 v179, 4, v176")
    k(f"s_mul_i32 s38, s{CB8}, 320")
    k.srd(52, 44, 45, 0, ACT_SZ)
    k.srd(56, 8, 9, MOD + 5120, 2560)
    for j in range(5): k(f"buffer_load_dwordx2 {r(120+2*j,2)}, v178, s[52:55], s60 offen offset:{j*32}")
    for j in range(5): k(f"buffer_load_dwordx4 {r(132+4*j)}, v179, s[56:59], s38 offen offset:{j*64} sc1")
    k("s_cmp_lg_u32 s5, 0")
    k("s_cbranch_scc1 k2_loop")
    k(f"s_movk_i32 s37, {hex(FS - FL)}")
    k(f"buffer_load_dwordx4 v[168:171], v1, s[16:19], s37 offen sc1")
    k("s_branch k2_loop")
    k.label("k2_sideld")
    k("s_lshl_b32 s52, s2, 3")
    k("s_add_u32 s52, s52, s5")
    k("s_lshr_b32 s53, s2, 3")
    k("s_lshl_b32 s53, s53, 3")
    k("s_add_u32 s53, s53, s5")
    k.srd(56, 48, 49, 0, 640 * 3072)
    k.srd(64, 8, 9, MOD + 7680, 5120)
    k("s_mul_i32 s62, s52, 1639")
    k("s_lshr_b32 s62, s62, 16")
    k("s_mul_i32 s63, s62, 40")
    k("s_sub_u32 s63, s52, s63")
    k("s_mul_i32 s68, s63, 49152")
    k("s_lshl_b32 s69, s62, 6")
    k("s_add_u32 s68, s68, s69")
    k("s_cmp_lt_u32 s52, 1920")
    k("s_cselect_b32 s70, 0, 0x40000000")
    k("s_add_u32 s68, s68, s70")
    k("v_mul_u32_u24 v15, 24576, v3")
    k("v_lshl_add_u32 v15, v2, 1, v15")
    for j in range(8):
        k(f"buffer_load_ushort v{136+j}, v15, s[56:59], s68 offen")
        if j < 7: k("s_add_u32 s68, s68, 3072")
    k("s_lshl_b32 s68, s63, 6")
    k("v_lshlrev_b32 v15, 5, v3")
    k(f"buffer_load_dwordx4 {r(144)}, v15, s[64:67], s68 offen sc1")
    k(f"buffer_load_dwordx4 {r(148)}, v15, s[64:67], s68 offen offset:16 sc1")
    k(f"buffer_load_dwordx4 {r(152)}, v15, s[64:67], s68 offen offset:2560 sc1")
    k(f"buffer_load_dwordx4 {r(156)}, v15, s[64:67], s68 offen offset:2576 sc1")
    k("s_cmp_ge_u32 s62, 24")
    k("s_cselect_b32 s68, 24, 0")
    k("s_cselect_b32 s71, 0x310, 0")
    k("s_cselect_b32 s72, 0, 0x542")
    k("s_or_b32 s71, s71, s72")
    k("s_sub_u32 s62, s62, s68")
    k("s_mul_i32 s68, s62, 86")
    k("s_lshr_b32 s68, s68, 8")
    k("s_mul_i32 s69, s68, 3")
    k("s_sub_u32 s69, s62, s69")
    k("s_lshl_b32 s69, s69, 2")
    k("s_lshr_b32 s71, s71, s69")
    k("s_and_b32 s71, s71, 15")
    k("s_mul_i32 s62, s68, 6")
    k("s_add_u32 s62, s62, s71")
    k("s_mul_i32 s68, s62, 86")
    k("s_lshr_b32 s68, s68, 8")
    k("s_mul_i32 s69, s68, 3")
    k("s_sub_u32 s69, s62, s69")
    k("s_mul_i32 s68, s68, 40")
    k("s_add_u32 s68, s68, s63")
    k("s_mul_i32 s68, s68, 3")
    k("s_add_u32 s68, s68, s69")
    k("s_lshl_b32 s68, s68, 10")
    k("s_add_u32 s63, s68, s70")
    k("s_lshl_b32 s62, s62, 7")
    k("s_add_u32 s62, s62, s70")
    k.srd(56, 46, 47, 0, 983040)
    k("s_mul_i32 s69, s52, 2731")
    k("s_lshr_b32 s69, s69, 16")
    k("s_mul_i32 s73, s69, 24")
    k("s_sub_u32 s68, s52, s73")
    k("s_cmp_lt_u32 s52, 960")
    k("s_cselect_b32 s70, 0, 0x40000000")
    k("s_mul_i32 s73, s68, 40960")
    k("s_lshl_b32 s74, s69, 5")
    k("s_add_u32 s73, s73, s74")
    k("s_add_u32 s73, s73, s70")
    k("s_add_u32 s74, s73, 5120")
    k("v_bfe_u32 v15, v0, 4, 2")
    k("v_mul_u32_u24 v15, 10240, v15")
    k("v_and_b32 v160, 15, v0")
    k("v_lshl_add_u32 v15, v160, 1, v15")
    for j in range(8):
        k(f"buffer_load_ushort v{160+j}, v15, s[56:59], {'s73' if j < 4 else 's74'} offen offset:{(j&3)*1280}")
    k("s_mul_i32 s73, s69, 52")
    k("s_lshr_b32 s73, s73, 8")
    k("s_mul_i32 s74, s73, 5")
    k("s_sub_u32 s74, s69, s74")
    k("s_mul_i32 s73, s73, 24")
    k("s_add_u32 s73, s73, s68")
    k("s_mul_i32 s73, s73, 5")
    k("s_add_u32 s73, s73, s74")
    k("s_lshl_b32 s73, s73, 10")
    k("s_add_u32 s60, s73, s70")
    k.srd(56, 50, 51, 0, WSPF_SZ)
    k("s_lshl_b32 s54, s3, 3")
    k("s_lshr_b32 s55, s53, 5")
    k("s_add_u32 s54, s54, s55")
    k("s_and_b32 s55, s53, 31")
    k("s_lshl_b32 s68, s54, 17")
    k("s_lshl_b32 s69, s55, 7")
    k("s_add_u32 s68, s68, s69")
    k("s_lshr_b32 s61, s54, 1")
    k("s_lshl_b32 s61, s61, 18")
    k("s_lshl_b32 s69, s55, 13")
    k("s_add_u32 s61, s61, s69")
    k("s_and_b32 s69, s54, 1")
    k("s_lshl_b32 s69, s69, 10")
    k("s_add_u32 s61, s61, s69")
    k("v_lshlrev_b32 v15, 12, v2")
    k("v_lshl_add_u32 v15, v3, 4, v15")
    for q in range(4):
        k(f"buffer_load_dwordx4 {r(120+4*q)}, v15, s[56:59], s68 offen offset:{q*32}")
    k("s_branch k2_cont")
    k.label("k2_side")
    k.srd(64, 8, 9, WSPF, WSPF_SZ)
    k.srd(68, 8, 9, WINF, WINF_SZ)
    k.srd(72, 8, 9, C1, 12288)
    k.srd(56, 8, 9, WOUTF, WOUTF_SZ)
    k("s_add_u32 s54, s61, 4096")
    k("s_waitcnt vmcnt(0)")
    for j in range(4):
        k(f"v_lshl_or_b32 v{160+j}, v{161+2*j}, 16, v{160+2*j}")
    k(f"buffer_store_dwordx4 {r(160)}, v1, s[56:59], s60 offen {SIDE_SC}")
    for j in range(8): k(f"v_lshlrev_b32 v{136+j}, 16, v{136+j}")
    k("v_mul_f32 v165, v136, v144")
    for j in range(1, 8): k(f"v_fmac_f32 v165, v{136+j}, v{144+j}")
    for j in range(8): k(f"v_mul_f32 v{136+j}, v{136+j}, v{152+j}")
    for j in range(4): k(f"v_cvt_pk_bf16_f32 v{144+j}, v{136+2*j}, v{137+2*j}")
    k(f"buffer_store_dwordx4 {r(144)}, v1, s[68:71], s63 offen {SIDE_SC}")
    for j in range(4):
        k(f"v_lshlrev_b32 v{136+2*j}, 16, v{144+j}")
        k(f"v_and_b32 v{137+2*j}, 0xffff0000, v{144+j}")
    for a, b in ((136, 137), (138, 139), (140, 141), (142, 143), (136, 138), (140, 142)):
        k(f"v_add_f32 v{a}, v{a}, v{b}")
    k("v_add_f32 v164, v136, v140")
    k("v_mul_u32_u24 v166, 6144, v3")
    k("v_lshl_add_u32 v166, v2, 2, v166")
    k("v_permlane32_swap_b32 v164, v165")
    k("v_add_f32 v164, v164, v165")
    k("buffer_atomic_add_f32 v164, v166, s[72:75], s62 offen")
    for q in range(4 if not os.environ.get("NOWSP") else 0):
        k(f"buffer_store_dwordx4 {r(120+4*q)}, v1, s[64:67], {'s61' if q < 2 else 's54'} offen offset:{(q&1)*2048} {SIDE_SC}")
    k("s_branch k2_cont")
    k.label("k2_slow")
    T = S1
    k(f"v_subrev_u32 v{AK2}, 143360, v{AK2}")
    k(f"v_subrev_u32 v{AV}, 143360, v{AV}")
    k(f"v_mov_b32 v{T}, 0xff800000")
    k("s_mov_b32 s42, 0")
    def ldK():
        k(f"buffer_load_dwordx4 {r(KF1[0])}, v1, s[20:23], s42 offen sc1")
        k(f"buffer_load_dwordx2 {r(KF2[0],2)}, v{AK2}, s[20:23], s42 offen sc1")
    k.label("k2_slow1")
    ldK()
    k("s_waitcnt vmcnt(0)")
    k(f"v_mfma_f32_32x32x16_bf16 {r(S0,16)}, {r(KF1[0])}, {r(QA)}, 0")
    k(f"v_mfma_f32_32x32x16_bf16 {r(S0,16)}, {r(KF2[0])}, {r(QB)}, {r(S0,16)}")
    k.nop(12)
    for i in range(8): k(f"v_max3_f32 v{T}, v{T}, v{S0+2*i}, v{S0+2*i+1}")
    k("s_add_u32 s42, s42, 2560")
    k("s_cmp_lt_u32 s42, 163840")
    k("s_cbranch_scc1 k2_slow1")
    k(f"v_mov_b32 v{T+1}, v{T}")
    k("s_mov_b32 s42, 0")
    k.nop(1)
    k(f"v_permlane32_swap_b32 v{T}, v{T+1}")
    k(f"v_max_f32 v{T}, v{T}, v{T+1}")
    for i in range(16): k(f"v_sub_f32 v{CM+i}, 0, v{T}")
    for i in range(16): k(f"v_mov_b32 v{OO+i}, 0")
    k.label("k2_slow2")
    ldK()
    k("s_mov_b64 exec, s[40:41]")
    k(f"buffer_load_dwordx4 {r(VF[0])}, v{AV}, s[20:23], s42 offen sc1")
    k(f"buffer_load_dwordx4 {r(VF[0]+4)}, v{AV}, s[20:23], s42 offen offset:640 sc1")
    k("s_mov_b64 exec, -1")
    k("s_waitcnt vmcnt(0)")
    k(f"v_mfma_f32_32x32x16_bf16 {r(S0,16)}, {r(KF1[0])}, {r(QA)}, {r(CM,16)}")
    k(f"v_mfma_f32_32x32x16_bf16 {r(S0,16)}, {r(KF2[0])}, {r(QB)}, {r(S0,16)}")
    k.nop(12)
    for i in range(16): k(f"v_exp_f32 v{S0+i}, v{S0+i}")
    k.nop(1)
    for i in range(8): k(f"v_cvt_pk_bf16_f32 v{PP+i}, v{S0+2*i}, v{S0+2*i+1}")
    k.nop(2)
    k(f"v_mfma_f32_32x32x16_bf16 {r(OO,16)}, {r(VF[0])}, {r(PP)}, {r(OO,16)}")
    k(f"v_mfma_f32_32x32x16_bf16 {r(OO,16)}, {r(VF[0]+4)}, {r(PP+4)}, {r(OO,16)}")
    k("s_add_u32 s42, s42, 2560")
    k("s_cmp_lt_u32 s42, 163840")
    k("s_cbranch_scc1 k2_slow2")
    k.nop(12)
    k("s_branch k2_epi")
    return k
```

```python
from asmlib import Kern
from layout import *
from k0 import hexf
from k234 import poll, poll_missing, hint, stores, setflag, x1_addr, gemm80_resident, resid, r
import os

SLOT = 20480; BLK = 5120
K56_LDS = 163840
A0 = 16; ZB = 64; Z1R = 96; BSP = 108
KIDX = int(os.environ.get('KIDX', '0'))
THR = int(os.environ.get('THR', '5'))
TO = int(os.environ.get('TO', '0'))
ROTW = int(os.environ.get("K5ROTW", "0"))

def gen_k56(k, RB, CB8, W3):
    k.label("k5_compute")
    k(f"s_mov_b32 s3, s{RB}")
    k(f"s_mov_b32 s4, s{CB8}")
    k("v_and_b32 v2, 31, v0")
    k("v_bfe_u32 v3, v0, 5, 1")
    k("s_and_b32 s6, s5, 1")
    k("s_lshl_b32 s34, s3, 1")
    k("s_add_u32 s34, s34, s6")
    k("s_lshr_b32 s33, s5, 1")
    k("s_mul_i32 s36, s34, 24")
    k("s_mul_i32 s37, s4, 3")
    k("s_add_u32 s36, s36, s37")
    k("s_lshl_b32 s36, s36, 1")
    k("s_add_u32 s36, s36, s33")
    k("s_lshl_b32 s36, s36, 10")
    k("s_add_u32 s37, s36, 4096")
    k("s_lshl_b32 s38, s34, 6")
    k("v_lshlrev_b32 v5, 1, v2")
    k(f"s_mul_i32 s39, s33, {2*BLK}")
    k("v_add_u32 v6, s39, v1")
    k(f"v_add_u32 v7, {2*SLOT}, v6")
    k("s_lshl_b32 s39, s6, 10")
    k("s_add_u32 s39, s39, 3072")
    k("v_add_u32 v8, s39, v6")
    k(f"v_add_u32 v9, {2*SLOT}, v8")
    for i in range(48): k(f"v_mov_b32 v{A0+i}, 0")
    k.srd(52, 8, 9, Z1, Z_SZ)
    k.srd(60, 44, 45, 0, 4096)
    def reads(s, q, par):
        sl = s & 3; o = (sl & 1) * SLOT + q * BLK; b = ZB + 16 * par
        for n in range(3): k(f"ds_read_b128 {r(b+4*n)}, {'v6' if sl < 2 else 'v7'} offset:{o + n*1024}")
        k(f"ds_read_b128 {r(b+12)}, {'v8' if sl < 2 else 'v9'} offset:{o}")
    k("s_barrier")
    k("s_barrier")
    if os.environ.get("FINE5"): k.stamp(2)
    reads(0, 0, 0)
    k(f"buffer_load_dwordx4 {r(Z1R)}, v1, s[52:55], s36 offen sc1")
    k(f"buffer_load_dwordx4 {r(Z1R+4)}, v1, s[52:55], s36 offen offset:2048 sc1")
    k(f"buffer_load_dwordx4 {r(Z1R+8)}, v1, s[52:55], s37 offen sc1")
    k(f"buffer_load_ushort v{BSP}, v5, s[60:63], s38 offen")
    k("v_bfe_u32 v204, v0, 4, 2")
    k("v_lshlrev_b32 v207, 4, v204")
    k("s_mul_i32 s41, s4, 320")
    k.srd(56, 8, 9, MOD + 12800, 2560)
    for j in range(5): k(f"buffer_load_dwordx4 {r(184+4*j)}, v207, s[56:59], s41 offen offset:{j*64} sc1")
    k("s_mov_b32 s43, 0")
    k.lines.append(".p2align 6")
    k.label("k5_loop")
    for s in range(4):
        for q in range(2):
            b = ZB + 16 * q
            k("s_waitcnt lgkmcnt(0)")
            if q == 1:
                if s == 3:
                    k("s_add_u32 s43, s43, 1")
                    k("s_cmp_eq_u32 s43, 8")
                    k("s_cbranch_scc1 k5_last")
                k("s_barrier")
            for n in range(3):
                k(f"v_mfma_f32_32x32x16_bf16 {r(A0+16*n,16)}, {r(b+4*n)}, {r(b+12)}, {r(A0+16*n,16)}")
                if n == 0:
                    if q == 1: reads(s + 1, 0, 0)
                    else: reads(s, 1, 1)
    k("s_branch k5_loop")
    k.label("k5_last")
    b = ZB + 16
    for n in range(3):
        k(f"v_mfma_f32_32x32x16_bf16 {r(A0+16*n,16)}, {r(b+4*n)}, {r(b+12)}, {r(A0+16*n,16)}")
    if os.environ.get('FINE5'): k.stamp(3)
    k("s_barrier")
    k("s_mul_i32 s36, s5, 6144")
    k("s_add_u32 s36, s36, 40960")
    k("v_add_u32 v10, s36, v1")
    k("s_xor_b32 s36, s5, 2")
    k("s_mul_i32 s36, s36, 6144")
    k("s_add_u32 s36, s36, 40960")
    k("v_add_u32 v11, s36, v1")
    k.srd(52, 8, 9, Y, Z_SZ)
    k("s_mul_i32 s7, s3, 98304")
    k("s_mul_i32 s37, s4, 12288")
    k("s_add_u32 s36, s7, s37")
    k("s_lshl_b32 s37, s6, 11")
    k("s_add_u32 s36, s36, s37")
    k("s_lshl_b32 s37, s33, 9")
    k("s_add_u32 s36, s36, s37")
    k("s_add_u32 s37, s36, 4096")
    k("s_add_u32 s38, s36, 8192")
    k("v_lshrrev_b32 v12, 4, v2")
    k("v_lshlrev_b32 v12, 10, v12")
    k("v_lshl_add_u32 v12, v3, 8, v12")
    k("v_and_b32 v13, 15, v0")
    k("v_lshl_add_u32 v12, v13, 4, v12")
    k("s_waitcnt vmcnt(0)")
    k(f"v_lshlrev_b32 v14, 16, v{BSP}")
    k("s_cmp_eq_u32 s33, 0")
    k("s_cbranch_scc0 k5_e1")
    for kh in range(2):
        if kh == 1: k.label("k5_e1")
        keep = 8 * kh; send = 8 * (1 - kh)
        for n in range(3):
            k(f"ds_write_b128 v10, {r(A0+16*n+send)} offset:{n*2048}")
            k(f"ds_write_b128 v10, {r(A0+16*n+send+4)} offset:{n*2048+1024}")
        U = ZB
        for i in range(12):
            k(f"v_lshlrev_b32 v{U+2*i}, 16, v{Z1R+i}")
            k(f"v_and_b32 v{U+2*i+1}, 0xffff0000, v{Z1R+i}")
        for n in range(3):
            for i in range(4):
                a = A0 + 16 * n + keep + 2 * i
                k(f"v_pk_add_f32 {r(a,2)}, {r(a,2)}, v[14:15] op_sel_hi:[1,0]")
        k("s_waitcnt lgkmcnt(0)")
        k("s_barrier")
        for n in range(3):
            k(f"ds_read_b128 {r(A0+16*n+send)}, v11 offset:{n*2048}")
            k(f"ds_read_b128 {r(A0+16*n+send+4)}, v11 offset:{n*2048+1024}")
        for n in range(3):
            k(f"s_waitcnt lgkmcnt({4-2*n})")
            for i in range(4):
                a = A0 + 16 * n + keep + 2 * i
                k(f"v_pk_add_f32 {r(a,2)}, {r(a,2)}, {r(A0+16*n+send+2*i,2)}")
            for i in range(4):
                a = A0 + 16 * n + keep + 2 * i
                k(f"v_pk_mul_f32 {r(a,2)}, {r(a,2)}, {r(U+8*n+2*i,2)}")
            P = Z1R + 4 * n
            for i in range(4):
                a = A0 + 16 * n + keep + 2 * i
                k(f"v_cvt_pk_bf16_f32 v{P+i}, v{a}, v{a+1}")
            k.nop(2)
            k(f"v_permlane32_swap_b32 v{P}, v{P+2}")
            k(f"v_permlane32_swap_b32 v{P+1}, v{P+3}")
            stores(k, [f"buffer_store_dwordx4 {r(P)}, v12, s[52:55], s{36+n} offen"])
        if kh == 0: k("s_branch k5_p6")
    k.label("k5_p6")
    ACT, A6, WB3, XR_, GB_R, AD = 16, 112, (132, 152, 212), 232, 184, 204
    WB = 132
    k("s_lshl_b32 s36, s3, 10")
    k(f"s_add_u32 s36, s36, {F5 - FL}")
    k("s_lshl_b32 s37, s4, 7")
    k("s_add_u32 s37, s37, s36")
    k("s_waitcnt vmcnt(0)")
    k("s_barrier")
    setflag(k, 16, "s37", "k5_f5done", local=True)
    if os.environ.get('FINE5'): k.stamp(4)
    k("v_bfe_u32 v3, v0, 4, 2")
    k("v_and_b32 v5, 15, v0")
    k("s_lshl_b32 s6, s3, 2")
    k("s_add_u32 s6, s6, s5")
    k("s_lshl_b32 s10, s5, 10")
    k("s_add_u32 s7, s7, s10")
    k.srd(60, 46, 47, 0, ACT_SZ)
    k("s_mul_i32 s39, s5, 2816")
    k("s_add_u32 s39, s39, 69632")
    k("v_mul_u32_u24 v6, 176, v5")
    k("v_lshl_add_u32 v6, v3, 3, v6")
    k(f"v_add_u32 v{AD}, s39, v6")
    for i in range(3):
        k("v_lshrrev_b32 v6, 4, v1")
        k(f"v_add_u32 v6, {64*i}, v6")
        k("v_mul_u32_u24 v7, 205, v6")
        k("v_lshrrev_b32 v7, 11, v7")
        k("v_mul_u32_u24 v2, 10, v7")
        k("v_sub_u32 v6, v6, v2")
        k("v_lshlrev_b32 v6, 4, v6")
        k("v_mul_u32_u24 v2, 176, v7")
        k(f"v_add3_u32 v{AD+1+i}, v2, v6, s39")
        k("v_mul_u32_u24 v2, 1280, v7")
        k(f"v_add_u32 v{AD+4+i}, v6, v2")
        if i == 2:
            k("v_lshrrev_b32 v7, 4, v7")
            k(f"v_lshl_add_u32 v{AD+4+i}, v7, 30, v{AD+4+i}")
    k("s_mul_i32 s40, s6, 20480")
    k("s_mul_i32 s41, s4, 160")
    k("s_add_u32 s40, s40, s41")
    def w6():
        poll(k, "k5_p5", 16, "s36", 8, 10, 11)
        if os.environ.get('FINE5'): k.stamp(5)
    gemm80_resident(k, 24, list(range(24)), ACT, A6, WB3, 52, 7, lambda ks: ks * 5120 + (40960 if ks >= 8 else 0), w6, 4)
    if os.environ.get('FINE5'): k.stamp(6)
    k.nop(4)
    resid(k, A6, XR_, GB_R, WB)
    for j in range(5): k(f"ds_write_b64 v{AD}, {r(XR_+2*j,2)} offset:{j*32}")
    k("s_waitcnt lgkmcnt(0)")
    for i in range(3): k(f"ds_read_b128 {r(WB+4*i)}, v{AD+1+i}")
    for i in range(3):
        k(f"s_waitcnt lgkmcnt({2-i})")
        k(f"buffer_store_dwordx4 {r(WB+4*i)}, v{AD+4+i}, s[60:63], s40 offen")
    k("s_or_b32 s36, s2, s5")
    k("s_cmp_lg_u32 s36, 0")
    k("s_cbranch_scc1 k5_noep")
    k.srd(56, 8, 9, EPOCH, 4)
    k("v_mov_b32 v10, s31")
    k("buffer_store_dword v10, off, s[56:59], 0")
    k.label("k5_noep")
    k.endpgm(KIDX)
    k.label("k5_loader")
    k(f"s_mov_b32 s3, s{RB}")
    k(f"s_mov_b32 s4, s{CB8}")
    k(f"s_mov_b32 s5, s{W3}")
    k("s_mul_i32 s34, s4, 393216")
    k(f"s_add_u32 s34, s34, {Z2}")
    k("s_lshl_b32 s35, s3, 18")
    k(f"s_add_u32 s35, s35, {WSPF}")
    k(f"s_mul_i32 s11, s5, {BLK}")
    k("s_mul_i32 s33, s4, 122880")
    k(f"s_add_u32 s33, s33, {WOUTF}")
    k("s_lshl_b32 s10, s5, 10")
    k.srd(52, 8, 9, "s34", 393216)
    k.srd(56, 8, 9, "s35", 262144)
    k.srd(60, 8, 9, "s33", 122880)
    k("s_mul_i32 s37, s5, 3072")
    k("s_lshl_b32 s36, s5, 11")
    def iz(sl):
        k(f"s_add_u32 m0, s11, {sl*SLOT}")
        k.nop(1)
        for j in range(3): k(f"buffer_load_dwordx4 v1, s[52:55], s37 offen offset:{j*1024} sc1 lds")
        k("s_add_u32 s37, s37, 12288")
    def iw(sl):
        k(f"s_add_u32 m0, s11, {sl*SLOT+3072}")
        k.nop(1)
        for j in range(2): k(f"buffer_load_dwordx4 v1, s[56:59], s36 offen offset:{j*1024} sc1 lds")
        k("s_add_u32 s36, s36, 8192")
    def issue(sl): iz(sl); iw(sl)
    iw(0); iw(1); iw(2)
    k("s_add_u32 s44, s10, 40960")
    for i in range(20):
        k("s_add_u32 m0, s44, 40960")
        k.nop(1)
        k("buffer_load_dwordx4 v1, s[60:63], s44 offen sc1 lds")
        k("s_add_u32 s44, s44, 4096")
        if THR: k(f"s_waitcnt vmcnt({THR})")
    k("v_and_b32 v10, 1, v0")
    k("v_bfe_u32 v11, v0, 1, 4")
    k("v_lshlrev_b32 v10, 7, v10")
    k("v_lshl_add_u32 v10, v11, 11, v10")
    k("s_lshl_b32 s39, s4, 8")
    k(f"s_add_u32 s39, s39, {F4 - FL}")
    k("s_barrier")
    k("s_cmp_lg_u32 s5, 0")
    k("s_cbranch_scc1 k5_p4_ok")
    poll_missing(k, "k5_p4", 16, ["s39"], 10, 11)
    k("s_barrier")
    if os.environ.get('FINE5'): k.stamp(2)
    iz(0); iz(1); iz(2)
    for s in range(4):
        k(f"s_waitcnt vmcnt({(6, 8, 10, 10)[s]})")
        k("s_barrier")
        issue((s + 3) & 3)
    k("s_mov_b32 s42, 0")
    k.lines.append(".p2align 6")
    k.label("k5_lloop")
    for s in range(4):
        k("s_waitcnt vmcnt(10)")
        k("s_barrier")
        issue((s + 3) & 3)
    k("s_add_u32 s42, s42, 1")
    k("s_cmp_lt_u32 s42, 6")
    k("s_cbranch_scc1 k5_lloop")
    def low(base, n):
        k(f"s_add_u32 m0, s10, {base}")
        for i in range(n):
            k.nop(1)
            k("buffer_load_dwordx4 v1, s[60:63], m0 offen sc1 lds")
            if i < n - 1: k("s_add_u32 m0, m0, 4096")
    k("s_waitcnt vmcnt(10)")
    k("s_barrier")
    issue(3)
    k.srd(64, 8, 9, Y, Z_SZ)
    k("s_mul_i32 s38, s3, 98304")
    k("s_mul_i32 s39, s4, 12288")
    k("s_add_u32 s38, s38, s39")
    k("s_mul_i32 s39, s5, 3072")
    k("s_add_u32 s38, s38, s39")
    k("v_lshrrev_b32 v10, 4, v1")
    k("v_min_u32 v10, 23, v10")
    k("v_lshlrev_b32 v10, 7, v10")
    k("buffer_load_dword v11, v10, s[64:67], s38 offen sc1")
    if TO:
        k.srd(64, 46, 47, 0, ACT_SZ)
        k("s_lshl_b32 s38, s3, 2")
        k("s_add_u32 s38, s38, s5")
        k("s_mul_i32 s38, s38, 20480")
        k("s_mul_i32 s39, s4, 160")
        k("s_add_u32 s38, s38, s39")
        k("v_bfe_u32 v10, v1, 6, 4")
        k("v_mul_u32_u24 v10, 1280, v10")
        k("v_bfe_u32 v12, v1, 4, 2")
        k("v_min_u32 v12, 2, v12")
        k("v_mul_u32_u24 v12, 78, v12")
        k("v_and_b32 v12, 0xfc, v12")
        k("v_add_u32 v10, v10, v12")
        k("buffer_load_dword v11, v10, s[64:67], s38 offen sc1")
    k("s_waitcnt vmcnt(10)")
    k("s_barrier")
    low(0, 5)
    k("s_waitcnt vmcnt(10)")
    k("s_barrier")
    low(20480, 5)
    k("s_waitcnt vmcnt(10)")
    k("s_barrier")
    k("s_barrier")
    k("s_barrier")
    k("s_waitcnt vmcnt(0)")
    k("s_barrier")
    k.endpgm(KIDX)
```

```python
import sys, os
from asmlib import check
from k234 import gen_k234, K234_LDS

NAME = "adaLN_cond__grouped_kv_mqa__mixer_gmlp__prompt"
def build(out, upto=7):
    ref = open(f"cdna_kernels/{NAME}.s.ref").read().split("\n")
    head = [l for l in ref if l.startswith(";") and "@launch" not in l and "Override" not in l and "grid=ceil" not in l]
    ks = []
    ks.append((gen_k234(), 256, 512, K234_LDS))
    ks = ks[:upto]
    s = "\n".join(head) + "\n"
    for k, g, b, l in ks:
        s += f"; @launch {'kernel=' + k.name + ' ' if os.environ.get('LIST') else ''}grid=({g},1,1) block=({b},1,1) lds={l}\n"
    s += '.amdgcn_target "amdgcn-amd-amdhsa--gfx950"\n.text\n'
    bodies = []; kds = []
    nerr = 0
    for i, (k, g, b, l) in enumerate(ks):
        for e in check(k.lines, k.name):
            print("HAZARD", e); nerr += 1
        body, kd = k.text()
        if i == 1: body = ".p2align 8\ncode_start:\n" + body
        bodies.append(body); kds.append(kd)
    s += "".join(bodies) + ".p2align 8\ncode_end:\n    s_endpgm\n" + '.section .rodata,"a"\n' + "".join(kds)
    open(out, "w").write(s)
    print("wrote", out, len(s), "bytes; hazards:", nerr)

if __name__ == "__main__":
    import os
    build(sys.argv[1] if len(sys.argv) > 1 else f"cdna_kernels/{NAME}.s", int(os.environ.get("UPTO", "7")))
```

```python
from layout import *
from k0 import hexf, xsum16_32, rowred
import math, os

QSCALE = math.log2(math.e) / math.sqrt(20.0)
def r(b, n=4): return f"v[{b}:{b+n-1}]"
A0 = 16; FB = 40; EP = 100
LKV = 102400; LT1 = 122880; LACT = 128000; KGS = 272; RTS = 1088; KS = 4416; ASL = 4 * KS
TOK = 31
TLB = int(os.environ.get('TLB', '0'))
def st1(k, i):
    if os.environ.get('FINE1') and not os.environ.get('FINE1B'): k.stamp(i)

def gen_front(k, poll_missing, code_start, code_end):
    k("s_load_dwordx8 s[40:47], s[0:1], 0")
    k("s_load_dwordx4 s[48:51], s[0:1], 80")
    k("s_load_dwordx2 s[52:53], s[0:1], 32")
    k("v_lshrrev_b32 v1, 6, v0")
    k("s_and_b32 s3, s2, 7")
    k("v_readfirstlane_b32 s5, v1")
    k("s_lshl_b32 s3, s3, 2")
    k("s_bfe_u32 s4, s2, 0x20003")
    k("s_add_u32 s3, s3, s4")
    k("s_lshr_b32 s4, s2, 5")
    k("v_and_b32 v1, 63, v0")
    k("v_lshlrev_b32 v1, 4, v1")
    k("s_lshr_b32 s33, s5, 2")
    k("s_and_b32 s5, s5, 3")
    k("s_lshl_b32 s6, s3, 2")
    k("s_add_u32 s6, s6, s5")
    k("s_cmp_eq_u32 s33, 0")
    k("s_cbranch_scc0 f_loader")
    k("s_and_b32 s21, s2, 3")
    k("s_lshr_b32 s20, s2, 2")
    k("v_lshrrev_b32 v2, 3, v0")
    k("v_and_b32 v3, 7, v0")
    k("v_mul_u32_u24 v13, 7680, v2")
    k("v_lshl_add_u32 v13, v3, 4, v13")
    k("v_lshlrev_b32 v2, 1, v2")
    k(f"s_mul_i32 s60, s21, {160*7680}")
    k("s_lshl_b32 s23, s20, 7")
    k("s_add_u32 s60, s60, s23")
    k("s_cmp_lt_u32 s20, 60")
    k("s_cselect_b32 s35, 0, 0x40000000")
    k("s_add_u32 s60, s60, s35")
    k("s_mul_i32 s61, s21, 320")
    k("s_waitcnt lgkmcnt(0)")
    k.srd(16, 50, 51, 0, 640 * 7680)
    k.srd(64, 48, 49, 0, 1280)
    k("s_lshl_b32 s34, s2, 2")
    k("s_add_u32 s34, s34, s5")
    k("s_mul_i32 s37, s34, 3277")
    k("s_lshr_b32 s37, s37, 16")
    k("s_mul_i32 s38, s37, 20")
    k("s_sub_u32 s38, s34, s38")
    k("s_cmp_ge_u32 s37, 42")
    k("s_cselect_b32 s23, 32, 0")
    k("s_cselect_b32 s24, 4, 16")
    k("s_lshl_b32 s25, s37, 5")
    k("s_cmp_ge_u32 s37, 40")
    k("s_cselect_b32 s23, s23, s25")
    k("s_movk_i32 s22, 1280")
    k("s_cselect_b32 s22, 40, s22")
    k("s_mov_b32 s14, 819200")
    k("s_cselect_b32 s14, 25600, s14")
    k("s_cselect_b32 s12, s44, s42")
    k("s_cselect_b32 s13, s45, s43")
    k("s_and_b32 s25, s37, 41")
    k("s_cmp_eq_u32 s25, 41")
    k("s_cselect_b32 s12, s46, s12")
    k("s_cselect_b32 s13, s47, s13")
    k("s_cmp_lt_u32 s37, 44")
    k("s_cselect_b32 s14, s14, 0")
    k("s_cselect_b32 s39, 0, 0x40000000")
    k("s_mov_b32 s15, 0x20000")
    k("s_lshl_b32 s27, s22, 3")
    k("s_lshl_b32 s25, s38, 5")
    k("s_mul_i32 s25, s25, s22")
    k("s_add_u32 s25, s25, s23")
    k("v_and_b32 v6, 15, v0")
    k("v_bfe_u32 v5, v0, 4, 2")
    k("v_mul_u32_u24 v4, s27, v5")
    k("v_lshl_add_u32 v4, v6, 1, v4")
    k("v_cmp_gt_u32 vcc, s24, v6")
    k("v_mov_b32 v5, 0x40000000")
    k("s_mul_i32 s26, s37, 52")
    k("s_lshr_b32 s26, s26, 8")
    k("v_cndmask_b32 v4, v5, v4, vcc")
    for j in range(8):
        k(f"buffer_load_ushort v{120+j}, v4, s[12:15], s25 offen")
        if j < 7: k("s_add_u32 s25, s25, s22")
    for p in range(5):
        k(f"buffer_load_dwordx4 v[{20+4*p}:{23+4*p}], v13, s[16:19], s60 offen")
        if p < 4: k(f"s_add_u32 s60, s60, {32 * 7680}")
        k(f"buffer_load_ushort v{8+p}, v2, s[64:67], s61 offen offset:{p*64}")
    k("s_mul_i32 s27, s26, 5")
    k("s_sub_u32 s27, s37, s27")
    k("s_sub_u32 s25, s37, 40")
    k("s_cmp_ge_u32 s37, 40")
    k("s_cselect_b32 s26, s25, s26")
    k("s_cselect_b32 s27, 5, s27")
    k("s_mul_i32 s26, s26, 20")
    k("s_add_u32 s26, s26, s38")
    k("s_mul_i32 s26, s26, 6")
    k("s_add_u32 s26, s26, s27")
    k("s_lshl_b32 s26, s26, 10")
    k(f"s_add_u32 s26, s26, {WQF}")
    k("s_add_u32 s26, s26, s39")
    k.srd(28, 8, 9, 0, WS_END)
    k(f"s_mov_b32 s22, {EPOCH}")
    k("buffer_load_dword v14, off, s[28:31], s22 sc1")
    k.srd(12, 8, 9, ZR, ZR_SZ)
    k("s_lshl_b32 s22, s34, 10")
    for i in range(4): k(f"v_mov_b32 v{16+i}, 0")
    k("buffer_store_dwordx4 v[16:19], v1, s[12:15], s22 offen sc1")
    k("s_getpc_b64 s[56:57]")
    k.label("f_pc")
    k(f"s_add_u32 s56, s56, {code_start}-f_pc")
    k("s_addc_u32 s57, s57, -1")
    k(f"s_mov_b32 s58, {code_end}-{code_start}")
    k("s_mov_b32 s59, 0x20000")
    k("s_lshr_b32 s22, s2, 3")
    k("s_lshl_b32 s22, s22, 2")
    k("s_add_u32 s22, s22, s5")
    k("s_lshl_b32 s22, s22, 10")
    k("buffer_load_dwordx4 v[40:43], v1, s[56:59], s22 offen")
    k("v_lshlrev_b32 v5, 3, v3")
    k("v_bfe_u32 v6, v0, 5, 1")
    k("v_lshl_add_u32 v5, v6, 2, v5")
    k("v_bfe_u32 v6, v0, 4, 1")
    k("v_lshl_add_u32 v5, v6, 1, v5")
    k("v_bfe_u32 v6, v0, 3, 1")
    k("v_add_u32 v5, v5, v6")
    k("v_lshlrev_b32 v5, 2, v5")
    k("s_lshl_b32 s22, s5, 8")
    k(f"s_add_u32 s22, s22, {LACT}")
    k("v_add_u32 v5, s22, v5")
    k("v_lshrrev_b32 v7, 2, v1")
    k(f"s_mul_i32 s24, s21, {MODP_ST}")
    k(f"s_add_u32 s24, s24, {MODP}")
    k("s_add_u32 s24, s24, s35")
    k("s_cmp_lt_u32 s20, 20")
    k("s_cbranch_scc1 f_t1")
    k("s_lshl_b32 s22, s20, 8")
    k("v_add_u32 v19, s22, v7")
    k("s_branch f_st")
    k.label("f_t1")
    k("s_cmp_lt_u32 s20, 10")
    k("s_cselect_b32 s23, 2560, 0")
    k("s_cselect_b32 s22, 0, 10")
    k("s_sub_u32 s22, s20, s22")
    k("s_lshl_b32 s22, s22, 7")
    k("s_add_u32 s22, s22, s23")
    k("v_bfe_u32 v19, v0, 2, 1")
    k("v_mul_u32_u24 v19, 1280, v19")
    k("v_bfe_u32 v18, v0, 3, 3")
    k("v_lshl_add_u32 v19, v18, 4, v19")
    k("v_and_b32 v18, 3, v0")
    k("v_lshl_add_u32 v19, v18, 2, v19")
    k("v_add_u32 v19, s22, v19")
    k.label("f_st")
    k("s_waitcnt vmcnt(13)")
    for j in range(4): k(f"v_lshl_or_b32 v{120+j}, v{121+2*j}, 16, v{120+2*j}")
    k(f"buffer_store_dwordx4 {r(120)}, v1, s[28:31], s26 offen sc1")
    k("s_waitcnt vmcnt(4)")
    st1(k, 2)
    T = 60; A = 72
    for p in range(5): k(f"v_lshlrev_b32 v{8+p}, 16, v{8+p}")
    for p in range(5): k(f"v_mul_f32 v{T+p}, 0xbfb8aa3b, v{8+p}")
    for p in range(5): k(f"v_exp_f32 v{T+p}, v{T+p}")
    for p in range(5): k(f"v_add_f32 v{T+p}, 1.0, v{T+p}")
    for p in range(5): k(f"v_rcp_f32 v{T+p}, v{T+p}")
    for p in range(5): k(f"v_mul_f32 v{8+p}, v{8+p}, v{T+p}")
    for p in range(5): k(f"v_cvt_pk_bf16_f32 v{8+p}, v{8+p}, v{8+p}")
    for p in range(5): k(f"v_and_b32 v{8+p}, 0xffff0000, v{8+p}")
    for p in range(5):
        for j in range(4):
            k(f"v_lshlrev_b32 v{T+2*j}, 16, v{20+4*p+j}")
            k(f"v_and_b32 v{T+2*j+1}, 0xffff0000, v{20+4*p+j}")
        sp = f"v[{8+p-(p&1)}:{9+p-(p&1)}]"
        for j in range(4):
            if p == 0: k(f"v_pk_mul_f32 {r(A+2*j,2)}, {r(T+2*j,2)}, {sp} op_sel_hi:[1,0]")
            else:
                sel3 = "op_sel_hi:[1,0,1]" if p % 2 == 0 else "op_sel:[0,1,0] op_sel_hi:[1,1,1]"
                k(f"v_pk_fma_f32 {r(A+2*j,2)}, {r(T+2*j,2)}, {sp}, {r(A+2*j,2)} {sel3}")
    k.nop(1)
    for j in range(4): k(f"v_permlane32_swap_b32 v{A+j}, v{A+4+j}")
    for j in range(4): k(f"v_add_f32 v{A+j}, v{A+j}, v{A+4+j}")
    k.nop(1)
    for j in range(2): k(f"v_permlane16_swap_b32 v{A+j}, v{A+2+j}")
    for j in range(2): k(f"v_add_f32 v{A+j}, v{A+j}, v{A+2+j}")
    k.nop(2)
    k(f"v_add_f32_dpp v{A}, v{A}, v{A} row_ror:8 row_mask:0xf bank_mask:0x3")
    k.nop(2)
    k(f"v_add_f32_dpp v{A}, v{A+1}, v{A+1} row_ror:8 row_mask:0xf bank_mask:0xc")
    k(f"ds_write_b32 v5, v{A}")
    k(f"v_add_u32 v6, {LACT}, v7")
    k("s_lshl_b32 s22, s5, 2")
    k(f"s_add_u32 s22, s22, {LACT + 1024}")
    k("v_mov_b32 v15, s22")
    k("s_waitcnt vmcnt(3) lgkmcnt(0)")
    k("v_add_u32 v14, 1, v14")
    k("ds_write_b32 v15, v14")
    k("v_readfirstlane_b32 s54, v14")
    k("s_cmp_eq_u32 s5, 0")
    k("s_cbranch_scc1 f_pub")
    k("s_waitcnt vmcnt(0)")
    k("ds_write_b32 v15, v14 offset:16")
    k("s_branch f_nopub")
    k.label("f_pub")
    k("ds_write_b32 v15, v14 offset:16")
    k("v_and_b32 v15, 12, v7")
    k(f"v_add_u32 v15, {LACT + 1024}, v15")
    def join(name, off):
        k("s_mov_b32 s23, 0")
        k.label(name)
        k(f"ds_read_b32 v24, v15 offset:{off}")
        k("s_add_u32 s23, s23, 1")
        k("s_waitcnt lgkmcnt(0)")
        k("v_cmp_eq_u32 vcc, s54, v24")
        k("s_cmp_eq_u64 vcc, -1")
        k(f"s_cbranch_scc1 {name}_ok")
        k("s_cmp_lt_u32 s23, 0x400000")
        k(f"s_cbranch_scc1 {name}")
        k.label(name + "_ok")
    join("f_join", 0)
    for i in range(4): k(f"ds_read_b32 v{20+i}, v6 offset:{i*256}")
    k("s_getreg_b32 s22, hwreg(HW_REG_XCC_ID, 0, 4)")
    k("s_add_u32 s22, s22, 1")
    k("v_mov_b32 v26, s22")
    k("s_lshl_b32 s22, s2, 2")
    k(f"s_add_u32 s22, s22, {XID}")
    k("s_waitcnt lgkmcnt(0)")
    k("v_add_f32 v20, v20, v21")
    k("v_add_f32 v22, v22, v23")
    k("v_add_f32 v20, v20, v22")
    k("buffer_store_dword v20, v19, s[28:31], s24 offen sc1")
    k("buffer_store_dword v26, off, s[28:31], s22 sc1")
    k("s_lshl_b32 s22, s2, 7")
    k(f"s_add_u32 s22, s22, {F0}")
    join("f_join2", 16)
    k("s_waitcnt vmcnt(0)")
    k("s_mov_b64 exec, 1")
    k("buffer_store_dword v14, off, s[28:31], s22 sc1")
    k("s_mov_b64 exec, -1")
    st1(k, 3)
    k.label("f_nopub")
    k("v_bfe_u32 v3, v0, 4, 2")
    k("v_and_b32 v5, 15, v0")
    k("s_mul_i32 s37, s34, 3277")
    k("s_lshr_b32 s37, s37, 16")
    k("s_mul_i32 s38, s37, 20")
    k("s_sub_u32 s38, s34, s38")
    k("s_cmp_lt_u32 s34, 800")
    k("s_cselect_b32 s39, 0, 0x40000000")
    k("s_mul_i32 s22, s38, 40960")
    k("s_lshl_b32 s23, s37, 5")
    k("s_add_u32 s22, s22, s23")
    k("s_add_u32 s22, s22, s39")
    k("s_add_u32 s23, s22, 5120")
    k("v_mul_u32_u24 v6, 10240, v3")
    k("v_lshl_add_u32 v6, v5, 1, v6")
    k.srd(12, 52, 53, 0, 819200)
    for j in range(8):
        k(f"buffer_load_ushort v{120+j}, v6, s[12:15], {'s22' if j < 4 else 's23'} offen offset:{(j&3)*1280}")
    k("s_mul_i32 s36, s37, 52")
    k("s_lshr_b32 s36, s36, 8")
    k("s_mul_i32 s22, s36, 5")
    k("s_sub_u32 s22, s37, s22")
    k("s_mul_i32 s36, s36, 20")
    k("s_add_u32 s36, s36, s38")
    k("s_mul_i32 s36, s36, 5")
    k("s_add_u32 s36, s36, s22")
    k("s_lshl_b32 s36, s36, 10")
    k(f"s_add_u32 s36, s36, {WOF}")
    k("s_add_u32 s55, s36, s39")
    k("s_and_b32 s36, s6, 1")
    k("s_lshl_b32 s36, s36, 4")
    k("v_add_u32 v6, s36, v5")
    k("s_lshr_b32 s40, s5, 1")
    k("s_mul_i32 s40, s40, 1280")
    k(f"s_add_u32 s40, s40, {LACT + ASL}")
    for j in range(5):
        o = EP + j
        k(f"v_add_u32 v4, {4*j}, v3")
        k("v_mul_u32_u24 v2, 52, v4")
        k("v_lshrrev_b32 v2, 8, v2")
        k("v_mul_u32_u24 v8, 5, v2")
        k("v_sub_u32 v4, v4, v8")
        k(f"v_mul_u32_u24 v{o}, 2560, v2")
        k("v_lshrrev_b32 v8, 1, v4")
        k(f"v_lshl_add_u32 v{o}, v8, 9, v{o}")
        k("v_and_b32 v8, 1, v4")
        k(f"v_lshl_add_u32 v{o}, v8, 3, v{o}")
        k("v_lshrrev_b32 v8, 2, v4")
        k("v_sub_u32 v8, 4, v8")
        k("v_lshlrev_b32 v8, v8, v6")
        k(f"v_add3_u32 v{o}, v{o}, v8, s40")
    k("v_add_u32 v8, 61440, v1")
    k.srd(16, 8, 9, WQF, WQF_SZ)
    k("s_mul_i32 s10, s4, 20")
    k("s_add_u32 s10, s10, s5")
    k("s_mul_i32 s10, s10, 6144")
    k("s_mul_i32 s11, s5, 6144")
    k(f"v_mul_u32_u24 v14, {KGS}, v3")
    k("v_lshl_add_u32 v14, v5, 4, v14")
    k(f"s_mul_i32 s36, s5, {RTS}")
    k(f"s_add_u32 s36, s36, {LACT}")
    k("v_add_u32 v14, s36, v14")
    def dma(g):
        out = [f"s_add_u32 m0, s11, {g*24576}\ns_add_u32 s36, s10, 4096\nbuffer_load_dwordx4 v1, s[16:19], s10 offen sc1 lds"]
        for j in range(1, 4): out.append(f"buffer_load_dwordx4 v1, s[16:19], s10 offen offset:{j*1024} sc1 lds")
        out.append(f"s_add_u32 m0, s11, {g*24576+4096}\ns_add_u32 s10, s10, 24576\nbuffer_load_dwordx4 v1, s[16:19], s36 offen sc1 lds")
        out.append("buffer_load_dwordx4 v1, s[16:19], s36 offen offset:1024 sc1 lds")
        return out
    k("s_waitcnt vmcnt(0)")
    for j in range(4): k(f"v_lshl_or_b32 v{120+j}, v{121+2*j}, 16, v{120+2*j}")
    k(f"buffer_store_dwordx4 {r(120)}, v1, s[28:31], s55 offen sc1")
    k("s_barrier")
    st1(k, 4)
    for l in dma(0) + dma(1): k(l)
    k("s_sub_u32 s22, s34, 20")
    k("s_cmp_lt_u32 s22, 10")
    k("s_cselect_b32 s56, 1.0, 0")
    k("s_cmp_lt_u32 s34, 40")
    k("s_cselect_b32 s22, 0, 0x40000000")
    k("s_lshl_b32 s57, s34, 8")
    k("s_add_u32 s57, s57, 5120")
    k("s_add_u32 s57, s57, s22")
    k(f"s_add_u32 s22, s57, {MODP}")
    for q in range(4):
        k(f"buffer_load_dword v{108+q}, v7, s[28:31], s22 offen sc1")
        if q < 3: k(f"s_add_u32 s22, s22, {MODP_ST}")
    k("s_barrier")
    for l in dma(2): k(l)
    def rd(ks):
        b = FB + 28 * (ks & 1); hi = ks >= 10
        return [f"ds_read_b128 {r(b)}, v14 offset:{((ks // 4) & 1) * ASL + (ks % 4) * KS}"] + \
               [f"ds_read_b128 {r(b+4+4*j)}, {'v8' if hi else 'v1'} offset:{ks*6144 + j*1024 - 61440*hi}" for j in range(6)]
    k("s_waitcnt vmcnt(16)")
    k("s_barrier")
    st1(k, 5)
    for l in rd(0): k(l)
    pend = []
    for ks in range(20):
        b = FB + 28 * (ks & 1); g = ks // 4
        k("s_waitcnt lgkmcnt(0)")
        if ks % 4 == 3 and ks < 19:
            if os.environ.get("FINE1B") and g < 3: k.stamp(2 + 2 * g)
            k(f"s_waitcnt vmcnt({(12, 12, 6, 0)[g]})")
            k("s_barrier")
            if os.environ.get("FINE1B") and g < 3: k.stamp(3 + 2 * g)
        if ks % 4 == 0 and g + 3 < 5: pend = dma(g + 3)
        fill = rd(ks + 1) if ks < 19 else []
        for j in range(7):
            if j < 6: k(f"v_mfma_f32_16x16x32_bf16 {r(A0+4*j)}, {r(b+4+4*j)}, {r(b)}, {'0' if ks == 0 else r(A0+4*j)}")
            else: k(f"v_mfma_f32_16x16x32_bf16 {r(96)}, {r(b)}, {r(b+24)}, {'0' if ks == 0 else r(96)}")
            for _ in range(2):
                if fill: k(fill.pop(0))
            if j in (4, 6) and pend: k(pend.pop(0))
    st1(k, 6)
    k("v_add_f32 v108, v108, v109")
    k("v_add_f32 v110, v110, v111")
    k("v_add_f32 v108, v108, v110")
    k("v_cvt_pk_bf16_f32 v108, v108, v108")
    k("v_and_b32 v108, 0xffff0000, v108")
    k("v_add_f32 v108, s56, v108")
    k("v_cvt_pk_bf16_f32 v108, v108, v108")
    k("v_and_b32 v108, 0xffff0000, v108")
    k("s_cmp_ge_u32 s4, 4")
    k("s_cbranch_scc1 k1_fin")
    P = FB + 12
    k(f"v_cvt_pk_bf16_f32 v{P}, v{A0+20}, v{A0+21}")
    k(f"v_cvt_pk_bf16_f32 v{P+1}, v{A0+22}, v{A0+23}")
    k("s_lshr_b32 s36, s6, 1")
    k("s_mul_i32 s36, s36, 2560")
    k(f"s_add_u32 s36, s36, {KV}")
    k("s_and_b32 s37, s6, 1")
    k("v_mov_b32 v11, 0x40000000")
    k("s_bitcmp1_b32 s4, 0")
    k("s_cbranch_scc1 k1_V")
    k("s_cmp_eq_u32 s4, 0")
    k("s_cbranch_scc0 k1_K2")
    k("v_lshrrev_b32 v10, 1, v3")
    k("v_lshlrev_b32 v10, 9, v10")
    k("v_lshl_add_u32 v10, v6, 4, v10")
    k("v_and_b32 v12, 1, v3")
    k("v_lshl_add_u32 v10, v12, 3, v10")
    k("s_branch k1_Kst")
    k.label("k1_K2")
    k("v_cmp_eq_u32 vcc, 0, v3")
    k("v_lshlrev_b32 v10, 3, v6")
    k("v_add_u32 v10, 1024, v10")
    k("v_cndmask_b32 v10, v11, v10, vcc")
    k.label("k1_Kst")
    k(f"buffer_store_dwordx2 {r(P,2)}, v10, s[28:31], s36 offen sc1")
    k(f"v_lshlrev_b32 v12, 16, v{P}")
    k(f"v_and_b32 v13, 0xffff0000, v{P}")
    k(f"v_lshlrev_b32 v14, 16, v{P+1}")
    k(f"v_and_b32 v15, 0xffff0000, v{P+1}")
    k("v_mul_f32 v12, v12, v12")
    k("v_fmac_f32 v12, v13, v13")
    k("v_fmac_f32 v12, v14, v14")
    k("v_fmac_f32 v12, v15, v15")
    xsum16_32(k, 12, 13)
    rowred(k, "v_max_f32", 12)
    k("s_lshl_b32 s36, s4, 8")
    k("s_lshl_b32 s37, s6, 2")
    k("s_add_u32 s36, s36, s37")
    k(f"s_add_u32 s36, s36, {KMAX}")
    k("s_mov_b64 exec, 1")
    k("buffer_store_dword v12, off, s[28:31], s36 sc1")
    k("s_mov_b64 exec, -1")
    k("s_branch k1_fin")
    k.label("k1_V")
    k(f"v_cvt_pk_bf16_f32 v{P}, v96, v97")
    k(f"v_cvt_pk_bf16_f32 v{P+1}, v98, v99")
    k("s_mul_i32 s37, s37, 640")
    k("s_add_u32 s36, s36, s37")
    k("s_add_u32 s36, s36, 1280")
    k("s_cmp_eq_u32 s4, 3")
    k("s_cselect_b32 s37, 256, 0")
    k("s_cselect_b32 s38, 4, 16")
    k("s_add_u32 s36, s36, s37")
    k("v_and_b32 v9, 1, v3")
    k("v_mul_u32_u24 v9, 320, v9")
    k("v_lshl_add_u32 v9, v5, 4, v9")
    k("v_cmp_gt_u32 vcc, s38, v5")
    k("v_lshrrev_b32 v10, 1, v3")
    k("v_lshl_add_u32 v9, v10, 3, v9")
    k("v_cndmask_b32 v9, v11, v9, vcc")
    k(f"buffer_store_dwordx2 {r(P,2)}, v9, s[28:31], s36 offen sc1")
    k.label("k1_fin")
    k("buffer_store_dword v108, v7, s[28:31], s57 offen sc1")
    k(f"v_mov_b32 v8, {hexf(QSCALE)}")
    for j in range(5):
        a = A0 + 4 * j
        k(f"v_pk_mul_f32 {r(a,2)}, {r(a,2)}, v[8:9] op_sel_hi:[1,0]")
        k(f"v_pk_mul_f32 {r(a+2,2)}, {r(a+2,2)}, v[8:9] op_sel_hi:[1,0]")
        k(f"v_cvt_pk_bf16_f32 v{FB+2*j}, v{a}, v{a+1}")
        k(f"v_cvt_pk_bf16_f32 v{FB+2*j+1}, v{a+2}, v{a+3}")
        k(f"ds_write_b64 v{EP+j}, {r(FB+2*j,2)}")
    k(f"s_mov_b32 s{TOK}, s54")
    k("s_waitcnt vmcnt(0) lgkmcnt(0)")
    k("s_branch k1_done")
    k.label("f_loader")
    X = 16; F = 96
    k("v_bfe_u32 v2, v0, 4, 2")
    k("v_and_b32 v3, 15, v0")
    k("v_mul_u32_u24 v4, 1280, v2")
    k("v_lshl_add_u32 v4, v3, 4, v4")
    k("s_mul_i32 s7, s6, 20480")
    k("s_waitcnt lgkmcnt(0)")
    k.srd(20, 40, 41, 0, ACT_SZ)
    def ldx(i):
        for s in range(5): k(f"buffer_load_dwordx4 {r(X+20*i+4*s)}, v4, s[20:23], s7 offen offset:{s*256}")
        k("s_add_u32 s7, s7, 5120")
    ldx(0); ldx(1)
    k.srd(28, 8, 9, 0, WS_END)
    k("v_mov_b32 v5, 0x3f803f80")
    if TLB:
        k("s_load_dwordx8 s[56:63], s[0:1], 48")
        k("s_load_dwordx2 s[64:65], s[0:1], 96")
        k(f"v_lshlrev_b32 v10, {TLB - 4}, v1")
        k("buffer_load_dword v11, v10, s[28:31], 0 offen")
        k("s_waitcnt lgkmcnt(0)")
        for lo, sz in ((56, 1966080), (58, 8388608), (60, 4096), (62, 983040), (64, ACT_SZ)):
            k.srd(12, lo, lo + 1, 0, sz)
            k("buffer_load_dword v11, v10, s[12:15], 0 offen")
    st1(k, 2)
    for i in range(4):
        R = X + 20 * i
        k(f"s_waitcnt vmcnt({((11 if TLB else 5), 5, 6, 0)[i]})")
        if i < 2: ldx(i + 2)
        if i == 1:
            k(f"s_mov_b32 s22, {EPOCH}")
            k("buffer_load_dword v14, off, s[28:31], s22 sc1")
        for h in range(2):
            k(f"v_dot2_f32_bf16 v{6+h}, v{R+h}, v5, 0")
            k(f"v_dot2_f32_bf16 v{8+h}, v{R+h}, v{R+h}, 0")
        for j in range(2, 20):
            k(f"v_dot2_f32_bf16 v{6+(j&1)}, v{R+j}, v5, v{6+(j&1)}")
            k(f"v_dot2_f32_bf16 v{8+(j&1)}, v{R+j}, v{R+j}, v{8+(j&1)}")
        for j in range(4):
            k(f"v_lshlrev_b32 v{F+2*j}, 16, v{R+j}")
            k(f"v_and_b32 v{F+2*j+1}, 0xffff0000, v{R+j}")
        k("v_add_f32 v6, v6, v7")
        k("v_add_f32 v8, v8, v9")
        n = 4
        for rot in (1, 2, 4, 8):
            for j in range(n, n + 4):
                if j == n + 1:
                    k(f"v_add_f32_dpp v6, v6, v6 row_ror:{rot} row_mask:0xf bank_mask:0xf")
                    k(f"v_add_f32_dpp v8, v8, v8 row_ror:{rot} row_mask:0xf bank_mask:0xf")
                k(f"v_lshlrev_b32 v{F+2*j}, 16, v{R+j}")
                k(f"v_and_b32 v{F+2*j+1}, 0xffff0000, v{R+j}")
            n += 4
        k(f"v_mul_f32 v6, {hexf(1.0/640)}, v6")
        k(f"v_mov_b32 v7, {hexf(1e-5)}")
        k(f"v_fmac_f32 v7, {hexf(1.0/640)}, v8")
        k("v_fma_f32 v7, -v6, v6, v7")
        k("v_rsq_f32 v8, v7")
        k.nop(1)
        k("v_mul_f32 v9, v6, v8")
        for j in range(20): k(f"v_pk_fma_f32 {r(F+2*j,2)}, {r(F+2*j,2)}, v[8:9], v[8:9] op_sel:[0,0,1] op_sel_hi:[1,0,1] neg_lo:[0,0,1] neg_hi:[0,0,1]")
        for j in range(20): k(f"v_cvt_pk_bf16_f32 v{R+j}, v{F+2*j}, v{F+2*j+1}")
    st1(k, 3)
    k("v_lshrrev_b32 v6, 2, v3")
    k(f"v_mul_u32_u24 v6, {KS}, v6")
    k("v_and_b32 v7, 3, v3")
    k(f"v_mul_u32_u24 v7, {KGS}, v7")
    k("v_lshl_add_u32 v7, v2, 4, v7")
    k(f"s_mul_i32 s36, s5, {RTS}")
    k(f"s_add_u32 s36, s36, {LACT}")
    k("v_add3_u32 v6, v6, v7, s36")
    k("v_lshlrev_b32 v10, 4, v3")
    k(f"v_add_u32 v10, {LT1}, v10")
    k("s_mul_i32 s34, s5, 1280")
    k(f"s_add_u32 s35, s34, {LT1}")
    k("v_add_u32 v11, s35, v1")
    k("v_lshrrev_b32 v5, 2, v1")
    k("v_add_u32 v12, s35, v5")
    k(f"s_add_u32 s34, s34, {MODP}")
    k("s_cmp_lt_u32 s5, 2")
    k("s_cselect_b32 s36, 1.0, 0")
    k("s_cmp_lg_u32 s5, 0")
    k("s_cbranch_scc1 f_p0_ok")
    k("v_readfirstlane_b32 s54, v14")
    k("v_lshlrev_b32 v96, 3, v1")
    k("s_add_u32 s54, s54, 1")
    for q in range(4): k(f"s_mov_b32 s{60+q}, {F0 + q * 8192}")
    poll_missing(k, "f_p0", 28, ["s60", "s61", "s62", "s63"], 96, 97, 1, tok="s54")
    k("s_setprio 3")
    k("s_barrier")
    st1(k, 4)
    for q in range(4):
        k(f"buffer_load_dwordx4 {r(96+4*q)}, v1, s[28:31], s34 offen sc1")
        k(f"buffer_load_dword v{112+q}, v5, s[28:31], s34 offen offset:1024 sc1")
        if q < 3: k(f"s_add_u32 s34, s34, {MODP_ST}")
    k("s_waitcnt vmcnt(0)")
    for h in range(2):
        k(f"v_pk_add_f32 {r(96+2*h,2)}, {r(96+2*h,2)}, {r(100+2*h,2)}")
        k(f"v_pk_add_f32 {r(104+2*h,2)}, {r(104+2*h,2)}, {r(108+2*h,2)}")
    k("v_add_f32 v112, v112, v113")
    k("v_add_f32 v114, v114, v115")
    for h in range(2): k(f"v_pk_add_f32 {r(96+2*h,2)}, {r(96+2*h,2)}, {r(104+2*h,2)}")
    k("v_add_f32 v100, v112, v114")
    for rnd in range(2):
        for i in range(5): k(f"v_cvt_pk_bf16_f32 v{96+i}, v{96+i}, v{96+i}")
        for i in range(5): k(f"v_and_b32 v{96+i}, 0xffff0000, v{96+i}")
        if rnd == 0:
            for i in range(5): k(f"v_add_f32 v{96+i}, s36, v{96+i}")
    k(f"ds_write_b128 v11, {r(96)}")
    k("ds_write_b32 v12, v100 offset:1024")
    k("s_waitcnt lgkmcnt(0)")
    k("s_barrier")
    st1(k, 5)
    CO = (96, 120); T = 112
    def coefs(s):
        for j in range(4): k(f"ds_read_b128 {r(CO[s&1]+4*j)}, v10 offset:{j*1280 + s*256}")
    coefs(0)
    for s in range(5):
        co = CO[s & 1]
        k("s_waitcnt lgkmcnt(0)")
        if s < 4: coefs(s + 1)
        for i in range(4):
            a = X + 20 * i + 4 * s
            for j in range(4):
                k(f"v_lshlrev_b32 v{T+2*j}, 16, v{a+j}")
                k(f"v_and_b32 v{T+2*j+1}, 0xffff0000, v{a+j}")
            for j in range(8): k(f"v_fma_f32 v{T+j}, v{T+j}, v{co+j}, v{co+8+j}")
            for j in range(4): k(f"v_cvt_pk_bf16_f32 v{a+j}, v{T+2*j}, v{T+2*j+1}")
            k(f"ds_write_b128 v6, {r(a)} offset:{(s&1)*ASL + i*64}")
        k("s_waitcnt lgkmcnt(0)")
        if os.environ.get("FINE1B") and 1 <= s < 4: k.stamp(2 * s)
        k("s_barrier")
        if os.environ.get("FINE1B") and 1 <= s < 4: k.stamp(2 * s + 1)
    st1(k, 6)
    k.label("k1_done")
```

```python
from layout import *
from k0 import hexf, xsum16_32, rowred
import math, os

QSCALE = math.log2(math.e) / math.sqrt(20.0)
def r(b, n=4): return f"v[{b}:{b+n-1}]"
A0 = 16; FB = 40; EP = 100
KGS = 272; RTS = 1088; KS = 4416; ASL = 4 * KS
LACT = 0; LKV = 5 * ASL; LT1 = LKV + 20480; LWQ = LT1 + 5120; LQ = 36864
WH = [LWQ + 5120 * i for i in range(8)] + [LKV + 5120 * i for i in range(5)] + [LWQ + 40960] + [LWQ + 5120 * i for i in range(4)] + [0, 5120]
TOK = 31
XF = os.environ.get('XF', '')
TLB = int(os.environ.get('TLB', '0'))
def st1(k, i):
    if os.environ.get('FINE1') and not os.environ.get('FINE1B'): k.stamp(i)

def token(k):
    k("v_readfirstlane_b32 s54, v14")
    k("s_mul_i32 s54, s54, 0x9e3779b1")
    k("s_add_u32 s54, s54, 0x7f4a7c15")

def gen_front(k, poll_missing, code_start, code_end):
    k("s_load_dwordx8 s[40:47], s[0:1], 0")
    k("s_load_dwordx4 s[48:51], s[0:1], 80")
    k("s_load_dwordx2 s[52:53], s[0:1], 32")
    k("v_lshrrev_b32 v1, 6, v0")
    k("s_and_b32 s3, s2, 7")
    k("v_readfirstlane_b32 s5, v1")
    k("s_lshl_b32 s3, s3, 2")
    k("s_bfe_u32 s4, s2, 0x20003")
    k("s_add_u32 s3, s3, s4")
    k("s_lshr_b32 s4, s2, 5")
    k("v_and_b32 v1, 63, v0")
    k("v_lshlrev_b32 v1, 4, v1")
    k("s_lshr_b32 s33, s5, 2")
    k("s_and_b32 s5, s5, 3")
    k("s_lshl_b32 s6, s3, 2")
    k("s_add_u32 s6, s6, s5")
    k("s_lshl_b32 s22, s5, 2")
    k(f"s_add_u32 s22, s22, {LACT + 1024}")
    k("v_and_b32 v2, 16, v1")
    k("v_add_u32 v2, s22, v2")
    k("v_mov_b32 v3, 0")
    k("ds_write_b32 v2, v3")
    k("s_waitcnt lgkmcnt(0)")
    k("s_barrier")
    k("s_cmp_eq_u32 s33, 0")
    k("s_cbranch_scc0 f_loader")
    k("s_and_b32 s21, s2, 3")
    k("s_lshr_b32 s20, s2, 2")
    k("v_lshrrev_b32 v2, 3, v0")
    k("v_and_b32 v3, 7, v0")
    k("v_mul_u32_u24 v13, 7680, v2")
    k("v_lshl_add_u32 v13, v3, 4, v13")
    k("v_lshlrev_b32 v2, 1, v2")
    k(f"s_mul_i32 s60, s21, {160*7680}")
    k("s_lshl_b32 s23, s20, 7")
    k("s_add_u32 s60, s60, s23")
    k("s_cmp_lt_u32 s20, 60")
    k("s_cselect_b32 s35, 0, 0x40000000")
    k("s_add_u32 s60, s60, s35")
    k("s_mul_i32 s61, s21, 320")
    k("s_waitcnt lgkmcnt(0)")
    k.srd(16, 50, 51, 0, 640 * 7680)
    k.srd(64, 48, 49, 0, 1280)
    k("s_lshl_b32 s34, s2, 2")
    k("s_add_u32 s34, s34, s5")
    k("s_mul_i32 s37, s34, 3277")
    k("s_lshr_b32 s37, s37, 16")
    k("s_mul_i32 s38, s37, 20")
    k("s_sub_u32 s38, s34, s38")
    k("s_cmp_ge_u32 s37, 42")
    k("s_cselect_b32 s23, 32, 0")
    k("s_cselect_b32 s24, 4, 16")
    k("s_lshl_b32 s25, s37, 5")
    k("s_cmp_ge_u32 s37, 40")
    k("s_cselect_b32 s23, s23, s25")
    k("s_movk_i32 s22, 1280")
    k("s_cselect_b32 s22, 40, s22")
    k("s_mov_b32 s14, 819200")
    k("s_cselect_b32 s14, 25600, s14")
    k("s_cselect_b32 s12, s44, s42")
    k("s_cselect_b32 s13, s45, s43")
    k("s_and_b32 s25, s37, 41")
    k("s_cmp_eq_u32 s25, 41")
    k("s_cselect_b32 s12, s46, s12")
    k("s_cselect_b32 s13, s47, s13")
    k("s_cmp_lt_u32 s37, 44")
    k("s_cselect_b32 s14, s14, 0")
    k("s_cselect_b32 s39, 0, 0x40000000")
    k("s_mov_b32 s15, 0x20000")
    k("s_lshl_b32 s27, s22, 3")
    k("s_lshl_b32 s25, s38, 5")
    k("s_mul_i32 s25, s25, s22")
    k("s_add_u32 s25, s25, s23")
    k("v_and_b32 v6, 15, v0")
    k("v_bfe_u32 v5, v0, 4, 2")
    k("v_mul_u32_u24 v4, s27, v5")
    k("v_lshl_add_u32 v4, v6, 1, v4")
    k("v_cmp_gt_u32 vcc, s24, v6")
    k("v_mov_b32 v5, 0x40000000")
    k("s_mul_i32 s26, s37, 52")
    k("s_lshr_b32 s26, s26, 8")
    k("v_cndmask_b32 v4, v5, v4, vcc")
    for j in range(8):
        k(f"buffer_load_ushort v{120+j}, v4, s[12:15], s25 offen")
        if j < 7: k("s_add_u32 s25, s25, s22")
    for p in range(5):
        k(f"buffer_load_dwordx4 v[{20+4*p}:{23+4*p}], v13, s[16:19], s60 offen")
        if p < 4: k(f"s_add_u32 s60, s60, {32 * 7680}")
        k(f"buffer_load_ushort v{8+p}, v2, s[64:67], s61 offen offset:{p*64}")
    k("s_mul_i32 s27, s26, 5")
    k("s_sub_u32 s27, s37, s27")
    k("s_sub_u32 s25, s37, 40")
    k("s_cmp_ge_u32 s37, 40")
    k("s_cselect_b32 s26, s25, s26")
    k("s_cselect_b32 s27, 5, s27")
    k("s_mul_i32 s26, s26, 20")
    k("s_add_u32 s26, s26, s38")
    k("s_mul_i32 s26, s26, 6")
    k("s_add_u32 s26, s26, s27")
    k("s_lshl_b32 s26, s26, 10")
    k(f"s_add_u32 s26, s26, {WQF}")
    k("s_add_u32 s26, s26, s39")
    k.srd(28, 8, 9, 0, WS_END)
    k(f"s_mov_b32 s22, {EPOCH}")
    k("buffer_load_dword v14, off, s[28:31], s22 sc1")
    k.srd(12, 8, 9, ZR, ZR_SZ)
    k("s_lshl_b32 s22, s34, 10")
    for i in range(4): k(f"v_mov_b32 v{16+i}, 0")
    k("buffer_store_dwordx4 v[16:19], v1, s[12:15], s22 offen sc1")
    k("s_getpc_b64 s[56:57]")
    k.label("f_pc")
    k(f"s_add_u32 s56, s56, {code_start}-f_pc")
    k("s_addc_u32 s57, s57, -1")
    k(f"s_mov_b32 s58, {code_end}-{code_start}")
    k("s_mov_b32 s59, 0x20000")
    k("s_lshr_b32 s22, s2, 3")
    k("s_lshl_b32 s22, s22, 2")
    k("s_add_u32 s22, s22, s5")
    k("s_lshl_b32 s22, s22, 10")
    k("buffer_load_dwordx4 v[40:43], v1, s[56:59], s22 offen")
    k("v_lshlrev_b32 v5, 3, v3")
    k("v_bfe_u32 v6, v0, 5, 1")
    k("v_lshl_add_u32 v5, v6, 2, v5")
    k("v_bfe_u32 v6, v0, 4, 1")
    k("v_lshl_add_u32 v5, v6, 1, v5")
    k("v_bfe_u32 v6, v0, 3, 1")
    k("v_add_u32 v5, v5, v6")
    k("v_lshlrev_b32 v5, 2, v5")
    k("s_lshl_b32 s22, s5, 8")
    k(f"s_add_u32 s22, s22, {LACT}")
    k("v_add_u32 v5, s22, v5")
    k("v_lshrrev_b32 v7, 2, v1")
    k(f"s_mul_i32 s24, s21, {MODP_ST}")
    k(f"s_add_u32 s24, s24, {MODP}")
    k("s_add_u32 s24, s24, s35")
    k("s_cmp_lt_u32 s20, 20")
    k("s_cbranch_scc1 f_t1")
    k("s_lshl_b32 s22, s20, 8")
    k("v_add_u32 v19, s22, v7")
    k("s_branch f_st")
    k.label("f_t1")
    k("s_cmp_lt_u32 s20, 10")
    k("s_cselect_b32 s23, 2560, 0")
    k("s_cselect_b32 s22, 0, 10")
    k("s_sub_u32 s22, s20, s22")
    k("s_lshl_b32 s22, s22, 7")
    k("s_add_u32 s22, s22, s23")
    k("v_bfe_u32 v19, v0, 2, 1")
    k("v_mul_u32_u24 v19, 1280, v19")
    k("v_bfe_u32 v18, v0, 3, 3")
    k("v_lshl_add_u32 v19, v18, 4, v19")
    k("v_and_b32 v18, 3, v0")
    k("v_lshl_add_u32 v19, v18, 2, v19")
    k("v_add_u32 v19, s22, v19")
    k.label("f_st")
    k("s_waitcnt vmcnt(13)")
    for j in range(4): k(f"v_lshl_or_b32 v{120+j}, v{121+2*j}, 16, v{120+2*j}")
    k(f"buffer_store_dwordx4 {r(120)}, v1, s[28:31], s26 offen sc1")
    k("s_waitcnt vmcnt(4)")
    st1(k, 2)
    T = 60; A = 72
    for p in range(5): k(f"v_lshlrev_b32 v{8+p}, 16, v{8+p}")
    for p in range(5): k(f"v_mul_f32 v{T+p}, 0xbfb8aa3b, v{8+p}")
    for p in range(5): k(f"v_exp_f32 v{T+p}, v{T+p}")
    for p in range(5): k(f"v_add_f32 v{T+p}, 1.0, v{T+p}")
    for p in range(5): k(f"v_rcp_f32 v{T+p}, v{T+p}")
    for p in range(5): k(f"v_mul_f32 v{8+p}, v{8+p}, v{T+p}")
    for p in range(5): k(f"v_cvt_pk_bf16_f32 v{8+p}, v{8+p}, v{8+p}")
    for p in range(5): k(f"v_and_b32 v{8+p}, 0xffff0000, v{8+p}")
    for p in range(5):
        for j in range(4):
            k(f"v_lshlrev_b32 v{T+2*j}, 16, v{20+4*p+j}")
            k(f"v_and_b32 v{T+2*j+1}, 0xffff0000, v{20+4*p+j}")
        sp = f"v[{8+p-(p&1)}:{9+p-(p&1)}]"
        for j in range(4):
            if p == 0: k(f"v_pk_mul_f32 {r(A+2*j,2)}, {r(T+2*j,2)}, {sp} op_sel_hi:[1,0]")
            else:
                sel3 = "op_sel_hi:[1,0,1]" if p % 2 == 0 else "op_sel:[0,1,0] op_sel_hi:[1,1,1]"
                k(f"v_pk_fma_f32 {r(A+2*j,2)}, {r(T+2*j,2)}, {sp}, {r(A+2*j,2)} {sel3}")
    k.nop(1)
    for j in range(4): k(f"v_permlane32_swap_b32 v{A+j}, v{A+4+j}")
    for j in range(4): k(f"v_add_f32 v{A+j}, v{A+j}, v{A+4+j}")
    k.nop(1)
    for j in range(2): k(f"v_permlane16_swap_b32 v{A+j}, v{A+2+j}")
    for j in range(2): k(f"v_add_f32 v{A+j}, v{A+j}, v{A+2+j}")
    k.nop(2)
    k(f"v_add_f32_dpp v{A}, v{A}, v{A} row_ror:8 row_mask:0xf bank_mask:0x3")
    k.nop(2)
    k(f"v_add_f32_dpp v{A}, v{A+1}, v{A+1} row_ror:8 row_mask:0xf bank_mask:0xc")
    k(f"ds_write_b32 v5, v{A}")
    k(f"v_add_u32 v6, {LACT}, v7")
    k("s_lshl_b32 s22, s5, 2")
    k(f"s_add_u32 s22, s22, {LACT + 1024}")
    k("v_mov_b32 v15, s22")
    k("v_mov_b32 v25, 1")
    k("s_waitcnt lgkmcnt(0)")
    k("ds_write_b32 v15, v25")
    k("s_cmp_eq_u32 s5, 0")
    k("s_cbranch_scc1 f_pub")
    k("s_waitcnt vmcnt(0)")
    k("ds_write_b32 v15, v25 offset:16")
    k("s_branch f_nopub")
    k.label("f_pub")
    k("ds_write_b32 v15, v25 offset:16")
    k("v_and_b32 v15, 12, v7")
    k(f"v_add_u32 v15, {LACT + 1024}, v15")
    def join(name, off):
        k("s_mov_b32 s23, 0")
        k.label(name)
        k(f"ds_read_b32 v24, v15 offset:{off}")
        k("s_add_u32 s23, s23, 1")
        k("s_waitcnt lgkmcnt(0)")
        k("v_cmp_eq_u32 vcc, 1, v24")
        k("s_cmp_eq_u64 vcc, -1")
        k(f"s_cbranch_scc1 {name}_ok")
        k("s_cmp_lt_u32 s23, 0x400000")
        k(f"s_cbranch_scc1 {name}")
        k.label(name + "_ok")
    join("f_join", 0)
    for i in range(4): k(f"ds_read_b32 v{20+i}, v6 offset:{i*256}")
    k("s_getreg_b32 s22, hwreg(HW_REG_XCC_ID, 0, 4)")
    k("s_add_u32 s22, s22, 1")
    k("v_mov_b32 v26, s22")
    k("s_lshl_b32 s22, s2, 2")
    k(f"s_add_u32 s22, s22, {XID}")
    k("s_waitcnt lgkmcnt(0)")
    k("v_add_f32 v20, v20, v21")
    k("v_add_f32 v22, v22, v23")
    k("v_add_f32 v20, v20, v22")
    k("buffer_store_dword v20, v19, s[28:31], s24 offen sc1")
    k("buffer_store_dword v26, off, s[28:31], s22 sc1")
    k("s_lshl_b32 s22, s2, 7")
    k(f"s_add_u32 s22, s22, {F0}")
    join("f_join2", 16)
    k("s_waitcnt vmcnt(0)")
    token(k)
    k("v_mov_b32 v14, s54")
    k("s_mov_b64 exec, 1")
    k("buffer_store_dword v14, off, s[28:31], s22 sc1")
    k("s_mov_b64 exec, -1")
    st1(k, 3)
    k.label("f_nopub")
    k("v_bfe_u32 v3, v0, 4, 2")
    k("v_and_b32 v5, 15, v0")
    k("s_mul_i32 s37, s34, 3277")
    k("s_lshr_b32 s37, s37, 16")
    k("s_mul_i32 s38, s37, 20")
    k("s_sub_u32 s38, s34, s38")
    k("s_cmp_lt_u32 s34, 800")
    k("s_cselect_b32 s39, 0, 0x40000000")
    k("s_mul_i32 s22, s38, 40960")
    k("s_lshl_b32 s23, s37, 5")
    k("s_add_u32 s22, s22, s23")
    k("s_add_u32 s22, s22, s39")
    k("s_add_u32 s23, s22, 5120")
    k("v_mul_u32_u24 v6, 10240, v3")
    k("v_lshl_add_u32 v6, v5, 1, v6")
    k.srd(12, 52, 53, 0, 819200)
    for j in range(8):
        k(f"buffer_load_ushort v{120+j}, v6, s[12:15], {'s22' if j < 4 else 's23'} offen offset:{(j&3)*1280}")
    k("s_mul_i32 s36, s37, 52")
    k("s_lshr_b32 s36, s36, 8")
    k("s_mul_i32 s22, s36, 5")
    k("s_sub_u32 s22, s37, s22")
    k("s_mul_i32 s36, s36, 20")
    k("s_add_u32 s36, s36, s38")
    k("s_mul_i32 s36, s36, 5")
    k("s_add_u32 s36, s36, s22")
    k("s_lshl_b32 s36, s36, 10")
    k(f"s_add_u32 s36, s36, {WOF}")
    k("s_add_u32 s55, s36, s39")
    k("s_and_b32 s36, s6, 1")
    k("s_lshl_b32 s36, s36, 4")
    k("v_add_u32 v6, s36, v5")
    k("s_lshr_b32 s40, s5, 1")
    k("s_mul_i32 s40, s40, 1280")
    k(f"s_add_u32 s40, s40, {LQ}")
    for j in range(5):
        o = EP + j
        k(f"v_add_u32 v4, {4*j}, v3")
        k("v_mul_u32_u24 v2, 52, v4")
        k("v_lshrrev_b32 v2, 8, v2")
        k("v_mul_u32_u24 v8, 5, v2")
        k("v_sub_u32 v4, v4, v8")
        k(f"v_mul_u32_u24 v{o}, 2560, v2")
        k("v_lshrrev_b32 v8, 1, v4")
        k(f"v_lshl_add_u32 v{o}, v8, 9, v{o}")
        k("v_and_b32 v8, 1, v4")
        k(f"v_lshl_add_u32 v{o}, v8, 3, v{o}")
        k("v_lshrrev_b32 v8, 2, v4")
        k("v_sub_u32 v8, 4, v8")
        k("v_lshlrev_b32 v8, v8, v6")
        k(f"v_add3_u32 v{o}, v{o}, v8, s40")
    k(f"v_add_u32 v8, {LKV}, v1")
    k.srd(16, 8, 9, WQF, WQF_SZ)
    k("s_mul_i32 s10, s4, 122880")
    k("s_mul_i32 s11, s5, 30720")
    k("s_add_u32 s10, s10, s11")
    k("s_add_u32 s10, s10, 5120")
    k("s_mul_i32 s11, s5, 5120")
    k(f"s_add_u32 s11, s11, {LKV}")
    k(f"v_mul_u32_u24 v14, {KGS}, v3")
    k("v_lshl_add_u32 v14, v5, 4, v14")
    k(f"s_mul_i32 s36, s5, {RTS}")
    k(f"s_add_u32 s36, s36, {LACT}")
    k("v_add_u32 v14, s36, v14")
    k(f"v_add_u32 v15, {3*ASL}, v14")
    k("s_waitcnt vmcnt(0)")
    for j in range(4): k(f"v_lshl_or_b32 v{120+j}, v{121+2*j}, 16, v{120+2*j}")
    k(f"buffer_store_dwordx4 {r(120)}, v1, s[28:31], s55 offen sc1")
    k("s_barrier")
    st1(k, 4)
    for q in range(5):
        k(f"s_add_u32 m0, s11, {q*1024}")
        k.nop(1)
        k("buffer_load_dwordx4 v1, s[16:19], s10 offen sc1 lds")
        k("s_add_u32 s10, s10, 6144")
    def wstep(mem, lds):
        k(f"s_mov_b32 m0, {lds}")
        k(f"s_add_u32 s37, {mem}, 4096")
        for j in range(4): k(f"buffer_load_dwordx4 v1, s[16:19], {mem} offen offset:{j*1024} sc1 lds")
        k("s_add_u32 m0, m0, 4096")
        k.nop(1)
        k("buffer_load_dwordx4 v1, s[16:19], s37 offen sc1 lds")
    k("s_sub_u32 s22, s34, 20")
    k("s_cmp_lt_u32 s22, 10")
    k("s_cselect_b32 s56, 1.0, 0")
    k("s_cmp_lt_u32 s34, 40")
    k("s_cselect_b32 s22, 0, 0x40000000")
    k("s_lshl_b32 s57, s34, 8")
    k("s_add_u32 s57, s57, 5120")
    k("s_add_u32 s57, s57, s22")
    k(f"s_add_u32 s22, s57, {MODP}")
    for q in range(4):
        k(f"buffer_load_dword v{108+q}, v7, s[28:31], s22 offen sc1")
        if q < 3: k(f"s_add_u32 s22, s22, {MODP_ST}")
    k("s_mul_i32 s10, s4, 122880")
    k("s_mul_i32 s11, s5, 12288")
    k("s_add_u32 s10, s10, s11")
    k("s_mul_i32 s11, s5, 10240")
    k(f"s_add_u32 s11, s11, {LWQ}")
    wstep("s10", "s11")
    k("s_add_u32 s10, s10, 6144")
    k("s_add_u32 s11, s11, 5120")
    wstep("s10", "s11")
    k("s_waitcnt vmcnt(14)")
    k("s_barrier")
    def rda(ks, reg): return f"ds_read_b128 {r(reg)}, {'v14' if ks < 12 else 'v15'} offset:{(ks // 4 - (3 if ks >= 12 else 0)) * ASL + (ks % 4) * KS}"
    for g in range(5):
        if g == 0:
            for q in range(4): k(f"ds_read_b128 {r(136+4*q)}, v8 offset:{q*1024}")
        k("s_barrier")
        if g == 0: st1(k, 5)
        for q in range(4): k(rda(4 * g + q, 208 + 4 * q))
        wb = 136 + 16 * (g & 1)
        if g < 4:
            for q in range(4): k(f"ds_read_b128 {r(136+16*((g+1)&1)+4*q)}, v8 offset:{(4*g+4+q)*1024}")
        for q in range(4):
            k(f"s_waitcnt lgkmcnt({(7 if g < 4 else 3) - q})")
            first = g == 0 and q == 0
            k(f"v_mfma_f32_16x16x32_bf16 {r(A0+20)}, {r(wb+4*q)}, {r(208+4*q)}, {'0' if first else r(A0+20)}")
            k(f"v_mfma_f32_16x16x32_bf16 {r(96)}, {r(208+4*q)}, {r(wb+4*q)}, {'0' if first else r(96)}")
    st1(k, 6)
    k("s_waitcnt vmcnt(0)")
    k("v_add_f32 v108, v108, v109")
    k("v_add_f32 v110, v110, v111")
    k("v_add_f32 v108, v108, v110")
    k("v_cvt_pk_bf16_f32 v108, v108, v108")
    k("v_and_b32 v108, 0xffff0000, v108")
    k("v_add_f32 v108, s56, v108")
    k("v_cvt_pk_bf16_f32 v108, v108, v108")
    k("v_and_b32 v108, 0xffff0000, v108")
    k("s_cmp_ge_u32 s4, 4")
    k("s_cbranch_scc1 k1_fin")
    P = FB + 12
    k(f"v_cvt_pk_bf16_f32 v{P}, v{A0+20}, v{A0+21}")
    k(f"v_cvt_pk_bf16_f32 v{P+1}, v{A0+22}, v{A0+23}")
    k("s_lshr_b32 s36, s6, 1")
    k("s_mul_i32 s36, s36, 2560")
    k(f"s_add_u32 s36, s36, {KV}")
    k("s_and_b32 s37, s6, 1")
    k("v_mov_b32 v11, 0x40000000")
    k("s_bitcmp1_b32 s4, 0")
    k("s_cbranch_scc1 k1_V")
    k("s_cmp_eq_u32 s4, 0")
    k("s_cbranch_scc0 k1_K2")
    k("v_lshrrev_b32 v10, 1, v3")
    k("v_lshlrev_b32 v10, 9, v10")
    k("v_lshl_add_u32 v10, v6, 4, v10")
    k("v_and_b32 v12, 1, v3")
    k("v_lshl_add_u32 v10, v12, 3, v10")
    k("s_branch k1_Kst")
    k.label("k1_K2")
    k("v_cmp_eq_u32 vcc, 0, v3")
    k("v_lshlrev_b32 v10, 3, v6")
    k("v_add_u32 v10, 1024, v10")
    k("v_cndmask_b32 v10, v11, v10, vcc")
    k.label("k1_Kst")
    k(f"buffer_store_dwordx2 {r(P,2)}, v10, s[28:31], s36 offen sc1")
    k(f"v_lshlrev_b32 v16, 16, v{P}")
    k(f"v_and_b32 v17, 0xffff0000, v{P}")
    k(f"v_lshlrev_b32 v18, 16, v{P+1}")
    k(f"v_and_b32 v19, 0xffff0000, v{P+1}")
    k("v_mul_f32 v16, v16, v16")
    k("v_fmac_f32 v16, v17, v17")
    k("v_fmac_f32 v16, v18, v18")
    k("v_fmac_f32 v16, v19, v19")
    xsum16_32(k, 16, 17)
    rowred(k, "v_max_f32", 16)
    k("s_lshl_b32 s36, s4, 8")
    k("s_lshl_b32 s37, s6, 2")
    k("s_add_u32 s36, s36, s37")
    k(f"s_add_u32 s36, s36, {KMAX}")
    k("s_mov_b64 exec, 1")
    k("buffer_store_dword v16, off, s[28:31], s36 sc1")
    k("s_mov_b64 exec, -1")
    k("s_branch k1_fin")
    k.label("k1_V")
    k(f"v_cvt_pk_bf16_f32 v{P}, v96, v97")
    k(f"v_cvt_pk_bf16_f32 v{P+1}, v98, v99")
    k("s_mul_i32 s37, s37, 640")
    k("s_add_u32 s36, s36, s37")
    k("s_add_u32 s36, s36, 1280")
    k("s_cmp_eq_u32 s4, 3")
    k("s_cselect_b32 s37, 256, 0")
    k("s_cselect_b32 s38, 4, 16")
    k("s_add_u32 s36, s36, s37")
    k("v_and_b32 v9, 1, v3")
    k("v_mul_u32_u24 v9, 320, v9")
    k("v_lshl_add_u32 v9, v5, 4, v9")
    k("v_cmp_gt_u32 vcc, s38, v5")
    k("v_lshrrev_b32 v10, 1, v3")
    k("v_lshl_add_u32 v9, v10, 3, v9")
    k("v_cndmask_b32 v9, v11, v9, vcc")
    k(f"buffer_store_dwordx2 {r(P,2)}, v9, s[28:31], s36 offen sc1")
    k.label("k1_fin")
    k("buffer_store_dword v108, v7, s[28:31], s57 offen sc1")
    k("s_lshl_b32 s36, s2, 7")
    k(f"s_add_u32 s36, s36, {F1}")
    k("v_mov_b32 v10, 1")
    k(f"v_add_u32 v11, {LWQ}, v1")
    k("s_waitcnt vmcnt(0)")
    k("s_barrier")
    k("s_cmp_lg_u32 s5, 0")
    k("s_cbranch_scc1 f_nof1")
    k("s_mov_b64 exec, 1")
    k("buffer_store_dword v10, off, s[28:31], s36 sc1")
    k("s_mov_b64 exec, -1")
    k.label("f_nof1")
    if os.environ.get("FINE2"): k.stamp(6)
    WBUF = (136, 156, 176); ABUF = (208, 212, 216)
    def rdw(ks):
        base = WH[ks]
        reg, off = ("v1", base) if base < LKV else ("v8", base - LKV) if base < LWQ else ("v11", base - LWQ)
        return [rda(ks, ABUF[ks % 3])] + [f"ds_read_b128 {r(WBUF[ks%3]+4*j)}, {reg} offset:{off + j*1024}" for j in range(5)]
    for l in rdw(0) + rdw(1): k(l)
    for ks in range(20):
        w = WBUF[ks % 3]; a = ABUF[ks % 3]
        k(f"s_waitcnt lgkmcnt({6 if ks < 19 else 0})")
        if ks in (6, 12): k("s_barrier")
        fill = rdw(ks + 2) if ks < 18 else []
        for j in range(5):
            k(f"v_mfma_f32_16x16x32_bf16 {r(A0+4*j)}, {r(w+4*j)}, {r(a)}, {'0' if ks == 0 else r(A0+4*j)}")
            if fill: k(fill.pop(0))
            if j == 0 and fill: k(fill.pop(0))
    k.nop(6)
    k(f"v_mov_b32 v8, {hexf(QSCALE)}")
    for j in range(5):
        a = A0 + 4 * j
        k(f"v_pk_mul_f32 {r(a,2)}, {r(a,2)}, v[8:9] op_sel_hi:[1,0]")
        k(f"v_pk_mul_f32 {r(a+2,2)}, {r(a+2,2)}, v[8:9] op_sel_hi:[1,0]")
        k(f"v_cvt_pk_bf16_f32 v{FB+2*j}, v{a}, v{a+1}")
        k(f"v_cvt_pk_bf16_f32 v{FB+2*j+1}, v{a+2}, v{a+3}")
        k(f"ds_write_b64 v{EP+j}, {r(FB+2*j,2)}")
    k(f"s_mov_b32 s{TOK}, s54")
    k("s_waitcnt lgkmcnt(0)")
    k("s_branch k1_done")
    k.label("f_loader")
    RAW = (176, 196, 216, 176); XF0 = 16
    k("v_bfe_u32 v2, v0, 4, 2")
    k("v_and_b32 v3, 15, v0")
    k("v_mul_u32_u24 v4, 1280, v2")
    k("v_lshl_add_u32 v4, v3, 4, v4")
    k("s_mul_i32 s7, s6, 20480")
    k("s_waitcnt lgkmcnt(0)")
    k.srd(20, 40, 41, 0, ACT_SZ)
    def ldx(i):
        for s in range(5): k(f"buffer_load_dwordx4 {r(RAW[i]+4*s)}, v4, s[20:23], s7 offen offset:{s*256}")
        k("s_add_u32 s7, s7, 5120")
    ldx(0); ldx(1)
    k.srd(28, 8, 9, 0, WS_END)
    k("v_mov_b32 v5, 0x3f803f80")
    if TLB:
        k("s_load_dwordx8 s[56:63], s[0:1], 48")
        k("s_load_dwordx2 s[64:65], s[0:1], 96")
        k(f"v_lshlrev_b32 v10, {TLB - 4}, v1")
        k("buffer_load_dword v11, v10, s[28:31], 0 offen")
        k("s_waitcnt lgkmcnt(0)")
        for lo, sz in ((56, 1966080), (58, 8388608), (60, 4096), (62, 983040), (64, ACT_SZ)):
            k.srd(12, lo, lo + 1, 0, sz)
            k("buffer_load_dword v11, v10, s[12:15], 0 offen")
    st1(k, 2)
    for i in range(4):
        R = RAW[i]; F = XF0 + 40 * i
        k(f"s_waitcnt vmcnt({((11 if TLB else 5), 10, 6, 0)[i]})")
        if i == 0: ldx(2)
        if i == 1:
            k(f"s_mov_b32 s22, {EPOCH}")
            k("buffer_load_dword v14, off, s[28:31], s22 sc1")
        for h in range(2):
            k(f"v_dot2_f32_bf16 v{6+h}, v{R+h}, v5, 0")
            k(f"v_dot2_f32_bf16 v{8+h}, v{R+h}, v{R+h}, 0")
        for j in range(2, 20):
            k(f"v_dot2_f32_bf16 v{6+(j&1)}, v{R+j}, v5, v{6+(j&1)}")
            k(f"v_dot2_f32_bf16 v{8+(j&1)}, v{R+j}, v{R+j}, v{8+(j&1)}")
        for j in range(4):
            k(f"v_lshlrev_b32 v{F+2*j}, 16, v{R+j}")
            k(f"v_and_b32 v{F+2*j+1}, 0xffff0000, v{R+j}")
        k("v_add_f32 v6, v6, v7")
        k("v_add_f32 v8, v8, v9")
        n = 4
        for rot in (1, 2, 4, 8):
            for j in range(n, n + 4):
                if j == n + 1:
                    k(f"v_add_f32_dpp v6, v6, v6 row_ror:{rot} row_mask:0xf bank_mask:0xf")
                    k(f"v_add_f32_dpp v8, v8, v8 row_ror:{rot} row_mask:0xf bank_mask:0xf")
                k(f"v_lshlrev_b32 v{F+2*j}, 16, v{R+j}")
                k(f"v_and_b32 v{F+2*j+1}, 0xffff0000, v{R+j}")
            n += 4
        k(f"v_mul_f32 v6, {hexf(1.0/640)}, v6")
        k(f"v_mov_b32 v7, {hexf(1e-5)}")
        k(f"v_fmac_f32 v7, {hexf(1.0/640)}, v8")
        k("v_fma_f32 v7, -v6, v6, v7")
        k("v_rsq_f32 v8, v7")
        k.nop(1)
        k("v_mul_f32 v9, v6, v8")
        for j in range(20): k(f"v_pk_fma_f32 {r(F+2*j,2)}, {r(F+2*j,2)}, v[8:9], v[8:9] op_sel:[0,0,1] op_sel_hi:[1,0,1] neg_lo:[0,0,1] neg_hi:[0,0,1]")
        if i == 0: ldx(3)
    st1(k, 3)
    k("v_lshrrev_b32 v6, 2, v3")
    k(f"v_mul_u32_u24 v6, {KS}, v6")
    k("v_and_b32 v7, 3, v3")
    k(f"v_mul_u32_u24 v7, {KGS}, v7")
    k("v_lshl_add_u32 v7, v2, 4, v7")
    k(f"s_mul_i32 s36, s5, {RTS}")
    k(f"s_add_u32 s36, s36, {LACT}")
    k("v_add3_u32 v6, v6, v7, s36")
    k("v_lshlrev_b32 v10, 4, v3")
    k(f"v_add_u32 v10, {LT1}, v10")
    k("s_mul_i32 s34, s5, 1280")
    k(f"s_add_u32 s35, s34, {LT1}")
    k("v_add_u32 v11, s35, v1")
    k("v_lshrrev_b32 v5, 2, v1")
    k("v_add_u32 v12, s35, v5")
    k(f"s_add_u32 s34, s34, {MODP}")
    k("s_cmp_lt_u32 s5, 2")
    k("s_cselect_b32 s36, 1.0, 0")
    k("s_cmp_lg_u32 s5, 0")
    k("s_cbranch_scc1 f_p0_ok")
    token(k)
    k("v_lshlrev_b32 v176, 3, v1")
    for q in range(4): k(f"s_mov_b32 s{60+q}, {F0 + q * 8192}")
    poll_missing(k, "f_p0", 28, ["s60", "s61", "s62", "s63"], 176, 177, 1, tok="s54")
    k.srd(16, 8, 9, WQF, WQF_SZ)
    k("v_add_u32 v7, 0x10000, v6")
    def six(first):
        for i in range(8):
            mem = [((first + (4*i+l)//5) * 6 + (4*i+l) % 5) * 1024 if 4*i+l < 30 else 0x40000000 for l in range(4)]
            lds = [WH[first + (4*i+l)//5] + ((4*i+l) % 5) * 1024 if 4*i+l < 30 else 163840 for l in range(4)]
            k(f"s_mov_b32 s37, {mem[0]}"); k(f"s_mov_b32 m0, {lds[0]}")
            for l in range(1, 4):
                k(f"s_cmp_eq_u32 s5, {l}")
                k(f"s_cselect_b32 s37, {mem[l]}, s37"); k(f"s_cselect_b32 m0, {lds[l]}, m0")
            k("s_add_u32 s37, s37, s10")
            k("buffer_load_dwordx4 v1, s[16:19], s37 offen sc1 lds")
    k("s_mul_i32 s10, s4, 122880")
    k("s_setprio 3")
    k("s_barrier")
    st1(k, 4)
    for q in range(4):
        k(f"buffer_load_dwordx4 {r(176+4*q)}, v1, s[28:31], s34 offen sc1")
        k(f"buffer_load_dword v{192+q}, v5, s[28:31], s34 offen offset:1024 sc1")
        if q < 3: k(f"s_add_u32 s34, s34, {MODP_ST}")
    k("s_waitcnt vmcnt(0)")
    for h in range(2):
        k(f"v_pk_add_f32 {r(176+2*h,2)}, {r(176+2*h,2)}, {r(180+2*h,2)}")
        k(f"v_pk_add_f32 {r(184+2*h,2)}, {r(184+2*h,2)}, {r(188+2*h,2)}")
    k("v_add_f32 v192, v192, v193")
    k("v_add_f32 v194, v194, v195")
    for h in range(2): k(f"v_pk_add_f32 {r(176+2*h,2)}, {r(176+2*h,2)}, {r(184+2*h,2)}")
    k("v_add_f32 v180, v192, v194")
    for rnd in range(2):
        for i in range(5): k(f"v_cvt_pk_bf16_f32 v{176+i}, v{176+i}, v{176+i}")
        for i in range(5): k(f"v_and_b32 v{176+i}, 0xffff0000, v{176+i}")
        if rnd == 0:
            for i in range(5): k(f"v_add_f32 v{176+i}, s36, v{176+i}")
    k(f"ds_write_b128 v11, {r(176)}")
    k("ds_write_b32 v12, v180 offset:1024")
    k("s_waitcnt lgkmcnt(0)")
    k("s_barrier")
    st1(k, 5)
    CO = (176, 194); T = 212
    def coefs(s):
        for j in range(4): k(f"ds_read_b128 {r(CO[s&1]+4*j)}, v10 offset:{j*1280 + s*256}")
    def valu(s):
        co = CO[s & 1]
        for i in range(4):
            a = XF0 + 40 * i + 8 * s; p = T + 4 * i
            for j in range(4): k(f"v_pk_fma_f32 {r(a+2*j,2)}, {r(a+2*j,2)}, {r(co+2*j,2)}, {r(co+8+2*j,2)}")
        for i in range(4):
            a = XF0 + 40 * i + 8 * s; p = T + 16 * (s & 1) + 4 * i
            for j in range(4): k(f"v_cvt_pk_bf16_f32 v{p+j}, v{a+2*j}, v{a+2*j+1}")
            o = s * ASL + i * 64
            k(f"ds_write_b128 {'v6' if o < 65536 else 'v7'}, {r(p)} offset:{o & 65535}")
    coefs(0); coefs(1)
    k("s_waitcnt lgkmcnt(4)")
    valu(0)
    for s in range(4):
        k("s_waitcnt lgkmcnt(4)")
        if s > 0: k("s_barrier")
        if s + 2 < 5:
            coefs(s + 2)
        valu(s + 1)
        if s + 2 >= 5: k("s_nop 0")
    k("s_waitcnt lgkmcnt(4)")
    k("s_barrier")
    for q in range(4): k(f"s_mov_b32 s{60+q}, {F1 + q * 8192}")
    k("v_lshlrev_b32 v96, 3, v1")
    k("s_waitcnt lgkmcnt(0)")
    k("s_barrier")
    k("s_barrier")
    six(8)
    k("s_waitcnt vmcnt(0)")
    k("s_barrier")
    six(14)
    k("s_waitcnt vmcnt(0)")
    k("s_barrier")
    k("s_cmp_lg_u32 s5, 0")
    k("s_cbranch_scc1 f_p1_ok")
    poll_missing(k, "f_p1", 28, ["s60", "s61", "s62", "s63"], 96, 97, 1)
    st1(k, 6)
    k.label("k1_done")
```

```python
from asmlib import Kern
from layout import *
from k0 import hexf, rowred
import os, math

K234_LDS = 163840
QA, QB, CM, S0, S1, OO, PP = 4, 8, 16, 32, 48, 64, 80
KF1 = (88, 92); KF2 = (96, 100); VF = (104, 112)
AK1, AK2, AV = 12, 13, 14
SIDE_SC = os.environ.get("SIDE_SC", "sc1")
Z_SC = os.environ.get("Z_SC", "sc1")
SPIN = 200000
POLLFL = os.environ.get('POLLFL', 'sc1')
KNAME = "adaLN_cond__grouped_kv_mqa__mixer_gmlp__prompt_kernel"
TZ = int(os.environ.get('TZ', '0'))
NC1 = int(os.environ.get('NC1', '8'))
F1SH = int(os.environ.get('F1SH', '5'))
PF7 = int(os.environ.get('PF7', '1'))
TOUCH = int(os.environ.get('TOUCH', '0'))
PF_WIN = int(os.environ.get('PF_WIN', '0'))
RETRY = 2000
PF_NEXT = int(os.environ.get('PF_NEXT', '0'))
GA_ = -2 * math.log2(math.e) * math.sqrt(2 / math.pi)
GB_ = GA_ * 0.044715
RB, CB8, W3, VV, RB128, CB16, FAST = 24, 25, 26, 27, 28, 29, 30
NOFAST = os.environ.get('NOFAST')

def prio(k, n):
    if not os.environ.get("NOPRIO"): k(f"s_setprio {n}")
def r(b, n=4): return f"v[{b}:{b+n-1}]"

def poll(k, name, srd, soff, nflag, vo, vf, want=None):
    if nflag:
        k(f"v_and_b32 v{vo}, {nflag-1}, v0")
        k(f"v_lshlrev_b32 v{vo}, 7, v{vo}")
    k("s_mov_b32 s38, 0")
    k(f"buffer_load_dword v{vf}, v{vo}, s[{srd}:{srd+3}], {soff} offen sc1")
    k("s_sleep 4")
    k.label(name)
    for h in range(2):
        k(f"buffer_load_dword v{vf+1-h}, v{vo}, s[{srd}:{srd+3}], {soff} offen sc1")
        if os.environ.get("PSLEEP"): k(f"s_sleep {os.environ['PSLEEP']}")
        k("s_waitcnt vmcnt(1)")
        k(f"v_cmp_ne_u32 vcc, 0, v{vf+h}" if want is None else f"v_cmp_eq_u32 vcc, {want}, v{vf+h}")
        k("s_cmp_eq_u64 vcc, -1")
        k(f"s_cbranch_scc1 {name}_ok")
    k("s_add_u32 s38, s38, 1")
    k(f"s_cmp_lt_u32 s38, {SPIN}")
    k(f"s_cbranch_scc1 {name}")
    k.label(name + "_ok")

def poll_missing(k, name, srd, soffs, vo, vf, sleep=1, tok=None):
    n = len(soffs)
    for q in range(n): k(f"v_mov_b32 v{vf+q}, 0" if tok is None else f"v_not_b32 v{vf+q}, {tok}")
    k("s_mov_b32 s38, 0")
    k("s_mov_b64 s[70:71], 0")
    k.label(name)
    for q in range(n):
        k(f"v_cmp_eq_u32 vcc, 0, v{vf+q}" if tok is None else f"v_cmp_ne_u32 vcc, {tok}, v{vf+q}")
        k("s_or_b64 s[70:71], s[70:71], vcc")
        k("s_cmp_eq_u64 vcc, 0")
        k(f"s_cbranch_scc1 {name}_s{q}")
        k("s_mov_b64 exec, vcc")
        k(f"buffer_load_dword v{vf+q}, v{vo}, s[{srd}:{srd+3}], {soffs[q]} offen {POLLFL}")
        k("s_mov_b64 exec, -1")
        k.label(f"{name}_s{q}")
    k("s_cmp_eq_u64 s[70:71], 0")
    k(f"s_cbranch_scc1 {name}_ok")
    k("s_mov_b64 s[70:71], 0")
    k("s_add_u32 s38, s38, 1")
    if sleep: k(f"s_sleep {sleep}")
    k("s_waitcnt vmcnt(0)")
    k(f"s_cmp_lt_u32 s38, {SPIN}")
    k(f"s_cbranch_scc1 {name}")
    k.label(name + "_ok")

def stores(k, lines):
    a = k.newlabel("sl"); b = k.newlabel("sd")
    k(f"s_cmp_eq_u32 s{FAST}, 0")
    k(f"s_cbranch_scc1 {a}")
    for l in lines: k(l)
    k(f"s_branch {b}")
    k.label(a)
    for l in lines: k(l + " sc1")
    k.label(b)

def setflag(k, srd, soff, lab, v=10, local=False, val="1", count=False):
    k("s_cmp_lg_u32 s5, 0")
    k(f"s_cbranch_scc1 {lab}")
    k(f"v_mov_b32 v{v}, {val}")
    k("s_mov_b64 exec, 1")
    if count: k(f"buffer_atomic_add v{v}, off, s[{srd}:{srd+3}], {soff}")
    elif local: stores(k, [f"buffer_store_dword v{v}, off, s[{srd}:{srd+3}], {soff}"])
    else: k(f"buffer_store_dword v{v}, off, s[{srd}:{srd+3}], {soff} sc1")
    k("s_mov_b64 exec, -1")
    k.label(lab)

def hint(k, srd, soff, v=10):
    k(f"v_mov_b32 v{v}, 1")
    k("s_mov_b64 exec, 1")
    k(f"buffer_store_dword v{v}, off, s[{srd}:{srd+3}], {soff} sc1")
    k("s_mov_b64 exec, -1")

def chk(k, c, b, n=4):
    for i in range(0, n, 2): k(f"v_max3_u32 v{c}, v{c}, v{b+i}, v{b+i+1}")

def verify(k, c, again, cnt):
    k(f"v_cmp_eq_u32 vcc, -1, v{c}")
    k(f"s_add_u32 s{cnt}, s{cnt}, 1")
    k(f"s_cmp_lt_u32 s{cnt}, {RETRY}")
    k("s_cselect_b64 s[70:71], vcc, 0")
    k("s_cmp_lg_u64 s[70:71], 0")
    k(f"s_cbranch_scc1 {again}")

def gelu(k, X, T, n):
    for i in range(n): k(f"v_pk_mul_f32 {r(T+2*i,2)}, {r(X+2*i,2)}, {r(X+2*i,2)}")
    for i in range(n): k(f"v_pk_fma_f32 {r(T+2*i,2)}, {r(T+2*i,2)}, v[12:13], v[12:13] op_sel:[0,1,0] op_sel_hi:[1,1,0]")
    for i in range(n): k(f"v_pk_mul_f32 {r(T+2*i,2)}, {r(T+2*i,2)}, {r(X+2*i,2)}")
    for i in range(2 * n): k(f"v_exp_f32 v{T+i}, v{T+i}")
    for i in range(n): k(f"v_pk_add_f32 {r(T+2*i,2)}, {r(T+2*i,2)}, 1.0 op_sel_hi:[1,0]")
    for i in range(2 * n): k(f"v_rcp_f32 v{T+i}, v{T+i}")
    for i in range(n): k(f"v_pk_mul_f32 {r(X+2*i,2)}, {r(X+2*i,2)}, {r(T+2*i,2)}")

def x1_addr(k, rt, cb, s0, dst, tmp, kg=3, l16=5):
    k(f"s_lshr_b32 s{s0}, s{rt}, 3")
    k(f"s_mul_i32 s{s0}, s{s0}, 40")
    k(f"s_mul_i32 s{s0+1}, s{cb}, 5")
    k(f"s_add_u32 s{s0}, s{s0}, s{s0+1}")
    k(f"s_lshl_b32 s{s0}, s{s0}, 12")
    k(f"s_bfe_u32 s{s0+1}, s{rt}, 0x20001")
    k(f"s_lshl_b32 s{s0+1}, s{s0+1}, 10")
    k(f"s_add_u32 s{s0}, s{s0}, s{s0+1}")
    k(f"s_and_b32 s{s0+1}, s{rt}, 1")
    k(f"s_lshl_b32 s{s0+1}, s{s0+1}, 8")
    k(f"s_add_u32 s{s0}, s{s0}, s{s0+1}")
    for j in range(1, 5): k(f"s_add_u32 s{s0+j}, s{s0}, {j*4096}")
    k(f"v_lshrrev_b32 v{dst}, 1, v{kg}")
    k(f"v_lshlrev_b32 v{dst}, 9, v{dst}")
    k(f"v_lshl_add_u32 v{dst}, v{l16}, 4, v{dst}")
    k(f"v_and_b32 v{tmp}, 1, v{kg}")
    k(f"v_lshl_add_u32 v{dst}, v{tmp}, 3, v{dst}")

def gemm80_resident(k, NK, order, ACT, A0, WB, srd, soff, lds_addr, wait, cb, bars={}, AH=11):
    k("v_add_u32 v8, 0xf000, v1")
    k("v_add_u32 v9, 0x1e000, v1")
    def ld(i):
        return [f"s_add_u32 s38, s{soff}, {order[i]*4096}\nbuffer_load_dwordx4 {r(ACT+4*i)}, v1, s[{srd}:{srd+3}], s38 offen sc1"]
    def rd(i):
        ks = order[i]; b = WB[i % 3]
        ad = lds_addr(ks); n = ad // 0xf000
        return [f"ds_read_b128 {r(b+4*j)}, {('v1', 'v8', 'v9')[n]} offset:{ad + j*1024 - n*0xf000}" for j in range(5)]
    for l in rd(0) + rd(1): k(l)
    wait()
    for i in range(AH): k(ld(i)[0])
    for i in range(NK):
        b = WB[i % 3]
        if i in bars: k("s_barrier")
        k(f"s_waitcnt vmcnt({min(AH-1, NK-1-i)}) lgkmcnt({5 if i < NK-1 else 0})")
        if os.environ.get("FINE3") and i in (0, 5, 12): k.stamp({0: 2, 5: 3, 12: 4}[i])
        fill = (rd(i + 2) if i + 2 < NK else [""] * 5)
        for j in range(5):
            c = "0" if i == 0 else r(A0 + 4 * j)
            k(f"v_mfma_f32_16x16x32_bf16 {r(A0+4*j)}, {r(b+4*j)}, {r(ACT+4*i)}, {c}")
            k(fill[j])
        if i + AH < NK: k(ld(i + AH)[0])
    if os.environ.get("FINE3"): k.stamp(7 if NK == 24 else 6)

def resid(k, A0, X, G, T):
    for i in range(10):
        k(f"v_lshlrev_b32 v{T+2*i}, 16, v{X+i}")
        k(f"v_and_b32 v{T+2*i+1}, 0xffff0000, v{X+i}")
    for i in range(10): k(f"v_pk_fma_f32 {r(A0+2*i,2)}, {r(A0+2*i,2)}, {r(G+2*i,2)}, {r(T+2*i,2)}")
    for i in range(10): k(f"v_cvt_pk_bf16_f32 v{X+i}, v{A0+2*i}, v{A0+2*i+1}")

def gen_k234():
    k = Kern(KNAME, 244, 100)
    k("s_cmp_ge_u32 s2, 256")
    k("s_cbranch_scc1 k2_end")
    k.stamp(0); k.rstamp(1)
    k("s_load_dwordx2 s[8:9], s[0:1], 112")
    from front import gen_front, LQ
    gen_front(k, poll_missing, KNAME, "code_end")
    k.srd(16, 8, 9, FL, FL_SZ)
    k("v_lshrrev_b32 v1, 6, v0")
    k("s_barrier")
    k("v_readfirstlane_b32 s5, v1")
    k("s_getreg_b32 s43, hwreg(HW_REG_XCC_ID, 0, 4)")
    k("s_add_u32 s42, s43, 1")
    if os.environ.get("FINE2"): k.stamp(4)
    k("v_and_b32 v1, 63, v0")
    k("v_lshlrev_b32 v1, 4, v1")
    k("s_lshl_b32 s10, s5, 10")
    k("s_mov_b32 m0, s10")
    k.srd(20, 8, 9, KV, KV_SZ)
    k("buffer_load_dwordx4 v1, s[20:23], m0 offen sc1 lds")
    k.srd(52, 8, 9, XID, 1024)
    k.srd(56, 8, 9, KMAX, 1024)
    k(f"buffer_load_dwordx4 {r(S1+8)}, v1, s[52:55], 0 offen sc1")
    k("s_add_u32 m0, m0, 0x2000")
    k(f"buffer_load_dwordx4 {r(S0)}, v1, s[56:59], 0 offen sc1")
    for i in range(3):
        k("buffer_load_dwordx4 v1, s[20:23], m0 offen sc1 lds")
        if i < 2:
            k("s_add_u32 m0, m0, 0x2000")
            k.nop(1)
    k("s_load_dwordx2 s[44:45], s[0:1], 0")
    k("s_load_dwordx4 s[48:51], s[0:1], 48")
    k("s_load_dwordx2 s[46:47], s[0:1], 72")
    k("s_and_b32 s3, s2, 7")
    k(f"s_lshl_b32 s{RB}, s3, 2")
    k("s_bfe_u32 s4, s2, 0x20003")
    k(f"s_add_u32 s{RB}, s{RB}, s4")
    k(f"s_lshr_b32 s{CB8}, s2, 5")
    k("v_and_b32 v2, 31, v0")
    k("v_bfe_u32 v3, v0, 5, 1")
    k(f"s_lshl_b32 s4, s{CB8}, 2")
    k(f"s_and_b32 s{W3}, s5, 3")
    k(f"s_add_u32 s4, s4, s{W3}")
    k(f"s_lshl_b32 s6, s{RB}, 1")
    k("s_lshr_b32 s43, s5, 2")
    k("s_add_u32 s6, s6, s43")
    k(f"s_mul_i32 s7, s{W3}, 2560")
    k("s_mul_i32 s11, s43, 1280")
    k("s_add_u32 s7, s7, s11")
    k(f"s_add_u32 s7, s7, {LQ}")
    k("v_add_u32 v15, s7, v1")
    k(f"ds_read_b128 {r(QA)}, v15")
    k("v_lshl_add_u32 v15, v2, 3, s7")
    k(f"v_mov_b32 v{QB}, 0")
    k(f"v_mov_b32 v{QB+1}, 0")
    k("s_mov_b32 exec_hi, 0")
    k(f"ds_read_b64 {r(QB,2)}, v15 offset:1024")
    k("s_mov_b64 exec, -1")
    prio(k, 3)
    k(f"s_bfe_u32 s{VV}, s2, 0x10003")
    k(f"s_lshr_b32 s{RB128}, s{RB}, 1")
    k(f"s_lshl_b32 s{CB16}, s{CB8}, 1")
    k(f"s_add_u32 s{CB16}, s{CB16}, s{VV}")
    k(f"v_mov_b32 v{AK1}, v1")
    k(f"v_lshlrev_b32 v{AK2}, 3, v2")
    k(f"v_add_u32 v{AK2}, 1024, v{AK2}")
    k(f"v_mul_u32_u24 v{AV}, 20, v3")
    k(f"v_add_u32 v{AV}, v{AV}, v2")
    k(f"v_lshlrev_b32 v{AV}, 4, v{AV}")
    k(f"v_add_u32 v{AV}, 1280, v{AV}")
    k("s_mov_b32 s40, 0x000fffff")
    k("s_mov_b32 s41, 0x000fffff")
    k("v_or_b32 v15, 4, v2")
    k("v_cmp_eq_u32 vcc, 28, v15")
    k("v_mov_b32 v15, 0x3f803f80")
    k("s_add_u32 s43, s43, 1")
    k(f"v_cndmask_b32 v{VF[0]}, 0, v15, vcc")
    for i in range(16): k(f"v_mov_b32 v{OO+i}, 0")
    for i in range(1, 16): k(f"v_mov_b32 v{VF[0]+i}, v{VF[0]}")
    for i in range(4, 8): k(f"v_mov_b32 v{PP+i}, 0")
    for b in (QB, KF2[0], KF2[1]):
        k(f"v_mov_b32 v{b+2}, 0"); k(f"v_mov_b32 v{b+3}, 0")
    k.srd(12, 8, 9, O, ACT_SZ)
    k(f"s_mul_i32 s7, s{CB8}, 102400")
    k(f"s_add_u32 s7, s7, {WOF}")
    k.srd(16 + 16, 8, 9, "s7", 102400)
    k("s_waitcnt vmcnt(3) lgkmcnt(0)")
    k("s_and_b32 s36, s2, 3")
    for q in range(1, 4):
        k(f"s_cmp_eq_u32 s36, {q}")
        k("s_cselect_b64 vcc, -1, 0")
        k(f"v_cndmask_b32 v{S1+8}, v{S1+8}, v{S1+8+q}, vcc")
    k("s_lshr_b32 s36, s2, 2")
    k(f"v_xor_b32 v{S1+12}, s36, v0")
    k(f"v_and_b32 v{S1+12}, 5, v{S1+12}")
    k(f"v_cmp_eq_u32 vcc, 0, v{S1+12}")
    k(f"v_cmp_ne_u32 s[36:37], s42, v{S1+8}")
    k.nop(1)
    k("s_and_b64 vcc, vcc, s[36:37]")
    k(f"s_cselect_b32 s{FAST}, 0, " + ("0" if NOFAST else "1"))
    k(f"v_max3_f32 v{S1}, v{S0}, v{S0+1}, v{S0+2}")
    k(f"v_max_f32 v{S1}, v{S1}, v{S0+3}")
    k(f"v_dot2_f32_bf16 v{S1+2}, v{QA}, v{QA}, 0")
    rowred(k, "v_max_f32", S1)
    for b in (QA + 1, QA + 2, QA + 3, QB, QB + 1):
        k(f"v_dot2_f32_bf16 v{S1+2}, v{b}, v{b}, v{S1+2}")
    k(f"v_mov_b32 v{S1+1}, v{S1}")
    k.nop(3)
    k(f"v_mov_b32 v{S1+3}, v{S1+2}")
    k(f"v_permlane16_swap_b32 v{S1}, v{S1+1}")
    k(f"v_max_f32 v{S1}, v{S1}, v{S1+1}")
    k(f"v_permlane32_swap_b32 v{S1+2}, v{S1+3}")
    k(f"v_mov_b32 v{S1+1}, v{S1}")
    k(f"v_add_f32 v{S1+2}, v{S1+2}, v{S1+3}")
    k.nop(1)
    k(f"v_permlane32_swap_b32 v{S1}, v{S1+1}")
    k(f"v_add_f32 v{S1}, v{S1}, v{S1+1}")
    k(f"v_mul_f32 v{S1}, v{S1}, v{S1+2}")
    k(f"v_sqrt_f32 v{S1}, v{S1}")
    k.nop(1)
    k(f"v_mov_b32 v{S1+1}, {hexf(-1.001)}")
    k(f"v_fmaak_f32 v{CM}, v{S1}, v{S1+1}, {hexf(60.0)}")
    for i in range(1, 16): k(f"v_mov_b32 v{CM+i}, v{CM}")
    def rdK(t, buf):
        k(f"ds_read_b128 {r(KF1[buf])}, v{AK1} offset:{t*2560}")
        k(f"ds_read_b64 {r(KF2[buf],2)}, v{AK2} offset:{t*2560}")
    def rdV(t, buf):
        k("s_mov_b64 exec, s[40:41]")
        k(f"ds_read_b128 {r(VF[buf])}, v{AV} offset:{t*2560}")
        k(f"ds_read_b128 {r(VF[buf]+4)}, v{AV} offset:{t*2560+640}")
        k("s_mov_b64 exec, -1")
    SB = (S0, S1)
    k("s_waitcnt vmcnt(0) lgkmcnt(0)")
    k("s_barrier")
    if not (os.environ.get("ITER") or os.environ.get("FINE1")): k.stamp(2)
    rdK(0, 0); rdK(1, 1); rdV(0, 0)
    k("s_waitcnt lgkmcnt(4)")
    k(f"v_mfma_f32_32x32x16_bf16 {r(S0,16)}, {r(KF1[0])}, {r(QA)}, {r(CM,16)}")
    k(f"v_mfma_f32_32x32x16_bf16 {r(S0,16)}, {r(KF2[0])}, {r(QB)}, {r(S0,16)}")
    k.nop(8)
    def body(dma, every=5, last=False, first=False):
        left = list(dma)
        body.n0 = len(k.lines)
        def ex(reg):
            if left and ex.n % every == 1:
                srd, pre, fl = left.pop(0)
                k(pre)
                k(f"v_exp_f32 v{reg}, v{reg}")
                if fl is None: k(f"buffer_load_dwordx4 v[172:175], v1, s[{srd}:{srd+3}], s53 offen sc1")
                else: k(f"buffer_load_dwordx4 v1, s[{srd}:{srd+3}], m0 offen {fl}lds")
            else:
                k(f"v_exp_f32 v{reg}, v{reg}")
            ex.n += 1
        ex.n = 0
        for t in range(8):
            cur = SB[t & 1]; nxt = SB[(t + 1) & 1]
            def E(lo):
                for i in range(lo, lo + 4): ex(cur + i)
                for i in range(lo // 2, lo // 2 + 2): k(f"v_cvt_pk_bf16_f32 v{PP+i}, v{cur+2*i}, v{cur+2*i+1}")
            fin = last and t == 7
            if (last or first) and t in (2, 4, 6): prio(k, 3 - t // 2)
            k("s_waitcnt lgkmcnt(0)")
            if not (last and t >= 6): rdK(t + 2, t & 1)
            else: k.nop(1)
            k(f"v_mfma_f32_32x32x16_bf16 {r(OO,16)}, {r(VF[(t+1)&1]+4)}, {r(PP+4)}, {r(OO,16)}")
            E(0)
            if not fin:
                k(f"v_mfma_f32_32x32x16_bf16 {r(nxt,16)}, {r(KF1[(t+1)&1])}, {r(QA)}, {r(CM,16)}")
                rdV(t + 1, (t + 1) & 1)
            E(4)
            if not fin: k(f"v_mfma_f32_32x32x16_bf16 {r(nxt,16)}, {r(KF2[(t+1)&1])}, {r(QB)}, {r(nxt,16)}")
            if t == 7 and not last:
                k(f"v_add_u32 v{AK1}, 20480, v{AK1}")
                k(f"v_add_u32 v{AK2}, 20480, v{AK2}")
                k(f"v_add_u32 v{AV}, 20480, v{AV}")
            E(8)
            k(f"v_mfma_f32_32x32x16_bf16 {r(OO,16)}, {r(VF[t&1])}, {r(PP)}, {r(OO,16)}")
            E(12)
        assert not left
        X = os.environ.get("XP", "")
        if X:
            new = []
            for l in k.lines[body.n0:]:
                if "nopv" in X and "v_mfma" in l and l.split()[1].startswith(f"v[{OO}:"): l = "    s_nop 0"
                if "noqk2" in X and "v_mfma" in l and f"{r(QB)}" in l: l = "    s_nop 0"
                if "nolds" in X and "ds_read" in l: l = "    s_nop 0"
                if "noexp" in X and "v_exp" in l: l = l.replace("v_exp_f32", "v_mov_b32")
                if "nocvt" in X and "v_cvt_pk" in l: l = "    s_nop 0"
                if "qk8" in X and "v_mfma" in l and f"{r(QB)}" in l:
                    l = l.replace("v_mfma_f32_32x32x16_bf16", "v_mfma_f32_32x32x8bf16_1k").replace(r(QB), r(QB, 2)).replace(r(KF2[0]), r(KF2[0], 2)).replace(r(KF2[1]), r(KF2[1], 2))
                new.append(l)
            k.lines[body.n0:] = new
        if last:
            k.nop(2)
            k(f"v_mfma_f32_32x32x16_bf16 {r(OO,16)}, {r(VF[1]+4)}, {r(PP+4)}, {r(OO,16)}")
    INC = "s_add_u32 m0, m0, 0x2000"
    body([(20, INC, 'sc1 ')] * 16, first=True)
    k("s_waitcnt vmcnt(0)")
    k("s_barrier")
    k("s_mov_b32 s42, 1")
    k("s_add_u32 s39, s43, 2")
    k("s_branch k2_disp")
    k.lines.append(".p2align 6")
    k.label("k2_loop")
    body([])
    k("s_add_u32 s42, s42, 1")
    k.label("k2_disp")
    if os.environ.get("ITER"):
        for i in range(1, 7):
            k(f"s_cmp_eq_u32 s42, {i}")
            k(f"s_cbranch_scc0 k2_it{i}")
            k.stamp(i + 1)
            k.label(f"k2_it{i}")
    if not os.environ.get("NOSIDE"):
        k("s_cmp_eq_u32 s42, s43")
        k("s_cbranch_scc1 k2_sideld")
        k("s_cmp_eq_u32 s42, s39")
        k("s_cbranch_scc1 k2_side")
    k.label("k2_cont")
    prio(k, 3)
    k("s_cmp_eq_u32 s42, 1")
    k("s_cbranch_scc1 k2_loop")
    k("s_cmp_eq_u32 s42, 5")
    k("s_cbranch_scc1 " + ("k2_loop" if os.environ.get("NOBLK") else "k2_blk5"))
    prio(k, 2)
    k("s_cmp_eq_u32 s42, 2")
    k("s_cbranch_scc1 k2_loop")
    k("s_cmp_eq_u32 s42, 6")
    k("s_cbranch_scc1 " + ("k2_loop" if os.environ.get("NOBLK") else "k2_blk6"))
    prio(k, 1)
    k("s_cmp_eq_u32 s42, 3")
    k("s_cbranch_scc1 k2_loop")
    prio(k, 0)
    k("s_cmp_eq_u32 s42, 4")
    k("s_cbranch_scc1 k2_loop")
    prio(k, 3)
    k("s_sub_u32 m0, s10, 0x2000")
    k(f"s_mul_i32 s7, s{CB16}, 122880")
    k(f"s_add_u32 s7, s7, {WINF - 40960}")
    k.srd(72, 8, 9, "s7", 163840)
    k.srd(68, 8, 9, WINF, WINF_SZ)
    k("s_lshr_b32 s53, s2, 3")
    k("s_lshl_b32 s53, s53, 3")
    k("s_add_u32 s53, s53, s5")
    k("s_mul_i32 s53, s53, 7680")
    k("s_sub_u32 s53, s53, 1024")
    k("s_cmp_lg_u32 s5, " + ("99" if os.environ.get("NOBLK") else "0"))
    k("s_cbranch_scc1 k2_fsok")
    k("s_mov_b32 s38, 0")
    k.label("k2_fschk")
    k("s_waitcnt vmcnt(0)")
    k("v_min3_u32 v168, v168, v169, v170")
    k("v_min_u32 v168, v168, v171")
    k("v_cmp_ne_u32 vcc, 0, v168")
    k("s_cmp_eq_u64 vcc, -1")
    k("s_cbranch_scc1 k2_fsok")
    k("s_sleep 1")
    k(f"buffer_load_dwordx4 v[168:171], v1, s[16:19], s37 offen sc1")
    k("s_add_u32 s38, s38, 1")
    k(f"s_cmp_lt_u32 s38, {SPIN}")
    k("s_cbranch_scc1 k2_fschk")
    k.label("k2_fsok")
    k("s_barrier")
    body([(72, 's_add_u32 m0, s10, 102400', 'sc1 ')] + [(72, INC, 'sc1 ')] * 4 + [(68, 's_add_u32 s53, s53, 1024', None)] * (8 if PF7 else 0), every=4 if PF7 else 7, last=True)
    if os.environ.get("ITER"):
        k.endpgm(0)
    if not os.environ.get("FINE1"): k.stamp(3)
    k(f"v_mov_b32 v15, {hexf(2.0**-100)}")
    k.nop(11)
    k(f"v_cmp_nge_f32 vcc, v{OO+12}, v15")
    k.nop(5)
    k("s_cbranch_vccnz k2_slow")
    k.label("k2_epi")
    k(f"v_rcp_f32 v{S0}, v{OO+12}")
    k(f"s_mul_i32 s7, s{RB}, 81920")
    k("s_and_b32 s10, s6, 1")
    k("s_lshl_b32 s10, s10, 11")
    k("s_add_u32 s10, s7, s10")
    k(f"v_lshrrev_b32 v{S0+3}, 4, v2")
    k(f"v_lshlrev_b32 v{S0+3}, 10, v{S0+3}")
    k(f"v_and_b32 v{S0+2}, 15, v2")
    k(f"v_lshl_add_u32 v{S0+3}, v{S0+2}, 4, v{S0+3}")
    k("s_mul_i32 s11, s4, 20")
    k(f"v_lshl_add_u32 v{S0+4}, v3, 2, s11")
    for i in range(6):
        k(f"v_pk_mul_f32 {r(OO+2*i,2)}, {r(OO+2*i,2)}, {r(S0,2)} op_sel_hi:[1,0]")
    for i in range(6):
        k(f"v_cvt_pk_bf16_f32 v{PP+i}, v{OO+2*i}, v{OO+2*i+1}")
    for i in range(3):
        c = S0 + 8 + 4 * i
        k(f"v_add_u32 v{c}, {8*i}, v{S0+4}")
        k(f"v_lshrrev_b32 v{c+1}, 5, v{c}")
        k(f"v_lshl_add_u32 v{c+1}, v{c+1}, 12, v{S0+3}")
        k(f"v_bfe_u32 v{c+2}, v{c}, 3, 2")
        k(f"v_lshl_add_u32 v{c+1}, v{c+2}, 8, v{c+1}")
        k(f"v_and_b32 v{c+2}, 4, v{c}")
        k(f"v_lshl_add_u32 v{c+1}, v{c+2}, 1, v{c+1}")
        if i == 2:
            k(f"v_lshl_add_u32 v{c+1}, v3, 30, v{c+1}")
    stores(k, [f"buffer_store_dwordx2 {r(PP+2*i,2)}, v{S0+9+4*i}, s[12:15], s10 offen" for i in range(3)])
    k(f"s_lshl_b32 s36, s{RB}, 10")
    k(f"s_add_u32 s36, s36, {F2 - FL}")
    k(f"s_lshl_b32 s37, s{CB8}, 7")
    k("s_add_u32 s37, s37, s36")
    k("s_load_dwordx2 s[44:45], s[0:1], 64")
    k("s_load_dwordx2 s[46:47], s[0:1], 96")
    k("s_cmp_ge_u32 s5, 4")
    k("s_cbranch_scc1 k2_loader")
    XR_, GA_R, ACT, A0, WB = 120, 132, 16, 96, (152, 172, 192)
    k("s_waitcnt vmcnt(0) lgkmcnt(0)")
    k("s_barrier")
    setflag(k, 16, "s37", "k2_f2done", local=True)
    if not (os.environ.get("FINE1") or os.environ.get("FINE2")): k.stamp(4)
    k("v_bfe_u32 v3, v0, 4, 2")
    k("v_and_b32 v5, 15, v0")
    k(f"s_lshl_b32 s6, s{RB}, 2")
    k("s_add_u32 s6, s6, s5")
    x1_addr(k, 6, CB8, 60, 6, 7)
    k("s_lshl_b32 s10, s5, 10")
    k("s_add_u32 s7, s7, s10")
    k.srd(52, 8, 9, X1, ACT_SZ)
    k.srd(56, 8, 9, SP2, SP2_SZ)
    def w3():
        poll(k, "k2_p2", 16, "s36", 8, 10, 11)
        if not (os.environ.get("FINE1") or os.environ.get("FINE2")): k.stamp(5)
    gemm80_resident(k, 20, list(range(8, 20)) + list(range(8)), ACT, A0, WB, 12, 7, lambda ks: ks * 5120,
                    w3, CB8, bars={9: 1, 12: 1})
    if os.environ.get("FINE"): k.stamp(2)
    k.nop(5)
    resid(k, A0, XR_, GA_R, WB[0])
    k("v_and_b32 v7, 1, v3")
    k("v_mul_u32_u24 v7, 4088, v7")
    k("v_add_u32 v7, v7, v6")
    for i in range(10):
        k(f"v_lshlrev_b32 v{A0+2*i}, 16, v{XR_+i}")
        k(f"v_and_b32 v{A0+2*i+1}, 0xffff0000, v{XR_+i}")
    for i in range(10): k(f"v_mov_b32 v{232+i}, v{XR_+i}")
    for p in range(2):
        k(f"v_permlane16_swap_b32 v{XR_+4*p}, v{XR_+4*p+2}")
        k(f"v_permlane16_swap_b32 v{XR_+4*p+1}, v{XR_+4*p+3}")
    stores(k, [f"buffer_store_dwordx4 {r(XR_+4*p)}, v7, s[52:55], s{60+2*p} offen" for p in range(2)] +
              [f"buffer_store_dwordx2 {r(XR_+8,2)}, v6, s[52:55], s64 offen"])
    k(f"v_pk_add_f32 v[10:11], {r(A0,2)}, {r(A0+2,2)}")
    k(f"v_pk_mul_f32 v[12:13], {r(A0,2)}, {r(A0,2)}")
    for i in range(1, 10):
        if i > 1: k(f"v_pk_add_f32 v[10:11], v[10:11], {r(A0+2*i,2)}")
        k(f"v_pk_fma_f32 v[12:13], {r(A0+2*i,2)}, {r(A0+2*i,2)}, v[12:13]")
    k("v_add_f32 v10, v10, v11")
    k("v_add_f32 v12, v12, v13")
    k(f"s_lshl_b32 s36, s{RB}, 3")
    k(f"s_add_u32 s36, s36, s{CB8}")
    k("v_lshlrev_b32 v7, 3, v5")
    k("v_permlane16_swap_b32 v10, v12")
    k("v_add_f32 v10, v10, v12")
    k("v_mov_b32 v12, v10")
    k("v_and_b32 v8, 1, v3")
    k("v_lshl_add_u32 v7, v8, 2, v7")
    k("v_permlane32_swap_b32 v10, v12")
    k("v_add_f32 v10, v10, v12")
    k("v_lshrrev_b32 v8, 1, v3")
    k("v_lshl_add_u32 v7, v8, 30, v7")
    k("s_lshl_b32 s36, s36, 9")
    k("s_lshl_b32 s37, s5, 7")
    k("s_add_u32 s36, s36, s37")
    stores(k, ["buffer_store_dword v10, v7, s[56:59], s36 offen"])
    k(f"s_lshl_b32 s36, s{RB128}, 11")
    k(f"s_add_u32 s36, s36, {F3 - FL}")
    k(f"s_lshl_b32 s37, s{CB16}, 7")
    k("s_add_u32 s37, s37, s36")
    if os.environ.get("FINE"): k.stamp(3)
    k("s_waitcnt vmcnt(0)")
    k("s_barrier")
    setflag(k, 16, "s37", "k2_f3done", 11, local=True)
    if os.environ.get("FINE"): k.stamp(4)
    ACT, A0, WB, ST = 16, 80, 128, 152
    NR = 16; AH = 12
    k("v_bfe_u32 v3, v0, 5, 1")
    k(f"s_lshl_b32 s6, s{RB128}, 2")
    k("s_add_u32 s6, s6, s5")
    k(f"s_mul_i32 s7, s{RB128}, 163840")
    k("s_add_u32 s7, s7, s10")
    k("s_lshl_b32 s11, s6, 11")
    k("s_and_b32 s37, s5, 1")
    k("s_mul_i32 s37, s37, 1792")
    k("s_sub_u32 s11, s11, s37")
    k("v_lshlrev_b32 v4, 3, v2")
    k("v_lshl_add_u32 v6, v3, 11, v4")
    k("v_add_u32 v7, 40960, v1")
    k("v_add_u32 v14, 102400, v1")
    k(f"v_mov_b32 v12, {hexf(GA_)}")
    k(f"v_mov_b32 v13, {hexf(GB_)}")
    order = list(range(20, 40)) + list(range(20))
    def ld(i):
        k(f"s_add_u32 s38, s7, {order[i]*4096}")
        k(f"buffer_load_dwordx4 {r(ACT+4*(i%NR))}, v1, s[52:55], s38 offen sc1")
    def rd(i):
        ks = order[i]; b = WB + 12 * (i & 1)
        a, base = ("v7", 0) if ks < 20 else ("v14", 61440)
        for j in range(3): k(f"ds_read_b128 {r(b+4*j)}, {a} offset:{ks*3072 + j*1024 - base}")
    rd(0)
    k(f"s_mul_i32 s37, s{RB128}, 163840")
    k(f"s_mul_i32 s39, s{CB16}, 10240")
    k("s_add_u32 s37, s37, s39")
    k("s_mul_i32 s39, s5, 2560")
    k("s_add_u32 s37, s37, s39")
    poll(k, "k2_p3", 16, "s36", 16, 10, 164)
    if not os.environ.get("FINE1") and not os.environ.get("FINE3") and not os.environ.get("FINE2"): k.stamp(6)
    for i in range(4): k(f"buffer_load_dwordx2 {r(ST+2*i,2)}, v6, s[56:59], s11 offen offset:{i*512} sc1")
    ld(0); ld(1)
    if TOUCH:
        for i in range(3): k(f"buffer_load_dwordx4 {r(160)}, v1, s[52:55], s37 offen offset:{min(i*1024, 1536)} sc1")
    for i in range(2, AH): ld(i)
    k(f"s_cmp_eq_u32 s{VV}, 0")
    k("s_cbranch_scc0 k2_p4B")
    LC1, LC2, LTAB = 0, 1024, 2048
    def rowtab(S, n, bias_s, bias_q):
        k(f"v_mov_b32 v{S+2}, v{S}")
        k(f"v_mov_b32 v{S+3}, v{S+1}")
        k("s_lshl_b32 s36, s5, 8")
        k(f"s_add_u32 s36, s36, {LTAB}")
        k(f"v_permlane32_swap_b32 v{S}, v{S+2}")
        k(f"v_permlane32_swap_b32 v{S+1}, v{S+3}")
        k(f"v_pk_add_f32 {r(S,2)}, {r(S,2)}, {r(S+2,2)}")
        k("v_lshl_add_u32 v10, v2, 2, s36")
        k(f"v_mov_b32 v{S+2}, {hexf(1.0/n)}")
        k(f"v_fmaak_f32 v8, v{S}, v{S+2}, {hexf(-bias_s/n)}")
        k(f"v_fmaak_f32 v9, v{S+1}, v{S+2}, {hexf(1e-5 - bias_q/n)}")
        k("v_fma_f32 v9, -v8, v8, v9")
        k("v_rsq_f32 v11, v9")
        k.nop(1)
        k("v_mul_f32 v9, v8, v11")
        k("v_sub_f32 v9, 0, v9")
        k("v_mov_b32 v8, v11")
        k("ds_write_b32 v10, v8")
        k("ds_write_b32 v10, v9 offset:128")
    for var in range(2):
        if var == 1: k.label("k2_p4B")
        types = ("z2", "z2", "z1") if var == 0 else ("z2", "z1", "z1")
        for i in range(40):
            b = WB + 12 * (i & 1); a = ACT + 4 * (i % NR)
            if i == 12: k("s_barrier")
            k(f"s_waitcnt vmcnt({min(AH-1, 39 - i)}) lgkmcnt(0)")
            if os.environ.get("FINE4") and i in (0, 6, 13, 26): k.stamp({0: 2, 6: 3, 13: 4, 26: 5}[i])
            for j in range(3):
                c = "0" if i == 0 else r(A0 + 16 * j, 16)
                x, y = (r(a), r(b + 4 * j)) if types[j] == "z2" else (r(b + 4 * j), r(a))
                k(f"v_mfma_f32_32x32x16_bf16 {r(A0+16*j,16)}, {x}, {y}, {c}")
                if j == 0 and i < 39: rd(i + 1)
                if j == 1 and i + AH < 40: ld(i + AH)
            if i == 21:
                k(f"v_pk_add_f32 {r(ST,2)}, {r(ST,2)}, {r(ST+2,2)}")
                k(f"v_pk_add_f32 {r(ST+4,2)}, {r(ST+4,2)}, {r(ST+6,2)}")
                k(f"v_pk_add_f32 {r(ST,2)}, {r(ST,2)}, {r(ST+4,2)}")
                rowtab(ST, 640, 0.0, 0.0)
                k("s_waitcnt lgkmcnt(0)")
        k("s_barrier")
        if not os.environ.get("FINE1") and not os.environ.get("FINE5"): k.stamp(7)
        RR, NN, CC, SS, QQ, T, CV = 16, 32, 48, 128, 144, 56, 160
        nz2 = types.count("z2")
        k("v_lshl_add_u32 v10, v3, 4, s36")
        k("v_lshlrev_b32 v11, 2, v2")
        def rd_tab():
            for a in range(4):
                k(f"ds_read_b128 {r(RR+4*a)}, v10 offset:{a*32}")
                k(f"ds_read_b128 {r(NN+4*a)}, v10 offset:{128 + a*32}")
        rd_tab()
        for n in range(nz2):
            k(f"ds_read_b32 v{CC+2*n}, v11 offset:{LC1 + n*128}")
            k(f"ds_read_b32 v{CC+2*n+1}, v11 offset:{LC2 + n*128}")
        k.srd(60, 8, 9, STP, STP_SZ)
        k.srd(64, 8, 9, Z1, Z_SZ)
        k.srd(68, 8, 9, Z2, Z_SZ)
        k("v_lshlrev_b32 v15, 4, v3")
        def rd_c(n):
            for a in range(4):
                k(f"ds_read_b128 {r(CV+4*a)}, v15 offset:{LC1 + n*128 + a*32}")
                k(f"ds_read_b128 {r(CV+16+4*a)}, v15 offset:{LC2 + n*128 + a*32}")
        k("s_waitcnt lgkmcnt(0)")
        rd_c(nz2)
        for n in range(nz2):
            X = A0 + 16 * n; c = r(CC + 2 * n, 2)
            for i in range(8): k(f"v_pk_fma_f32 {r(T+2*i,2)}, {r(NN+2*i,2)}, {c}, {c} op_sel:[0,0,1] op_sel_hi:[1,0,1]")
            for i in range(8): k(f"v_pk_fma_f32 {r(X+2*i,2)}, {r(X+2*i,2)}, {r(RR+2*i,2)}, {r(T+2*i,2)}")
            gelu(k, X, T, 8)
            for i in range(8):
                if n == 0: k(f"v_pk_mul_f32 {r(QQ+2*i,2)}, {r(X+2*i,2)}, {r(X+2*i,2)}")
                else: k(f"v_pk_fma_f32 {r(QQ+2*i,2)}, {r(X+2*i,2)}, {r(X+2*i,2)}, {r(QQ+2*i,2)}")
        for i in range(8):
            if nz2 == 2: k(f"v_pk_add_f32 {r(SS+2*i,2)}, {r(A0+2*i,2)}, {r(A0+16+2*i,2)}")
            else: k(f"v_pk_mul_f32 {r(SS+2*i,2)}, {r(A0+2*i,2)}, 1.0 op_sel_hi:[1,0]")
        k("v_and_b32 v4, 3, v0")
        k("v_bfe_u32 v5, v0, 2, 2")
        for i in range(16): k(f"v_permlane16_swap_b32 v{SS+i}, v{QQ+i}")
        for i in range(16): k(f"v_add_f32 v{SS+i}, v{SS+i}, v{QQ+i}")
        for j in range(8): k(f"v_add_f32_dpp v{SS+j}, v{SS+j}, v{SS+j} row_ror:8 row_mask:0xf bank_mask:0x3")
        for j in range(8): k(f"v_add_f32_dpp v{SS+j}, v{SS+8+j}, v{SS+8+j} row_ror:8 row_mask:0xf bank_mask:0xc")
        for j in range(4): k(f"v_add_f32_dpp v{SS+j}, v{SS+j}, v{SS+j} row_half_mirror row_mask:0xf bank_mask:0x5")
        for j in range(4): k(f"v_add_f32_dpp v{SS+j}, v{SS+4+j}, v{SS+4+j} row_half_mirror row_mask:0xf bank_mask:0xa")
        for j in range(4): k(f"v_add_f32_dpp v{SS+j}, v{SS+j}, v{SS+j} quad_perm:[2,3,0,1] row_mask:0xf bank_mask:0xf")
        for j in range(4): k(f"v_add_f32_dpp v{SS+j}, v{SS+j}, v{SS+j} quad_perm:[1,0,3,2] row_mask:0xf bank_mask:0xf")
        k("v_lshl_add_u32 v4, v5, 3, v4")
        k("v_lshl_add_u32 v4, v3, 2, v4")
        k("v_lshlrev_b32 v4, 3, v4")
        k("v_bfe_u32 v5, v0, 4, 1")
        k("v_lshl_add_u32 v4, v5, 2, v4")
        k("v_cvt_f32_u32 v5, v5")
        k(f"v_fmaak_f32 v5, {hexf(-15.0)}, v5, {hexf(16.0)}" if False else f"v_mul_f32 v5, {hexf(-15.0)}, v5")
        k(f"v_add_f32 v5, {hexf(16.0)}, v5")
        for j in range(1, 4):
            m = hex(0x11111111 << j)
            k(f"s_mov_b32 s40, {m}")
            k(f"s_mov_b32 s41, {m}")
            k(f"v_cndmask_b32 v{SS}, v{SS}, v{SS+j}, s[40:41]")
        k(f"s_lshl_b32 s37, s{RB128}, 14")
        k("s_lshl_b32 s38, s5, 8")
        k("s_add_u32 s37, s37, s38")
        k(f"s_lshl_b32 s38, s{CB16}, 10")
        k("s_add_u32 s38, s38, s37")
        k(f"v_add_f32 v{SS}, v{SS}, v5")
        stores(k, [f"buffer_store_dword v{SS}, v4, s[60:63], s38 offen"])
        k("s_mul_i32 s39, s6, 24")
        k(f"s_mul_i32 s38, s{CB8}, 3")
        k("s_add_u32 s39, s39, s38")
        k(f"s_add_u32 s39, s39, {var}")
        k("s_lshl_b32 s39, s39, 11")
        for n in range(nz2, 3):
            X = A0 + 16 * n
            k("s_waitcnt lgkmcnt(0)")
            for i in range(8):
                k(f"v_pk_fma_f32 {r(T+2*i,2)}, v[8:9], {r(CV+2*i,2)}, {r(CV+16+2*i,2)} op_sel:[1,0,0] op_sel_hi:[1,1,1]")
            if n < 2: rd_c(n + 1)
            for i in range(8):
                k(f"v_pk_fma_f32 {r(X+2*i,2)}, {r(X+2*i,2)}, v[8:9], {r(T+2*i,2)} op_sel_hi:[1,0,1]")
            gelu(k, X, T, 8)
            P = SS + 8 * (n - nz2)
            for i in range(8): k(f"v_cvt_pk_bf16_f32 v{P+i}, v{X+2*i}, v{X+2*i+1}")
            if n < 2:
                for ap in range(2):
                    k(f"buffer_store_dwordx4 {r(P+4*ap)}, v1, s[64:67], s39 offen offset:{(n-nz2)*2048 + ap*1024} {Z_SC}")
        G = CV
        k("v_lshlrev_b32 v4, 3, v2")
        k("v_lshl_add_u32 v4, v3, 13, v4")
        k("s_add_u32 s38, s37, 4096")
        k("s_mov_b32 s42, 0")
        lab = f"k2_st{var}"
        k.label(lab)
        for i in range(8):
            k(f"buffer_load_dwordx2 {r(G+2*i,2)}, v4, s[60:63], {'s37' if i < 4 else 's38'} offen offset:{(i&3)*1024} sc1")
        k("s_cmp_lg_u32 s42, 0")
        k(f"s_cbranch_scc1 {lab}_w0")
        for ap in range(2):
            k(f"buffer_store_dwordx4 {r(P+4*ap)}, v1, s[64:67], s39 offen offset:{(2-nz2)*2048 + ap*1024} {Z_SC}")
        k("s_waitcnt vmcnt(2)")
        k(f"s_branch {lab}_w1")
        k.label(lab + "_w0")
        k("s_waitcnt vmcnt(0)")
        k.label(lab + "_w1")
        k("s_add_u32 s42, s42, 1")
        k(f"v_min3_u32 v5, v{G}, v{G+1}, v{G+2}")
        for i in range(6): k(f"v_min3_u32 v5, v5, v{G+3+2*i}, v{G+4+2*i}")
        k(f"v_min_u32 v5, v5, v{G+15}")
        k("v_cmp_ne_u32 vcc, 0, v5")
        k("s_cmp_eq_u64 vcc, -1")
        k(f"s_cbranch_scc1 {lab}_ok")
        k("s_sleep 1")
        k(f"s_cmp_lt_u32 s42, {SPIN}")
        k(f"s_cbranch_scc1 {lab}")
        k.label(lab + "_ok")
        for a, b_ in ((0, 2), (4, 6), (8, 10), (12, 14), (0, 4), (8, 12), (0, 8)):
            k(f"v_pk_add_f32 {r(G+a,2)}, {r(G+a,2)}, {r(G+b_,2)}")
        rowtab(G, 768, 256.0, 16.0)
        k("v_lshl_add_u32 v10, v3, 4, s36")
        k(f"s_lshl_b32 s37, s{CB8}, 7")
        k("s_lshl_b32 s38, s6, 1")
        k("s_add_u32 s37, s37, s38")
        k("s_mul_i32 s37, s37, 3072")
        k(f"s_add_u32 s37, s37, {2048*var}")
        k("s_add_u32 s38, s37, 3072")
        k("s_waitcnt lgkmcnt(0)")
        rd_tab()
        k("s_waitcnt lgkmcnt(0)")
        for n in range(nz2):
            X = A0 + 16 * n; P = T + 8 * n
            for i in range(8): k(f"v_pk_fma_f32 {r(X+2*i,2)}, {r(X+2*i,2)}, {r(RR+2*i,2)}, {r(NN+2*i,2)}")
            for i in range(8): k(f"v_cvt_pk_bf16_f32 v{P+i}, v{X+2*i}, v{X+2*i+1}")
            k.nop(1)
            for h in range(2):
                k(f"v_permlane32_swap_b32 v{P+4*h}, v{P+4*h+2}")
                k(f"v_permlane32_swap_b32 v{P+4*h+1}, v{P+4*h+3}")
                k(f"buffer_store_dwordx4 {r(P+4*h)}, v1, s[68:71], {'s37' if h == 0 else 's38'} offen offset:{n*1024} {Z_SC}")
        if var == 0: k("s_branch k2_zdone")
    k.label("k2_zdone")
    k(f"s_lshl_b32 s37, s{RB128}, 4")
    k(f"s_add_u32 s37, s37, s{CB16}")
    k("s_lshl_b32 s37, s37, 7")
    k(f"s_add_u32 s37, s37, {F4 - FL}")
    k("s_waitcnt vmcnt(0)")
    k("s_barrier")
    setflag(k, 16, "s37", "k2_f4done")
    if os.environ.get("FINE5"): k.stamp(7)
    from k56 import gen_k56
    gen_k56(k, RB, CB8, W3)
    k.label("k2_loader")
    k.srd(56, 8, 9, C1, 12288)
    k(f"s_lshl_b32 s10, s{W3}, 10")
    k("s_waitcnt vmcnt(0) lgkmcnt(0)")
    k("s_barrier")
    if not (os.environ.get("FINE1") or os.environ.get("FINE2")): k.stamp(4)
    def win(base, n):
        k(f"s_add_u32 m0, s10, {base}")
        for i in range(n):
            k.nop(1)
            k("buffer_load_dwordx4 v1, s[72:75], m0 offen sc1 lds")
            if i < n - 1: k("s_add_u32 m0, m0, 4096")
    k("s_barrier")
    win(143360, 5)
    k("s_barrier")
    win(40960, 15)
    if not (os.environ.get("FINE1") or os.environ.get("FINE2")): k.stamp(5)
    k(f"s_mul_i32 s11, s{CB16}, 384")
    k("s_and_b32 s36, s5, 1")
    k("s_mul_i32 s37, s36, 6144")
    k("s_add_u32 s11, s11, s37")
    k("s_lshl_b32 m0, s36, 10")
    k("s_barrier")
    k("buffer_load_dwordx4 v1, s[56:59], s11 offen sc1 lds")
    k("s_waitcnt vmcnt(0)")
    if not (os.environ.get("FINE1") or os.environ.get("FINE2")): k.stamp(6)
    k("s_barrier")
    k("s_barrier")
    k("s_branch k5_loader")
    k.label("k2_end")
    k("s_endpgm")
    k.label("k2_blk5")
    k("s_lshl_b32 s37, s2, 2")
    k(f"s_add_u32 s37, s37, {FS - FL}")
    k("s_waitcnt vmcnt(0)")
    k("s_barrier")
    setflag(k, 16, "s37", "k2_fsdone", 172)
    k("s_cmp_ge_u32 s5, 4")
    k("s_cbranch_scc1 k2_blk5b")
    def wo_burst(first, n):
        k(f"s_lshl_b32 m0, s{W3}, 10")
        k(f"s_add_u32 m0, m0, {first}")
        for i in range(n):
            k.nop(1)
            k("buffer_load_dwordx4 v1, s[32:35], m0 offen sc1 lds")
            if i < n - 1: k("s_add_u32 m0, m0, 4096")
    wo_burst(0, 13)
    k("s_branch k2_loop")
    k.label("k2_blk5b")
    k.srd(68, 8, 9, 0, WS_END)
    k("v_lshrrev_b32 v176, 4, v1")
    k(f"s_mul_i32 s54, s{CB8}, 10")
    k("v_min_u32 v177, 19, v176")
    k("v_lshrrev_b32 v178, 1, v177")
    k("v_add_u32 v178, s54, v178")
    k("v_and_b32 v177, 1, v177")
    k("v_lshlrev_b32 v177, 7, v177")
    k("v_and_b32 v179, 3, v178")
    k("v_lshl_add_u32 v177, v179, 8, v177")
    k("v_lshrrev_b32 v178, 2, v178")
    k("v_lshl_add_u32 v177, v178, 12, v177")
    k(f"s_mul_i32 s54, s{RB}, 81920")
    k(f"s_lshl_b32 s55, s{W3}, 10")
    k("s_add_u32 s54, s54, s55")
    k(f"s_add_u32 s54, s54, {O}")
    k("buffer_load_dword v172, v177, s[68:71], s54 offen sc1")
    k(f"s_mul_i32 s54, s{W3}, 20")
    k("v_min_u32 v178, 19, v176")
    k("v_add_u32 v178, s54, v178")
    k("v_and_b32 v179, 15, v178")
    k("v_lshlrev_b32 v179, 7, v179")
    k("v_lshrrev_b32 v178, 4, v178")
    k("v_lshl_add_u32 v178, v178, 12, v179")
    k(f"s_mul_i32 s54, s{RB128}, 40")
    k(f"s_mul_i32 s55, s{CB8}, 5")
    k("s_add_u32 s54, s54, s55")
    k("s_lshl_b32 s54, s54, 1")
    k(f"s_add_u32 s54, s54, s{VV}")
    k("s_lshl_b32 s54, s54, 11")
    k(f"s_add_u32 s54, s54, {X1}")
    k("buffer_load_dword v173, v178, s[68:71], s54 offen sc1")
    k(f"s_lshl_b32 s54, s{RB}, 3")
    k(f"s_add_u32 s54, s54, s{CB8}")
    k("s_lshl_b32 s54, s54, 2")
    k(f"s_add_u32 s54, s54, s{W3}")
    k("s_lshl_b32 s54, s54, 7")
    k(f"s_add_u32 s54, s54, {SP2}")
    k("buffer_load_dword v174, off, s[68:71], s54 sc1")
    k(f"s_lshl_b32 s54, s{RB128}, 4")
    k(f"s_add_u32 s54, s54, s{CB16}")
    k("s_lshl_b32 s54, s54, 2")
    k(f"s_add_u32 s54, s54, s{W3}")
    k("s_lshl_b32 s54, s54, 8")
    k(f"s_add_u32 s54, s54, {STP}")
    k("buffer_load_dword v175, off, s[68:71], s54 sc1")
    k("buffer_load_dword v175, off, s[68:71], s54 offset:128 sc1")
    if TZ:
        k(f"s_lshl_b32 s54, s{RB128}, 2")
        k(f"s_add_u32 s54, s54, s{W3}")
        k("s_mul_i32 s55, s54, 24")
        k(f"s_mul_i32 s60, s{CB8}, 3")
        k("s_add_u32 s55, s55, s60")
        k(f"s_add_u32 s55, s55, s{VV}")
        k("s_lshl_b32 s55, s55, 11")
        k(f"s_add_u32 s55, s55, {Z1}")
        k(f"s_lshl_b32 s60, s{VV}, 4")
        k("s_add_u32 s60, s60, 15")
        k("v_min_u32 v177, s60, v176")
        k("v_lshlrev_b32 v177, 7, v177")
        k("buffer_load_dword v172, v177, s[68:71], s55 offen sc1")
        k(f"s_lshl_b32 s55, s{CB8}, 7")
        k("s_lshl_b32 s54, s54, 1")
        k("s_add_u32 s55, s55, s54")
        k("s_mul_i32 s55, s55, 3072")
        k(f"s_lshl_b32 s60, s{VV}, 11")
        k("s_add_u32 s55, s55, s60")
        k(f"s_add_u32 s55, s55, {Z2}")
        k(f"s_lshl_b32 s60, s{VV}, 3")
        k("s_sub_u32 s60, 15, s60")
        k("v_and_b32 v177, 15, v176")
        k("v_min_u32 v177, s60, v177")
        k("v_lshlrev_b32 v177, 7, v177")
        k("v_bfe_u32 v178, v176, 4, 1")
        k("v_mul_u32_u24 v178, 3072, v178")
        k("v_add_u32 v177, v177, v178")
        k("buffer_load_dword v173, v177, s[68:71], s55 offen sc1")
    k("s_branch k2_loop")
    k.label("k2_blk6")
    k.srd(68, 8, 9, WINF, WINF_SZ)
    k("s_mul_i32 s53, s53, 7680")
    k("s_add_u32 s54, s53, 4096")
    for i in range(8 if PF_WIN else 0): k(f"buffer_load_dwordx4 v[172:175], v1, s[68:71], {'s53' if i < 4 else 's54'} offen offset:{(i&3)*1024} sc1")
    k("s_cmp_lt_u32 s5, 4")
    k("s_cbranch_scc1 k2_blk6a")
    wo_burst(53248, 12)
    k("s_branch k2_loop")
    k.label("k2_blk6a")
    k("v_bfe_u32 v176, v0, 4, 2")
    k("v_and_b32 v177, 15, v0")
    k(f"s_lshl_b32 s59, s{RB}, 2")
    k("s_add_u32 s59, s59, s5")
    k("v_mul_u32_u24 v178, 1280, v177")
    k("v_lshl_add_u32 v178, v176, 3, v178")
    k("s_mul_i32 s60, s59, 20480")
    k(f"s_mul_i32 s61, s{CB8}, 160")
    k("s_add_u32 s60, s60, s61")
    k("v_lshlrev_b32 v179, 4, v176")
    k(f"s_mul_i32 s38, s{CB8}, 320")
    k.srd(52, 44, 45, 0, ACT_SZ)
    k.srd(56, 8, 9, MOD + 5120, 2560)
    for j in range(5): k(f"buffer_load_dwordx2 {r(120+2*j,2)}, v178, s[52:55], s60 offen offset:{j*32}")
    for j in range(5): k(f"buffer_load_dwordx4 {r(132+4*j)}, v179, s[56:59], s38 offen offset:{j*64} sc1")
    k("s_cmp_lg_u32 s5, 0")
    k("s_cbranch_scc1 k2_loop")
    k(f"s_movk_i32 s37, {hex(FS - FL)}")
    k(f"buffer_load_dwordx4 v[168:171], v1, s[16:19], s37 offen sc1")
    k("s_branch k2_loop")
    k.label("k2_sideld")
    k("s_lshl_b32 s52, s2, 3")
    k("s_add_u32 s52, s52, s5")
    k("s_lshr_b32 s53, s2, 3")
    k("s_lshl_b32 s53, s53, 3")
    k("s_add_u32 s53, s53, s5")
    k.srd(56, 48, 49, 0, 640 * 3072)
    k.srd(64, 8, 9, MOD + 7680, 5120)
    k("s_mul_i32 s62, s52, 1639")
    k("s_lshr_b32 s62, s62, 16")
    k("s_mul_i32 s63, s62, 40")
    k("s_sub_u32 s63, s52, s63")
    k("s_mul_i32 s68, s63, 49152")
    k("s_lshl_b32 s69, s62, 6")
    k("s_add_u32 s68, s68, s69")
    k("s_cmp_lt_u32 s52, 1920")
    k("s_cselect_b32 s70, 0, 0x40000000")
    k("s_add_u32 s68, s68, s70")
    k("v_mul_u32_u24 v15, 24576, v3")
    k("v_lshl_add_u32 v15, v2, 1, v15")
    for j in range(8):
        k(f"buffer_load_ushort v{136+j}, v15, s[56:59], s68 offen")
        if j < 7: k("s_add_u32 s68, s68, 3072")
    k("s_lshl_b32 s68, s63, 6")
    k("v_lshlrev_b32 v15, 5, v3")
    k(f"buffer_load_dwordx4 {r(144)}, v15, s[64:67], s68 offen sc1")
    k(f"buffer_load_dwordx4 {r(148)}, v15, s[64:67], s68 offen offset:16 sc1")
    k(f"buffer_load_dwordx4 {r(152)}, v15, s[64:67], s68 offen offset:2560 sc1")
    k(f"buffer_load_dwordx4 {r(156)}, v15, s[64:67], s68 offen offset:2576 sc1")
    k("s_cmp_ge_u32 s62, 24")
    k("s_cselect_b32 s68, 24, 0")
    k("s_cselect_b32 s71, 0x310, 0")
    k("s_cselect_b32 s72, 0, 0x542")
    k("s_or_b32 s71, s71, s72")
    k("s_sub_u32 s62, s62, s68")
    k("s_mul_i32 s68, s62, 86")
    k("s_lshr_b32 s68, s68, 8")
    k("s_mul_i32 s69, s68, 3")
    k("s_sub_u32 s69, s62, s69")
    k("s_lshl_b32 s69, s69, 2")
    k("s_lshr_b32 s71, s71, s69")
    k("s_and_b32 s71, s71, 15")
    k("s_mul_i32 s62, s68, 6")
    k("s_add_u32 s62, s62, s71")
    k("s_mul_i32 s68, s62, 86")
    k("s_lshr_b32 s68, s68, 8")
    k("s_mul_i32 s69, s68, 3")
    k("s_sub_u32 s69, s62, s69")
    k("s_mul_i32 s68, s68, 40")
    k("s_add_u32 s68, s68, s63")
    k("s_mul_i32 s68, s68, 3")
    k("s_add_u32 s68, s68, s69")
    k("s_lshl_b32 s68, s68, 10")
    k("s_add_u32 s63, s68, s70")
    k("s_lshl_b32 s62, s62, 7")
    k("s_add_u32 s62, s62, s70")
    k.srd(56, 46, 47, 0, 983040)
    k("s_mul_i32 s69, s52, 2731")
    k("s_lshr_b32 s69, s69, 16")
    k("s_mul_i32 s73, s69, 24")
    k("s_sub_u32 s68, s52, s73")
    k("s_cmp_lt_u32 s52, 960")
    k("s_cselect_b32 s70, 0, 0x40000000")
    k("s_mul_i32 s73, s68, 40960")
    k("s_lshl_b32 s74, s69, 5")
    k("s_add_u32 s73, s73, s74")
    k("s_add_u32 s73, s73, s70")
    k("s_add_u32 s74, s73, 5120")
    k("v_bfe_u32 v15, v0, 4, 2")
    k("v_mul_u32_u24 v15, 10240, v15")
    k("v_and_b32 v160, 15, v0")
    k("v_lshl_add_u32 v15, v160, 1, v15")
    for j in range(8):
        k(f"buffer_load_ushort v{160+j}, v15, s[56:59], {'s73' if j < 4 else 's74'} offen offset:{(j&3)*1280}")
    k("s_mul_i32 s73, s69, 52")
    k("s_lshr_b32 s73, s73, 8")
    k("s_mul_i32 s74, s73, 5")
    k("s_sub_u32 s74, s69, s74")
    k("s_mul_i32 s73, s73, 24")
    k("s_add_u32 s73, s73, s68")
    k("s_mul_i32 s73, s73, 5")
    k("s_add_u32 s73, s73, s74")
    k("s_lshl_b32 s73, s73, 10")
    k("s_add_u32 s60, s73, s70")
    k.srd(56, 50, 51, 0, WSPF_SZ)
    k("s_lshl_b32 s54, s3, 3")
    k("s_lshr_b32 s55, s53, 5")
    k("s_add_u32 s54, s54, s55")
    k("s_and_b32 s55, s53, 31")
    k("s_lshl_b32 s68, s54, 17")
    k("s_lshl_b32 s69, s55, 7")
    k("s_add_u32 s68, s68, s69")
    k("s_lshr_b32 s61, s54, 1")
    k("s_lshl_b32 s61, s61, 18")
    k("s_lshl_b32 s69, s55, 13")
    k("s_add_u32 s61, s61, s69")
    k("s_and_b32 s69, s54, 1")
    k("s_lshl_b32 s69, s69, 10")
    k("s_add_u32 s61, s61, s69")
    k("v_lshlrev_b32 v15, 12, v2")
    k("v_lshl_add_u32 v15, v3, 4, v15")
    for q in range(4):
        k(f"buffer_load_dwordx4 {r(120+4*q)}, v15, s[56:59], s68 offen offset:{q*32}")
    k("s_branch k2_cont")
    k.label("k2_side")
    k.srd(64, 8, 9, WSPF, WSPF_SZ)
    k.srd(68, 8, 9, WINF, WINF_SZ)
    k.srd(72, 8, 9, C1, 12288)
    k.srd(56, 8, 9, WOUTF, WOUTF_SZ)
    k("s_add_u32 s54, s61, 4096")
    k("s_waitcnt vmcnt(0)")
    for j in range(4):
        k(f"v_lshl_or_b32 v{160+j}, v{161+2*j}, 16, v{160+2*j}")
    k(f"buffer_store_dwordx4 {r(160)}, v1, s[56:59], s60 offen {SIDE_SC}")
    for j in range(8): k(f"v_lshlrev_b32 v{136+j}, 16, v{136+j}")
    k("v_mul_f32 v165, v136, v144")
    for j in range(1, 8): k(f"v_fmac_f32 v165, v{136+j}, v{144+j}")
    for j in range(8): k(f"v_mul_f32 v{136+j}, v{136+j}, v{152+j}")
    for j in range(4): k(f"v_cvt_pk_bf16_f32 v{144+j}, v{136+2*j}, v{137+2*j}")
    k(f"buffer_store_dwordx4 {r(144)}, v1, s[68:71], s63 offen {SIDE_SC}")
    for j in range(4):
        k(f"v_lshlrev_b32 v{136+2*j}, 16, v{144+j}")
        k(f"v_and_b32 v{137+2*j}, 0xffff0000, v{144+j}")
    for a, b in ((136, 137), (138, 139), (140, 141), (142, 143), (136, 138), (140, 142)):
        k(f"v_add_f32 v{a}, v{a}, v{b}")
    k("v_add_f32 v164, v136, v140")
    k("v_mul_u32_u24 v166, 6144, v3")
    k("v_lshl_add_u32 v166, v2, 2, v166")
    k("v_permlane32_swap_b32 v164, v165")
    k("v_add_f32 v164, v164, v165")
    k("buffer_atomic_add_f32 v164, v166, s[72:75], s62 offen")
    for q in range(4 if not os.environ.get("NOWSP") else 0):
        k(f"buffer_store_dwordx4 {r(120+4*q)}, v1, s[64:67], {'s61' if q < 2 else 's54'} offen offset:{(q&1)*2048} {SIDE_SC}")
    k("s_branch k2_cont")
    k.label("k2_slow")
    T = S1
    k(f"v_subrev_u32 v{AK2}, 143360, v{AK2}")
    k(f"v_subrev_u32 v{AV}, 143360, v{AV}")
    k(f"v_mov_b32 v{T}, 0xff800000")
    k("s_mov_b32 s42, 0")
    def ldK():
        k(f"buffer_load_dwordx4 {r(KF1[0])}, v1, s[20:23], s42 offen sc1")
        k(f"buffer_load_dwordx2 {r(KF2[0],2)}, v{AK2}, s[20:23], s42 offen sc1")
    k.label("k2_slow1")
    ldK()
    k("s_waitcnt vmcnt(0)")
    k(f"v_mfma_f32_32x32x16_bf16 {r(S0,16)}, {r(KF1[0])}, {r(QA)}, 0")
    k(f"v_mfma_f32_32x32x16_bf16 {r(S0,16)}, {r(KF2[0])}, {r(QB)}, {r(S0,16)}")
    k.nop(12)
    for i in range(8): k(f"v_max3_f32 v{T}, v{T}, v{S0+2*i}, v{S0+2*i+1}")
    k("s_add_u32 s42, s42, 2560")
    k("s_cmp_lt_u32 s42, 163840")
    k("s_cbranch_scc1 k2_slow1")
    k(f"v_mov_b32 v{T+1}, v{T}")
    k("s_mov_b32 s42, 0")
    k.nop(1)
    k(f"v_permlane32_swap_b32 v{T}, v{T+1}")
    k(f"v_max_f32 v{T}, v{T}, v{T+1}")
    for i in range(16): k(f"v_sub_f32 v{CM+i}, 0, v{T}")
    for i in range(16): k(f"v_mov_b32 v{OO+i}, 0")
    k.label("k2_slow2")
    ldK()
    k("s_mov_b64 exec, s[40:41]")
    k(f"buffer_load_dwordx4 {r(VF[0])}, v{AV}, s[20:23], s42 offen sc1")
    k(f"buffer_load_dwordx4 {r(VF[0]+4)}, v{AV}, s[20:23], s42 offen offset:640 sc1")
    k("s_mov_b64 exec, -1")
    k("s_waitcnt vmcnt(0)")
    k(f"v_mfma_f32_32x32x16_bf16 {r(S0,16)}, {r(KF1[0])}, {r(QA)}, {r(CM,16)}")
    k(f"v_mfma_f32_32x32x16_bf16 {r(S0,16)}, {r(KF2[0])}, {r(QB)}, {r(S0,16)}")
    k.nop(12)
    for i in range(16): k(f"v_exp_f32 v{S0+i}, v{S0+i}")
    k.nop(1)
    for i in range(8): k(f"v_cvt_pk_bf16_f32 v{PP+i}, v{S0+2*i}, v{S0+2*i+1}")
    k.nop(2)
    k(f"v_mfma_f32_32x32x16_bf16 {r(OO,16)}, {r(VF[0])}, {r(PP)}, {r(OO,16)}")
    k(f"v_mfma_f32_32x32x16_bf16 {r(OO,16)}, {r(VF[0]+4)}, {r(PP+4)}, {r(OO,16)}")
    k("s_add_u32 s42, s42, 2560")
    k("s_cmp_lt_u32 s42, 163840")
    k("s_cbranch_scc1 k2_slow2")
    k.nop(12)
    k("s_branch k2_epi")
    return k
```

```python
import re, os
STAMPS = bool(os.environ.get('STAMPS'))
STAMP_OFF = 0x2800000
DBG = int(os.environ.get('DBG', '0'))

class Kern:
    def __init__(self, name, vgpr, sgpr=96, agpr=0):
        self.name = name; self.lines = []; self.vgpr = vgpr; self.sgpr = sgpr; self.agpr = agpr
        self.nlab = 0
    def __call__(self, s):
        for l in s.split("\n"):
            l = l.strip()
            if l: self.lines.append("    " + l)
    def label(self, l):
        self.lines.append(f"{l}:")
    def newlabel(self, p="L"):
        self.nlab += 1
        return f"{self.name}_{p}{self.nlab}"
    def nop(self, n):
        while n > 0:
            k = min(n, 16); self(f"s_nop {k-1}"); n -= k
    def srd(self, d, lo, hi, off, size):
        if off == 0:
            self(f"s_mov_b32 s{d}, s{lo}")
            self(f"s_mov_b32 s{d+1}, s{hi}")
        else:
            o = off if isinstance(off, str) else hex(off)
            self(f"s_add_u32 s{d}, s{lo}, {o}")
            self(f"s_addc_u32 s{d+1}, s{hi}, 0")
        self(f"s_mov_b32 s{d+2}, {hex(size)}")
        self(f"s_mov_b32 s{d+3}, 0x20000")
    def stamp(self, i):
        if STAMPS or DBG: self(f"s_memtime s[{80+2*i}:{81+2*i}]")
    def rstamp(self, i):
        if STAMPS or DBG: self(f"s_memrealtime s[{80+2*i}:{81+2*i}]")
    def endpgm(self, kidx=None, ws=(8, 9)):
        if STAMPS and kidx is not None:
            self("s_waitcnt vmcnt(0)")
            self.stamp(8); self.rstamp(9)
            self("s_mov_b64 exec, -1")
            self("v_lshrrev_b32 v1, 6, v0")
            self("v_lshlrev_b32 v1, 6, v1")
            self(f"s_add_u32 s76, s{ws[0]}, {hex(STAMP_OFF + kidx * 1024 * 1024)}")
            self(f"s_addc_u32 s77, s{ws[1]}, 0")
            self("s_mov_b32 s78, 0x100000")
            self("s_mov_b32 s79, 0x20000")
            self("s_lshl_b32 s75, s2, 10")
            self("s_waitcnt lgkmcnt(0)")
            for i in range(10):
                self(f"v_mov_b32 v2, s{80+2*i}")
                self(f"buffer_store_dword v2, v1, s[76:79], s75 offen offset:{4*i}")
        if DBG and kidx is not None:
            lab = self.newlabel("dbg")
            self("v_readfirstlane_b32 s75, v0")
            self(f"s_xor_b32 s74, s2, {DBG - 1}")
            self("s_or_b32 s75, s75, s74")
            self("s_cmp_lg_u32 s75, 0")
            self(f"s_cbranch_scc1 {lab}")
            self("s_waitcnt vmcnt(0)")
            self("s_memtime s[96:97]")
            self("s_memrealtime s[98:99]")
            self("s_load_dwordx2 s[76:77], s[0:1], 104")
            self("s_mov_b64 exec, -1")
            self("s_mov_b32 s78, 256")
            self("s_mov_b32 s79, 0x20000")
            self("s_waitcnt lgkmcnt(0)")
            for i in range(2, 10):
                self(f"s_sub_u32 s75, s{80+2*i}, s{80 if i < 9 else 82}")
                self("v_mov_b32 v2, s75")
                self(f"buffer_store_dword v2, off, s[76:79], 0 offset:{4*(i-2)}")
            self.label(lab)
        self("s_endpgm")
    def text(self):
        if STAMPS or DBG: self.sgpr = 102
        acc = ((self.vgpr + 3) // 4) * 4
        nfv = acc + self.agpr if self.agpr else self.vgpr
        body = f".globl {self.name}\n.p2align 8\n.type {self.name},@function\n{self.name}:\n" + "\n".join(self.lines) + "\n"
        kd = f""".p2align 6
.amdhsa_kernel {self.name}
  .amdhsa_next_free_vgpr {nfv}
  .amdhsa_next_free_sgpr {self.sgpr}
  .amdhsa_accum_offset {acc}
  .amdhsa_group_segment_fixed_size 0
  .amdhsa_kernarg_size 120
  .amdhsa_user_sgpr_count 2
  .amdhsa_user_sgpr_kernarg_segment_ptr 1
  .amdhsa_system_sgpr_workgroup_id_x 1
.end_amdhsa_kernel
"""
        return body, kd

RV = re.compile(r"\b([va])\[(\d+):(\d+)\]|\b([va])(\d+)\b")
RS = re.compile(r"\bs\[(\d+):(\d+)\]|\bs(\d+)\b|\b(vcc|exec|m0)\b")
def vregs(op):
    out = set()
    for m in RV.finditer(op):
        if m.group(1): out |= {(m.group(1), i) for i in range(int(m.group(2)), int(m.group(3)) + 1)}
        else: out.add((m.group(4), int(m.group(5))))
    return out
def sregs(op):
    out = set()
    for m in RS.finditer(op):
        if m.group(1): out |= {("s", i) for i in range(int(m.group(1)), int(m.group(2)) + 1)}
        elif m.group(3): out.add(("s", int(m.group(3))))
        else: out.add((m.group(4), 0))
    return out
TRANS = ("v_exp_", "v_log_", "v_rcp_", "v_rsq_", "v_sqrt_", "v_sin_", "v_cos_")
class I:
    pass
def parse(line):
    line = line.split(";")[0].strip()
    if not line or line.endswith(":") or line.startswith("."): return None
    p = line.split(None, 1)
    mn = p[0]; rest = p[1] if len(p) > 1 else ""
    ops = [o.strip() for o in re.split(r",(?![^\[]*\])", rest)] if rest else []
    i = I(); i.mn = mn; i.ops = ops; i.text = line
    i.vw = set(); i.vr = set(); i.sw = set(); i.sr = set()
    i.states = 1
    i.kind = "other"
    if mn == "s_nop": i.states = int(ops[0], 0) + 1
    if mn.startswith("v_mfma"):
        i.kind = "mfma"; i.vw = vregs(ops[0]); i.a = vregs(ops[1]); i.b = vregs(ops[2]); i.c = vregs(ops[3])
        i.vr = i.a | i.b | i.c
        i.passes = 8 if "32x32" in mn else 4
    elif mn.startswith("v_"):
        i.kind = "valu"
        i.trans = mn.startswith(TRANS)
        i.dpp = "dpp" in mn or "row_" in rest or "quad_perm" in rest
        i.perml = mn.startswith("v_permlane")
        if mn.startswith("v_cmp"):
            i.sw = sregs(ops[0]); srcs = ops[1:]
            if mn.startswith("v_cmpx"): i.sw.add(("exec", 0))
        elif mn.startswith("v_readfirstlane") or mn.startswith("v_readlane"):
            i.sw = sregs(ops[0]); srcs = ops[1:]
        elif i.perml:
            i.vw = vregs(ops[0]) | vregs(ops[1]); srcs = ops
        else:
            i.vw = vregs(ops[0]); srcs = ops[1:]
            if "_co_" in mn: i.sw = sregs(ops[1]); srcs = ops[2:]
            if mn.startswith(("v_fmac", "v_dot2c", "v_pk_fmac")) or i.dpp or "sdwa" in mn: srcs = ops
        for o in srcs:
            o = o.split(" ")[0] if not o.startswith(("v[", "s[", "a[", "-", "abs")) else o
            i.vr |= vregs(o); i.sr |= sregs(o)
    elif mn.startswith(("buffer_", "global_", "ds_")):
        i.kind = "mem"
        load = ("load" in mn or "ds_read" in mn or "bpermute" in mn or "swizzle" in mn)
        lds = rest.rstrip().endswith("lds") or " lds" in rest
        i.lds = lds
        if load and not lds:
            i.vw = vregs(ops[0]); srcs = ops[1:]
        else:
            srcs = ops
        for o in srcs:
            i.vr |= vregs(o); i.sr |= sregs(o)
        if lds: i.sr.add(("m0", 0))
        i.widestore = ("store" in mn and ("x3" in mn or "x4" in mn))
        if i.widestore: i.data = vregs(ops[0]) if mn.startswith("buffer") else vregs(ops[1])
    elif mn.startswith("s_"):
        i.kind = "salu"
        if ops and not mn.startswith(("s_cmp", "s_cbranch", "s_branch", "s_waitcnt", "s_nop", "s_barrier", "s_bitcmp", "s_endpgm", "s_sleep", "s_setprio")):
            i.sw = sregs(ops[0])
            if "saveexec" in mn: i.sw.add(("exec", 0))
    return i

def check(lines, name=""):
    seq = []
    labels = {}
    for l in lines:
        t = l.strip()
        if t.endswith(":") and not t.startswith(";"):
            labels[t[:-1]] = len(seq)
        ins = parse(l)
        if ins: seq.append(ins)
    traces = [list(range(len(seq)))]
    for n, ins in enumerate(seq):
        if ins.mn.startswith(("s_cbranch", "s_branch")) and ins.ops[0] in labels:
            t = labels[ins.ops[0]]
            traces.append(list(range(max(0, n - 24), n + 1)) + list(range(t, min(len(seq), t + 24))))
    errs = set()
    for tr in traces:
        for x in range(len(tr)):
            c = seq[tr[x]]
            dist = 0
            for y in range(x - 1, max(-1, x - 26), -1):
                p = seq[tr[y]]
                if p.mn in ("s_branch", "s_endpgm") and tr[y] + 1 == tr[y + 1]:
                    break
                need = 0; why = ""
                if p.kind == "valu":
                    if c.kind == "mfma" and p.vw & c.vr: need, why = 2, "valu->mfma"
                    if c.kind == "valu":
                        if c.dpp and p.vw & c.vr: need, why = max(need, 2), "valu->dpp"
                        if c.perml and p.vw & c.vr: need, why = max(need, 2), "valu->permlane"
                        if c.mn.startswith(("v_readfirstlane", "v_readlane")) and p.vw & c.vr: need, why = max(need, 1), "valu->readlane"
                        if p.trans and not c.trans and p.vw & c.vr: need, why = max(need, 1), "trans->valu"
                        if p.sw & c.sr: need, why = max(need, 2), "valu sgpr->valu"
                        if ("exec", 0) in p.sw and c.dpp: need, why = max(need, 5), "exec->dpp"
                        if "sdwa" in p.mn and p.vw & c.vr: need, why = max(need, 1), "sdwa->valu"
                    if c.kind == "mfma" and p.trans and p.vw & c.vr: need = max(need, 2)
                    if c.kind == "mem" and p.sw & c.sr: need, why = max(need, 5), "valu sgpr->vmem"
                    if c.kind == "mfma" and ("exec", 0) in p.sw: need, why = max(need, 4), "exec->mfma"
                elif p.kind == "mfma":
                    n4 = p.passes == 4
                    if c.kind == "mfma":
                        if p.vw & (c.a | c.b): need, why = (8 if n4 else 12), "mfma D->A/B"
                        elif p.vw & c.c and not (p.vw == c.c and p.passes == c.passes): need, why = (6 if n4 else 10), "mfma D->C partial"
                        elif p.vw & c.vw and not (p.vw == c.c): need, why = (6 if n4 else 10), "mfma D->D waw?"
                    elif c.kind == "valu":
                        if p.vw & (c.vr | c.vw): need, why = (8 if n4 else 12), "mfma D->valu"
                        elif p.c & c.vw: need, why = (3 if n4 else 7), "mfma C war"
                    elif c.kind == "mem":
                        if p.vw & (c.vr | c.vw): need, why = (8 if n4 else 12), "mfma D->mem"
                elif p.kind == "mem":
                    if getattr(p, "widestore", False) and c.kind in ("valu", "mfma") and p.data & c.vw: need, why = 2, "store data war"
                elif p.kind == "salu":
                    if ("m0", 0) in p.sw and c.kind == "mem" and c.lds: need, why = 1, "m0->ldsdma"
                if need > dist:
                    errs.add((tr[x], f"{name}: need {need} have {dist} [{why}]  {p.text}  ->  {c.text}"))
                dist += p.states
    return [e for _, e in sorted(errs)]
```

```python
from asmlib import Kern
from layout import *
from k0 import hexf
from k234 import poll, poll_missing, hint, stores, setflag, x1_addr, gemm80_resident, resid, r
import os

SLOT = 20480; BLK = 5120
K56_LDS = 163840
A0 = 16; ZB = 64; Z1R = 96; BSP = 108
KIDX = int(os.environ.get('KIDX', '0'))
THR = int(os.environ.get('THR', '5'))
TO = int(os.environ.get('TO', '0'))
ROTW = int(os.environ.get("K5ROTW", "0"))

def gen_k56(k, RB, CB8, W3):
    k.label("k5_compute")
    k(f"s_mov_b32 s3, s{RB}")
    k(f"s_mov_b32 s4, s{CB8}")
    k("v_and_b32 v2, 31, v0")
    k("v_bfe_u32 v3, v0, 5, 1")
    k("s_and_b32 s6, s5, 1")
    k("s_lshl_b32 s34, s3, 1")
    k("s_add_u32 s34, s34, s6")
    k("s_lshr_b32 s33, s5, 1")
    k("s_mul_i32 s36, s34, 24")
    k("s_mul_i32 s37, s4, 3")
    k("s_add_u32 s36, s36, s37")
    k("s_lshl_b32 s36, s36, 1")
    k("s_add_u32 s36, s36, s33")
    k("s_lshl_b32 s36, s36, 10")
    k("s_add_u32 s37, s36, 4096")
    k("s_lshl_b32 s38, s34, 6")
    k("v_lshlrev_b32 v5, 1, v2")
    k(f"s_mul_i32 s39, s33, {2*BLK}")
    k("v_add_u32 v6, s39, v1")
    k(f"v_add_u32 v7, {2*SLOT}, v6")
    k("s_lshl_b32 s39, s6, 10")
    k("s_add_u32 s39, s39, 3072")
    k("v_add_u32 v8, s39, v6")
    k(f"v_add_u32 v9, {2*SLOT}, v8")
    for i in range(48): k(f"v_mov_b32 v{A0+i}, 0")
    k.srd(52, 8, 9, Z1, Z_SZ)
    k.srd(60, 44, 45, 0, 4096)
    def reads(s, q, par):
        sl = s & 3; o = (sl & 1) * SLOT + q * BLK; b = ZB + 16 * par
        for n in range(3): k(f"ds_read_b128 {r(b+4*n)}, {'v6' if sl < 2 else 'v7'} offset:{o + n*1024}")
        k(f"ds_read_b128 {r(b+12)}, {'v8' if sl < 2 else 'v9'} offset:{o}")
    k("s_barrier")
    k("s_barrier")
    if os.environ.get("FINE5"): k.stamp(2)
    reads(0, 0, 0)
    k(f"buffer_load_dwordx4 {r(Z1R)}, v1, s[52:55], s36 offen sc1")
    k(f"buffer_load_dwordx4 {r(Z1R+4)}, v1, s[52:55], s36 offen offset:2048 sc1")
    k(f"buffer_load_dwordx4 {r(Z1R+8)}, v1, s[52:55], s37 offen sc1")
    k(f"buffer_load_ushort v{BSP}, v5, s[60:63], s38 offen")
    k("v_bfe_u32 v204, v0, 4, 2")
    k("v_lshlrev_b32 v207, 4, v204")
    k("s_mul_i32 s41, s4, 320")
    k.srd(56, 8, 9, MOD + 12800, 2560)
    for j in range(5): k(f"buffer_load_dwordx4 {r(184+4*j)}, v207, s[56:59], s41 offen offset:{j*64} sc1")
    k("s_mov_b32 s43, 0")
    k.lines.append(".p2align 6")
    k.label("k5_loop")
    for s in range(4):
        for q in range(2):
            b = ZB + 16 * q
            k("s_waitcnt lgkmcnt(0)")
            if q == 1:
                if s == 3:
                    k("s_add_u32 s43, s43, 1")
                    k("s_cmp_eq_u32 s43, 8")
                    k("s_cbranch_scc1 k5_last")
                k("s_barrier")
            for n in range(3):
                k(f"v_mfma_f32_32x32x16_bf16 {r(A0+16*n,16)}, {r(b+4*n)}, {r(b+12)}, {r(A0+16*n,16)}")
                if n == 0:
                    if q == 1: reads(s + 1, 0, 0)
                    else: reads(s, 1, 1)
    k("s_branch k5_loop")
    k.label("k5_last")
    b = ZB + 16
    for n in range(3):
        k(f"v_mfma_f32_32x32x16_bf16 {r(A0+16*n,16)}, {r(b+4*n)}, {r(b+12)}, {r(A0+16*n,16)}")
    if os.environ.get('FINE5'): k.stamp(3)
    k("s_barrier")
    k("s_mul_i32 s36, s5, 6144")
    k("s_add_u32 s36, s36, 40960")
    k("v_add_u32 v10, s36, v1")
    k("s_xor_b32 s36, s5, 2")
    k("s_mul_i32 s36, s36, 6144")
    k("s_add_u32 s36, s36, 40960")
    k("v_add_u32 v11, s36, v1")
    k.srd(52, 8, 9, Y, Z_SZ)
    k("s_mul_i32 s7, s3, 98304")
    k("s_mul_i32 s37, s4, 12288")
    k("s_add_u32 s36, s7, s37")
    k("s_lshl_b32 s37, s6, 11")
    k("s_add_u32 s36, s36, s37")
    k("s_lshl_b32 s37, s33, 9")
    k("s_add_u32 s36, s36, s37")
    k("s_add_u32 s37, s36, 4096")
    k("s_add_u32 s38, s36, 8192")
    k("v_lshrrev_b32 v12, 4, v2")
    k("v_lshlrev_b32 v12, 10, v12")
    k("v_lshl_add_u32 v12, v3, 8, v12")
    k("v_and_b32 v13, 15, v0")
    k("v_lshl_add_u32 v12, v13, 4, v12")
    k("s_waitcnt vmcnt(0)")
    k(f"v_lshlrev_b32 v14, 16, v{BSP}")
    k("s_cmp_eq_u32 s33, 0")
    k("s_cbranch_scc0 k5_e1")
    for kh in range(2):
        if kh == 1: k.label("k5_e1")
        keep = 8 * kh; send = 8 * (1 - kh)
        for n in range(3):
            k(f"ds_write_b128 v10, {r(A0+16*n+send)} offset:{n*2048}")
            k(f"ds_write_b128 v10, {r(A0+16*n+send+4)} offset:{n*2048+1024}")
        U = ZB
        for i in range(12):
            k(f"v_lshlrev_b32 v{U+2*i}, 16, v{Z1R+i}")
            k(f"v_and_b32 v{U+2*i+1}, 0xffff0000, v{Z1R+i}")
        for n in range(3):
            for i in range(4):
                a = A0 + 16 * n + keep + 2 * i
                k(f"v_pk_add_f32 {r(a,2)}, {r(a,2)}, v[14:15] op_sel_hi:[1,0]")
        k("s_waitcnt lgkmcnt(0)")
        k("s_barrier")
        for n in range(3):
            k(f"ds_read_b128 {r(A0+16*n+send)}, v11 offset:{n*2048}")
            k(f"ds_read_b128 {r(A0+16*n+send+4)}, v11 offset:{n*2048+1024}")
        for n in range(3):
            k(f"s_waitcnt lgkmcnt({4-2*n})")
            for i in range(4):
                a = A0 + 16 * n + keep + 2 * i
                k(f"v_pk_add_f32 {r(a,2)}, {r(a,2)}, {r(A0+16*n+send+2*i,2)}")
            for i in range(4):
                a = A0 + 16 * n + keep + 2 * i
                k(f"v_pk_mul_f32 {r(a,2)}, {r(a,2)}, {r(U+8*n+2*i,2)}")
            P = Z1R + 4 * n
            for i in range(4):
                a = A0 + 16 * n + keep + 2 * i
                k(f"v_cvt_pk_bf16_f32 v{P+i}, v{a}, v{a+1}")
            k.nop(2)
            k(f"v_permlane32_swap_b32 v{P}, v{P+2}")
            k(f"v_permlane32_swap_b32 v{P+1}, v{P+3}")
            stores(k, [f"buffer_store_dwordx4 {r(P)}, v12, s[52:55], s{36+n} offen"])
        if kh == 0: k("s_branch k5_p6")
    k.label("k5_p6")
    ACT, A6, WB3, XR_, GB_R, AD = 16, 112, (132, 152, 212), 232, 184, 204
    WB = 132
    k("s_lshl_b32 s36, s3, 10")
    k(f"s_add_u32 s36, s36, {F5 - FL}")
    k("s_lshl_b32 s37, s4, 7")
    k("s_add_u32 s37, s37, s36")
    k("s_waitcnt vmcnt(0)")
    k("s_barrier")
    setflag(k, 16, "s37", "k5_f5done", local=True)
    if os.environ.get('FINE5'): k.stamp(4)
    k("v_bfe_u32 v3, v0, 4, 2")
    k("v_and_b32 v5, 15, v0")
    k("s_lshl_b32 s6, s3, 2")
    k("s_add_u32 s6, s6, s5")
    k("s_lshl_b32 s10, s5, 10")
    k("s_add_u32 s7, s7, s10")
    k.srd(60, 46, 47, 0, ACT_SZ)
    k("s_mul_i32 s39, s5, 2816")
    k("s_add_u32 s39, s39, 69632")
    k("v_mul_u32_u24 v6, 176, v5")
    k("v_lshl_add_u32 v6, v3, 3, v6")
    k(f"v_add_u32 v{AD}, s39, v6")
    for i in range(3):
        k("v_lshrrev_b32 v6, 4, v1")
        k(f"v_add_u32 v6, {64*i}, v6")
        k("v_mul_u32_u24 v7, 205, v6")
        k("v_lshrrev_b32 v7, 11, v7")
        k("v_mul_u32_u24 v2, 10, v7")
        k("v_sub_u32 v6, v6, v2")
        k("v_lshlrev_b32 v6, 4, v6")
        k("v_mul_u32_u24 v2, 176, v7")
        k(f"v_add3_u32 v{AD+1+i}, v2, v6, s39")
        k("v_mul_u32_u24 v2, 1280, v7")
        k(f"v_add_u32 v{AD+4+i}, v6, v2")
        if i == 2:
            k("v_lshrrev_b32 v7, 4, v7")
            k(f"v_lshl_add_u32 v{AD+4+i}, v7, 30, v{AD+4+i}")
    k("s_mul_i32 s40, s6, 20480")
    k("s_mul_i32 s41, s4, 160")
    k("s_add_u32 s40, s40, s41")
    def w6():
        poll(k, "k5_p5", 16, "s36", 8, 10, 11)
        if os.environ.get('FINE5'): k.stamp(5)
    gemm80_resident(k, 24, list(range(24)), ACT, A6, WB3, 52, 7, lambda ks: ks * 5120 + (40960 if ks >= 8 else 0), w6, 4)
    if os.environ.get('FINE5'): k.stamp(6)
    k.nop(4)
    resid(k, A6, XR_, GB_R, WB)
    for j in range(5): k(f"ds_write_b64 v{AD}, {r(XR_+2*j,2)} offset:{j*32}")
    k("s_waitcnt lgkmcnt(0)")
    for i in range(3): k(f"ds_read_b128 {r(WB+4*i)}, v{AD+1+i}")
    for i in range(3):
        k(f"s_waitcnt lgkmcnt({2-i})")
        k(f"buffer_store_dwordx4 {r(WB+4*i)}, v{AD+4+i}, s[60:63], s40 offen {os.environ.get('OUT_SC', '')}")
    k("s_or_b32 s36, s2, s5")
    k("s_cmp_lg_u32 s36, 0")
    k("s_cbranch_scc1 k5_noep")
    k.srd(56, 8, 9, EPOCH, 4)
    k("v_mov_b32 v10, s31")
    k("buffer_store_dword v10, off, s[56:59], 0")
    k.label("k5_noep")
    k.endpgm(KIDX)
    k.label("k5_loader")
    k(f"s_mov_b32 s3, s{RB}")
    k(f"s_mov_b32 s4, s{CB8}")
    k(f"s_mov_b32 s5, s{W3}")
    k("s_mul_i32 s34, s4, 393216")
    k(f"s_add_u32 s34, s34, {Z2}")
    k("s_lshl_b32 s35, s3, 18")
    k(f"s_add_u32 s35, s35, {WSPF}")
    k(f"s_mul_i32 s11, s5, {BLK}")
    k("s_mul_i32 s33, s4, 122880")
    k(f"s_add_u32 s33, s33, {WOUTF}")
    k("s_lshl_b32 s10, s5, 10")
    k.srd(52, 8, 9, "s34", 393216)
    k.srd(56, 8, 9, "s35", 262144)
    k.srd(60, 8, 9, "s33", 122880)
    k("s_mul_i32 s37, s5, 3072")
    k("s_lshl_b32 s36, s5, 11")
    def iz(sl):
        k(f"s_add_u32 m0, s11, {sl*SLOT}")
        k.nop(1)
        for j in range(3): k(f"buffer_load_dwordx4 v1, s[52:55], s37 offen offset:{j*1024} sc1 lds")
        k("s_add_u32 s37, s37, 12288")
    def iw(sl):
        k(f"s_add_u32 m0, s11, {sl*SLOT+3072}")
        k.nop(1)
        for j in range(2): k(f"buffer_load_dwordx4 v1, s[56:59], s36 offen offset:{j*1024} sc1 lds")
        k("s_add_u32 s36, s36, 8192")
    def issue(sl): iz(sl); iw(sl)
    iw(0); iw(1); iw(2)
    k("s_add_u32 s44, s10, 40960")
    for i in range(20):
        k("s_add_u32 m0, s44, 40960")
        k.nop(1)
        k("buffer_load_dwordx4 v1, s[60:63], s44 offen sc1 lds")
        k("s_add_u32 s44, s44, 4096")
        if THR: k(f"s_waitcnt vmcnt({THR})")
    k("v_and_b32 v10, 1, v0")
    k("v_bfe_u32 v11, v0, 1, 4")
    k("v_lshlrev_b32 v10, 7, v10")
    k("v_lshl_add_u32 v10, v11, 11, v10")
    k("s_lshl_b32 s39, s4, 8")
    k(f"s_add_u32 s39, s39, {F4 - FL}")
    k("s_barrier")
    k("s_cmp_lg_u32 s5, 0")
    k("s_cbranch_scc1 k5_p4_ok")
    poll_missing(k, "k5_p4", 16, ["s39"], 10, 11)
    k("s_barrier")
    if os.environ.get('FINE5'): k.stamp(2)
    iz(0); iz(1); iz(2)
    for s in range(4):
        k(f"s_waitcnt vmcnt({(6, 8, 10, 10)[s]})")
        k("s_barrier")
        issue((s + 3) & 3)
    k("s_mov_b32 s42, 0")
    k.lines.append(".p2align 6")
    k.label("k5_lloop")
    for s in range(4):
        k("s_waitcnt vmcnt(10)")
        k("s_barrier")
        issue((s + 3) & 3)
    k("s_add_u32 s42, s42, 1")
    k("s_cmp_lt_u32 s42, 6")
    k("s_cbranch_scc1 k5_lloop")
    def low(base, n):
        k(f"s_add_u32 m0, s10, {base}")
        for i in range(n):
            k.nop(1)
            k("buffer_load_dwordx4 v1, s[60:63], m0 offen sc1 lds")
            if i < n - 1: k("s_add_u32 m0, m0, 4096")
    k("s_waitcnt vmcnt(10)")
    k("s_barrier")
    issue(3)
    k.srd(64, 8, 9, Y, Z_SZ)
    k("s_mul_i32 s38, s3, 98304")
    k("s_mul_i32 s39, s4, 12288")
    k("s_add_u32 s38, s38, s39")
    k("s_mul_i32 s39, s5, 3072")
    k("s_add_u32 s38, s38, s39")
    k("v_lshrrev_b32 v10, 4, v1")
    k("v_min_u32 v10, 23, v10")
    k("v_lshlrev_b32 v10, 7, v10")
    k("buffer_load_dword v11, v10, s[64:67], s38 offen sc1")
    if TO:
        k.srd(64, 46, 47, 0, ACT_SZ)
        k("s_lshl_b32 s38, s3, 2")
        k("s_add_u32 s38, s38, s5")
        k("s_mul_i32 s38, s38, 20480")
        k("s_mul_i32 s39, s4, 160")
        k("s_add_u32 s38, s38, s39")
        k("v_bfe_u32 v10, v1, 6, 4")
        k("v_mul_u32_u24 v10, 1280, v10")
        k("v_bfe_u32 v12, v1, 4, 2")
        k("v_min_u32 v12, 2, v12")
        k("v_mul_u32_u24 v12, 78, v12")
        k("v_and_b32 v12, 0xfc, v12")
        k("v_add_u32 v10, v10, v12")
        k("buffer_load_dword v11, v10, s[64:67], s38 offen sc1")
    k("s_waitcnt vmcnt(10)")
    k("s_barrier")
    low(0, 5)
    k("s_waitcnt vmcnt(10)")
    k("s_barrier")
    low(20480, 5)
    k("s_waitcnt vmcnt(10)")
    k("s_barrier")
    k("s_barrier")
    k("s_barrier")
    k("s_waitcnt vmcnt(0)")
    k("s_barrier")
    if os.environ.get("WBL2"):
        k("s_lshr_b32 s36, s2, 3")
        k("s_or_b32 s36, s36, s5")
        k(f"s_and_b32 s36, s36, {os.environ['WBL2']}")
        k("s_cmp_lg_u32 s36, 0")
        k("s_cbranch_scc1 k5_nowb")
        k("s_sleep 16")
        k("buffer_wbl2 sc1")
        k("s_waitcnt vmcnt(0)")
        k.label("k5_nowb")
    k.endpgm(KIDX)
```

```python
from layout import *
from k0 import hexf, xsum16_32, rowred
import math, os

QSCALE = math.log2(math.e) / math.sqrt(20.0)
def r(b, n=4): return f"v[{b}:{b+n-1}]"
A0 = 16; FB = 40; EP = 100
KGS = 272; RTS = 1088; KS = 4416; ASL = 4 * KS
LACT = 0; LKV = 5 * ASL; LT1 = LKV + 20480; LWQ = LT1 + 5120; LQ = 36864
WH = [LWQ + 5120 * i for i in range(8)] + [LKV + 5120 * i for i in range(5)] + [LWQ + 40960] + [LWQ + 5120 * i for i in range(4)] + [0, 5120]
TOK = 31
PT = int(os.environ.get('PT', '0'))
XF = os.environ.get('XF', '')
TLB = int(os.environ.get('TLB', '0'))
def st1(k, i):
    if os.environ.get('FINE1') and not os.environ.get('FINE1B'): k.stamp(i)

def token(k):
    k("v_readfirstlane_b32 s54, v14")
    k("s_mul_i32 s54, s54, 0x9e3779b1")
    k("s_add_u32 s54, s54, 0x7f4a7c15")

def gen_front(k, poll_missing, code_start, code_end):
    k("s_load_dwordx8 s[40:47], s[0:1], 0")
    k("s_load_dwordx4 s[48:51], s[0:1], 80")
    k("s_load_dwordx2 s[52:53], s[0:1], 32")
    k("v_lshrrev_b32 v1, 6, v0")
    k("s_and_b32 s3, s2, 7")
    k("v_readfirstlane_b32 s5, v1")
    k("s_lshl_b32 s3, s3, 2")
    k("s_bfe_u32 s4, s2, 0x20003")
    k("s_add_u32 s3, s3, s4")
    k("s_lshr_b32 s4, s2, 5")
    k("v_and_b32 v1, 63, v0")
    k("v_lshlrev_b32 v1, 4, v1")
    k("s_lshr_b32 s33, s5, 2")
    k("s_and_b32 s5, s5, 3")
    k("s_lshl_b32 s6, s3, 2")
    k("s_add_u32 s6, s6, s5")
    k("s_lshl_b32 s22, s5, 2")
    k(f"s_add_u32 s22, s22, {LACT + 1024}")
    k("v_and_b32 v2, 16, v1")
    k("v_add_u32 v2, s22, v2")
    k("v_mov_b32 v3, 0")
    k("ds_write_b32 v2, v3")
    k("s_waitcnt lgkmcnt(0)")
    k("s_barrier")
    k("s_cmp_eq_u32 s33, 0")
    k("s_cbranch_scc0 f_loader")
    k("s_and_b32 s21, s2, 3")
    k("s_lshr_b32 s20, s2, 2")
    k("v_lshrrev_b32 v2, 3, v0")
    k("v_and_b32 v3, 7, v0")
    k("v_mul_u32_u24 v13, 7680, v2")
    k("v_lshl_add_u32 v13, v3, 4, v13")
    k("v_lshlrev_b32 v2, 1, v2")
    k(f"s_mul_i32 s60, s21, {160*7680}")
    k("s_lshl_b32 s23, s20, 7")
    k("s_add_u32 s60, s60, s23")
    k("s_cmp_lt_u32 s20, 60")
    k("s_cselect_b32 s35, 0, 0x40000000")
    k("s_add_u32 s60, s60, s35")
    k("s_mul_i32 s61, s21, 320")
    k("s_waitcnt lgkmcnt(0)")
    k.srd(16, 50, 51, 0, 640 * 7680)
    k.srd(64, 48, 49, 0, 1280)
    k("s_lshl_b32 s34, s2, 2")
    k("s_add_u32 s34, s34, s5")
    k("s_mul_i32 s37, s34, 3277")
    k("s_lshr_b32 s37, s37, 16")
    k("s_mul_i32 s38, s37, 20")
    k("s_sub_u32 s38, s34, s38")
    k("s_cmp_ge_u32 s37, 42")
    k("s_cselect_b32 s23, 32, 0")
    k("s_cselect_b32 s24, 4, 16")
    k("s_lshl_b32 s25, s37, 5")
    k("s_cmp_ge_u32 s37, 40")
    k("s_cselect_b32 s23, s23, s25")
    k("s_movk_i32 s22, 1280")
    k("s_cselect_b32 s22, 40, s22")
    k("s_mov_b32 s14, 819200")
    k("s_cselect_b32 s14, 25600, s14")
    k("s_cselect_b32 s12, s44, s42")
    k("s_cselect_b32 s13, s45, s43")
    k("s_and_b32 s25, s37, 41")
    k("s_cmp_eq_u32 s25, 41")
    k("s_cselect_b32 s12, s46, s12")
    k("s_cselect_b32 s13, s47, s13")
    k("s_cmp_lt_u32 s37, 44")
    k("s_cselect_b32 s14, s14, 0")
    k("s_cselect_b32 s39, 0, 0x40000000")
    k("s_mov_b32 s15, 0x20000")
    k("s_lshl_b32 s27, s22, 3")
    k("s_lshl_b32 s25, s38, 5")
    k("s_mul_i32 s25, s25, s22")
    k("s_add_u32 s25, s25, s23")
    k("v_and_b32 v6, 15, v0")
    k("v_bfe_u32 v5, v0, 4, 2")
    k("v_mul_u32_u24 v4, s27, v5")
    k("v_lshl_add_u32 v4, v6, 1, v4")
    k("v_cmp_gt_u32 vcc, s24, v6")
    k("v_mov_b32 v5, 0x40000000")
    k("s_mul_i32 s26, s37, 52")
    k("s_lshr_b32 s26, s26, 8")
    k("v_cndmask_b32 v4, v5, v4, vcc")
    for j in range(8):
        k(f"buffer_load_ushort v{120+j}, v4, s[12:15], s25 offen")
        if j < 7: k("s_add_u32 s25, s25, s22")
    for p in range(5):
        k(f"buffer_load_dwordx4 v[{20+4*p}:{23+4*p}], v13, s[16:19], s60 offen")
        if p < 4: k(f"s_add_u32 s60, s60, {32 * 7680}")
        k(f"buffer_load_ushort v{8+p}, v2, s[64:67], s61 offen offset:{p*64}")
    k("s_mul_i32 s27, s26, 5")
    k("s_sub_u32 s27, s37, s27")
    k("s_sub_u32 s25, s37, 40")
    k("s_cmp_ge_u32 s37, 40")
    k("s_cselect_b32 s26, s25, s26")
    k("s_cselect_b32 s27, 5, s27")
    k("s_mul_i32 s26, s26, 20")
    k("s_add_u32 s26, s26, s38")
    k("s_mul_i32 s26, s26, 6")
    k("s_add_u32 s26, s26, s27")
    k("s_lshl_b32 s26, s26, 10")
    k(f"s_add_u32 s26, s26, {WQF}")
    k("s_add_u32 s26, s26, s39")
    k.srd(28, 8, 9, 0, WS_END)
    k(f"s_mov_b32 s22, {EPOCH}")
    k("buffer_load_dword v14, off, s[28:31], s22 sc1")
    k.srd(12, 8, 9, ZR, ZR_SZ)
    k("s_lshl_b32 s22, s34, 10")
    for i in range(4): k(f"v_mov_b32 v{16+i}, 0")
    k("buffer_store_dwordx4 v[16:19], v1, s[12:15], s22 offen sc1")
    k("s_getpc_b64 s[56:57]")
    k.label("f_pc")
    k(f"s_add_u32 s56, s56, {code_start}-f_pc")
    k("s_addc_u32 s57, s57, -1")
    k(f"s_mov_b32 s58, {code_end}-{code_start}")
    k("s_mov_b32 s59, 0x20000")
    k("s_lshr_b32 s22, s2, 3")
    k("s_lshl_b32 s22, s22, 2")
    k("s_add_u32 s22, s22, s5")
    k("s_lshl_b32 s22, s22, 10")
    k("buffer_load_dwordx4 v[40:43], v1, s[56:59], s22 offen")
    k("v_lshlrev_b32 v5, 3, v3")
    k("v_bfe_u32 v6, v0, 5, 1")
    k("v_lshl_add_u32 v5, v6, 2, v5")
    k("v_bfe_u32 v6, v0, 4, 1")
    k("v_lshl_add_u32 v5, v6, 1, v5")
    k("v_bfe_u32 v6, v0, 3, 1")
    k("v_add_u32 v5, v5, v6")
    k("v_lshlrev_b32 v5, 2, v5")
    k("s_lshl_b32 s22, s5, 8")
    k(f"s_add_u32 s22, s22, {LACT}")
    k("v_add_u32 v5, s22, v5")
    k("v_lshrrev_b32 v7, 2, v1")
    k(f"s_mul_i32 s24, s21, {MODP_ST}")
    k(f"s_add_u32 s24, s24, {MODP}")
    k("s_add_u32 s24, s24, s35")
    k("s_cmp_lt_u32 s20, 20")
    k("s_cbranch_scc1 f_t1")
    k("s_lshl_b32 s22, s20, 8")
    k("v_add_u32 v19, s22, v7")
    k("s_branch f_st")
    k.label("f_t1")
    k("s_cmp_lt_u32 s20, 10")
    k("s_cselect_b32 s23, 2560, 0")
    k("s_cselect_b32 s22, 0, 10")
    k("s_sub_u32 s22, s20, s22")
    k("s_lshl_b32 s22, s22, 7")
    k("s_add_u32 s22, s22, s23")
    k("v_bfe_u32 v19, v0, 2, 1")
    k("v_mul_u32_u24 v19, 1280, v19")
    k("v_bfe_u32 v18, v0, 3, 3")
    k("v_lshl_add_u32 v19, v18, 4, v19")
    k("v_and_b32 v18, 3, v0")
    k("v_lshl_add_u32 v19, v18, 2, v19")
    k("v_add_u32 v19, s22, v19")
    k.label("f_st")
    k("s_waitcnt vmcnt(13)")
    for j in range(4): k(f"v_lshl_or_b32 v{120+j}, v{121+2*j}, 16, v{120+2*j}")
    k(f"buffer_store_dwordx4 {r(120)}, v1, s[28:31], s26 offen sc1")
    k("s_waitcnt vmcnt(4)")
    st1(k, 2)
    T = 60; A = 72
    for p in range(5): k(f"v_lshlrev_b32 v{8+p}, 16, v{8+p}")
    for p in range(5): k(f"v_mul_f32 v{T+p}, 0xbfb8aa3b, v{8+p}")
    for p in range(5): k(f"v_exp_f32 v{T+p}, v{T+p}")
    for p in range(5): k(f"v_add_f32 v{T+p}, 1.0, v{T+p}")
    for p in range(5): k(f"v_rcp_f32 v{T+p}, v{T+p}")
    for p in range(5): k(f"v_mul_f32 v{8+p}, v{8+p}, v{T+p}")
    for p in range(5): k(f"v_cvt_pk_bf16_f32 v{8+p}, v{8+p}, v{8+p}")
    for p in range(5): k(f"v_and_b32 v{8+p}, 0xffff0000, v{8+p}")
    for p in range(5):
        for j in range(4):
            k(f"v_lshlrev_b32 v{T+2*j}, 16, v{20+4*p+j}")
            k(f"v_and_b32 v{T+2*j+1}, 0xffff0000, v{20+4*p+j}")
        sp = f"v[{8+p-(p&1)}:{9+p-(p&1)}]"
        for j in range(4):
            if p == 0: k(f"v_pk_mul_f32 {r(A+2*j,2)}, {r(T+2*j,2)}, {sp} op_sel_hi:[1,0]")
            else:
                sel3 = "op_sel_hi:[1,0,1]" if p % 2 == 0 else "op_sel:[0,1,0] op_sel_hi:[1,1,1]"
                k(f"v_pk_fma_f32 {r(A+2*j,2)}, {r(T+2*j,2)}, {sp}, {r(A+2*j,2)} {sel3}")
    k.nop(1)
    for j in range(4): k(f"v_permlane32_swap_b32 v{A+j}, v{A+4+j}")
    for j in range(4): k(f"v_add_f32 v{A+j}, v{A+j}, v{A+4+j}")
    k.nop(1)
    for j in range(2): k(f"v_permlane16_swap_b32 v{A+j}, v{A+2+j}")
    for j in range(2): k(f"v_add_f32 v{A+j}, v{A+j}, v{A+2+j}")
    k.nop(2)
    k(f"v_add_f32_dpp v{A}, v{A}, v{A} row_ror:8 row_mask:0xf bank_mask:0x3")
    k.nop(2)
    k(f"v_add_f32_dpp v{A}, v{A+1}, v{A+1} row_ror:8 row_mask:0xf bank_mask:0xc")
    k(f"ds_write_b32 v5, v{A}")
    k(f"v_add_u32 v6, {LACT}, v7")
    k("s_lshl_b32 s22, s5, 2")
    k(f"s_add_u32 s22, s22, {LACT + 1024}")
    k("v_mov_b32 v15, s22")
    k("v_mov_b32 v25, 1")
    k("s_waitcnt lgkmcnt(0)")
    k("ds_write_b32 v15, v25")
    k("s_cmp_eq_u32 s5, 0")
    k("s_cbranch_scc1 f_pub")
    k("s_waitcnt vmcnt(0)")
    k("ds_write_b32 v15, v25 offset:16")
    k("s_branch f_nopub")
    k.label("f_pub")
    k("ds_write_b32 v15, v25 offset:16")
    k("v_and_b32 v15, 12, v7")
    k(f"v_add_u32 v15, {LACT + 1024}, v15")
    def join(name, off):
        k("s_mov_b32 s23, 0")
        k.label(name)
        k(f"ds_read_b32 v24, v15 offset:{off}")
        k("s_add_u32 s23, s23, 1")
        k("s_waitcnt lgkmcnt(0)")
        k("v_cmp_eq_u32 vcc, 1, v24")
        k("s_cmp_eq_u64 vcc, -1")
        k(f"s_cbranch_scc1 {name}_ok")
        k("s_cmp_lt_u32 s23, 0x400000")
        k(f"s_cbranch_scc1 {name}")
        k.label(name + "_ok")
    join("f_join", 0)
    for i in range(4): k(f"ds_read_b32 v{20+i}, v6 offset:{i*256}")
    k("s_getreg_b32 s22, hwreg(HW_REG_XCC_ID, 0, 4)")
    k("s_add_u32 s22, s22, 1")
    k("v_mov_b32 v26, s22")
    k("s_lshl_b32 s22, s2, 2")
    k(f"s_add_u32 s22, s22, {XID}")
    k("s_waitcnt lgkmcnt(0)")
    k("v_add_f32 v20, v20, v21")
    k("v_add_f32 v22, v22, v23")
    k("v_add_f32 v20, v20, v22")
    k("buffer_store_dword v20, v19, s[28:31], s24 offen sc1")
    k("buffer_store_dword v26, off, s[28:31], s22 sc1")
    k("s_lshl_b32 s22, s2, 7")
    k(f"s_add_u32 s22, s22, {F0}")
    join("f_join2", 16)
    k("s_waitcnt vmcnt(0)")
    token(k)
    k("v_mov_b32 v14, s54")
    k("s_mov_b64 exec, 1")
    k("buffer_store_dword v14, off, s[28:31], s22 sc1")
    k("s_mov_b64 exec, -1")
    st1(k, 3)
    k.label("f_nopub")
    k("v_bfe_u32 v3, v0, 4, 2")
    k("v_and_b32 v5, 15, v0")
    k("s_mul_i32 s37, s34, 3277")
    k("s_lshr_b32 s37, s37, 16")
    k("s_mul_i32 s38, s37, 20")
    k("s_sub_u32 s38, s34, s38")
    k("s_cmp_lt_u32 s34, 800")
    k("s_cselect_b32 s39, 0, 0x40000000")
    k("s_mul_i32 s22, s38, 40960")
    k("s_lshl_b32 s23, s37, 5")
    k("s_add_u32 s22, s22, s23")
    k("s_add_u32 s22, s22, s39")
    k("s_add_u32 s23, s22, 5120")
    k("v_mul_u32_u24 v6, 10240, v3")
    k("v_lshl_add_u32 v6, v5, 1, v6")
    k.srd(12, 52, 53, 0, 819200)
    for j in range(8):
        k(f"buffer_load_ushort v{120+j}, v6, s[12:15], {'s22' if j < 4 else 's23'} offen offset:{(j&3)*1280}")
    k("s_mul_i32 s36, s37, 52")
    k("s_lshr_b32 s36, s36, 8")
    k("s_mul_i32 s22, s36, 5")
    k("s_sub_u32 s22, s37, s22")
    k("s_mul_i32 s36, s36, 20")
    k("s_add_u32 s36, s36, s38")
    k("s_mul_i32 s36, s36, 5")
    k("s_add_u32 s36, s36, s22")
    k("s_lshl_b32 s36, s36, 10")
    k(f"s_add_u32 s36, s36, {WOF}")
    k("s_add_u32 s55, s36, s39")
    k("s_and_b32 s36, s6, 1")
    k("s_lshl_b32 s36, s36, 4")
    k("v_add_u32 v6, s36, v5")
    k("s_lshr_b32 s40, s5, 1")
    k("s_mul_i32 s40, s40, 1280")
    k(f"s_add_u32 s40, s40, {LQ}")
    for j in range(5):
        o = EP + j
        k(f"v_add_u32 v4, {4*j}, v3")
        k("v_mul_u32_u24 v2, 52, v4")
        k("v_lshrrev_b32 v2, 8, v2")
        k("v_mul_u32_u24 v8, 5, v2")
        k("v_sub_u32 v4, v4, v8")
        k(f"v_mul_u32_u24 v{o}, 2560, v2")
        k("v_lshrrev_b32 v8, 1, v4")
        k(f"v_lshl_add_u32 v{o}, v8, 9, v{o}")
        k("v_and_b32 v8, 1, v4")
        k(f"v_lshl_add_u32 v{o}, v8, 3, v{o}")
        k("v_lshrrev_b32 v8, 2, v4")
        k("v_sub_u32 v8, 4, v8")
        k("v_lshlrev_b32 v8, v8, v6")
        k(f"v_add3_u32 v{o}, v{o}, v8, s40")
    k(f"v_add_u32 v8, {LKV}, v1")
    k.srd(16, 8, 9, WQF, WQF_SZ)
    k("s_mul_i32 s10, s4, 122880")
    k("s_mul_i32 s11, s5, 30720")
    k("s_add_u32 s10, s10, s11")
    k("s_add_u32 s10, s10, 5120")
    k("s_mul_i32 s11, s5, 5120")
    k(f"s_add_u32 s11, s11, {LKV}")
    k(f"v_mul_u32_u24 v14, {KGS}, v3")
    k("v_lshl_add_u32 v14, v5, 4, v14")
    k(f"s_mul_i32 s36, s5, {RTS}")
    k(f"s_add_u32 s36, s36, {LACT}")
    k("v_add_u32 v14, s36, v14")
    k(f"v_add_u32 v15, {3*ASL}, v14")
    k("s_waitcnt vmcnt(0)")
    for j in range(4): k(f"v_lshl_or_b32 v{120+j}, v{121+2*j}, 16, v{120+2*j}")
    k(f"buffer_store_dwordx4 {r(120)}, v1, s[28:31], s55 offen sc1")
    k("s_barrier")
    st1(k, 4)
    for q in range(5):
        k(f"s_add_u32 m0, s11, {q*1024}")
        k.nop(1)
        k("buffer_load_dwordx4 v1, s[16:19], s10 offen sc1 lds")
        k("s_add_u32 s10, s10, 6144")
    def wstep(mem, lds):
        k(f"s_mov_b32 m0, {lds}")
        k(f"s_add_u32 s37, {mem}, 4096")
        for j in range(4): k(f"buffer_load_dwordx4 v1, s[16:19], {mem} offen offset:{j*1024} sc1 lds")
        k("s_add_u32 m0, m0, 4096")
        k.nop(1)
        k("buffer_load_dwordx4 v1, s[16:19], s37 offen sc1 lds")
    k("s_sub_u32 s22, s34, 20")
    k("s_cmp_lt_u32 s22, 10")
    k("s_cselect_b32 s56, 1.0, 0")
    k("s_cmp_lt_u32 s34, 40")
    k("s_cselect_b32 s22, 0, 0x40000000")
    k("s_lshl_b32 s57, s34, 8")
    k("s_add_u32 s57, s57, 5120")
    k("s_add_u32 s57, s57, s22")
    k(f"s_add_u32 s22, s57, {MODP}")
    for q in range(4):
        k(f"buffer_load_dword v{108+q}, v7, s[28:31], s22 offen sc1")
        if q < 3: k(f"s_add_u32 s22, s22, {MODP_ST}")
    k("s_mul_i32 s10, s4, 122880")
    k("s_mul_i32 s11, s5, 12288")
    k("s_add_u32 s10, s10, s11")
    k("s_mul_i32 s11, s5, 10240")
    k(f"s_add_u32 s11, s11, {LWQ}")
    wstep("s10", "s11")
    k("s_add_u32 s10, s10, 6144")
    k("s_add_u32 s11, s11, 5120")
    wstep("s10", "s11")
    k("s_waitcnt vmcnt(14)")
    k("s_barrier")
    def rda(ks, reg): return f"ds_read_b128 {r(reg)}, {'v14' if ks < 12 else 'v15'} offset:{(ks // 4 - (3 if ks >= 12 else 0)) * ASL + (ks % 4) * KS}"
    for g in range(5):
        if g == 0:
            for q in range(4): k(f"ds_read_b128 {r(136+4*q)}, v8 offset:{q*1024}")
        k("s_barrier")
        if g == 0: st1(k, 5)
        for q in range(4): k(rda(4 * g + q, 208 + 4 * q))
        wb = 136 + 16 * (g & 1)
        if g < 4:
            for q in range(4): k(f"ds_read_b128 {r(136+16*((g+1)&1)+4*q)}, v8 offset:{(4*g+4+q)*1024}")
        for q in range(4):
            k(f"s_waitcnt lgkmcnt({(7 if g < 4 else 3) - q})")
            first = g == 0 and q == 0
            k(f"v_mfma_f32_16x16x32_bf16 {r(A0+20)}, {r(wb+4*q)}, {r(208+4*q)}, {'0' if first else r(A0+20)}")
            k(f"v_mfma_f32_16x16x32_bf16 {r(96)}, {r(208+4*q)}, {r(wb+4*q)}, {'0' if first else r(96)}")
    st1(k, 6)
    k("s_waitcnt vmcnt(0)")
    k("v_add_f32 v108, v108, v109")
    k("v_add_f32 v110, v110, v111")
    k("v_add_f32 v108, v108, v110")
    k("v_cvt_pk_bf16_f32 v108, v108, v108")
    k("v_and_b32 v108, 0xffff0000, v108")
    k("v_add_f32 v108, s56, v108")
    k("v_cvt_pk_bf16_f32 v108, v108, v108")
    k("v_and_b32 v108, 0xffff0000, v108")
    k("s_cmp_ge_u32 s4, 4")
    k("s_cbranch_scc1 k1_fin")
    P = FB + 12
    k(f"v_cvt_pk_bf16_f32 v{P}, v{A0+20}, v{A0+21}")
    k(f"v_cvt_pk_bf16_f32 v{P+1}, v{A0+22}, v{A0+23}")
    k("s_lshr_b32 s36, s6, 1")
    k("s_mul_i32 s36, s36, 2560")
    k(f"s_add_u32 s36, s36, {KV}")
    k("s_and_b32 s37, s6, 1")
    k("v_mov_b32 v11, 0x40000000")
    k("s_bitcmp1_b32 s4, 0")
    k("s_cbranch_scc1 k1_V")
    k("s_cmp_eq_u32 s4, 0")
    k("s_cbranch_scc0 k1_K2")
    k("v_lshrrev_b32 v10, 1, v3")
    k("v_lshlrev_b32 v10, 9, v10")
    k("v_lshl_add_u32 v10, v6, 4, v10")
    k("v_and_b32 v12, 1, v3")
    k("v_lshl_add_u32 v10, v12, 3, v10")
    k("s_branch k1_Kst")
    k.label("k1_K2")
    k("v_cmp_eq_u32 vcc, 0, v3")
    k("v_lshlrev_b32 v10, 3, v6")
    k("v_add_u32 v10, 1024, v10")
    k("v_cndmask_b32 v10, v11, v10, vcc")
    k.label("k1_Kst")
    k(f"buffer_store_dwordx2 {r(P,2)}, v10, s[28:31], s36 offen sc1")
    k(f"v_lshlrev_b32 v16, 16, v{P}")
    k(f"v_and_b32 v17, 0xffff0000, v{P}")
    k(f"v_lshlrev_b32 v18, 16, v{P+1}")
    k(f"v_and_b32 v19, 0xffff0000, v{P+1}")
    k("v_mul_f32 v16, v16, v16")
    k("v_fmac_f32 v16, v17, v17")
    k("v_fmac_f32 v16, v18, v18")
    k("v_fmac_f32 v16, v19, v19")
    xsum16_32(k, 16, 17)
    rowred(k, "v_max_f32", 16)
    k("s_lshl_b32 s36, s4, 8")
    k("s_lshl_b32 s37, s6, 2")
    k("s_add_u32 s36, s36, s37")
    k(f"s_add_u32 s36, s36, {KMAX}")
    k("s_mov_b64 exec, 1")
    k("buffer_store_dword v16, off, s[28:31], s36 sc1")
    k("s_mov_b64 exec, -1")
    k("s_branch k1_fin")
    k.label("k1_V")
    k(f"v_cvt_pk_bf16_f32 v{P}, v96, v97")
    k(f"v_cvt_pk_bf16_f32 v{P+1}, v98, v99")
    k("s_mul_i32 s37, s37, 640")
    k("s_add_u32 s36, s36, s37")
    k("s_add_u32 s36, s36, 1280")
    k("s_cmp_eq_u32 s4, 3")
    k("s_cselect_b32 s37, 256, 0")
    k("s_cselect_b32 s38, 4, 16")
    k("s_add_u32 s36, s36, s37")
    k("v_and_b32 v9, 1, v3")
    k("v_mul_u32_u24 v9, 320, v9")
    k("v_lshl_add_u32 v9, v5, 4, v9")
    k("v_cmp_gt_u32 vcc, s38, v5")
    k("v_lshrrev_b32 v10, 1, v3")
    k("v_lshl_add_u32 v9, v10, 3, v9")
    k("v_cndmask_b32 v9, v11, v9, vcc")
    k(f"buffer_store_dwordx2 {r(P,2)}, v9, s[28:31], s36 offen sc1")
    k.label("k1_fin")
    k("buffer_store_dword v108, v7, s[28:31], s57 offen sc1")
    k("s_lshl_b32 s36, s2, 7")
    k(f"s_add_u32 s36, s36, {F1}")
    k("v_mov_b32 v10, 1")
    k(f"v_add_u32 v11, {LWQ}, v1")
    k("s_waitcnt vmcnt(0)")
    k("s_barrier")
    k("s_cmp_lg_u32 s5, 0")
    k("s_cbranch_scc1 f_nof1")
    k("s_mov_b64 exec, 1")
    k("buffer_store_dword v10, off, s[28:31], s36 sc1")
    k("s_mov_b64 exec, -1")
    k.label("f_nof1")
    if os.environ.get("FINE2"): k.stamp(6)
    WBUF = (136, 156, 176); ABUF = (208, 212, 216)
    def rdw(ks):
        base = WH[ks]
        reg, off = ("v1", base) if base < LKV else ("v8", base - LKV) if base < LWQ else ("v11", base - LWQ)
        return [rda(ks, ABUF[ks % 3])] + [f"ds_read_b128 {r(WBUF[ks%3]+4*j)}, {reg} offset:{off + j*1024}" for j in range(5)]
    for l in rdw(0) + rdw(1): k(l)
    for ks in range(20):
        w = WBUF[ks % 3]; a = ABUF[ks % 3]
        k(f"s_waitcnt lgkmcnt({6 if ks < 19 else 0})")
        if ks in (6, 12): k("s_barrier")
        fill = rdw(ks + 2) if ks < 18 else []
        for j in range(5):
            k(f"v_mfma_f32_16x16x32_bf16 {r(A0+4*j)}, {r(w+4*j)}, {r(a)}, {'0' if ks == 0 else r(A0+4*j)}")
            if fill: k(fill.pop(0))
            if j == 0 and fill: k(fill.pop(0))
    k.nop(6)
    k(f"v_mov_b32 v8, {hexf(QSCALE)}")
    for j in range(5):
        a = A0 + 4 * j
        k(f"v_pk_mul_f32 {r(a,2)}, {r(a,2)}, v[8:9] op_sel_hi:[1,0]")
        k(f"v_pk_mul_f32 {r(a+2,2)}, {r(a+2,2)}, v[8:9] op_sel_hi:[1,0]")
        k(f"v_cvt_pk_bf16_f32 v{FB+2*j}, v{a}, v{a+1}")
        k(f"v_cvt_pk_bf16_f32 v{FB+2*j+1}, v{a+2}, v{a+3}")
        k(f"ds_write_b64 v{EP+j}, {r(FB+2*j,2)}")
    k(f"s_mov_b32 s{TOK}, s54")
    k("s_waitcnt lgkmcnt(0)")
    k("s_branch k1_done")
    k.label("f_loader")
    RAW = (176, 196, 216, 176); XF0 = 16
    k("v_bfe_u32 v2, v0, 4, 2")
    k("v_and_b32 v3, 15, v0")
    k("v_mul_u32_u24 v4, 1280, v2")
    k("v_lshl_add_u32 v4, v3, 4, v4")
    k("s_mul_i32 s7, s6, 20480")
    k("s_waitcnt lgkmcnt(0)")
    k.srd(20, 40, 41, 0, ACT_SZ)
    def ldx(i):
        for s in range(5): k(f"buffer_load_dwordx4 {r(RAW[i]+4*s)}, v4, s[20:23], s7 offen offset:{s*256}")
        k("s_add_u32 s7, s7, 5120")
    k.srd(28, 8, 9, 0, WS_END)
    if PT:
        k("s_lshl_b32 s22, s2, 7")
        k(f"s_add_u32 s22, s22, {F0}")
        k("buffer_load_dword v11, off, s[28:31], s22 sc1")
        k("s_lshl_b32 s22, s2, 2")
        k(f"s_add_u32 s22, s22, {XID}")
        k("buffer_load_dword v11, off, s[28:31], s22 sc1")
    ldx(0); ldx(1)
    k("v_mov_b32 v5, 0x3f803f80")
    if TLB:
        k("s_load_dwordx8 s[56:63], s[0:1], 48")
        k("s_load_dwordx2 s[64:65], s[0:1], 96")
        k(f"v_lshlrev_b32 v10, {TLB - 4}, v1")
        k("buffer_load_dword v11, v10, s[28:31], 0 offen")
        k("s_waitcnt lgkmcnt(0)")
        for lo, sz in ((56, 1966080), (58, 8388608), (60, 4096), (62, 983040), (64, ACT_SZ)):
            k.srd(12, lo, lo + 1, 0, sz)
            k("buffer_load_dword v11, v10, s[12:15], 0 offen")
    st1(k, 2)
    for i in range(4):
        R = RAW[i]; F = XF0 + 40 * i
        k(f"s_waitcnt vmcnt({((11 if TLB else 5), 10, 6, 0)[i]})")
        if i == 0: ldx(2)
        if i == 1:
            k(f"s_mov_b32 s22, {EPOCH}")
            k("buffer_load_dword v14, off, s[28:31], s22 sc1")
        for h in range(2):
            k(f"v_dot2_f32_bf16 v{6+h}, v{R+h}, v5, 0")
            k(f"v_dot2_f32_bf16 v{8+h}, v{R+h}, v{R+h}, 0")
        for j in range(2, 20):
            k(f"v_dot2_f32_bf16 v{6+(j&1)}, v{R+j}, v5, v{6+(j&1)}")
            k(f"v_dot2_f32_bf16 v{8+(j&1)}, v{R+j}, v{R+j}, v{8+(j&1)}")
        for j in range(4):
            k(f"v_lshlrev_b32 v{F+2*j}, 16, v{R+j}")
            k(f"v_and_b32 v{F+2*j+1}, 0xffff0000, v{R+j}")
        k("v_add_f32 v6, v6, v7")
        k("v_add_f32 v8, v8, v9")
        n = 4
        for rot in (1, 2, 4, 8):
            for j in range(n, n + 4):
                if j == n + 1:
                    k(f"v_add_f32_dpp v6, v6, v6 row_ror:{rot} row_mask:0xf bank_mask:0xf")
                    k(f"v_add_f32_dpp v8, v8, v8 row_ror:{rot} row_mask:0xf bank_mask:0xf")
                k(f"v_lshlrev_b32 v{F+2*j}, 16, v{R+j}")
                k(f"v_and_b32 v{F+2*j+1}, 0xffff0000, v{R+j}")
            n += 4
        k(f"v_mul_f32 v6, {hexf(1.0/640)}, v6")
        k(f"v_mov_b32 v7, {hexf(1e-5)}")
        k(f"v_fmac_f32 v7, {hexf(1.0/640)}, v8")
        k("v_fma_f32 v7, -v6, v6, v7")
        k("v_rsq_f32 v8, v7")
        k.nop(1)
        k("v_mul_f32 v9, v6, v8")
        for j in range(20): k(f"v_pk_fma_f32 {r(F+2*j,2)}, {r(F+2*j,2)}, v[8:9], v[8:9] op_sel:[0,0,1] op_sel_hi:[1,0,1] neg_lo:[0,0,1] neg_hi:[0,0,1]")
        if i == 0: ldx(3)
    st1(k, 3)
    k("v_lshrrev_b32 v6, 2, v3")
    k(f"v_mul_u32_u24 v6, {KS}, v6")
    k("v_and_b32 v7, 3, v3")
    k(f"v_mul_u32_u24 v7, {KGS}, v7")
    k("v_lshl_add_u32 v7, v2, 4, v7")
    k(f"s_mul_i32 s36, s5, {RTS}")
    k(f"s_add_u32 s36, s36, {LACT}")
    k("v_add3_u32 v6, v6, v7, s36")
    k("v_lshlrev_b32 v10, 4, v3")
    k(f"v_add_u32 v10, {LT1}, v10")
    k("s_mul_i32 s34, s5, 1280")
    k(f"s_add_u32 s35, s34, {LT1}")
    k("v_add_u32 v11, s35, v1")
    k("v_lshrrev_b32 v5, 2, v1")
    k("v_add_u32 v12, s35, v5")
    k(f"s_add_u32 s34, s34, {MODP}")
    k("s_cmp_lt_u32 s5, 2")
    k("s_cselect_b32 s36, 1.0, 0")
    k("s_cmp_lg_u32 s5, 0")
    k("s_cbranch_scc1 f_p0_ok")
    token(k)
    k("v_lshlrev_b32 v176, 3, v1")
    for q in range(4): k(f"s_mov_b32 s{60+q}, {F0 + q * 8192}")
    poll_missing(k, "f_p0", 28, ["s60", "s61", "s62", "s63"], 176, 177, 1, tok="s54")
    k.srd(16, 8, 9, WQF, WQF_SZ)
    k("v_add_u32 v7, 0x10000, v6")
    def six(first):
        for i in range(8):
            mem = [((first + (4*i+l)//5) * 6 + (4*i+l) % 5) * 1024 if 4*i+l < 30 else 0x40000000 for l in range(4)]
            lds = [WH[first + (4*i+l)//5] + ((4*i+l) % 5) * 1024 if 4*i+l < 30 else 163840 for l in range(4)]
            k(f"s_mov_b32 s37, {mem[0]}"); k(f"s_mov_b32 m0, {lds[0]}")
            for l in range(1, 4):
                k(f"s_cmp_eq_u32 s5, {l}")
                k(f"s_cselect_b32 s37, {mem[l]}, s37"); k(f"s_cselect_b32 m0, {lds[l]}, m0")
            k("s_add_u32 s37, s37, s10")
            k("buffer_load_dwordx4 v1, s[16:19], s37 offen sc1 lds")
    k("s_mul_i32 s10, s4, 122880")
    k("s_setprio 3")
    k("s_barrier")
    st1(k, 4)
    for q in range(4):
        k(f"buffer_load_dwordx4 {r(176+4*q)}, v1, s[28:31], s34 offen sc1")
        k(f"buffer_load_dword v{192+q}, v5, s[28:31], s34 offen offset:1024 sc1")
        if q < 3: k(f"s_add_u32 s34, s34, {MODP_ST}")
    k("s_waitcnt vmcnt(0)")
    for h in range(2):
        k(f"v_pk_add_f32 {r(176+2*h,2)}, {r(176+2*h,2)}, {r(180+2*h,2)}")
        k(f"v_pk_add_f32 {r(184+2*h,2)}, {r(184+2*h,2)}, {r(188+2*h,2)}")
    k("v_add_f32 v192, v192, v193")
    k("v_add_f32 v194, v194, v195")
    for h in range(2): k(f"v_pk_add_f32 {r(176+2*h,2)}, {r(176+2*h,2)}, {r(184+2*h,2)}")
    k("v_add_f32 v180, v192, v194")
    for rnd in range(2):
        for i in range(5): k(f"v_cvt_pk_bf16_f32 v{176+i}, v{176+i}, v{176+i}")
        for i in range(5): k(f"v_and_b32 v{176+i}, 0xffff0000, v{176+i}")
        if rnd == 0:
            for i in range(5): k(f"v_add_f32 v{176+i}, s36, v{176+i}")
    k(f"ds_write_b128 v11, {r(176)}")
    k("ds_write_b32 v12, v180 offset:1024")
    k("s_waitcnt lgkmcnt(0)")
    k("s_barrier")
    st1(k, 5)
    CO = (176, 194); T = 212
    def coefs(s):
        for j in range(4): k(f"ds_read_b128 {r(CO[s&1]+4*j)}, v10 offset:{j*1280 + s*256}")
    def valu(s):
        co = CO[s & 1]
        for i in range(4):
            a = XF0 + 40 * i + 8 * s; p = T + 4 * i
            for j in range(4): k(f"v_pk_fma_f32 {r(a+2*j,2)}, {r(a+2*j,2)}, {r(co+2*j,2)}, {r(co+8+2*j,2)}")
        for i in range(4):
            a = XF0 + 40 * i + 8 * s; p = T + 16 * (s & 1) + 4 * i
            for j in range(4): k(f"v_cvt_pk_bf16_f32 v{p+j}, v{a+2*j}, v{a+2*j+1}")
            o = s * ASL + i * 64
            k(f"ds_write_b128 {'v6' if o < 65536 else 'v7'}, {r(p)} offset:{o & 65535}")
    coefs(0); coefs(1)
    k("s_waitcnt lgkmcnt(4)")
    valu(0)
    for s in range(4):
        k("s_waitcnt lgkmcnt(4)")
        if s > 0: k("s_barrier")
        if s + 2 < 5:
            coefs(s + 2)
        valu(s + 1)
        if s + 2 >= 5: k("s_nop 0")
    k("s_waitcnt lgkmcnt(4)")
    k("s_barrier")
    for q in range(4): k(f"s_mov_b32 s{60+q}, {F1 + q * 8192}")
    k("v_lshlrev_b32 v96, 3, v1")
    k("s_waitcnt lgkmcnt(0)")
    k("s_barrier")
    k("s_barrier")
    six(8)
    k("s_waitcnt vmcnt(0)")
    k("s_barrier")
    six(14)
    k("s_waitcnt vmcnt(0)")
    k("s_barrier")
    k("s_cmp_lg_u32 s5, 0")
    k("s_cbranch_scc1 f_p1_ok")
    poll_missing(k, "f_p1", 28, ["s60", "s61", "s62", "s63"], 96, 97, 1)
    st1(k, 6)
    k.label("k1_done")
```

```python
from layout import *
from k0 import hexf, xsum16_32, rowred
import math, os

QSCALE = math.log2(math.e) / math.sqrt(20.0)
def r(b, n=4): return f"v[{b}:{b+n-1}]"
A0 = 16; FB = 40; EP = 100
KGS = 272; RTS = 1088; KS = 4416; ASL = 4 * KS
LACT = 0; LKV = 5 * ASL; LT1 = LKV + 20480; LWQ = LT1 + 5120; LQ = 36864
WH = [LWQ + 5120 * i for i in range(8)] + [LKV + 5120 * i for i in range(5)] + [LWQ + 40960] + [LWQ + 5120 * i for i in range(4)] + [0, 5120]
TOK = 31
F0SH = int(os.environ.get('F0SH', '4')); F1SH = int(os.environ.get('F1SH', '7')); PSL = int(os.environ.get('PSL', '4'))
F0D = int(os.environ.get('F0D', '24'))
PT = int(os.environ.get('PT', '0'))
XF = os.environ.get('XF', '')
TLB = int(os.environ.get('TLB', '0'))
def st1(k, i):
    if os.environ.get('FINE1') and not os.environ.get('FINE1B'): k.stamp(i)

def token(k):
    k("v_readfirstlane_b32 s54, v14")
    k("s_mul_i32 s54, s54, 0x9e3779b1")
    k("s_add_u32 s54, s54, 0x7f4a7c15")

def gen_front(k, poll_missing, code_start, code_end):
    k("s_load_dwordx8 s[40:47], s[0:1], 0")
    k("s_load_dwordx4 s[48:51], s[0:1], 80")
    k("s_load_dwordx2 s[52:53], s[0:1], 32")
    k("v_lshrrev_b32 v1, 6, v0")
    k("s_and_b32 s3, s2, 7")
    k("v_readfirstlane_b32 s5, v1")
    k("s_lshl_b32 s3, s3, 2")
    k("s_bfe_u32 s4, s2, 0x20003")
    k("s_add_u32 s3, s3, s4")
    k("s_lshr_b32 s4, s2, 5")
    k("v_and_b32 v1, 63, v0")
    k("v_lshlrev_b32 v1, 4, v1")
    k("s_lshr_b32 s33, s5, 2")
    k("s_and_b32 s5, s5, 3")
    k("s_lshl_b32 s6, s3, 2")
    k("s_add_u32 s6, s6, s5")
    k("s_lshl_b32 s22, s5, 2")
    k(f"s_add_u32 s22, s22, {LACT + 1024}")
    k("v_and_b32 v2, 16, v1")
    k("v_add_u32 v2, s22, v2")
    k("v_mov_b32 v3, 0")
    k("ds_write_b32 v2, v3")
    k("s_waitcnt lgkmcnt(0)")
    k("s_barrier")
    k("s_cmp_eq_u32 s33, 0")
    k("s_cbranch_scc0 f_loader")
    k("s_and_b32 s21, s2, 3")
    k("s_lshr_b32 s20, s2, 2")
    k("v_lshrrev_b32 v2, 3, v0")
    k("v_and_b32 v3, 7, v0")
    k("v_mul_u32_u24 v13, 7680, v2")
    k("v_lshl_add_u32 v13, v3, 4, v13")
    k("v_lshlrev_b32 v2, 1, v2")
    k(f"s_mul_i32 s60, s21, {160*7680}")
    k("s_lshl_b32 s23, s20, 7")
    k("s_add_u32 s60, s60, s23")
    k("s_cmp_lt_u32 s20, 60")
    k("s_cselect_b32 s35, 0, 0x40000000")
    k("s_add_u32 s60, s60, s35")
    k("s_mul_i32 s61, s21, 320")
    k("s_waitcnt lgkmcnt(0)")
    k.srd(16, 50, 51, 0, 640 * 7680)
    k.srd(64, 48, 49, 0, 1280)
    k("s_lshl_b32 s34, s2, 2")
    k("s_add_u32 s34, s34, s5")
    k("s_mul_i32 s37, s34, 3277")
    k("s_lshr_b32 s37, s37, 16")
    k("s_mul_i32 s38, s37, 20")
    k("s_sub_u32 s38, s34, s38")
    k("s_cmp_ge_u32 s37, 42")
    k("s_cselect_b32 s23, 32, 0")
    k("s_cselect_b32 s24, 4, 16")
    k("s_lshl_b32 s25, s37, 5")
    k("s_cmp_ge_u32 s37, 40")
    k("s_cselect_b32 s23, s23, s25")
    k("s_movk_i32 s22, 1280")
    k("s_cselect_b32 s22, 40, s22")
    k("s_mov_b32 s14, 819200")
    k("s_cselect_b32 s14, 25600, s14")
    k("s_cselect_b32 s12, s44, s42")
    k("s_cselect_b32 s13, s45, s43")
    k("s_and_b32 s25, s37, 41")
    k("s_cmp_eq_u32 s25, 41")
    k("s_cselect_b32 s12, s46, s12")
    k("s_cselect_b32 s13, s47, s13")
    k("s_cmp_lt_u32 s37, 44")
    k("s_cselect_b32 s14, s14, 0")
    k("s_cselect_b32 s39, 0, 0x40000000")
    k("s_mov_b32 s15, 0x20000")
    k("s_lshl_b32 s27, s22, 3")
    k("s_lshl_b32 s25, s38, 5")
    k("s_mul_i32 s25, s25, s22")
    k("s_add_u32 s25, s25, s23")
    k("v_and_b32 v6, 15, v0")
    k("v_bfe_u32 v5, v0, 4, 2")
    k("v_mul_u32_u24 v4, s27, v5")
    k("v_lshl_add_u32 v4, v6, 1, v4")
    k("v_cmp_gt_u32 vcc, s24, v6")
    k("v_mov_b32 v5, 0x40000000")
    k("s_mul_i32 s26, s37, 52")
    k("s_lshr_b32 s26, s26, 8")
    k("v_cndmask_b32 v4, v5, v4, vcc")
    for j in range(8):
        k(f"buffer_load_ushort v{120+j}, v4, s[12:15], s25 offen")
        if j < 7: k("s_add_u32 s25, s25, s22")
    for p in range(5):
        k(f"buffer_load_dwordx4 v[{20+4*p}:{23+4*p}], v13, s[16:19], s60 offen")
        if p < 4: k(f"s_add_u32 s60, s60, {32 * 7680}")
        k(f"buffer_load_ushort v{8+p}, v2, s[64:67], s61 offen offset:{p*64}")
    k("s_mul_i32 s27, s26, 5")
    k("s_sub_u32 s27, s37, s27")
    k("s_sub_u32 s25, s37, 40")
    k("s_cmp_ge_u32 s37, 40")
    k("s_cselect_b32 s26, s25, s26")
    k("s_cselect_b32 s27, 5, s27")
    k("s_mul_i32 s26, s26, 20")
    k("s_add_u32 s26, s26, s38")
    k("s_mul_i32 s26, s26, 6")
    k("s_add_u32 s26, s26, s27")
    k("s_lshl_b32 s26, s26, 10")
    k(f"s_add_u32 s26, s26, {WQF}")
    k("s_add_u32 s26, s26, s39")
    k.srd(28, 8, 9, 0, WS_END)
    k(f"s_mov_b32 s22, {EPOCH}")
    k("buffer_load_dword v14, off, s[28:31], s22 sc1")
    k.srd(12, 8, 9, ZR, ZR_SZ)
    k("s_lshl_b32 s22, s34, 10")
    for i in range(4): k(f"v_mov_b32 v{16+i}, 0")
    k("buffer_store_dwordx4 v[16:19], v1, s[12:15], s22 offen sc1")
    k("s_getpc_b64 s[56:57]")
    k.label("f_pc")
    k(f"s_add_u32 s56, s56, {code_start}-f_pc")
    k("s_addc_u32 s57, s57, -1")
    k(f"s_mov_b32 s58, {code_end}-{code_start}")
    k("s_mov_b32 s59, 0x20000")
    k("s_lshr_b32 s22, s2, 3")
    k("s_lshl_b32 s22, s22, 2")
    k("s_add_u32 s22, s22, s5")
    k("s_lshl_b32 s22, s22, 10")
    k("buffer_load_dwordx4 v[40:43], v1, s[56:59], s22 offen")
    k("v_lshlrev_b32 v5, 3, v3")
    k("v_bfe_u32 v6, v0, 5, 1")
    k("v_lshl_add_u32 v5, v6, 2, v5")
    k("v_bfe_u32 v6, v0, 4, 1")
    k("v_lshl_add_u32 v5, v6, 1, v5")
    k("v_bfe_u32 v6, v0, 3, 1")
    k("v_add_u32 v5, v5, v6")
    k("v_lshlrev_b32 v5, 2, v5")
    k("s_lshl_b32 s22, s5, 8")
    k(f"s_add_u32 s22, s22, {LACT}")
    k("v_add_u32 v5, s22, v5")
    k("v_lshrrev_b32 v7, 2, v1")
    k(f"s_mul_i32 s24, s21, {MODP_ST}")
    k(f"s_add_u32 s24, s24, {MODP}")
    k("s_add_u32 s24, s24, s35")
    k("s_cmp_lt_u32 s20, 20")
    k("s_cbranch_scc1 f_t1")
    k("s_lshl_b32 s22, s20, 8")
    k("v_add_u32 v19, s22, v7")
    k("s_branch f_st")
    k.label("f_t1")
    k("s_cmp_lt_u32 s20, 10")
    k("s_cselect_b32 s23, 2560, 0")
    k("s_cselect_b32 s22, 0, 10")
    k("s_sub_u32 s22, s20, s22")
    k("s_lshl_b32 s22, s22, 7")
    k("s_add_u32 s22, s22, s23")
    k("v_bfe_u32 v19, v0, 2, 1")
    k("v_mul_u32_u24 v19, 1280, v19")
    k("v_bfe_u32 v18, v0, 3, 3")
    k("v_lshl_add_u32 v19, v18, 4, v19")
    k("v_and_b32 v18, 3, v0")
    k("v_lshl_add_u32 v19, v18, 2, v19")
    k("v_add_u32 v19, s22, v19")
    k.label("f_st")
    k("s_waitcnt vmcnt(13)")
    for j in range(4): k(f"v_lshl_or_b32 v{120+j}, v{121+2*j}, 16, v{120+2*j}")
    k(f"buffer_store_dwordx4 {r(120)}, v1, s[28:31], s26 offen sc1")
    k("s_waitcnt vmcnt(4)")
    st1(k, 2)
    T = 60; A = 72
    for p in range(5): k(f"v_lshlrev_b32 v{8+p}, 16, v{8+p}")
    for p in range(5): k(f"v_mul_f32 v{T+p}, 0xbfb8aa3b, v{8+p}")
    for p in range(5): k(f"v_exp_f32 v{T+p}, v{T+p}")
    for p in range(5): k(f"v_add_f32 v{T+p}, 1.0, v{T+p}")
    for p in range(5): k(f"v_rcp_f32 v{T+p}, v{T+p}")
    for p in range(5): k(f"v_mul_f32 v{8+p}, v{8+p}, v{T+p}")
    for p in range(5): k(f"v_cvt_pk_bf16_f32 v{8+p}, v{8+p}, v{8+p}")
    for p in range(5): k(f"v_and_b32 v{8+p}, 0xffff0000, v{8+p}")
    for p in range(5):
        for j in range(4):
            k(f"v_lshlrev_b32 v{T+2*j}, 16, v{20+4*p+j}")
            k(f"v_and_b32 v{T+2*j+1}, 0xffff0000, v{20+4*p+j}")
        sp = f"v[{8+p-(p&1)}:{9+p-(p&1)}]"
        for j in range(4):
            if p == 0: k(f"v_pk_mul_f32 {r(A+2*j,2)}, {r(T+2*j,2)}, {sp} op_sel_hi:[1,0]")
            else:
                sel3 = "op_sel_hi:[1,0,1]" if p % 2 == 0 else "op_sel:[0,1,0] op_sel_hi:[1,1,1]"
                k(f"v_pk_fma_f32 {r(A+2*j,2)}, {r(T+2*j,2)}, {sp}, {r(A+2*j,2)} {sel3}")
    k.nop(1)
    for j in range(4): k(f"v_permlane32_swap_b32 v{A+j}, v{A+4+j}")
    for j in range(4): k(f"v_add_f32 v{A+j}, v{A+j}, v{A+4+j}")
    k.nop(1)
    for j in range(2): k(f"v_permlane16_swap_b32 v{A+j}, v{A+2+j}")
    for j in range(2): k(f"v_add_f32 v{A+j}, v{A+j}, v{A+2+j}")
    k.nop(2)
    k(f"v_add_f32_dpp v{A}, v{A}, v{A} row_ror:8 row_mask:0xf bank_mask:0x3")
    k.nop(2)
    k(f"v_add_f32_dpp v{A}, v{A+1}, v{A+1} row_ror:8 row_mask:0xf bank_mask:0xc")
    k(f"ds_write_b32 v5, v{A}")
    k(f"v_add_u32 v6, {LACT}, v7")
    k("s_lshl_b32 s22, s5, 2")
    k(f"s_add_u32 s22, s22, {LACT + 1024}")
    k("v_mov_b32 v15, s22")
    k("v_mov_b32 v25, 1")
    k("s_waitcnt lgkmcnt(0)")
    k("ds_write_b32 v15, v25")
    k("s_cmp_eq_u32 s5, 0")
    k("s_cbranch_scc1 f_pub")
    k("s_waitcnt vmcnt(0)")
    k("ds_write_b32 v15, v25 offset:16")
    k("s_branch f_nopub")
    k.label("f_pub")
    k("ds_write_b32 v15, v25 offset:16")
    k("v_and_b32 v15, 12, v7")
    k(f"v_add_u32 v15, {LACT + 1024}, v15")
    def join(name, off):
        k("s_mov_b32 s23, 0")
        k.label(name)
        k(f"ds_read_b32 v24, v15 offset:{off}")
        k("s_add_u32 s23, s23, 1")
        k("s_waitcnt lgkmcnt(0)")
        k("v_cmp_eq_u32 vcc, 1, v24")
        k("s_cmp_eq_u64 vcc, -1")
        k(f"s_cbranch_scc1 {name}_ok")
        k("s_cmp_lt_u32 s23, 0x400000")
        k(f"s_cbranch_scc1 {name}")
        k.label(name + "_ok")
    join("f_join", 0)
    for i in range(4): k(f"ds_read_b32 v{20+i}, v6 offset:{i*256}")
    k("s_getreg_b32 s22, hwreg(HW_REG_XCC_ID, 0, 4)")
    k("s_add_u32 s22, s22, 1")
    k("v_mov_b32 v26, s22")
    k("s_lshl_b32 s22, s2, 2")
    k(f"s_add_u32 s22, s22, {XID}")
    k("s_waitcnt lgkmcnt(0)")
    k("v_add_f32 v20, v20, v21")
    k("v_add_f32 v22, v22, v23")
    k("v_add_f32 v20, v20, v22")
    k("buffer_store_dword v20, v19, s[28:31], s24 offen sc1")
    k("buffer_store_dword v26, off, s[28:31], s22 sc1")
    k(f"s_lshl_b32 s22, s2, {F0SH}")
    k(f"s_add_u32 s22, s22, {F0}")
    join("f_join2", 16)
    k("s_waitcnt vmcnt(0)")
    token(k)
    k("v_mov_b32 v14, s54")
    k("s_mov_b64 exec, 1")
    k("buffer_store_dword v14, off, s[28:31], s22 sc1")
    k("s_mov_b64 exec, -1")
    if F0D:
        k("v_mov_b32 v25, 2")
        k("ds_write_b32 v15, v25")
    st1(k, 3)
    k.label("f_nopub")
    k("v_bfe_u32 v3, v0, 4, 2")
    k("v_and_b32 v5, 15, v0")
    k("s_mul_i32 s37, s34, 3277")
    k("s_lshr_b32 s37, s37, 16")
    k("s_mul_i32 s38, s37, 20")
    k("s_sub_u32 s38, s34, s38")
    k("s_cmp_lt_u32 s34, 800")
    k("s_cselect_b32 s39, 0, 0x40000000")
    k("s_mul_i32 s22, s38, 40960")
    k("s_lshl_b32 s23, s37, 5")
    k("s_add_u32 s22, s22, s23")
    k("s_add_u32 s22, s22, s39")
    k("s_add_u32 s23, s22, 5120")
    k("v_mul_u32_u24 v6, 10240, v3")
    k("v_lshl_add_u32 v6, v5, 1, v6")
    k.srd(12, 52, 53, 0, 819200)
    for j in range(8):
        k(f"buffer_load_ushort v{120+j}, v6, s[12:15], {'s22' if j < 4 else 's23'} offen offset:{(j&3)*1280}")
    k("s_mul_i32 s36, s37, 52")
    k("s_lshr_b32 s36, s36, 8")
    k("s_mul_i32 s22, s36, 5")
    k("s_sub_u32 s22, s37, s22")
    k("s_mul_i32 s36, s36, 20")
    k("s_add_u32 s36, s36, s38")
    k("s_mul_i32 s36, s36, 5")
    k("s_add_u32 s36, s36, s22")
    k("s_lshl_b32 s36, s36, 10")
    k(f"s_add_u32 s36, s36, {WOF}")
    k("s_add_u32 s55, s36, s39")
    k("s_and_b32 s36, s6, 1")
    k("s_lshl_b32 s36, s36, 4")
    k("v_add_u32 v6, s36, v5")
    k("s_lshr_b32 s40, s5, 1")
    k("s_mul_i32 s40, s40, 1280")
    k(f"s_add_u32 s40, s40, {LQ}")
    for j in range(5):
        o = EP + j
        k(f"v_add_u32 v4, {4*j}, v3")
        k("v_mul_u32_u24 v2, 52, v4")
        k("v_lshrrev_b32 v2, 8, v2")
        k("v_mul_u32_u24 v8, 5, v2")
        k("v_sub_u32 v4, v4, v8")
        k(f"v_mul_u32_u24 v{o}, 2560, v2")
        k("v_lshrrev_b32 v8, 1, v4")
        k(f"v_lshl_add_u32 v{o}, v8, 9, v{o}")
        k("v_and_b32 v8, 1, v4")
        k(f"v_lshl_add_u32 v{o}, v8, 3, v{o}")
        k("v_lshrrev_b32 v8, 2, v4")
        k("v_sub_u32 v8, 4, v8")
        k("v_lshlrev_b32 v8, v8, v6")
        k(f"v_add3_u32 v{o}, v{o}, v8, s40")
    k(f"v_add_u32 v8, {LKV}, v1")
    k.srd(16, 8, 9, WQF, WQF_SZ)
    k("s_mul_i32 s10, s4, 122880")
    k("s_mul_i32 s11, s5, 30720")
    k("s_add_u32 s10, s10, s11")
    k("s_add_u32 s10, s10, 5120")
    k("s_mul_i32 s11, s5, 5120")
    k(f"s_add_u32 s11, s11, {LKV}")
    k(f"v_mul_u32_u24 v14, {KGS}, v3")
    k("v_lshl_add_u32 v14, v5, 4, v14")
    k(f"s_mul_i32 s36, s5, {RTS}")
    k(f"s_add_u32 s36, s36, {LACT}")
    k("v_add_u32 v14, s36, v14")
    k(f"v_add_u32 v15, {3*ASL}, v14")
    k("s_waitcnt vmcnt(0)")
    for j in range(4): k(f"v_lshl_or_b32 v{120+j}, v{121+2*j}, 16, v{120+2*j}")
    k(f"buffer_store_dwordx4 {r(120)}, v1, s[28:31], s55 offen sc1")
    k("s_barrier")
    st1(k, 4)
    for q in range(5):
        k(f"s_add_u32 m0, s11, {q*1024}")
        k.nop(1)
        k("buffer_load_dwordx4 v1, s[16:19], s10 offen sc1 lds")
        k("s_add_u32 s10, s10, 6144")
    def wstep(mem, lds):
        k(f"s_mov_b32 m0, {lds}")
        k(f"s_add_u32 s37, {mem}, 4096")
        for j in range(4): k(f"buffer_load_dwordx4 v1, s[16:19], {mem} offen offset:{j*1024} sc1 lds")
        k("s_add_u32 m0, m0, 4096")
        k.nop(1)
        k("buffer_load_dwordx4 v1, s[16:19], s37 offen sc1 lds")
    k("s_sub_u32 s22, s34, 20")
    k("s_cmp_lt_u32 s22, 10")
    k("s_cselect_b32 s56, 1.0, 0")
    k("s_cmp_lt_u32 s34, 40")
    k("s_cselect_b32 s22, 0, 0x40000000")
    k("s_lshl_b32 s57, s34, 8")
    k("s_add_u32 s57, s57, 5120")
    k("s_add_u32 s57, s57, s22")
    k(f"s_add_u32 s22, s57, {MODP}")
    for q in range(4):
        k(f"buffer_load_dword v{108+q}, v7, s[28:31], s22 offen sc1")
        if q < 3: k(f"s_add_u32 s22, s22, {MODP_ST}")
    k("s_mul_i32 s10, s4, 122880")
    k("s_mul_i32 s11, s5, 12288")
    k("s_add_u32 s10, s10, s11")
    k("s_mul_i32 s11, s5, 10240")
    k(f"s_add_u32 s11, s11, {LWQ}")
    wstep("s10", "s11")
    k("s_add_u32 s10, s10, 6144")
    k("s_add_u32 s11, s11, 5120")
    wstep("s10", "s11")
    k("s_waitcnt vmcnt(14)")
    k("s_barrier")
    def rda(ks, reg): return f"ds_read_b128 {r(reg)}, {'v14' if ks < 12 else 'v15'} offset:{(ks // 4 - (3 if ks >= 12 else 0)) * ASL + (ks % 4) * KS}"
    for g in range(5):
        if g == 0:
            for q in range(4): k(f"ds_read_b128 {r(136+4*q)}, v8 offset:{q*1024}")
        k("s_barrier")
        if g == 0: st1(k, 5)
        for q in range(4): k(rda(4 * g + q, 208 + 4 * q))
        wb = 136 + 16 * (g & 1)
        if g < 4:
            for q in range(4): k(f"ds_read_b128 {r(136+16*((g+1)&1)+4*q)}, v8 offset:{(4*g+4+q)*1024}")
        for q in range(4):
            k(f"s_waitcnt lgkmcnt({(7 if g < 4 else 3) - q})")
            first = g == 0 and q == 0
            k(f"v_mfma_f32_16x16x32_bf16 {r(A0+20)}, {r(wb+4*q)}, {r(208+4*q)}, {'0' if first else r(A0+20)}")
            k(f"v_mfma_f32_16x16x32_bf16 {r(96)}, {r(208+4*q)}, {r(wb+4*q)}, {'0' if first else r(96)}")
    st1(k, 6)
    k("s_waitcnt vmcnt(0)")
    k("v_add_f32 v108, v108, v109")
    k("v_add_f32 v110, v110, v111")
    k("v_add_f32 v108, v108, v110")
    k("v_cvt_pk_bf16_f32 v108, v108, v108")
    k("v_and_b32 v108, 0xffff0000, v108")
    k("v_add_f32 v108, s56, v108")
    k("v_cvt_pk_bf16_f32 v108, v108, v108")
    k("v_and_b32 v108, 0xffff0000, v108")
    k("s_cmp_ge_u32 s4, 4")
    k("s_cbranch_scc1 k1_fin")
    P = FB + 12
    k(f"v_cvt_pk_bf16_f32 v{P}, v{A0+20}, v{A0+21}")
    k(f"v_cvt_pk_bf16_f32 v{P+1}, v{A0+22}, v{A0+23}")
    k("s_lshr_b32 s36, s6, 1")
    k("s_mul_i32 s36, s36, 2560")
    k(f"s_add_u32 s36, s36, {KV}")
    k("s_and_b32 s37, s6, 1")
    k("v_mov_b32 v11, 0x40000000")
    k("s_bitcmp1_b32 s4, 0")
    k("s_cbranch_scc1 k1_V")
    k("s_cmp_eq_u32 s4, 0")
    k("s_cbranch_scc0 k1_K2")
    k("v_lshrrev_b32 v10, 1, v3")
    k("v_lshlrev_b32 v10, 9, v10")
    k("v_lshl_add_u32 v10, v6, 4, v10")
    k("v_and_b32 v12, 1, v3")
    k("v_lshl_add_u32 v10, v12, 3, v10")
    k("s_branch k1_Kst")
    k.label("k1_K2")
    k("v_cmp_eq_u32 vcc, 0, v3")
    k("v_lshlrev_b32 v10, 3, v6")
    k("v_add_u32 v10, 1024, v10")
    k("v_cndmask_b32 v10, v11, v10, vcc")
    k.label("k1_Kst")
    k(f"buffer_store_dwordx2 {r(P,2)}, v10, s[28:31], s36 offen sc1")
    k(f"v_lshlrev_b32 v16, 16, v{P}")
    k(f"v_and_b32 v17, 0xffff0000, v{P}")
    k(f"v_lshlrev_b32 v18, 16, v{P+1}")
    k(f"v_and_b32 v19, 0xffff0000, v{P+1}")
    k("v_mul_f32 v16, v16, v16")
    k("v_fmac_f32 v16, v17, v17")
    k("v_fmac_f32 v16, v18, v18")
    k("v_fmac_f32 v16, v19, v19")
    xsum16_32(k, 16, 17)
    rowred(k, "v_max_f32", 16)
    k("s_lshl_b32 s36, s4, 8")
    k("s_lshl_b32 s37, s6, 2")
    k("s_add_u32 s36, s36, s37")
    k(f"s_add_u32 s36, s36, {KMAX}")
    k("s_mov_b64 exec, 1")
    k("buffer_store_dword v16, off, s[28:31], s36 sc1")
    k("s_mov_b64 exec, -1")
    k("s_branch k1_fin")
    k.label("k1_V")
    k(f"v_cvt_pk_bf16_f32 v{P}, v96, v97")
    k(f"v_cvt_pk_bf16_f32 v{P+1}, v98, v99")
    k("s_mul_i32 s37, s37, 640")
    k("s_add_u32 s36, s36, s37")
    k("s_add_u32 s36, s36, 1280")
    k("s_cmp_eq_u32 s4, 3")
    k("s_cselect_b32 s37, 256, 0")
    k("s_cselect_b32 s38, 4, 16")
    k("s_add_u32 s36, s36, s37")
    k("v_and_b32 v9, 1, v3")
    k("v_mul_u32_u24 v9, 320, v9")
    k("v_lshl_add_u32 v9, v5, 4, v9")
    k("v_cmp_gt_u32 vcc, s38, v5")
    k("v_lshrrev_b32 v10, 1, v3")
    k("v_lshl_add_u32 v9, v10, 3, v9")
    k("v_cndmask_b32 v9, v11, v9, vcc")
    k(f"buffer_store_dwordx2 {r(P,2)}, v9, s[28:31], s36 offen sc1")
    k.label("k1_fin")
    k("buffer_store_dword v108, v7, s[28:31], s57 offen sc1")
    k(f"s_lshl_b32 s36, s2, {F1SH}")
    k(f"s_add_u32 s36, s36, {F1}")
    k("v_mov_b32 v10, 1")
    k(f"v_add_u32 v11, {LWQ}, v1")
    k("s_waitcnt vmcnt(0)")
    k("s_barrier")
    k("s_cmp_lg_u32 s5, 0")
    k("s_cbranch_scc1 f_nof1")
    k("s_mov_b64 exec, 1")
    k("buffer_store_dword v10, off, s[28:31], s36 sc1")
    k("s_mov_b64 exec, -1")
    k.label("f_nof1")
    if os.environ.get("FINE2"): k.stamp(6)
    WBUF = (136, 156, 176); ABUF = (208, 212, 216)
    def rdw(ks):
        base = WH[ks]
        reg, off = ("v1", base) if base < LKV else ("v8", base - LKV) if base < LWQ else ("v11", base - LWQ)
        return [rda(ks, ABUF[ks % 3])] + [f"ds_read_b128 {r(WBUF[ks%3]+4*j)}, {reg} offset:{off + j*1024}" for j in range(5)]
    for l in rdw(0) + rdw(1): k(l)
    for ks in range(20):
        w = WBUF[ks % 3]; a = ABUF[ks % 3]
        k(f"s_waitcnt lgkmcnt({6 if ks < 19 else 0})")
        if ks in (6, 12): k("s_barrier")
        fill = rdw(ks + 2) if ks < 18 else []
        for j in range(5):
            k(f"v_mfma_f32_16x16x32_bf16 {r(A0+4*j)}, {r(w+4*j)}, {r(a)}, {'0' if ks == 0 else r(A0+4*j)}")
            if fill: k(fill.pop(0))
            if j == 0 and fill: k(fill.pop(0))
    k.nop(6)
    k(f"v_mov_b32 v8, {hexf(QSCALE)}")
    for j in range(5):
        a = A0 + 4 * j
        k(f"v_pk_mul_f32 {r(a,2)}, {r(a,2)}, v[8:9] op_sel_hi:[1,0]")
        k(f"v_pk_mul_f32 {r(a+2,2)}, {r(a+2,2)}, v[8:9] op_sel_hi:[1,0]")
        k(f"v_cvt_pk_bf16_f32 v{FB+2*j}, v{a}, v{a+1}")
        k(f"v_cvt_pk_bf16_f32 v{FB+2*j+1}, v{a+2}, v{a+3}")
        k(f"ds_write_b64 v{EP+j}, {r(FB+2*j,2)}")
    k(f"s_mov_b32 s{TOK}, s54")
    k("s_waitcnt lgkmcnt(0)")
    k("s_branch k1_done")
    k.label("f_loader")
    RAW = (176, 196, 216, 176); XF0 = 16
    k("v_bfe_u32 v2, v0, 4, 2")
    k("v_and_b32 v3, 15, v0")
    k("v_mul_u32_u24 v4, 1280, v2")
    k("v_lshl_add_u32 v4, v3, 4, v4")
    k("s_mul_i32 s7, s6, 20480")
    k("s_waitcnt lgkmcnt(0)")
    k.srd(20, 40, 41, 0, ACT_SZ)
    def ldx(i):
        for s in range(5): k(f"buffer_load_dwordx4 {r(RAW[i]+4*s)}, v4, s[20:23], s7 offen offset:{s*256}")
        k("s_add_u32 s7, s7, 5120")
    k.srd(28, 8, 9, 0, WS_END)
    if PT:
        k("s_lshl_b32 s22, s2, 7")
        k(f"s_add_u32 s22, s22, {F0}")
        k("buffer_load_dword v11, off, s[28:31], s22 sc1")
        k("s_lshl_b32 s22, s2, 2")
        k(f"s_add_u32 s22, s22, {XID}")
        k("buffer_load_dword v11, off, s[28:31], s22 sc1")
    ldx(0); ldx(1)
    k("v_mov_b32 v5, 0x3f803f80")
    if TLB:
        k("s_load_dwordx8 s[56:63], s[0:1], 48")
        k("s_load_dwordx2 s[64:65], s[0:1], 96")
        k(f"v_lshlrev_b32 v10, {TLB - 4}, v1")
        k("buffer_load_dword v11, v10, s[28:31], 0 offen")
        k("s_waitcnt lgkmcnt(0)")
        for lo, sz in ((56, 1966080), (58, 8388608), (60, 4096), (62, 983040), (64, ACT_SZ)):
            k.srd(12, lo, lo + 1, 0, sz)
            k("buffer_load_dword v11, v10, s[12:15], 0 offen")
    st1(k, 2)
    for i in range(4):
        R = RAW[i]; F = XF0 + 40 * i
        k(f"s_waitcnt vmcnt({((11 if TLB else 5), 10, 6, 0)[i]})")
        if i == 0: ldx(2)
        if i == 1:
            k(f"s_mov_b32 s22, {EPOCH}")
            k("buffer_load_dword v14, off, s[28:31], s22 sc1")
        for h in range(2):
            k(f"v_dot2_f32_bf16 v{6+h}, v{R+h}, v5, 0")
            k(f"v_dot2_f32_bf16 v{8+h}, v{R+h}, v{R+h}, 0")
        for j in range(2, 20):
            k(f"v_dot2_f32_bf16 v{6+(j&1)}, v{R+j}, v5, v{6+(j&1)}")
            k(f"v_dot2_f32_bf16 v{8+(j&1)}, v{R+j}, v{R+j}, v{8+(j&1)}")
        for j in range(4):
            k(f"v_lshlrev_b32 v{F+2*j}, 16, v{R+j}")
            k(f"v_and_b32 v{F+2*j+1}, 0xffff0000, v{R+j}")
        k("v_add_f32 v6, v6, v7")
        k("v_add_f32 v8, v8, v9")
        n = 4
        for rot in (1, 2, 4, 8):
            for j in range(n, n + 4):
                if j == n + 1:
                    k(f"v_add_f32_dpp v6, v6, v6 row_ror:{rot} row_mask:0xf bank_mask:0xf")
                    k(f"v_add_f32_dpp v8, v8, v8 row_ror:{rot} row_mask:0xf bank_mask:0xf")
                k(f"v_lshlrev_b32 v{F+2*j}, 16, v{R+j}")
                k(f"v_and_b32 v{F+2*j+1}, 0xffff0000, v{R+j}")
            n += 4
        k(f"v_mul_f32 v6, {hexf(1.0/640)}, v6")
        k(f"v_mov_b32 v7, {hexf(1e-5)}")
        k(f"v_fmac_f32 v7, {hexf(1.0/640)}, v8")
        k("v_fma_f32 v7, -v6, v6, v7")
        k("v_rsq_f32 v8, v7")
        k.nop(1)
        k("v_mul_f32 v9, v6, v8")
        for j in range(20): k(f"v_pk_fma_f32 {r(F+2*j,2)}, {r(F+2*j,2)}, v[8:9], v[8:9] op_sel:[0,0,1] op_sel_hi:[1,0,1] neg_lo:[0,0,1] neg_hi:[0,0,1]")
        if i == 0: ldx(3)
    st1(k, 3)
    k("v_lshrrev_b32 v6, 2, v3")
    k(f"v_mul_u32_u24 v6, {KS}, v6")
    k("v_and_b32 v7, 3, v3")
    k(f"v_mul_u32_u24 v7, {KGS}, v7")
    k("v_lshl_add_u32 v7, v2, 4, v7")
    k(f"s_mul_i32 s36, s5, {RTS}")
    k(f"s_add_u32 s36, s36, {LACT}")
    k("v_add3_u32 v6, v6, v7, s36")
    k("v_lshlrev_b32 v10, 4, v3")
    k(f"v_add_u32 v10, {LT1}, v10")
    k("s_mul_i32 s34, s5, 1280")
    k(f"s_add_u32 s35, s34, {LT1}")
    k("v_add_u32 v11, s35, v1")
    k("v_lshrrev_b32 v5, 2, v1")
    k("v_add_u32 v12, s35, v5")
    k(f"s_add_u32 s34, s34, {MODP}")
    k("s_cmp_lt_u32 s5, 2")
    k("s_cselect_b32 s36, 1.0, 0")
    k("s_cmp_lg_u32 s5, 0")
    k("s_cbranch_scc1 f_p0_ok")
    token(k)
    if F0D:
        k(f"v_mov_b32 v176, {LACT + 1024}")
        k("s_mov_b32 s23, 0")
        k.label("f_own")
        k("ds_read_b32 v177, v176")
        k("s_add_u32 s23, s23, 1")
        k("s_waitcnt lgkmcnt(0)")
        k("v_cmp_eq_u32 vcc, 2, v177")
        k("s_cmp_eq_u64 vcc, -1")
        k("s_cbranch_scc1 f_own_ok")
        k("s_sleep 1")
        k("s_cmp_lt_u32 s23, 0x400000")
        k("s_cbranch_scc1 f_own")
        k.label("f_own_ok")
        k(f"s_sleep {F0D}")
    k("v_lshrrev_b32 v176, 4, v1")
    k(f"v_lshlrev_b32 v176, {F0SH}, v176")
    for q in range(4): k(f"s_mov_b32 s{60+q}, {F0 + q * (64 << F0SH)}")
    poll_missing(k, "f_p0", 28, ["s60", "s61", "s62", "s63"], 176, 177, PSL, tok="s54")
    k.srd(16, 8, 9, WQF, WQF_SZ)
    k("v_add_u32 v7, 0x10000, v6")
    def six(first):
        for i in range(8):
            mem = [((first + (4*i+l)//5) * 6 + (4*i+l) % 5) * 1024 if 4*i+l < 30 else 0x40000000 for l in range(4)]
            lds = [WH[first + (4*i+l)//5] + ((4*i+l) % 5) * 1024 if 4*i+l < 30 else 163840 for l in range(4)]
            k(f"s_mov_b32 s37, {mem[0]}"); k(f"s_mov_b32 m0, {lds[0]}")
            for l in range(1, 4):
                k(f"s_cmp_eq_u32 s5, {l}")
                k(f"s_cselect_b32 s37, {mem[l]}, s37"); k(f"s_cselect_b32 m0, {lds[l]}, m0")
            k("s_add_u32 s37, s37, s10")
            k("buffer_load_dwordx4 v1, s[16:19], s37 offen sc1 lds")
    k("s_mul_i32 s10, s4, 122880")
    k("s_setprio 3")
    k("s_barrier")
    st1(k, 4)
    for q in range(4):
        k(f"buffer_load_dwordx4 {r(176+4*q)}, v1, s[28:31], s34 offen sc1")
        k(f"buffer_load_dword v{192+q}, v5, s[28:31], s34 offen offset:1024 sc1")
        if q < 3: k(f"s_add_u32 s34, s34, {MODP_ST}")
    k("s_waitcnt vmcnt(0)")
    for h in range(2):
        k(f"v_pk_add_f32 {r(176+2*h,2)}, {r(176+2*h,2)}, {r(180+2*h,2)}")
        k(f"v_pk_add_f32 {r(184+2*h,2)}, {r(184+2*h,2)}, {r(188+2*h,2)}")
    k("v_add_f32 v192, v192, v193")
    k("v_add_f32 v194, v194, v195")
    for h in range(2): k(f"v_pk_add_f32 {r(176+2*h,2)}, {r(176+2*h,2)}, {r(184+2*h,2)}")
    k("v_add_f32 v180, v192, v194")
    for rnd in range(2):
        for i in range(5): k(f"v_cvt_pk_bf16_f32 v{176+i}, v{176+i}, v{176+i}")
        for i in range(5): k(f"v_and_b32 v{176+i}, 0xffff0000, v{176+i}")
        if rnd == 0:
            for i in range(5): k(f"v_add_f32 v{176+i}, s36, v{176+i}")
    k(f"ds_write_b128 v11, {r(176)}")
    k("ds_write_b32 v12, v180 offset:1024")
    k("s_waitcnt lgkmcnt(0)")
    k("s_barrier")
    st1(k, 5)
    CO = (176, 194); T = 212
    def coefs(s):
        for j in range(4): k(f"ds_read_b128 {r(CO[s&1]+4*j)}, v10 offset:{j*1280 + s*256}")
    def valu(s):
        co = CO[s & 1]
        for i in range(4):
            a = XF0 + 40 * i + 8 * s; p = T + 4 * i
            for j in range(4): k(f"v_pk_fma_f32 {r(a+2*j,2)}, {r(a+2*j,2)}, {r(co+2*j,2)}, {r(co+8+2*j,2)}")
        for i in range(4):
            a = XF0 + 40 * i + 8 * s; p = T + 16 * (s & 1) + 4 * i
            for j in range(4): k(f"v_cvt_pk_bf16_f32 v{p+j}, v{a+2*j}, v{a+2*j+1}")
            o = s * ASL + i * 64
            k(f"ds_write_b128 {'v6' if o < 65536 else 'v7'}, {r(p)} offset:{o & 65535}")
    coefs(0); coefs(1)
    k("s_waitcnt lgkmcnt(4)")
    valu(0)
    for s in range(4):
        k("s_waitcnt lgkmcnt(4)")
        if s > 0: k("s_barrier")
        if s + 2 < 5:
            coefs(s + 2)
        valu(s + 1)
        if s + 2 >= 5: k("s_nop 0")
    k("s_waitcnt lgkmcnt(4)")
    k("s_barrier")
    for q in range(4): k(f"s_mov_b32 s{60+q}, {F1 + q * (64 << F1SH)}")
    k("v_lshrrev_b32 v96, 4, v1")
    k(f"v_lshlrev_b32 v96, {F1SH}, v96")
    k("s_waitcnt lgkmcnt(0)")
    k("s_barrier")
    k("s_barrier")
    six(8)
    k("s_waitcnt vmcnt(0)")
    k("s_barrier")
    six(14)
    k("s_waitcnt vmcnt(0)")
    k("s_barrier")
    k("s_cmp_lg_u32 s5, 0")
    k("s_cbranch_scc1 f_p1_ok")
    poll_missing(k, "f_p1", 28, ["s60", "s61", "s62", "s63"], 96, 97, PSL)
    st1(k, 6)
    k.label("k1_done")
```

```python
from asmlib import Kern
from layout import *
from k0 import hexf, rowred
import os, math

K234_LDS = 163840
QA, QB, CM, S0, S1, OO, PP = 4, 8, 16, 32, 48, 64, 80
KF1 = (88, 92); KF2 = (96, 100); VF = (104, 112)
AK1, AK2, AV = 12, 13, 14
SIDE_SC = os.environ.get("SIDE_SC", "sc1")
Z_SC = os.environ.get("Z_SC", "sc1")
SPIN = 200000
TW = int(os.environ.get('TW', '0'))
POLLFL = os.environ.get('POLLFL', 'sc1')
KNAME = "adaLN_cond__grouped_kv_mqa__mixer_gmlp__prompt_kernel"
TZ = int(os.environ.get('TZ', '0'))
NC1 = int(os.environ.get('NC1', '8'))
F1SH = int(os.environ.get('F1SH', '5'))
PF7 = int(os.environ.get('PF7', '1'))
TOUCH = int(os.environ.get('TOUCH', '0'))
PF_WIN = int(os.environ.get('PF_WIN', '0'))
RETRY = 2000
PF_NEXT = int(os.environ.get('PF_NEXT', '0'))
GA_ = -2 * math.log2(math.e) * math.sqrt(2 / math.pi)
GB_ = GA_ * 0.044715
RB, CB8, W3, VV, RB128, CB16, FAST = 24, 25, 26, 27, 28, 29, 30
NOFAST = os.environ.get('NOFAST')

def prio(k, n):
    if not os.environ.get("NOPRIO"): k(f"s_setprio {n}")
def r(b, n=4): return f"v[{b}:{b+n-1}]"

def poll(k, name, srd, soff, nflag, vo, vf, want=None):
    if nflag:
        k(f"v_and_b32 v{vo}, {nflag-1}, v0")
        k(f"v_lshlrev_b32 v{vo}, 7, v{vo}")
    k("s_mov_b32 s38, 0")
    k(f"buffer_load_dword v{vf}, v{vo}, s[{srd}:{srd+3}], {soff} offen sc1")
    k("s_sleep 4")
    k.label(name)
    for h in range(2):
        k(f"buffer_load_dword v{vf+1-h}, v{vo}, s[{srd}:{srd+3}], {soff} offen sc1")
        if os.environ.get("PSLEEP"): k(f"s_sleep {os.environ['PSLEEP']}")
        k("s_waitcnt vmcnt(1)")
        k(f"v_cmp_ne_u32 vcc, 0, v{vf+h}" if want is None else f"v_cmp_eq_u32 vcc, {want}, v{vf+h}")
        k("s_cmp_eq_u64 vcc, -1")
        k(f"s_cbranch_scc1 {name}_ok")
    k("s_add_u32 s38, s38, 1")
    k(f"s_cmp_lt_u32 s38, {SPIN}")
    k(f"s_cbranch_scc1 {name}")
    k.label(name + "_ok")

def poll_missing(k, name, srd, soffs, vo, vf, sleep=1, tok=None):
    n = len(soffs)
    for q in range(n): k(f"v_mov_b32 v{vf+q}, 0" if tok is None else f"v_not_b32 v{vf+q}, {tok}")
    k("s_mov_b32 s38, 0")
    k("s_mov_b64 s[70:71], 0")
    k.label(name)
    for q in range(n):
        k(f"v_cmp_eq_u32 vcc, 0, v{vf+q}" if tok is None else f"v_cmp_ne_u32 vcc, {tok}, v{vf+q}")
        k("s_or_b64 s[70:71], s[70:71], vcc")
        k("s_cmp_eq_u64 vcc, 0")
        k(f"s_cbranch_scc1 {name}_s{q}")
        k("s_mov_b64 exec, vcc")
        k(f"buffer_load_dword v{vf+q}, v{vo}, s[{srd}:{srd+3}], {soffs[q]} offen {POLLFL}")
        k("s_mov_b64 exec, -1")
        k.label(f"{name}_s{q}")
    k("s_cmp_eq_u64 s[70:71], 0")
    k(f"s_cbranch_scc1 {name}_ok")
    k("s_mov_b64 s[70:71], 0")
    k("s_add_u32 s38, s38, 1")
    if sleep: k(f"s_sleep {sleep}")
    k("s_waitcnt vmcnt(0)")
    k(f"s_cmp_lt_u32 s38, {SPIN}")
    k(f"s_cbranch_scc1 {name}")
    k.label(name + "_ok")

def stores(k, lines):
    a = k.newlabel("sl"); b = k.newlabel("sd")
    k(f"s_cmp_eq_u32 s{FAST}, 0")
    k(f"s_cbranch_scc1 {a}")
    for l in lines: k(l)
    k(f"s_branch {b}")
    k.label(a)
    for l in lines: k(l + " sc1")
    k.label(b)

def setflag(k, srd, soff, lab, v=10, local=False, val="1", count=False):
    k("s_cmp_lg_u32 s5, 0")
    k(f"s_cbranch_scc1 {lab}")
    k(f"v_mov_b32 v{v}, {val}")
    k("s_mov_b64 exec, 1")
    if count: k(f"buffer_atomic_add v{v}, off, s[{srd}:{srd+3}], {soff}")
    elif local: stores(k, [f"buffer_store_dword v{v}, off, s[{srd}:{srd+3}], {soff}"])
    else: k(f"buffer_store_dword v{v}, off, s[{srd}:{srd+3}], {soff} sc1")
    k("s_mov_b64 exec, -1")
    k.label(lab)

def hint(k, srd, soff, v=10):
    k(f"v_mov_b32 v{v}, 1")
    k("s_mov_b64 exec, 1")
    k(f"buffer_store_dword v{v}, off, s[{srd}:{srd+3}], {soff} sc1")
    k("s_mov_b64 exec, -1")

def chk(k, c, b, n=4):
    for i in range(0, n, 2): k(f"v_max3_u32 v{c}, v{c}, v{b+i}, v{b+i+1}")

def verify(k, c, again, cnt):
    k(f"v_cmp_eq_u32 vcc, -1, v{c}")
    k(f"s_add_u32 s{cnt}, s{cnt}, 1")
    k(f"s_cmp_lt_u32 s{cnt}, {RETRY}")
    k("s_cselect_b64 s[70:71], vcc, 0")
    k("s_cmp_lg_u64 s[70:71], 0")
    k(f"s_cbranch_scc1 {again}")

def gelu(k, X, T, n):
    for i in range(n): k(f"v_pk_mul_f32 {r(T+2*i,2)}, {r(X+2*i,2)}, {r(X+2*i,2)}")
    for i in range(n): k(f"v_pk_fma_f32 {r(T+2*i,2)}, {r(T+2*i,2)}, v[12:13], v[12:13] op_sel:[0,1,0] op_sel_hi:[1,1,0]")
    for i in range(n): k(f"v_pk_mul_f32 {r(T+2*i,2)}, {r(T+2*i,2)}, {r(X+2*i,2)}")
    for i in range(2 * n): k(f"v_exp_f32 v{T+i}, v{T+i}")
    for i in range(n): k(f"v_pk_add_f32 {r(T+2*i,2)}, {r(T+2*i,2)}, 1.0 op_sel_hi:[1,0]")
    for i in range(2 * n): k(f"v_rcp_f32 v{T+i}, v{T+i}")
    for i in range(n): k(f"v_pk_mul_f32 {r(X+2*i,2)}, {r(X+2*i,2)}, {r(T+2*i,2)}")

def x1_addr(k, rt, cb, s0, dst, tmp, kg=3, l16=5):
    k(f"s_lshr_b32 s{s0}, s{rt}, 3")
    k(f"s_mul_i32 s{s0}, s{s0}, 40")
    k(f"s_mul_i32 s{s0+1}, s{cb}, 5")
    k(f"s_add_u32 s{s0}, s{s0}, s{s0+1}")
    k(f"s_lshl_b32 s{s0}, s{s0}, 12")
    k(f"s_bfe_u32 s{s0+1}, s{rt}, 0x20001")
    k(f"s_lshl_b32 s{s0+1}, s{s0+1}, 10")
    k(f"s_add_u32 s{s0}, s{s0}, s{s0+1}")
    k(f"s_and_b32 s{s0+1}, s{rt}, 1")
    k(f"s_lshl_b32 s{s0+1}, s{s0+1}, 8")
    k(f"s_add_u32 s{s0}, s{s0}, s{s0+1}")
    for j in range(1, 5): k(f"s_add_u32 s{s0+j}, s{s0}, {j*4096}")
    k(f"v_lshrrev_b32 v{dst}, 1, v{kg}")
    k(f"v_lshlrev_b32 v{dst}, 9, v{dst}")
    k(f"v_lshl_add_u32 v{dst}, v{l16}, 4, v{dst}")
    k(f"v_and_b32 v{tmp}, 1, v{kg}")
    k(f"v_lshl_add_u32 v{dst}, v{tmp}, 3, v{dst}")

def gemm80_resident(k, NK, order, ACT, A0, WB, srd, soff, lds_addr, wait, cb, bars={}, AH=11):
    k("v_add_u32 v8, 0xf000, v1")
    k("v_add_u32 v9, 0x1e000, v1")
    def ld(i):
        return [f"s_add_u32 s38, s{soff}, {order[i]*4096}\nbuffer_load_dwordx4 {r(ACT+4*i)}, v1, s[{srd}:{srd+3}], s38 offen sc1"]
    def rd(i):
        ks = order[i]; b = WB[i % 3]
        ad = lds_addr(ks); n = ad // 0xf000
        return [f"ds_read_b128 {r(b+4*j)}, {('v1', 'v8', 'v9')[n]} offset:{ad + j*1024 - n*0xf000}" for j in range(5)]
    for l in rd(0) + rd(1): k(l)
    wait()
    for i in range(AH): k(ld(i)[0])
    for i in range(NK):
        b = WB[i % 3]
        if i in bars: k("s_barrier")
        k(f"s_waitcnt vmcnt({min(AH-1, NK-1-i)}) lgkmcnt({5 if i < NK-1 else 0})")
        if os.environ.get("FINE3") and i in (0, 5, 12): k.stamp({0: 2, 5: 3, 12: 4}[i])
        fill = (rd(i + 2) if i + 2 < NK else [""] * 5)
        for j in range(5):
            c = "0" if i == 0 else r(A0 + 4 * j)
            k(f"v_mfma_f32_16x16x32_bf16 {r(A0+4*j)}, {r(b+4*j)}, {r(ACT+4*i)}, {c}")
            k(fill[j])
        if i + AH < NK: k(ld(i + AH)[0])
    if os.environ.get("FINE3"): k.stamp(7 if NK == 24 else 6)

def resid(k, A0, X, G, T):
    for i in range(10):
        k(f"v_lshlrev_b32 v{T+2*i}, 16, v{X+i}")
        k(f"v_and_b32 v{T+2*i+1}, 0xffff0000, v{X+i}")
    for i in range(10): k(f"v_pk_fma_f32 {r(A0+2*i,2)}, {r(A0+2*i,2)}, {r(G+2*i,2)}, {r(T+2*i,2)}")
    for i in range(10): k(f"v_cvt_pk_bf16_f32 v{X+i}, v{A0+2*i}, v{A0+2*i+1}")

def gen_k234():
    k = Kern(KNAME, 244, 100)
    k("s_cmp_ge_u32 s2, 256")
    k("s_cbranch_scc1 k2_end")
    k.stamp(0); k.rstamp(1)
    k("s_load_dwordx2 s[8:9], s[0:1], 112")
    from front import gen_front, LQ
    gen_front(k, poll_missing, KNAME, "code_end")
    k.srd(16, 8, 9, FL, FL_SZ)
    k("v_lshrrev_b32 v1, 6, v0")
    k("s_barrier")
    k("v_readfirstlane_b32 s5, v1")
    k("s_getreg_b32 s43, hwreg(HW_REG_XCC_ID, 0, 4)")
    k("s_add_u32 s42, s43, 1")
    if os.environ.get("FINE2"): k.stamp(4)
    k("v_and_b32 v1, 63, v0")
    k("v_lshlrev_b32 v1, 4, v1")
    k("s_lshl_b32 s10, s5, 10")
    k("s_mov_b32 m0, s10")
    k.srd(20, 8, 9, KV, KV_SZ)
    k("buffer_load_dwordx4 v1, s[20:23], m0 offen sc1 lds")
    k.srd(52, 8, 9, XID, 1024)
    k.srd(56, 8, 9, KMAX, 1024)
    k(f"buffer_load_dwordx4 {r(S1+8)}, v1, s[52:55], 0 offen sc1")
    k("s_add_u32 m0, m0, 0x2000")
    k(f"buffer_load_dwordx4 {r(S0)}, v1, s[56:59], 0 offen sc1")
    for i in range(3):
        k("buffer_load_dwordx4 v1, s[20:23], m0 offen sc1 lds")
        if i < 2:
            k("s_add_u32 m0, m0, 0x2000")
            k.nop(1)
    k("s_load_dwordx2 s[44:45], s[0:1], 0")
    k("s_load_dwordx4 s[48:51], s[0:1], 48")
    k("s_load_dwordx2 s[46:47], s[0:1], 72")
    k("s_and_b32 s3, s2, 7")
    k(f"s_lshl_b32 s{RB}, s3, 2")
    k("s_bfe_u32 s4, s2, 0x20003")
    k(f"s_add_u32 s{RB}, s{RB}, s4")
    k(f"s_lshr_b32 s{CB8}, s2, 5")
    k("v_and_b32 v2, 31, v0")
    k("v_bfe_u32 v3, v0, 5, 1")
    k(f"s_lshl_b32 s4, s{CB8}, 2")
    k(f"s_and_b32 s{W3}, s5, 3")
    k(f"s_add_u32 s4, s4, s{W3}")
    k(f"s_lshl_b32 s6, s{RB}, 1")
    k("s_lshr_b32 s43, s5, 2")
    k("s_add_u32 s6, s6, s43")
    k(f"s_mul_i32 s7, s{W3}, 2560")
    k("s_mul_i32 s11, s43, 1280")
    k("s_add_u32 s7, s7, s11")
    k(f"s_add_u32 s7, s7, {LQ}")
    k("v_add_u32 v15, s7, v1")
    k(f"ds_read_b128 {r(QA)}, v15")
    k("v_lshl_add_u32 v15, v2, 3, s7")
    k(f"v_mov_b32 v{QB}, 0")
    k(f"v_mov_b32 v{QB+1}, 0")
    k("s_mov_b32 exec_hi, 0")
    k(f"ds_read_b64 {r(QB,2)}, v15 offset:1024")
    k("s_mov_b64 exec, -1")
    prio(k, 3)
    k(f"s_bfe_u32 s{VV}, s2, 0x10003")
    k(f"s_lshr_b32 s{RB128}, s{RB}, 1")
    k(f"s_lshl_b32 s{CB16}, s{CB8}, 1")
    k(f"s_add_u32 s{CB16}, s{CB16}, s{VV}")
    k(f"v_mov_b32 v{AK1}, v1")
    k(f"v_lshlrev_b32 v{AK2}, 3, v2")
    k(f"v_add_u32 v{AK2}, 1024, v{AK2}")
    k(f"v_mul_u32_u24 v{AV}, 20, v3")
    k(f"v_add_u32 v{AV}, v{AV}, v2")
    k(f"v_lshlrev_b32 v{AV}, 4, v{AV}")
    k(f"v_add_u32 v{AV}, 1280, v{AV}")
    k("s_mov_b32 s40, 0x000fffff")
    k("s_mov_b32 s41, 0x000fffff")
    k("v_or_b32 v15, 4, v2")
    k("v_cmp_eq_u32 vcc, 28, v15")
    k("v_mov_b32 v15, 0x3f803f80")
    k("s_add_u32 s43, s43, 1")
    k(f"v_cndmask_b32 v{VF[0]}, 0, v15, vcc")
    for i in range(16): k(f"v_mov_b32 v{OO+i}, 0")
    for i in range(1, 16): k(f"v_mov_b32 v{VF[0]+i}, v{VF[0]}")
    for i in range(4, 8): k(f"v_mov_b32 v{PP+i}, 0")
    for b in (QB, KF2[0], KF2[1]):
        k(f"v_mov_b32 v{b+2}, 0"); k(f"v_mov_b32 v{b+3}, 0")
    k.srd(12, 8, 9, O, ACT_SZ)
    k(f"s_mul_i32 s7, s{CB8}, 102400")
    k(f"s_add_u32 s7, s7, {WOF}")
    k.srd(16 + 16, 8, 9, "s7", 102400)
    k("s_waitcnt vmcnt(3) lgkmcnt(0)")
    k("s_and_b32 s36, s2, 3")
    for q in range(1, 4):
        k(f"s_cmp_eq_u32 s36, {q}")
        k("s_cselect_b64 vcc, -1, 0")
        k(f"v_cndmask_b32 v{S1+8}, v{S1+8}, v{S1+8+q}, vcc")
    k("s_lshr_b32 s36, s2, 2")
    k(f"v_xor_b32 v{S1+12}, s36, v0")
    k(f"v_and_b32 v{S1+12}, 5, v{S1+12}")
    k(f"v_cmp_eq_u32 vcc, 0, v{S1+12}")
    k(f"v_cmp_ne_u32 s[36:37], s42, v{S1+8}")
    k.nop(1)
    k("s_and_b64 vcc, vcc, s[36:37]")
    k(f"s_cselect_b32 s{FAST}, 0, " + ("0" if NOFAST else "1"))
    k(f"v_max3_f32 v{S1}, v{S0}, v{S0+1}, v{S0+2}")
    k(f"v_max_f32 v{S1}, v{S1}, v{S0+3}")
    k(f"v_dot2_f32_bf16 v{S1+2}, v{QA}, v{QA}, 0")
    rowred(k, "v_max_f32", S1)
    for b in (QA + 1, QA + 2, QA + 3, QB, QB + 1):
        k(f"v_dot2_f32_bf16 v{S1+2}, v{b}, v{b}, v{S1+2}")
    k(f"v_mov_b32 v{S1+1}, v{S1}")
    k.nop(3)
    k(f"v_mov_b32 v{S1+3}, v{S1+2}")
    k(f"v_permlane16_swap_b32 v{S1}, v{S1+1}")
    k(f"v_max_f32 v{S1}, v{S1}, v{S1+1}")
    k(f"v_permlane32_swap_b32 v{S1+2}, v{S1+3}")
    k(f"v_mov_b32 v{S1+1}, v{S1}")
    k(f"v_add_f32 v{S1+2}, v{S1+2}, v{S1+3}")
    k.nop(1)
    k(f"v_permlane32_swap_b32 v{S1}, v{S1+1}")
    k(f"v_add_f32 v{S1}, v{S1}, v{S1+1}")
    k(f"v_mul_f32 v{S1}, v{S1}, v{S1+2}")
    k(f"v_sqrt_f32 v{S1}, v{S1}")
    k.nop(1)
    k(f"v_mov_b32 v{S1+1}, {hexf(-1.001)}")
    k(f"v_fmaak_f32 v{CM}, v{S1}, v{S1+1}, {hexf(60.0)}")
    for i in range(1, 16): k(f"v_mov_b32 v{CM+i}, v{CM}")
    def rdK(t, buf):
        k(f"ds_read_b128 {r(KF1[buf])}, v{AK1} offset:{t*2560}")
        k(f"ds_read_b64 {r(KF2[buf],2)}, v{AK2} offset:{t*2560}")
    def rdV(t, buf):
        k("s_mov_b64 exec, s[40:41]")
        k(f"ds_read_b128 {r(VF[buf])}, v{AV} offset:{t*2560}")
        k(f"ds_read_b128 {r(VF[buf]+4)}, v{AV} offset:{t*2560+640}")
        k("s_mov_b64 exec, -1")
    SB = (S0, S1)
    k("s_waitcnt vmcnt(0) lgkmcnt(0)")
    k("s_barrier")
    if not (os.environ.get("ITER") or os.environ.get("FINE1")): k.stamp(2)
    rdK(0, 0); rdK(1, 1); rdV(0, 0)
    k("s_waitcnt lgkmcnt(4)")
    k(f"v_mfma_f32_32x32x16_bf16 {r(S0,16)}, {r(KF1[0])}, {r(QA)}, {r(CM,16)}")
    k(f"v_mfma_f32_32x32x16_bf16 {r(S0,16)}, {r(KF2[0])}, {r(QB)}, {r(S0,16)}")
    k.nop(8)
    def body(dma, every=5, last=False, first=False):
        left = list(dma)
        body.n0 = len(k.lines)
        def ex(reg):
            if left and ex.n % every == 1:
                srd, pre, fl = left.pop(0)
                k(pre)
                k(f"v_exp_f32 v{reg}, v{reg}")
                if fl is None: k(f"buffer_load_dwordx4 v[172:175], v1, s[{srd}:{srd+3}], s53 offen sc1")
                else: k(f"buffer_load_dwordx4 v1, s[{srd}:{srd+3}], m0 offen {fl}lds")
            else:
                k(f"v_exp_f32 v{reg}, v{reg}")
            ex.n += 1
        ex.n = 0
        for t in range(8):
            cur = SB[t & 1]; nxt = SB[(t + 1) & 1]
            def E(lo):
                for i in range(lo, lo + 4): ex(cur + i)
                for i in range(lo // 2, lo // 2 + 2): k(f"v_cvt_pk_bf16_f32 v{PP+i}, v{cur+2*i}, v{cur+2*i+1}")
            fin = last and t == 7
            if (last or first) and t in (2, 4, 6): prio(k, 3 - t // 2)
            k("s_waitcnt lgkmcnt(0)")
            if not (last and t >= 6): rdK(t + 2, t & 1)
            else: k.nop(1)
            k(f"v_mfma_f32_32x32x16_bf16 {r(OO,16)}, {r(VF[(t+1)&1]+4)}, {r(PP+4)}, {r(OO,16)}")
            E(0)
            if not fin:
                k(f"v_mfma_f32_32x32x16_bf16 {r(nxt,16)}, {r(KF1[(t+1)&1])}, {r(QA)}, {r(CM,16)}")
                rdV(t + 1, (t + 1) & 1)
            E(4)
            if not fin: k(f"v_mfma_f32_32x32x16_bf16 {r(nxt,16)}, {r(KF2[(t+1)&1])}, {r(QB)}, {r(nxt,16)}")
            if t == 7 and not last:
                k(f"v_add_u32 v{AK1}, 20480, v{AK1}")
                k(f"v_add_u32 v{AK2}, 20480, v{AK2}")
                k(f"v_add_u32 v{AV}, 20480, v{AV}")
            E(8)
            k(f"v_mfma_f32_32x32x16_bf16 {r(OO,16)}, {r(VF[t&1])}, {r(PP)}, {r(OO,16)}")
            E(12)
        assert not left
        X = os.environ.get("XP", "")
        if X:
            new = []
            for l in k.lines[body.n0:]:
                if "nopv" in X and "v_mfma" in l and l.split()[1].startswith(f"v[{OO}:"): l = "    s_nop 0"
                if "noqk2" in X and "v_mfma" in l and f"{r(QB)}" in l: l = "    s_nop 0"
                if "nolds" in X and "ds_read" in l: l = "    s_nop 0"
                if "noexp" in X and "v_exp" in l: l = l.replace("v_exp_f32", "v_mov_b32")
                if "nocvt" in X and "v_cvt_pk" in l: l = "    s_nop 0"
                if "qk8" in X and "v_mfma" in l and f"{r(QB)}" in l:
                    l = l.replace("v_mfma_f32_32x32x16_bf16", "v_mfma_f32_32x32x8bf16_1k").replace(r(QB), r(QB, 2)).replace(r(KF2[0]), r(KF2[0], 2)).replace(r(KF2[1]), r(KF2[1], 2))
                new.append(l)
            k.lines[body.n0:] = new
        if last:
            k.nop(2)
            k(f"v_mfma_f32_32x32x16_bf16 {r(OO,16)}, {r(VF[1]+4)}, {r(PP+4)}, {r(OO,16)}")
    INC = "s_add_u32 m0, m0, 0x2000"
    body([(20, INC, 'sc1 ')] * 16, first=True)
    k("s_waitcnt vmcnt(0)")
    k("s_barrier")
    k("s_mov_b32 s42, 1")
    k("s_add_u32 s39, s43, 2")
    k("s_branch k2_disp")
    k.lines.append(".p2align 6")
    k.label("k2_loop")
    body([])
    k("s_add_u32 s42, s42, 1")
    k.label("k2_disp")
    if os.environ.get("ITER"):
        for i in range(1, 7):
            k(f"s_cmp_eq_u32 s42, {i}")
            k(f"s_cbranch_scc0 k2_it{i}")
            k.stamp(i + 1)
            k.label(f"k2_it{i}")
    if not os.environ.get("NOSIDE"):
        k("s_cmp_eq_u32 s42, s43")
        k("s_cbranch_scc1 k2_sideld")
        k("s_cmp_eq_u32 s42, s39")
        k("s_cbranch_scc1 k2_side")
    k.label("k2_cont")
    prio(k, 3)
    k("s_cmp_eq_u32 s42, 1")
    k("s_cbranch_scc1 k2_loop")
    k("s_cmp_eq_u32 s42, 5")
    k("s_cbranch_scc1 " + ("k2_loop" if os.environ.get("NOBLK") else "k2_blk5"))
    prio(k, 2)
    k("s_cmp_eq_u32 s42, 2")
    k("s_cbranch_scc1 k2_loop")
    k("s_cmp_eq_u32 s42, 6")
    k("s_cbranch_scc1 " + ("k2_loop" if os.environ.get("NOBLK") else "k2_blk6"))
    prio(k, 1)
    k("s_cmp_eq_u32 s42, 3")
    k("s_cbranch_scc1 k2_loop")
    prio(k, 0)
    k("s_cmp_eq_u32 s42, 4")
    k("s_cbranch_scc1 k2_loop")
    prio(k, 3)
    k("s_sub_u32 m0, s10, 0x2000")
    k(f"s_mul_i32 s7, s{CB16}, 122880")
    k(f"s_add_u32 s7, s7, {WINF - 40960}")
    k.srd(72, 8, 9, "s7", 163840)
    k.srd(68, 8, 9, WINF, WINF_SZ)
    k("s_lshr_b32 s53, s2, 3")
    k("s_lshl_b32 s53, s53, 3")
    k("s_add_u32 s53, s53, s5")
    k("s_mul_i32 s53, s53, 7680")
    k("s_sub_u32 s53, s53, 1024")
    k("s_cmp_lg_u32 s5, " + ("99" if os.environ.get("NOBLK") else "0"))
    k("s_cbranch_scc1 k2_fsok")
    k("s_mov_b32 s38, 0")
    k.label("k2_fschk")
    k("s_waitcnt vmcnt(0)")
    k("v_min3_u32 v168, v168, v169, v170")
    k("v_min_u32 v168, v168, v171")
    k("v_cmp_ne_u32 vcc, 0, v168")
    k("s_cmp_eq_u64 vcc, -1")
    k("s_cbranch_scc1 k2_fsok")
    k("s_sleep 1")
    k(f"buffer_load_dwordx4 v[168:171], v1, s[16:19], s37 offen sc1")
    k("s_add_u32 s38, s38, 1")
    k(f"s_cmp_lt_u32 s38, {SPIN}")
    k("s_cbranch_scc1 k2_fschk")
    k.label("k2_fsok")
    k("s_barrier")
    body([(72, 's_add_u32 m0, s10, 102400', 'sc1 ')] + [(72, INC, 'sc1 ')] * 4 + [(68, 's_add_u32 s53, s53, 1024', None)] * (8 if PF7 else 0), every=4 if PF7 else 7, last=True)
    if os.environ.get("ITER"):
        k.endpgm(0)
    if not os.environ.get("FINE1"): k.stamp(3)
    k(f"v_mov_b32 v15, {hexf(2.0**-100)}")
    k.nop(11)
    k(f"v_cmp_nge_f32 vcc, v{OO+12}, v15")
    k.nop(5)
    k("s_cbranch_vccnz k2_slow")
    k.label("k2_epi")
    k(f"v_rcp_f32 v{S0}, v{OO+12}")
    k(f"s_mul_i32 s7, s{RB}, 81920")
    k("s_and_b32 s10, s6, 1")
    k("s_lshl_b32 s10, s10, 11")
    k("s_add_u32 s10, s7, s10")
    k(f"v_lshrrev_b32 v{S0+3}, 4, v2")
    k(f"v_lshlrev_b32 v{S0+3}, 10, v{S0+3}")
    k(f"v_and_b32 v{S0+2}, 15, v2")
    k(f"v_lshl_add_u32 v{S0+3}, v{S0+2}, 4, v{S0+3}")
    k("s_mul_i32 s11, s4, 20")
    k(f"v_lshl_add_u32 v{S0+4}, v3, 2, s11")
    for i in range(6):
        k(f"v_pk_mul_f32 {r(OO+2*i,2)}, {r(OO+2*i,2)}, {r(S0,2)} op_sel_hi:[1,0]")
    for i in range(6):
        k(f"v_cvt_pk_bf16_f32 v{PP+i}, v{OO+2*i}, v{OO+2*i+1}")
    for i in range(3):
        c = S0 + 8 + 4 * i
        k(f"v_add_u32 v{c}, {8*i}, v{S0+4}")
        k(f"v_lshrrev_b32 v{c+1}, 5, v{c}")
        k(f"v_lshl_add_u32 v{c+1}, v{c+1}, 12, v{S0+3}")
        k(f"v_bfe_u32 v{c+2}, v{c}, 3, 2")
        k(f"v_lshl_add_u32 v{c+1}, v{c+2}, 8, v{c+1}")
        k(f"v_and_b32 v{c+2}, 4, v{c}")
        k(f"v_lshl_add_u32 v{c+1}, v{c+2}, 1, v{c+1}")
        if i == 2:
            k(f"v_lshl_add_u32 v{c+1}, v3, 30, v{c+1}")
    stores(k, [f"buffer_store_dwordx2 {r(PP+2*i,2)}, v{S0+9+4*i}, s[12:15], s10 offen" for i in range(3)])
    k(f"s_lshl_b32 s36, s{RB}, 10")
    k(f"s_add_u32 s36, s36, {F2 - FL}")
    k(f"s_lshl_b32 s37, s{CB8}, 7")
    k("s_add_u32 s37, s37, s36")
    k("s_load_dwordx2 s[44:45], s[0:1], 64")
    k("s_load_dwordx2 s[46:47], s[0:1], 96")
    k("s_cmp_ge_u32 s5, 4")
    k("s_cbranch_scc1 k2_loader")
    XR_, GA_R, ACT, A0, WB = 120, 132, 16, 96, (152, 172, 192)
    k("s_waitcnt vmcnt(0) lgkmcnt(0)")
    k("s_barrier")
    setflag(k, 16, "s37", "k2_f2done", local=True)
    if not (os.environ.get("FINE1") or os.environ.get("FINE2")): k.stamp(4)
    k("v_bfe_u32 v3, v0, 4, 2")
    k("v_and_b32 v5, 15, v0")
    k(f"s_lshl_b32 s6, s{RB}, 2")
    k("s_add_u32 s6, s6, s5")
    x1_addr(k, 6, CB8, 60, 6, 7)
    k("s_lshl_b32 s10, s5, 10")
    k("s_add_u32 s7, s7, s10")
    k.srd(52, 8, 9, X1, ACT_SZ)
    k.srd(56, 8, 9, SP2, SP2_SZ)
    def w3():
        poll(k, "k2_p2", 16, "s36", 8, 10, 11)
        if not (os.environ.get("FINE1") or os.environ.get("FINE2")): k.stamp(5)
    gemm80_resident(k, 20, list(range(8, 20)) + list(range(8)), ACT, A0, WB, 12, 7, lambda ks: ks * 5120,
                    w3, CB8, bars={9: 1, 12: 1})
    if os.environ.get("FINE"): k.stamp(2)
    k.nop(5)
    resid(k, A0, XR_, GA_R, WB[0])
    k("v_and_b32 v7, 1, v3")
    k("v_mul_u32_u24 v7, 4088, v7")
    k("v_add_u32 v7, v7, v6")
    for i in range(10):
        k(f"v_lshlrev_b32 v{A0+2*i}, 16, v{XR_+i}")
        k(f"v_and_b32 v{A0+2*i+1}, 0xffff0000, v{XR_+i}")
    for i in range(10): k(f"v_mov_b32 v{232+i}, v{XR_+i}")
    for p in range(2):
        k(f"v_permlane16_swap_b32 v{XR_+4*p}, v{XR_+4*p+2}")
        k(f"v_permlane16_swap_b32 v{XR_+4*p+1}, v{XR_+4*p+3}")
    stores(k, [f"buffer_store_dwordx4 {r(XR_+4*p)}, v7, s[52:55], s{60+2*p} offen" for p in range(2)] +
              [f"buffer_store_dwordx2 {r(XR_+8,2)}, v6, s[52:55], s64 offen"])
    k(f"v_pk_add_f32 v[10:11], {r(A0,2)}, {r(A0+2,2)}")
    k(f"v_pk_mul_f32 v[12:13], {r(A0,2)}, {r(A0,2)}")
    for i in range(1, 10):
        if i > 1: k(f"v_pk_add_f32 v[10:11], v[10:11], {r(A0+2*i,2)}")
        k(f"v_pk_fma_f32 v[12:13], {r(A0+2*i,2)}, {r(A0+2*i,2)}, v[12:13]")
    k("v_add_f32 v10, v10, v11")
    k("v_add_f32 v12, v12, v13")
    k(f"s_lshl_b32 s36, s{RB}, 3")
    k(f"s_add_u32 s36, s36, s{CB8}")
    k("v_lshlrev_b32 v7, 3, v5")
    k("v_permlane16_swap_b32 v10, v12")
    k("v_add_f32 v10, v10, v12")
    k("v_mov_b32 v12, v10")
    k("v_and_b32 v8, 1, v3")
    k("v_lshl_add_u32 v7, v8, 2, v7")
    k("v_permlane32_swap_b32 v10, v12")
    k("v_add_f32 v10, v10, v12")
    k("v_lshrrev_b32 v8, 1, v3")
    k("v_lshl_add_u32 v7, v8, 30, v7")
    k("s_lshl_b32 s36, s36, 9")
    k("s_lshl_b32 s37, s5, 7")
    k("s_add_u32 s36, s36, s37")
    stores(k, ["buffer_store_dword v10, v7, s[56:59], s36 offen"])
    k(f"s_lshl_b32 s36, s{RB128}, 11")
    k(f"s_add_u32 s36, s36, {F3 - FL}")
    k(f"s_lshl_b32 s37, s{CB16}, 7")
    k("s_add_u32 s37, s37, s36")
    if os.environ.get("FINE"): k.stamp(3)
    k("s_waitcnt vmcnt(0)")
    k("s_barrier")
    setflag(k, 16, "s37", "k2_f3done", 11, local=True)
    if os.environ.get("FINE"): k.stamp(4)
    ACT, A0, WB, ST = 16, 80, 128, 152
    NR = 16; AH = 12
    k("v_bfe_u32 v3, v0, 5, 1")
    k(f"s_lshl_b32 s6, s{RB128}, 2")
    k("s_add_u32 s6, s6, s5")
    k(f"s_mul_i32 s7, s{RB128}, 163840")
    k("s_add_u32 s7, s7, s10")
    k("s_lshl_b32 s11, s6, 11")
    k("s_and_b32 s37, s5, 1")
    k("s_mul_i32 s37, s37, 1792")
    k("s_sub_u32 s11, s11, s37")
    k("v_lshlrev_b32 v4, 3, v2")
    k("v_lshl_add_u32 v6, v3, 11, v4")
    k("v_add_u32 v7, 40960, v1")
    k("v_add_u32 v14, 102400, v1")
    k(f"v_mov_b32 v12, {hexf(GA_)}")
    k(f"v_mov_b32 v13, {hexf(GB_)}")
    order = list(range(20, 40)) + list(range(20))
    def ld(i):
        k(f"s_add_u32 s38, s7, {order[i]*4096}")
        k(f"buffer_load_dwordx4 {r(ACT+4*(i%NR))}, v1, s[52:55], s38 offen sc1")
    def rd(i):
        ks = order[i]; b = WB + 12 * (i & 1)
        a, base = ("v7", 0) if ks < 20 else ("v14", 61440)
        for j in range(3): k(f"ds_read_b128 {r(b+4*j)}, {a} offset:{ks*3072 + j*1024 - base}")
    rd(0)
    k(f"s_mul_i32 s37, s{RB128}, 163840")
    k(f"s_mul_i32 s39, s{CB16}, 10240")
    k("s_add_u32 s37, s37, s39")
    k("s_mul_i32 s39, s5, 2560")
    k("s_add_u32 s37, s37, s39")
    poll(k, "k2_p3", 16, "s36", 16, 10, 164)
    if not os.environ.get("FINE1") and not os.environ.get("FINE3") and not os.environ.get("FINE2"): k.stamp(6)
    for i in range(4): k(f"buffer_load_dwordx2 {r(ST+2*i,2)}, v6, s[56:59], s11 offen offset:{i*512} sc1")
    ld(0); ld(1)
    if TOUCH:
        for i in range(3): k(f"buffer_load_dwordx4 {r(160)}, v1, s[52:55], s37 offen offset:{min(i*1024, 1536)} sc1")
    for i in range(2, AH): ld(i)
    k(f"s_cmp_eq_u32 s{VV}, 0")
    k("s_cbranch_scc0 k2_p4B")
    LC1, LC2, LTAB = 0, 1024, 2048
    def rowtab(S, n, bias_s, bias_q):
        k(f"v_mov_b32 v{S+2}, v{S}")
        k(f"v_mov_b32 v{S+3}, v{S+1}")
        k("s_lshl_b32 s36, s5, 8")
        k(f"s_add_u32 s36, s36, {LTAB}")
        k(f"v_permlane32_swap_b32 v{S}, v{S+2}")
        k(f"v_permlane32_swap_b32 v{S+1}, v{S+3}")
        k(f"v_pk_add_f32 {r(S,2)}, {r(S,2)}, {r(S+2,2)}")
        k("v_lshl_add_u32 v10, v2, 2, s36")
        k(f"v_mov_b32 v{S+2}, {hexf(1.0/n)}")
        k(f"v_fmaak_f32 v8, v{S}, v{S+2}, {hexf(-bias_s/n)}")
        k(f"v_fmaak_f32 v9, v{S+1}, v{S+2}, {hexf(1e-5 - bias_q/n)}")
        k("v_fma_f32 v9, -v8, v8, v9")
        k("v_rsq_f32 v11, v9")
        k.nop(1)
        k("v_mul_f32 v9, v8, v11")
        k("v_sub_f32 v9, 0, v9")
        k("v_mov_b32 v8, v11")
        k("ds_write_b32 v10, v8")
        k("ds_write_b32 v10, v9 offset:128")
    for var in range(2):
        if var == 1: k.label("k2_p4B")
        types = ("z2", "z2", "z1") if var == 0 else ("z2", "z1", "z1")
        for i in range(40):
            b = WB + 12 * (i & 1); a = ACT + 4 * (i % NR)
            if i == 12: k("s_barrier")
            k(f"s_waitcnt vmcnt({min(AH-1, 39 - i)}) lgkmcnt(0)")
            if os.environ.get("FINE4") and i in (0, 6, 13, 26): k.stamp({0: 2, 6: 3, 13: 4, 26: 5}[i])
            for j in range(3):
                c = "0" if i == 0 else r(A0 + 16 * j, 16)
                x, y = (r(a), r(b + 4 * j)) if types[j] == "z2" else (r(b + 4 * j), r(a))
                k(f"v_mfma_f32_32x32x16_bf16 {r(A0+16*j,16)}, {x}, {y}, {c}")
                if j == 0 and i < 39: rd(i + 1)
                if j == 1 and i + AH < 40: ld(i + AH)
            if i == 21:
                k(f"v_pk_add_f32 {r(ST,2)}, {r(ST,2)}, {r(ST+2,2)}")
                k(f"v_pk_add_f32 {r(ST+4,2)}, {r(ST+4,2)}, {r(ST+6,2)}")
                k(f"v_pk_add_f32 {r(ST,2)}, {r(ST,2)}, {r(ST+4,2)}")
                rowtab(ST, 640, 0.0, 0.0)
                k("s_waitcnt lgkmcnt(0)")
        k("s_barrier")
        if not os.environ.get("FINE1") and not os.environ.get("FINE5"): k.stamp(7)
        RR, NN, CC, SS, QQ, T, CV = 16, 32, 48, 128, 144, 56, 160
        nz2 = types.count("z2")
        k("v_lshl_add_u32 v10, v3, 4, s36")
        k("v_lshlrev_b32 v11, 2, v2")
        def rd_tab():
            for a in range(4):
                k(f"ds_read_b128 {r(RR+4*a)}, v10 offset:{a*32}")
                k(f"ds_read_b128 {r(NN+4*a)}, v10 offset:{128 + a*32}")
        rd_tab()
        for n in range(nz2):
            k(f"ds_read_b32 v{CC+2*n}, v11 offset:{LC1 + n*128}")
            k(f"ds_read_b32 v{CC+2*n+1}, v11 offset:{LC2 + n*128}")
        k.srd(60, 8, 9, STP, STP_SZ)
        k.srd(64, 8, 9, Z1, Z_SZ)
        k.srd(68, 8, 9, Z2, Z_SZ)
        k("v_lshlrev_b32 v15, 4, v3")
        def rd_c(n):
            for a in range(4):
                k(f"ds_read_b128 {r(CV+4*a)}, v15 offset:{LC1 + n*128 + a*32}")
                k(f"ds_read_b128 {r(CV+16+4*a)}, v15 offset:{LC2 + n*128 + a*32}")
        k("s_waitcnt lgkmcnt(0)")
        rd_c(nz2)
        for n in range(nz2):
            X = A0 + 16 * n; c = r(CC + 2 * n, 2)
            for i in range(8): k(f"v_pk_fma_f32 {r(T+2*i,2)}, {r(NN+2*i,2)}, {c}, {c} op_sel:[0,0,1] op_sel_hi:[1,0,1]")
            for i in range(8): k(f"v_pk_fma_f32 {r(X+2*i,2)}, {r(X+2*i,2)}, {r(RR+2*i,2)}, {r(T+2*i,2)}")
            gelu(k, X, T, 8)
            for i in range(8):
                if n == 0: k(f"v_pk_mul_f32 {r(QQ+2*i,2)}, {r(X+2*i,2)}, {r(X+2*i,2)}")
                else: k(f"v_pk_fma_f32 {r(QQ+2*i,2)}, {r(X+2*i,2)}, {r(X+2*i,2)}, {r(QQ+2*i,2)}")
        for i in range(8):
            if nz2 == 2: k(f"v_pk_add_f32 {r(SS+2*i,2)}, {r(A0+2*i,2)}, {r(A0+16+2*i,2)}")
            else: k(f"v_pk_mul_f32 {r(SS+2*i,2)}, {r(A0+2*i,2)}, 1.0 op_sel_hi:[1,0]")
        k("v_and_b32 v4, 3, v0")
        k("v_bfe_u32 v5, v0, 2, 2")
        for i in range(16): k(f"v_permlane16_swap_b32 v{SS+i}, v{QQ+i}")
        for i in range(16): k(f"v_add_f32 v{SS+i}, v{SS+i}, v{QQ+i}")
        for j in range(8): k(f"v_add_f32_dpp v{SS+j}, v{SS+j}, v{SS+j} row_ror:8 row_mask:0xf bank_mask:0x3")
        for j in range(8): k(f"v_add_f32_dpp v{SS+j}, v{SS+8+j}, v{SS+8+j} row_ror:8 row_mask:0xf bank_mask:0xc")
        for j in range(4): k(f"v_add_f32_dpp v{SS+j}, v{SS+j}, v{SS+j} row_half_mirror row_mask:0xf bank_mask:0x5")
        for j in range(4): k(f"v_add_f32_dpp v{SS+j}, v{SS+4+j}, v{SS+4+j} row_half_mirror row_mask:0xf bank_mask:0xa")
        for j in range(4): k(f"v_add_f32_dpp v{SS+j}, v{SS+j}, v{SS+j} quad_perm:[2,3,0,1] row_mask:0xf bank_mask:0xf")
        for j in range(4): k(f"v_add_f32_dpp v{SS+j}, v{SS+j}, v{SS+j} quad_perm:[1,0,3,2] row_mask:0xf bank_mask:0xf")
        k("v_lshl_add_u32 v4, v5, 3, v4")
        k("v_lshl_add_u32 v4, v3, 2, v4")
        k("v_lshlrev_b32 v4, 3, v4")
        k("v_bfe_u32 v5, v0, 4, 1")
        k("v_lshl_add_u32 v4, v5, 2, v4")
        k("v_cvt_f32_u32 v5, v5")
        k(f"v_fmaak_f32 v5, {hexf(-15.0)}, v5, {hexf(16.0)}" if False else f"v_mul_f32 v5, {hexf(-15.0)}, v5")
        k(f"v_add_f32 v5, {hexf(16.0)}, v5")
        for j in range(1, 4):
            m = hex(0x11111111 << j)
            k(f"s_mov_b32 s40, {m}")
            k(f"s_mov_b32 s41, {m}")
            k(f"v_cndmask_b32 v{SS}, v{SS}, v{SS+j}, s[40:41]")
        k(f"s_lshl_b32 s37, s{RB128}, 14")
        k("s_lshl_b32 s38, s5, 8")
        k("s_add_u32 s37, s37, s38")
        k(f"s_lshl_b32 s38, s{CB16}, 10")
        k("s_add_u32 s38, s38, s37")
        k(f"v_add_f32 v{SS}, v{SS}, v5")
        stores(k, [f"buffer_store_dword v{SS}, v4, s[60:63], s38 offen"])
        k("s_mul_i32 s39, s6, 24")
        k(f"s_mul_i32 s38, s{CB8}, 3")
        k("s_add_u32 s39, s39, s38")
        k(f"s_add_u32 s39, s39, {var}")
        k("s_lshl_b32 s39, s39, 11")
        for n in range(nz2, 3):
            X = A0 + 16 * n
            k("s_waitcnt lgkmcnt(0)")
            for i in range(8):
                k(f"v_pk_fma_f32 {r(T+2*i,2)}, v[8:9], {r(CV+2*i,2)}, {r(CV+16+2*i,2)} op_sel:[1,0,0] op_sel_hi:[1,1,1]")
            if n < 2: rd_c(n + 1)
            for i in range(8):
                k(f"v_pk_fma_f32 {r(X+2*i,2)}, {r(X+2*i,2)}, v[8:9], {r(T+2*i,2)} op_sel_hi:[1,0,1]")
            gelu(k, X, T, 8)
            P = SS + 8 * (n - nz2)
            for i in range(8): k(f"v_cvt_pk_bf16_f32 v{P+i}, v{X+2*i}, v{X+2*i+1}")
            if n < 2:
                for ap in range(2):
                    k(f"buffer_store_dwordx4 {r(P+4*ap)}, v1, s[64:67], s39 offen offset:{(n-nz2)*2048 + ap*1024} {Z_SC}")
        G = CV
        k("v_lshlrev_b32 v4, 3, v2")
        k("v_lshl_add_u32 v4, v3, 13, v4")
        k("s_add_u32 s38, s37, 4096")
        k("s_mov_b32 s42, 0")
        lab = f"k2_st{var}"
        k.label(lab)
        for i in range(8):
            k(f"buffer_load_dwordx2 {r(G+2*i,2)}, v4, s[60:63], {'s37' if i < 4 else 's38'} offen offset:{(i&3)*1024} sc1")
        k("s_cmp_lg_u32 s42, 0")
        k(f"s_cbranch_scc1 {lab}_w0")
        for ap in range(2):
            k(f"buffer_store_dwordx4 {r(P+4*ap)}, v1, s[64:67], s39 offen offset:{(2-nz2)*2048 + ap*1024} {Z_SC}")
        k("s_waitcnt vmcnt(2)")
        k(f"s_branch {lab}_w1")
        k.label(lab + "_w0")
        k("s_waitcnt vmcnt(0)")
        k.label(lab + "_w1")
        k("s_add_u32 s42, s42, 1")
        k(f"v_min3_u32 v5, v{G}, v{G+1}, v{G+2}")
        for i in range(6): k(f"v_min3_u32 v5, v5, v{G+3+2*i}, v{G+4+2*i}")
        k(f"v_min_u32 v5, v5, v{G+15}")
        k("v_cmp_ne_u32 vcc, 0, v5")
        k("s_cmp_eq_u64 vcc, -1")
        k(f"s_cbranch_scc1 {lab}_ok")
        k("s_sleep 1")
        k(f"s_cmp_lt_u32 s42, {SPIN}")
        k(f"s_cbranch_scc1 {lab}")
        k.label(lab + "_ok")
        for a, b_ in ((0, 2), (4, 6), (8, 10), (12, 14), (0, 4), (8, 12), (0, 8)):
            k(f"v_pk_add_f32 {r(G+a,2)}, {r(G+a,2)}, {r(G+b_,2)}")
        rowtab(G, 768, 256.0, 16.0)
        k("v_lshl_add_u32 v10, v3, 4, s36")
        k(f"s_lshl_b32 s37, s{CB8}, 7")
        k("s_lshl_b32 s38, s6, 1")
        k("s_add_u32 s37, s37, s38")
        k("s_mul_i32 s37, s37, 3072")
        k(f"s_add_u32 s37, s37, {2048*var}")
        k("s_add_u32 s38, s37, 3072")
        k("s_waitcnt lgkmcnt(0)")
        rd_tab()
        k("s_waitcnt lgkmcnt(0)")
        for n in range(nz2):
            X = A0 + 16 * n; P = T + 8 * n
            for i in range(8): k(f"v_pk_fma_f32 {r(X+2*i,2)}, {r(X+2*i,2)}, {r(RR+2*i,2)}, {r(NN+2*i,2)}")
            for i in range(8): k(f"v_cvt_pk_bf16_f32 v{P+i}, v{X+2*i}, v{X+2*i+1}")
            k.nop(1)
            for h in range(2):
                k(f"v_permlane32_swap_b32 v{P+4*h}, v{P+4*h+2}")
                k(f"v_permlane32_swap_b32 v{P+4*h+1}, v{P+4*h+3}")
                k(f"buffer_store_dwordx4 {r(P+4*h)}, v1, s[68:71], {'s37' if h == 0 else 's38'} offen offset:{n*1024} {Z_SC}")
        if var == 0: k("s_branch k2_zdone")
    k.label("k2_zdone")
    k(f"s_lshl_b32 s37, s{RB128}, 4")
    k(f"s_add_u32 s37, s37, s{CB16}")
    k("s_lshl_b32 s37, s37, 7")
    k(f"s_add_u32 s37, s37, {F4 - FL}")
    k("s_waitcnt vmcnt(0)")
    k("s_barrier")
    setflag(k, 16, "s37", "k2_f4done")
    if os.environ.get("FINE5"): k.stamp(7)
    from k56 import gen_k56
    gen_k56(k, RB, CB8, W3)
    k.label("k2_loader")
    k.srd(56, 8, 9, C1, 12288)
    k(f"s_lshl_b32 s10, s{W3}, 10")
    k("s_waitcnt vmcnt(0) lgkmcnt(0)")
    k("s_barrier")
    if not (os.environ.get("FINE1") or os.environ.get("FINE2")): k.stamp(4)
    def win(base, n):
        k(f"s_add_u32 m0, s10, {base}")
        for i in range(n):
            k.nop(1)
            k("buffer_load_dwordx4 v1, s[72:75], m0 offen sc1 lds")
            if i < n - 1: k("s_add_u32 m0, m0, 4096")
    k("s_barrier")
    win(143360, 5)
    k("s_barrier")
    win(40960, 15)
    if not (os.environ.get("FINE1") or os.environ.get("FINE2")): k.stamp(5)
    k(f"s_mul_i32 s11, s{CB16}, 384")
    k("s_and_b32 s36, s5, 1")
    k("s_mul_i32 s37, s36, 6144")
    k("s_add_u32 s11, s11, s37")
    k("s_lshl_b32 m0, s36, 10")
    k("s_barrier")
    k("buffer_load_dwordx4 v1, s[56:59], s11 offen sc1 lds")
    k("s_waitcnt vmcnt(0)")
    if not (os.environ.get("FINE1") or os.environ.get("FINE2")): k.stamp(6)
    k("s_barrier")
    k("s_barrier")
    k("s_branch k5_loader")
    k.label("k2_end")
    k("s_endpgm")
    k.label("k2_blk5")
    k("s_lshl_b32 s37, s2, 2")
    k(f"s_add_u32 s37, s37, {FS - FL}")
    k("s_waitcnt vmcnt(0)")
    k("s_barrier")
    setflag(k, 16, "s37", "k2_fsdone", 172)
    k("s_cmp_ge_u32 s5, 4")
    k("s_cbranch_scc1 k2_blk5b")
    def wo_burst(first, n):
        k(f"s_lshl_b32 m0, s{W3}, 10")
        k(f"s_add_u32 m0, m0, {first}")
        for i in range(n):
            k.nop(1)
            k("buffer_load_dwordx4 v1, s[32:35], m0 offen sc1 lds")
            if i < n - 1: k("s_add_u32 m0, m0, 4096")
    wo_burst(0, 13)
    k("s_branch k2_loop")
    k.label("k2_blk5b")
    k.srd(68, 8, 9, 0, WS_END)
    k("v_lshrrev_b32 v176, 4, v1")
    k(f"s_mul_i32 s54, s{CB8}, 10")
    k("v_min_u32 v177, 19, v176")
    k("v_lshrrev_b32 v178, 1, v177")
    k("v_add_u32 v178, s54, v178")
    k("v_and_b32 v177, 1, v177")
    k("v_lshlrev_b32 v177, 7, v177")
    k("v_and_b32 v179, 3, v178")
    k("v_lshl_add_u32 v177, v179, 8, v177")
    k("v_lshrrev_b32 v178, 2, v178")
    k("v_lshl_add_u32 v177, v178, 12, v177")
    k(f"s_mul_i32 s54, s{RB}, 81920")
    k(f"s_lshl_b32 s55, s{W3}, 10")
    k("s_add_u32 s54, s54, s55")
    k(f"s_add_u32 s54, s54, {O}")
    k("buffer_load_dword v172, v177, s[68:71], s54 offen sc1")
    k(f"s_mul_i32 s54, s{W3}, 20")
    k("v_min_u32 v178, 19, v176")
    k("v_add_u32 v178, s54, v178")
    k("v_and_b32 v179, 15, v178")
    k("v_lshlrev_b32 v179, 7, v179")
    k("v_lshrrev_b32 v178, 4, v178")
    k("v_lshl_add_u32 v178, v178, 12, v179")
    k(f"s_mul_i32 s54, s{RB128}, 40")
    k(f"s_mul_i32 s55, s{CB8}, 5")
    k("s_add_u32 s54, s54, s55")
    k("s_lshl_b32 s54, s54, 1")
    k(f"s_add_u32 s54, s54, s{VV}")
    k("s_lshl_b32 s54, s54, 11")
    k(f"s_add_u32 s54, s54, {X1}")
    k("buffer_load_dword v173, v178, s[68:71], s54 offen sc1")
    k(f"s_lshl_b32 s54, s{RB}, 3")
    k(f"s_add_u32 s54, s54, s{CB8}")
    k("s_lshl_b32 s54, s54, 2")
    k(f"s_add_u32 s54, s54, s{W3}")
    k("s_lshl_b32 s54, s54, 7")
    k(f"s_add_u32 s54, s54, {SP2}")
    k("buffer_load_dword v174, off, s[68:71], s54 sc1")
    k(f"s_lshl_b32 s54, s{RB128}, 4")
    k(f"s_add_u32 s54, s54, s{CB16}")
    k("s_lshl_b32 s54, s54, 2")
    k(f"s_add_u32 s54, s54, s{W3}")
    k("s_lshl_b32 s54, s54, 8")
    k(f"s_add_u32 s54, s54, {STP}")
    k("buffer_load_dword v175, off, s[68:71], s54 sc1")
    k("buffer_load_dword v175, off, s[68:71], s54 offset:128 sc1")
    if TZ:
        k(f"s_lshl_b32 s54, s{RB128}, 2")
        k(f"s_add_u32 s54, s54, s{W3}")
        k("s_mul_i32 s55, s54, 24")
        k(f"s_mul_i32 s60, s{CB8}, 3")
        k("s_add_u32 s55, s55, s60")
        k(f"s_add_u32 s55, s55, s{VV}")
        k("s_lshl_b32 s55, s55, 11")
        k(f"s_add_u32 s55, s55, {Z1}")
        k(f"s_lshl_b32 s60, s{VV}, 4")
        k("s_add_u32 s60, s60, 15")
        k("v_min_u32 v177, s60, v176")
        k("v_lshlrev_b32 v177, 7, v177")
        k("buffer_load_dword v172, v177, s[68:71], s55 offen sc1")
        k(f"s_lshl_b32 s55, s{CB8}, 7")
        k("s_lshl_b32 s54, s54, 1")
        k("s_add_u32 s55, s55, s54")
        k("s_mul_i32 s55, s55, 3072")
        k(f"s_lshl_b32 s60, s{VV}, 11")
        k("s_add_u32 s55, s55, s60")
        k(f"s_add_u32 s55, s55, {Z2}")
        k(f"s_lshl_b32 s60, s{VV}, 3")
        k("s_sub_u32 s60, 15, s60")
        k("v_and_b32 v177, 15, v176")
        k("v_min_u32 v177, s60, v177")
        k("v_lshlrev_b32 v177, 7, v177")
        k("v_bfe_u32 v178, v176, 4, 1")
        k("v_mul_u32_u24 v178, 3072, v178")
        k("v_add_u32 v177, v177, v178")
        k("buffer_load_dword v173, v177, s[68:71], s55 offen sc1")
    k("s_branch k2_loop")
    k.label("k2_blk6")
    k.srd(68, 8, 9, WINF, WINF_SZ)
    k("s_mul_i32 s53, s53, 7680")
    k("s_add_u32 s54, s53, 4096")
    for i in range(8 if PF_WIN else 0): k(f"buffer_load_dwordx4 v[172:175], v1, s[68:71], {'s53' if i < 4 else 's54'} offen offset:{(i&3)*1024} sc1")
    k("s_cmp_lt_u32 s5, 4")
    k("s_cbranch_scc1 k2_blk6a")
    wo_burst(53248, 12)
    k("s_branch k2_loop")
    k.label("k2_blk6a")
    k("v_bfe_u32 v176, v0, 4, 2")
    k("v_and_b32 v177, 15, v0")
    k(f"s_lshl_b32 s59, s{RB}, 2")
    k("s_add_u32 s59, s59, s5")
    k("v_mul_u32_u24 v178, 1280, v177")
    k("v_lshl_add_u32 v178, v176, 3, v178")
    k("s_mul_i32 s60, s59, 20480")
    k(f"s_mul_i32 s61, s{CB8}, 160")
    k("s_add_u32 s60, s60, s61")
    k("v_lshlrev_b32 v179, 4, v176")
    k(f"s_mul_i32 s38, s{CB8}, 320")
    k.srd(52, 44, 45, 0, ACT_SZ)
    k.srd(56, 8, 9, MOD + 5120, 2560)
    for j in range(5): k(f"buffer_load_dwordx2 {r(120+2*j,2)}, v178, s[52:55], s60 offen offset:{j*32}")
    for j in range(5): k(f"buffer_load_dwordx4 {r(132+4*j)}, v179, s[56:59], s38 offen offset:{j*64} sc1")
    k("s_cmp_lg_u32 s5, 0")
    k("s_cbranch_scc1 k2_loop")
    k(f"s_movk_i32 s37, {hex(FS - FL)}")
    k(f"buffer_load_dwordx4 v[168:171], v1, s[16:19], s37 offen sc1")
    k("s_branch k2_loop")
    k.label("k2_sideld")
    k("s_lshl_b32 s52, s2, 3")
    k("s_add_u32 s52, s52, s5")
    k("s_lshr_b32 s53, s2, 3")
    k("s_lshl_b32 s53, s53, 3")
    k("s_add_u32 s53, s53, s5")
    k.srd(56, 48, 49, 0, 640 * 3072)
    k.srd(64, 8, 9, MOD + 7680, 5120)
    k("s_mul_i32 s62, s52, 1639")
    k("s_lshr_b32 s62, s62, 16")
    k("s_mul_i32 s63, s62, 40")
    k("s_sub_u32 s63, s52, s63")
    k("s_mul_i32 s68, s63, 49152")
    k("s_lshl_b32 s69, s62, 6")
    k("s_add_u32 s68, s68, s69")
    k("s_cmp_lt_u32 s52, 1920")
    k("s_cselect_b32 s70, 0, 0x40000000")
    k("s_add_u32 s68, s68, s70")
    k("v_mul_u32_u24 v15, 24576, v3")
    k("v_lshl_add_u32 v15, v2, 1, v15")
    for j in range(8):
        k(f"buffer_load_ushort v{136+j}, v15, s[56:59], s68 offen")
        if j < 7: k("s_add_u32 s68, s68, 3072")
    k("s_lshl_b32 s68, s63, 6")
    k("v_lshlrev_b32 v15, 5, v3")
    k(f"buffer_load_dwordx4 {r(144)}, v15, s[64:67], s68 offen sc1")
    k(f"buffer_load_dwordx4 {r(148)}, v15, s[64:67], s68 offen offset:16 sc1")
    k(f"buffer_load_dwordx4 {r(152)}, v15, s[64:67], s68 offen offset:2560 sc1")
    k(f"buffer_load_dwordx4 {r(156)}, v15, s[64:67], s68 offen offset:2576 sc1")
    k("s_cmp_ge_u32 s62, 24")
    k("s_cselect_b32 s68, 24, 0")
    k("s_cselect_b32 s71, 0x310, 0")
    k("s_cselect_b32 s72, 0, 0x542")
    k("s_or_b32 s71, s71, s72")
    k("s_sub_u32 s62, s62, s68")
    k("s_mul_i32 s68, s62, 86")
    k("s_lshr_b32 s68, s68, 8")
    k("s_mul_i32 s69, s68, 3")
    k("s_sub_u32 s69, s62, s69")
    k("s_lshl_b32 s69, s69, 2")
    k("s_lshr_b32 s71, s71, s69")
    k("s_and_b32 s71, s71, 15")
    k("s_mul_i32 s62, s68, 6")
    k("s_add_u32 s62, s62, s71")
    k("s_mul_i32 s68, s62, 86")
    k("s_lshr_b32 s68, s68, 8")
    k("s_mul_i32 s69, s68, 3")
    k("s_sub_u32 s69, s62, s69")
    k("s_mul_i32 s68, s68, 40")
    k("s_add_u32 s68, s68, s63")
    k("s_mul_i32 s68, s68, 3")
    k("s_add_u32 s68, s68, s69")
    k("s_lshl_b32 s68, s68, 10")
    k("s_add_u32 s63, s68, s70")
    k("s_lshl_b32 s62, s62, 7")
    k("s_add_u32 s62, s62, s70")
    k.srd(56, 46, 47, 0, 983040)
    k("s_mul_i32 s69, s52, 2731")
    k("s_lshr_b32 s69, s69, 16")
    k("s_mul_i32 s73, s69, 24")
    k("s_sub_u32 s68, s52, s73")
    k("s_cmp_lt_u32 s52, 960")
    k("s_cselect_b32 s70, 0, 0x40000000")
    k("s_mul_i32 s73, s68, 40960")
    k("s_lshl_b32 s74, s69, 5")
    k("s_add_u32 s73, s73, s74")
    k("s_add_u32 s73, s73, s70")
    k("s_add_u32 s74, s73, 5120")
    k("v_bfe_u32 v15, v0, 4, 2")
    k("v_mul_u32_u24 v15, 10240, v15")
    k("v_and_b32 v160, 15, v0")
    k("v_lshl_add_u32 v15, v160, 1, v15")
    for j in range(8):
        k(f"buffer_load_ushort v{160+j}, v15, s[56:59], {'s73' if j < 4 else 's74'} offen offset:{(j&3)*1280}")
    k("s_mul_i32 s73, s69, 52")
    k("s_lshr_b32 s73, s73, 8")
    k("s_mul_i32 s74, s73, 5")
    k("s_sub_u32 s74, s69, s74")
    k("s_mul_i32 s73, s73, 24")
    k("s_add_u32 s73, s73, s68")
    k("s_mul_i32 s73, s73, 5")
    k("s_add_u32 s73, s73, s74")
    k("s_lshl_b32 s73, s73, 10")
    k("s_add_u32 s60, s73, s70")
    k.srd(56, 50, 51, 0, WSPF_SZ)
    k("s_lshl_b32 s54, s3, 3")
    k("s_lshr_b32 s55, s53, 5")
    k("s_add_u32 s54, s54, s55")
    k("s_and_b32 s55, s53, 31")
    k("s_lshl_b32 s68, s54, 17")
    k("s_lshl_b32 s69, s55, 7")
    k("s_add_u32 s68, s68, s69")
    k("s_lshr_b32 s61, s54, 1")
    k("s_lshl_b32 s61, s61, 18")
    k("s_lshl_b32 s69, s55, 13")
    k("s_add_u32 s61, s61, s69")
    k("s_and_b32 s69, s54, 1")
    k("s_lshl_b32 s69, s69, 10")
    k("s_add_u32 s61, s61, s69")
    k("v_lshlrev_b32 v15, 12, v2")
    k("v_lshl_add_u32 v15, v3, 4, v15")
    for q in range(4):
        k(f"buffer_load_dwordx4 {r(120+4*q)}, v15, s[56:59], s68 offen offset:{q*32}")
    if TW:
        k.srd(56, 8, 9, 0, WS_END)
        k("v_lshrrev_b32 v15, 4, v1")
        k("v_and_b32 v168, 7, v15")
        k("v_lshlrev_b32 v168, 7, v168")
        k("v_bfe_u32 v15, v15, 3, 2")
        k("v_lshl_add_u32 v15, v15, 11, v168")
        k(f"s_add_u32 s68, s61, {WSPF}")
        k("buffer_load_dword v169, v15, s[56:59], s68 offen sc1")
        k(f"s_add_u32 s68, s63, {WINF}")
        k("buffer_load_dword v169, v168, s[56:59], s68 offen sc1")
        k(f"s_add_u32 s68, s60, {WOUTF}")
        k("buffer_load_dword v169, v168, s[56:59], s68 offen sc1")
    k("s_branch k2_cont")
    k.label("k2_side")
    k.srd(64, 8, 9, WSPF, WSPF_SZ)
    k.srd(68, 8, 9, WINF, WINF_SZ)
    k.srd(72, 8, 9, C1, 12288)
    k.srd(56, 8, 9, WOUTF, WOUTF_SZ)
    k("s_add_u32 s54, s61, 4096")
    k("s_waitcnt vmcnt(0)")
    for j in range(4):
        k(f"v_lshl_or_b32 v{160+j}, v{161+2*j}, 16, v{160+2*j}")
    k(f"buffer_store_dwordx4 {r(160)}, v1, s[56:59], s60 offen {SIDE_SC}")
    for j in range(8): k(f"v_lshlrev_b32 v{136+j}, 16, v{136+j}")
    k("v_mul_f32 v165, v136, v144")
    for j in range(1, 8): k(f"v_fmac_f32 v165, v{136+j}, v{144+j}")
    for j in range(8): k(f"v_mul_f32 v{136+j}, v{136+j}, v{152+j}")
    for j in range(4): k(f"v_cvt_pk_bf16_f32 v{144+j}, v{136+2*j}, v{137+2*j}")
    k(f"buffer_store_dwordx4 {r(144)}, v1, s[68:71], s63 offen {SIDE_SC}")
    for j in range(4):
        k(f"v_lshlrev_b32 v{136+2*j}, 16, v{144+j}")
        k(f"v_and_b32 v{137+2*j}, 0xffff0000, v{144+j}")
    for a, b in ((136, 137), (138, 139), (140, 141), (142, 143), (136, 138), (140, 142)):
        k(f"v_add_f32 v{a}, v{a}, v{b}")
    k("v_add_f32 v164, v136, v140")
    k("v_mul_u32_u24 v166, 6144, v3")
    k("v_lshl_add_u32 v166, v2, 2, v166")
    k("v_permlane32_swap_b32 v164, v165")
    k("v_add_f32 v164, v164, v165")
    k("buffer_atomic_add_f32 v164, v166, s[72:75], s62 offen")
    for q in range(4 if not os.environ.get("NOWSP") else 0):
        k(f"buffer_store_dwordx4 {r(120+4*q)}, v1, s[64:67], {'s61' if q < 2 else 's54'} offen offset:{(q&1)*2048} {SIDE_SC}")
    k("s_branch k2_cont")
    k.label("k2_slow")
    T = S1
    k(f"v_subrev_u32 v{AK2}, 143360, v{AK2}")
    k(f"v_subrev_u32 v{AV}, 143360, v{AV}")
    k(f"v_mov_b32 v{T}, 0xff800000")
    k("s_mov_b32 s42, 0")
    def ldK():
        k(f"buffer_load_dwordx4 {r(KF1[0])}, v1, s[20:23], s42 offen sc1")
        k(f"buffer_load_dwordx2 {r(KF2[0],2)}, v{AK2}, s[20:23], s42 offen sc1")
    k.label("k2_slow1")
    ldK()
    k("s_waitcnt vmcnt(0)")
    k(f"v_mfma_f32_32x32x16_bf16 {r(S0,16)}, {r(KF1[0])}, {r(QA)}, 0")
    k(f"v_mfma_f32_32x32x16_bf16 {r(S0,16)}, {r(KF2[0])}, {r(QB)}, {r(S0,16)}")
    k.nop(12)
    for i in range(8): k(f"v_max3_f32 v{T}, v{T}, v{S0+2*i}, v{S0+2*i+1}")
    k("s_add_u32 s42, s42, 2560")
    k("s_cmp_lt_u32 s42, 163840")
    k("s_cbranch_scc1 k2_slow1")
    k(f"v_mov_b32 v{T+1}, v{T}")
    k("s_mov_b32 s42, 0")
    k.nop(1)
    k(f"v_permlane32_swap_b32 v{T}, v{T+1}")
    k(f"v_max_f32 v{T}, v{T}, v{T+1}")
    for i in range(16): k(f"v_sub_f32 v{CM+i}, 0, v{T}")
    for i in range(16): k(f"v_mov_b32 v{OO+i}, 0")
    k.label("k2_slow2")
    ldK()
    k("s_mov_b64 exec, s[40:41]")
    k(f"buffer_load_dwordx4 {r(VF[0])}, v{AV}, s[20:23], s42 offen sc1")
    k(f"buffer_load_dwordx4 {r(VF[0]+4)}, v{AV}, s[20:23], s42 offen offset:640 sc1")
    k("s_mov_b64 exec, -1")
    k("s_waitcnt vmcnt(0)")
    k(f"v_mfma_f32_32x32x16_bf16 {r(S0,16)}, {r(KF1[0])}, {r(QA)}, {r(CM,16)}")
    k(f"v_mfma_f32_32x32x16_bf16 {r(S0,16)}, {r(KF2[0])}, {r(QB)}, {r(S0,16)}")
    k.nop(12)
    for i in range(16): k(f"v_exp_f32 v{S0+i}, v{S0+i}")
    k.nop(1)
    for i in range(8): k(f"v_cvt_pk_bf16_f32 v{PP+i}, v{S0+2*i}, v{S0+2*i+1}")
    k.nop(2)
    k(f"v_mfma_f32_32x32x16_bf16 {r(OO,16)}, {r(VF[0])}, {r(PP)}, {r(OO,16)}")
    k(f"v_mfma_f32_32x32x16_bf16 {r(OO,16)}, {r(VF[0]+4)}, {r(PP+4)}, {r(OO,16)}")
    k("s_add_u32 s42, s42, 2560")
    k("s_cmp_lt_u32 s42, 163840")
    k("s_cbranch_scc1 k2_slow2")
    k.nop(12)
    k("s_branch k2_epi")
    return k
```

```python
from asmlib import Kern
from layout import *
from k0 import hexf
from k234 import poll, poll_missing, hint, stores, setflag, x1_addr, gemm80_resident, resid, r
import os

SLOT = 20480; BLK = 5120
K56_LDS = 163840
A0 = 16; ZB = 64; Z1R = 96; BSP = 108
KIDX = int(os.environ.get('KIDX', '0'))
THR = int(os.environ.get('THR', '5'))
TO = int(os.environ.get('TO', '0'))
PROG = int(os.environ.get('PROG', '1'))
ROTW = int(os.environ.get("K5ROTW", "0"))

def gen_k56(k, RB, CB8, W3):
    k.label("k5_compute")
    k(f"s_mov_b32 s3, s{RB}")
    k(f"s_mov_b32 s4, s{CB8}")
    k("v_and_b32 v2, 31, v0")
    k("v_bfe_u32 v3, v0, 5, 1")
    k("s_and_b32 s6, s5, 1")
    k("s_lshl_b32 s34, s3, 1")
    k("s_add_u32 s34, s34, s6")
    k("s_lshr_b32 s33, s5, 1")
    k("s_mul_i32 s36, s34, 24")
    k("s_mul_i32 s37, s4, 3")
    k("s_add_u32 s36, s36, s37")
    k("s_lshl_b32 s36, s36, 1")
    k("s_add_u32 s36, s36, s33")
    k("s_lshl_b32 s36, s36, 10")
    k("s_add_u32 s37, s36, 4096")
    k("s_lshl_b32 s38, s34, 6")
    k("v_lshlrev_b32 v5, 1, v2")
    k(f"s_mul_i32 s39, s33, {2*BLK}")
    k("v_add_u32 v6, s39, v1")
    k(f"v_add_u32 v7, {2*SLOT}, v6")
    k("s_lshl_b32 s39, s6, 10")
    k("s_add_u32 s39, s39, 3072")
    k("v_add_u32 v8, s39, v6")
    k(f"v_add_u32 v9, {2*SLOT}, v8")
    for i in range(48): k(f"v_mov_b32 v{A0+i}, 0")
    k.srd(52, 8, 9, Z1, Z_SZ)
    k.srd(60, 44, 45, 0, 4096)
    def reads(s, q, par):
        sl = s & 3; o = (sl & 1) * SLOT + q * BLK; b = ZB + 16 * par
        for n in range(3): k(f"ds_read_b128 {r(b+4*n)}, {'v6' if sl < 2 else 'v7'} offset:{o + n*1024}")
        k(f"ds_read_b128 {r(b+12)}, {'v8' if sl < 2 else 'v9'} offset:{o}")
    k("s_barrier")
    k("s_barrier")
    if os.environ.get("FINE5"): k.stamp(2)
    reads(0, 0, 0)
    k(f"buffer_load_dwordx4 {r(Z1R)}, v1, s[52:55], s36 offen sc1")
    k(f"buffer_load_dwordx4 {r(Z1R+4)}, v1, s[52:55], s36 offen offset:2048 sc1")
    k(f"buffer_load_dwordx4 {r(Z1R+8)}, v1, s[52:55], s37 offen sc1")
    k(f"buffer_load_ushort v{BSP}, v5, s[60:63], s38 offen")
    k("v_bfe_u32 v204, v0, 4, 2")
    k("v_lshlrev_b32 v207, 4, v204")
    k("s_mul_i32 s41, s4, 320")
    k.srd(56, 8, 9, MOD + 12800, 2560)
    for j in range(5): k(f"buffer_load_dwordx4 {r(184+4*j)}, v207, s[56:59], s41 offen offset:{j*64} sc1")
    k("s_mov_b32 s43, 0")
    k.lines.append(".p2align 6")
    k.label("k5_loop")
    for s in range(4):
        for q in range(2):
            b = ZB + 16 * q
            k("s_waitcnt lgkmcnt(0)")
            if q == 1:
                if s == 3:
                    k("s_add_u32 s43, s43, 1")
                    k("s_cmp_eq_u32 s43, 8")
                    k("s_cbranch_scc1 k5_last")
                k("s_barrier")
            for n in range(3):
                k(f"v_mfma_f32_32x32x16_bf16 {r(A0+16*n,16)}, {r(b+4*n)}, {r(b+12)}, {r(A0+16*n,16)}")
                if n == 0:
                    if q == 1: reads(s + 1, 0, 0)
                    else: reads(s, 1, 1)
    k("s_branch k5_loop")
    k.label("k5_last")
    b = ZB + 16
    for n in range(3):
        k(f"v_mfma_f32_32x32x16_bf16 {r(A0+16*n,16)}, {r(b+4*n)}, {r(b+12)}, {r(A0+16*n,16)}")
    if os.environ.get('FINE5'): k.stamp(3)
    k("s_barrier")
    k("s_mul_i32 s36, s5, 6144")
    k("s_add_u32 s36, s36, 40960")
    k("v_add_u32 v10, s36, v1")
    k("s_xor_b32 s36, s5, 2")
    k("s_mul_i32 s36, s36, 6144")
    k("s_add_u32 s36, s36, 40960")
    k("v_add_u32 v11, s36, v1")
    k.srd(52, 8, 9, Y, Z_SZ)
    k("s_mul_i32 s7, s3, 98304")
    k("s_mul_i32 s37, s4, 12288")
    k("s_add_u32 s36, s7, s37")
    k("s_lshl_b32 s37, s6, 11")
    k("s_add_u32 s36, s36, s37")
    k("s_lshl_b32 s37, s33, 9")
    k("s_add_u32 s36, s36, s37")
    k("s_add_u32 s37, s36, 4096")
    k("s_add_u32 s38, s36, 8192")
    k("v_lshrrev_b32 v12, 4, v2")
    k("v_lshlrev_b32 v12, 10, v12")
    k("v_lshl_add_u32 v12, v3, 8, v12")
    k("v_and_b32 v13, 15, v0")
    k("v_lshl_add_u32 v12, v13, 4, v12")
    k("s_waitcnt vmcnt(0)")
    k(f"v_lshlrev_b32 v14, 16, v{BSP}")
    k("s_cmp_eq_u32 s33, 0")
    k("s_cbranch_scc0 k5_e1")
    for kh in range(2):
        if kh == 1: k.label("k5_e1")
        keep = 8 * kh; send = 8 * (1 - kh)
        for n in range(3):
            k(f"ds_write_b128 v10, {r(A0+16*n+send)} offset:{n*2048}")
            k(f"ds_write_b128 v10, {r(A0+16*n+send+4)} offset:{n*2048+1024}")
        U = ZB
        for i in range(12):
            k(f"v_lshlrev_b32 v{U+2*i}, 16, v{Z1R+i}")
            k(f"v_and_b32 v{U+2*i+1}, 0xffff0000, v{Z1R+i}")
        for n in range(3):
            for i in range(4):
                a = A0 + 16 * n + keep + 2 * i
                k(f"v_pk_add_f32 {r(a,2)}, {r(a,2)}, v[14:15] op_sel_hi:[1,0]")
        k("s_waitcnt lgkmcnt(0)")
        k("s_barrier")
        for n in range(3):
            k(f"ds_read_b128 {r(A0+16*n+send)}, v11 offset:{n*2048}")
            k(f"ds_read_b128 {r(A0+16*n+send+4)}, v11 offset:{n*2048+1024}")
        for n in range(3):
            k(f"s_waitcnt lgkmcnt({4-2*n})")
            for i in range(4):
                a = A0 + 16 * n + keep + 2 * i
                k(f"v_pk_add_f32 {r(a,2)}, {r(a,2)}, {r(A0+16*n+send+2*i,2)}")
            for i in range(4):
                a = A0 + 16 * n + keep + 2 * i
                k(f"v_pk_mul_f32 {r(a,2)}, {r(a,2)}, {r(U+8*n+2*i,2)}")
            P = Z1R + 4 * n
            for i in range(4):
                a = A0 + 16 * n + keep + 2 * i
                k(f"v_cvt_pk_bf16_f32 v{P+i}, v{a}, v{a+1}")
            k.nop(2)
            k(f"v_permlane32_swap_b32 v{P}, v{P+2}")
            k(f"v_permlane32_swap_b32 v{P+1}, v{P+3}")
            stores(k, [f"buffer_store_dwordx4 {r(P)}, v12, s[52:55], s{36+n} offen"])
        if kh == 0: k("s_branch k5_p6")
    k.label("k5_p6")
    ACT, A6, WB3, XR_, GB_R, AD = 16, 112, (132, 152, 212), 232, 184, 204
    WB = 132
    k("s_lshl_b32 s36, s3, 10")
    k(f"s_add_u32 s36, s36, {F5 - FL}")
    k("s_lshl_b32 s37, s4, 7")
    k("s_add_u32 s37, s37, s36")
    k("s_waitcnt vmcnt(0)")
    k("s_barrier")
    setflag(k, 16, "s37", "k5_f5done", local=True)
    if os.environ.get('FINE5'): k.stamp(4)
    k("v_bfe_u32 v3, v0, 4, 2")
    k("v_and_b32 v5, 15, v0")
    k("s_lshl_b32 s6, s3, 2")
    k("s_add_u32 s6, s6, s5")
    k("s_lshl_b32 s10, s5, 10")
    k("s_add_u32 s7, s7, s10")
    k.srd(60, 46, 47, 0, ACT_SZ)
    k("s_mul_i32 s39, s5, 2816")
    k("s_add_u32 s39, s39, 69632")
    k("v_mul_u32_u24 v6, 176, v5")
    k("v_lshl_add_u32 v6, v3, 3, v6")
    k(f"v_add_u32 v{AD}, s39, v6")
    for i in range(3):
        k("v_lshrrev_b32 v6, 4, v1")
        k(f"v_add_u32 v6, {64*i}, v6")
        k("v_mul_u32_u24 v7, 205, v6")
        k("v_lshrrev_b32 v7, 11, v7")
        k("v_mul_u32_u24 v2, 10, v7")
        k("v_sub_u32 v6, v6, v2")
        k("v_lshlrev_b32 v6, 4, v6")
        k("v_mul_u32_u24 v2, 176, v7")
        k(f"v_add3_u32 v{AD+1+i}, v2, v6, s39")
        k("v_mul_u32_u24 v2, 1280, v7")
        k(f"v_add_u32 v{AD+4+i}, v6, v2")
        if i == 2:
            k("v_lshrrev_b32 v7, 4, v7")
            k(f"v_lshl_add_u32 v{AD+4+i}, v7, 30, v{AD+4+i}")
    k("s_mul_i32 s40, s6, 20480")
    k("s_mul_i32 s41, s4, 160")
    k("s_add_u32 s40, s40, s41")
    def w6():
        poll(k, "k5_p5", 16, "s36", 8, 10, 11)
        if os.environ.get('FINE5'): k.stamp(5)
    gemm80_resident(k, 24, list(range(24)), ACT, A6, WB3, 52, 7, lambda ks: ks * 5120 + (40960 if ks >= 8 else 0), w6, 4)
    if os.environ.get('FINE5'): k.stamp(6)
    k.nop(4)
    resid(k, A6, XR_, GB_R, WB)
    for j in range(5): k(f"ds_write_b64 v{AD}, {r(XR_+2*j,2)} offset:{j*32}")
    k("s_waitcnt lgkmcnt(0)")
    for i in range(3): k(f"ds_read_b128 {r(WB+4*i)}, v{AD+1+i}")
    for i in range(3):
        k(f"s_waitcnt lgkmcnt({2-i})")
        k(f"buffer_store_dwordx4 {r(WB+4*i)}, v{AD+4+i}, s[60:63], s40 offen {os.environ.get('OUT_SC', '')}")
    k("s_or_b32 s36, s2, s5")
    k("s_cmp_lg_u32 s36, 0")
    k("s_cbranch_scc1 k5_noep")
    k.srd(56, 8, 9, EPOCH, 4)
    k("v_mov_b32 v10, s31")
    k("buffer_store_dword v10, off, s[56:59], 0")
    k.label("k5_noep")
    k.endpgm(KIDX)
    k.label("k5_loader")
    k(f"s_mov_b32 s3, s{RB}")
    k(f"s_mov_b32 s4, s{CB8}")
    k(f"s_mov_b32 s5, s{W3}")
    k("s_mul_i32 s34, s4, 393216")
    k(f"s_add_u32 s34, s34, {Z2}")
    k("s_lshl_b32 s35, s3, 18")
    k(f"s_add_u32 s35, s35, {WSPF}")
    k(f"s_mul_i32 s11, s5, {BLK}")
    k("s_mul_i32 s33, s4, 122880")
    k(f"s_add_u32 s33, s33, {WOUTF}")
    k("s_lshl_b32 s10, s5, 10")
    k.srd(52, 8, 9, "s34", 393216)
    k.srd(56, 8, 9, "s35", 262144)
    k.srd(60, 8, 9, "s33", 122880)
    k("s_and_b32 s45, s3, 28")
    if not PROG: k("s_mov_b32 s45, 0")
    k("s_mul_i32 s37, s5, 3072")
    k("s_mul_i32 s46, s45, 12288")
    k("s_add_u32 s37, s37, s46")
    k("s_lshl_b32 s36, s5, 11")
    k("s_lshl_b32 s46, s45, 13")
    k("s_add_u32 s36, s36, s46")
    k("s_lshl_b32 s46, 15, s45")
    if not PROG: k("s_mov_b32 s46, -1")
    k("s_mov_b32 s45, -1")
    def need():
        lab = k.newlabel("nd")
        k("s_cmp_lg_u32 s5, 0")
        k(f"s_cbranch_scc1 {lab}_x")
        k("s_cmp_eq_u32 s45, 0")
        k(f"s_cbranch_scc1 {lab}_x")
        k("s_mov_b32 s38, 0")
        k.label(lab)
        k("v_cmp_eq_u32 vcc, 0, v13")
        k("s_add_u32 s38, s38, 1")
        k("s_mov_b32 s45, vcc_lo")
        k("s_cmp_eq_u32 s45, 0")
        k(f"s_cbranch_scc1 {lab}_x")
        k("s_mov_b32 exec_lo, s45")
        k("s_mov_b32 exec_hi, 0")
        k("buffer_load_dword v13, v12, s[16:19], s39 offen sc1")
        k("s_mov_b64 exec, -1")
        k("s_and_b32 s47, s45, s46")
        k(f"s_cbranch_scc0 {lab}_ok")
        k("s_waitcnt vmcnt(0)")
        k("s_cmp_lt_u32 s38, 200000")
        k(f"s_cbranch_scc1 {lab}")
        k.label(lab + "_ok")
        k("s_lshr_b32 s47, s46, 30")
        k("s_lshl_b32 s46, s46, 2")
        k("s_or_b32 s46, s46, s47")
        k.label(lab + "_x")
    def iz(sl):
        k(f"s_add_u32 m0, s11, {sl*SLOT}")
        k.nop(1)
        for j in range(3): k(f"buffer_load_dwordx4 v1, s[52:55], s37 offen offset:{j*1024} sc1 lds")
        k("s_add_u32 s37, s37, 12288")
        k("s_cmp_ge_u32 s37, 393216")
        k("s_cselect_b32 s47, 393216, 0")
        k("s_sub_u32 s37, s37, s47")
    def iw(sl):
        k(f"s_add_u32 m0, s11, {sl*SLOT+3072}")
        k.nop(1)
        for j in range(2): k(f"buffer_load_dwordx4 v1, s[56:59], s36 offen offset:{j*1024} sc1 lds")
        k("s_add_u32 s36, s36, 8192")
        k("s_and_b32 s36, s36, 0x3ffff")
    def issue(sl): iz(sl); iw(sl)
    iw(0); iw(1); iw(2)
    k("s_add_u32 s44, s10, 40960")
    for i in range(20):
        k("s_add_u32 m0, s44, 40960")
        k.nop(1)
        k("buffer_load_dwordx4 v1, s[60:63], s44 offen sc1 lds")
        k("s_add_u32 s44, s44, 4096")
        if THR: k(f"s_waitcnt vmcnt({THR})")
    k("v_and_b32 v12, 1, v0")
    k("v_bfe_u32 v13, v0, 1, 4")
    k("v_lshlrev_b32 v12, 7, v12")
    k("v_lshl_add_u32 v12, v13, 11, v12")
    k("v_mov_b32 v13, 0")
    k("s_lshl_b32 s39, s4, 8")
    k(f"s_add_u32 s39, s39, {F4 - FL}")
    k("s_barrier")
    need()
    k("s_barrier")
    if os.environ.get('FINE5'): k.stamp(2)
    iz(0); iz(1); iz(2)
    for s in range(4):
        if s & 1: need()
        k(f"s_waitcnt vmcnt({(6, 8, 10, 10)[s]})")
        k("s_barrier")
        issue((s + 3) & 3)
    k("s_mov_b32 s42, 0")
    k.lines.append(".p2align 6")
    k.label("k5_lloop")
    for s in range(4):
        if s & 1: need()
        k("s_waitcnt vmcnt(10)")
        k("s_barrier")
        issue((s + 3) & 3)
    k("s_add_u32 s42, s42, 1")
    k("s_cmp_lt_u32 s42, 6")
    k("s_cbranch_scc1 k5_lloop")
    def low(base, n):
        k(f"s_add_u32 m0, s10, {base}")
        for i in range(n):
            k.nop(1)
            k("buffer_load_dwordx4 v1, s[60:63], m0 offen sc1 lds")
            if i < n - 1: k("s_add_u32 m0, m0, 4096")
    k("s_waitcnt vmcnt(10)")
    k("s_barrier")
    issue(3)
    k.srd(64, 8, 9, Y, Z_SZ)
    k("s_mul_i32 s38, s3, 98304")
    k("s_mul_i32 s39, s4, 12288")
    k("s_add_u32 s38, s38, s39")
    k("s_mul_i32 s39, s5, 3072")
    k("s_add_u32 s38, s38, s39")
    k("v_lshrrev_b32 v10, 4, v1")
    k("v_min_u32 v10, 23, v10")
    k("v_lshlrev_b32 v10, 7, v10")
    k("buffer_load_dword v11, v10, s[64:67], s38 offen sc1")
    if TO:
        k.srd(64, 46, 47, 0, ACT_SZ)
        k("s_lshl_b32 s38, s3, 2")
        k("s_add_u32 s38, s38, s5")
        k("s_mul_i32 s38, s38, 20480")
        k("s_mul_i32 s39, s4, 160")
        k("s_add_u32 s38, s38, s39")
        k("v_bfe_u32 v10, v1, 6, 4")
        k("v_mul_u32_u24 v10, 1280, v10")
        k("v_bfe_u32 v12, v1, 4, 2")
        k("v_min_u32 v12, 2, v12")
        k("v_mul_u32_u24 v12, 78, v12")
        k("v_and_b32 v12, 0xfc, v12")
        k("v_add_u32 v10, v10, v12")
        k("buffer_load_dword v11, v10, s[64:67], s38 offen sc1")
    k("s_waitcnt vmcnt(10)")
    k("s_barrier")
    low(0, 5)
    k("s_waitcnt vmcnt(10)")
    k("s_barrier")
    low(20480, 5)
    k("s_waitcnt vmcnt(10)")
    k("s_barrier")
    k("s_barrier")
    k("s_barrier")
    k("s_waitcnt vmcnt(0)")
    k("s_barrier")
    if os.environ.get("WBL2"):
        k("s_lshr_b32 s36, s2, 3")
        k("s_or_b32 s36, s36, s5")
        k(f"s_and_b32 s36, s36, {os.environ['WBL2']}")
        k("s_cmp_lg_u32 s36, 0")
        k("s_cbranch_scc1 k5_nowb")
        k("s_sleep 16")
        k("buffer_wbl2 sc1")
        k("s_waitcnt vmcnt(0)")
        k.label("k5_nowb")
    k.endpgm(KIDX)
```
